```python
import torch

def _softmax(x, axis=-1):
    return torch.softmax(x, dim=axis)
def _gelu(x):
    return torch.nn.functional.gelu(x, approximate="tanh")
def _silu(x):
    return torch.nn.functional.silu(x)
def _sigmoid(x):
    return torch.sigmoid(x)
def _layernorm(x, axis=-1, eps=1e-5):
    m = x.mean(dim=axis, keepdim=True)
    v = x.var(dim=axis, keepdim=True, unbiased=False)
    return (x - m) / torch.sqrt(v + eps)
def _scatter_add(tgt, idx, src, axis=0):
    return tgt.clone().index_add_(axis, idx, src)
def _segment_sum(src, seg, n):
    out = torch.zeros((n,) + src.shape[1:], dtype=src.dtype)
    return out.index_add_(0, seg, src)
def _pad(x, pw):
    flat = tuple(v for pair in reversed(pw) for v in pair)
    return torch.nn.functional.pad(x, flat)

kernel_name = 'gated_mix__linear_kernel_hedgehog__softmax_full_mha__prompt'

def setup_inputs():

    _w = (lambda a: (lambda t: t.to(torch.bfloat16) if t.is_floating_point() else t)(torch.as_tensor(a)))
    def _A_setup():
        B, S, D, H = 1, 2048, 512, 32
        Dh = D // H
        return {
            "x": _w((lambda *s: torch.randn(*s, dtype=torch.bfloat16) * 0.05)(B, S, D)),
            "wqkv": _w((lambda *s: torch.randn(*s, dtype=torch.bfloat16) * 3.2)(D, 3 * D)),
            "w_phi": _w((lambda *s: torch.randn(*s, dtype=torch.bfloat16) * 3.2)(H, Dh, Dh) * (Dh ** -0.5)),
            "wo": _w((lambda *s: torch.randn(*s, dtype=torch.bfloat16) * 0.05)(D, D)),
        }
    _A_in = _A_setup()

    def _B_setup():
        B, S, D = 1, 2048, 512
        return {
            "x": _w((lambda *s: torch.randn(*s, dtype=torch.bfloat16) * 0.05)(B, S, D)),
            "wqkv": _w((lambda *s: torch.randn(*s, dtype=torch.bfloat16) * 1.6)(D, 3 * D)),
            "wo": _w((lambda *s: torch.randn(*s, dtype=torch.bfloat16) * 0.05)(D, D)),
        }
    _B_in = _B_setup()

    return {
        "A_x": _A_in["x"],
        "A_wqkv": _A_in["wqkv"],
        "A_w_phi": _A_in["w_phi"],
        "A_wo": _A_in["wo"],
        "B_x": _B_in["x"],
        "B_wqkv": _B_in["wqkv"],
        "B_wo": _B_in["wo"],
        "gate_w": _w((lambda *s: torch.randn(*s, dtype=torch.bfloat16) * 0.05)(512) * 16.0),
    }

def reference(A_x, A_wqkv, A_w_phi, A_wo, B_x, B_wqkv, B_wo, gate_w):
    def _A_ref(x, wqkv, w_phi, wo):
        B, S, D = x.shape
        H = 32; Dh = D // H
        qkv = (lambda x, *d: x.permute(*d))((x @ wqkv).reshape(B, S, 3, H, Dh), 2, 0, 3, 1, 4)
        q, k, v = qkv[0], qkv[1], qkv[2]
        pq = torch.einsum("bhsd,hdf->bhsf", q, w_phi)
        pk = torch.einsum("bhsd,hdf->bhsf", k, w_phi)
        phi_q = torch.concatenate([_softmax(pq, axis=-1), _softmax(-pq, axis=-1)], axis=-1)
        phi_k = torch.concatenate([_softmax(pk, axis=-1), _softmax(-pk, axis=-1)], axis=-1)
        kv = torch.einsum("bhsf,bhsd->bhfd", phi_k, v)
        z  = torch.einsum("bhsf->bhf", phi_k)
        num = torch.einsum("bhqf,bhfd->bhqd", phi_q, kv)
        den = torch.einsum("bhqf,bhf->bhq", phi_q, z)[..., None] + 1e-6
        o = num / den
        return (lambda x, *d: x.permute(*d))(o, 0, 2, 1, 3).reshape(B, S, D) @ wo

    def _B_ref(x, wqkv, wo):
        B, S, D = x.shape
        H = 32; Dh = D // H
        qkv = (lambda x, *d: x.permute(*d))((x @ wqkv).reshape(B, S, 3, H, Dh), 2, 0, 3, 1, 4)
        q, k, v = qkv[0], qkv[1], qkv[2]
        scale = Dh ** -0.5
        scores = torch.einsum("bhqd,bhkd->bhqk", q, k) * scale
        p = _softmax(scores, axis=-1)
        o = torch.einsum("bhqk,bhkd->bhqd", p, v)
        return (lambda x, *d: x.permute(*d))(o, 0, 2, 1, 3).reshape(B, S, D) @ wo

    x = A_x
    g = _sigmoid((x * gate_w).sum(-1, keepdims=True))
    a = _A_ref(x, A_wqkv, A_w_phi, A_wo)
    b = _B_ref(x, B_wqkv, B_wo)
    return g * a + (1 - g) * b
```

```python
import sys

NAME = "gated_mix__linear_kernel_hedgehog__softmax_full_mha__prompt"

MB = 1 << 20
WS_QB = 0
WS_KVB = 2 * MB
WS_PHIQ = 6 * MB
WS_KVP = 10 * MB
WS_O = 12 * MB
WS_G = 16 * MB
WS_SIZE = 17 * MB

LOG2E = 1.4426950408889634


def f32bits(x):
    import struct
    return struct.unpack("<I", struct.pack("<f", x))[0]


class Asm:
    def __init__(self):
        self.lines = []

    def __call__(self, s):
        for l in s.strip("\n").split("\n"):
            self.lines.append("    " + l.strip())

    def label(self, l):
        self.lines.append(l + ":")

    def raw(self, s):
        self.lines.append(s)

    def text(self):
        return "\n".join(self.lines) + "\n"


def vr(b, n=1):
    return f"v{b}" if n == 1 else f"v[{b}:{b+n-1}]"


def sr(b, n=1):
    return f"s{b}" if n == 1 else f"s[{b}:{b+n-1}]"


def mfma(a, d, A, B, C):
    c = C if isinstance(C, str) else vr(C, 16)
    a(f"v_mfma_f32_32x32x16_bf16 {vr(d,16)}, {vr(A,4)}, {vr(B,4)}, {c}")


def srd(a, d, ptr, size):
    a(f"s_mov_b32 s{d}, s{ptr}")
    a(f"s_mov_b32 s{d+1}, s{ptr+1}")
    a(f"s_mov_b32 s{d+2}, {size}")
    a(f"s_mov_b32 s{d+3}, 0x00020000")


def kernel_begin(a, name):
    a.raw(f".globl {name}")
    a.raw(".p2align 8")
    a.raw(f".type {name},@function")
    a.label(name)


def kd(name, vgpr, sgpr):
    acc = (vgpr + 3) // 4 * 4
    return f""".p2align 6
.amdhsa_kernel {name}
  .amdhsa_next_free_vgpr {vgpr}
  .amdhsa_next_free_sgpr {sgpr}
  .amdhsa_accum_offset {acc}
  .amdhsa_group_segment_fixed_size 0
  .amdhsa_kernarg_size 88
  .amdhsa_user_sgpr_count 2
  .amdhsa_user_sgpr_kernarg_segment_ptr 1
  .amdhsa_system_sgpr_workgroup_id_x 1
.end_amdhsa_kernel
"""


def cross_half(a, op, x, t):
    a(f"v_mov_b32 v{t}, v{x}")
    a("s_nop 1")
    a(f"v_permlane32_swap_b32 v{x}, v{t}")
    a("s_nop 1")
    a(f"{op} v{x}, v{x}, v{t}")


def gen_k1(a):
    kn = "qkv_kernel"
    kernel_begin(a, kn)
    STAGE = 40960
    SX, SWA, SWB, SWS, SPHI, SGW = 8, 12, 16, 20, 24, 28
    a("s_cmp_ge_u32 s2, 256")
    a("s_cbranch_scc1 K1_end")
    a("s_load_dwordx4 s[36:39], s[0:1], 0")
    a("s_load_dwordx2 s[40:41], s[0:1], 16")
    a("s_load_dwordx2 s[42:43], s[0:1], 40")
    a("s_load_dwordx2 s[44:45], s[0:1], 56")
    a("s_load_dwordx2 s[46:47], s[0:1], 80")
    a("v_lshrrev_b32 v1, 6, v0")
    a("v_and_b32 v0, 63, v0")
    a("v_readfirstlane_b32 s32, v1")
    a("s_and_b32 s3, s2, 3")
    a("s_lshl_b32 s33, s3, 2")
    a("s_lshr_b32 s3, s2, 3")
    a("s_and_b32 s4, s3, 3")
    a("s_add_u32 s33, s33, s4")
    a("s_lshr_b32 s34, s3, 2")
    a("s_and_b32 s4, s2, 4")
    a("s_lshl_b32 s4, s4, 1")
    a("s_add_u32 s34, s34, s4")
    a("s_waitcnt lgkmcnt(0)")
    srd(a, SX, 36, 2 * MB)
    srd(a, SWA, 38, 512 * 1536 * 2)
    srd(a, SWB, 42, 512 * 1536 * 2)
    srd(a, SWS, 46, WS_SIZE)
    srd(a, SPHI, 40, 32 * 16 * 16 * 2)
    srd(a, SGW, 44, 1024)
    a("s_cmp_ge_u32 s32, 8")
    a("s_cbranch_scc0 K1_compute")

    a("s_sub_u32 s35, s32, 8")
    a("v_lshrrev_b32 v2, 3, v0")
    a("s_lshl_b32 s3, s35, 3")
    a("v_add_u32 v2, s3, v2")
    a("v_lshlrev_b32 v2, 10, v2")
    a("v_lshrrev_b32 v3, 4, v0")
    a("s_and_b32 s3, s35, 1")
    a("s_lshl_b32 s3, s3, 2")
    a("v_add_u32 v3, s3, v3")
    a("v_and_b32 v4, 7, v0")
    a("v_xor_b32 v3, v3, v4")
    a("v_lshlrev_b32 v3, 4, v3")
    a("v_add_u32 v2, v2, v3")
    a("v_lshrrev_b32 v3, 2, v0")
    a("s_lshl_b32 s3, s35, 4")
    a("v_add_u32 v3, s3, v3")
    a("v_mul_u32_u24 v3, 3072, v3")
    a("v_and_b32 v4, 3, v0")
    a("v_lshlrev_b32 v4, 4, v4")
    a("v_add_u32 v3, v3, v4")
    a("s_lshl_b32 s48, s33, 17")
    a("s_lshl_b32 s49, s34, 6")
    a("s_lshl_b32 s50, s35, 10")
    a("s_mov_b32 s51, 0")
    a.label("K1_ld_loop")
    a("s_cmp_lt_u32 s51, 4")
    a("s_cbranch_scc1 K1_ld_issue")
    a("s_cmp_lg_u32 s51, 4")
    a("s_cbranch_scc1 K1_ld_w")
    a("s_waitcnt vmcnt(30)")
    a("s_barrier")
    a.label("K1_ld_w")
    a("s_waitcnt vmcnt(20)")
    a("s_barrier")
    a.label("K1_ld_issue")
    for ii in range(4):
        a(f"s_add_u32 m0, s50, {ii*4096}")
        a(f"s_add_u32 s52, s48, {ii*32768}")
        a(f"buffer_load_dwordx4 v2, {sr(SX,4)}, s52 offen lds")
    for br, S in ((0, SWB), (1, SWA)):
        for j in range(3):
            a(f"s_add_u32 m0, s50, {16384 + br*12288 + j*4096}")
            a(f"s_add_u32 s52, s49, {j*1024}")
            a(f"buffer_load_dwordx4 v3, {sr(S,4)}, s52 offen lds")
    a("s_add_u32 s48, s48, 128")
    a(f"s_add_u32 s49, s49, {64*3072}")
    a(f"s_add_u32 s50, s50, {STAGE}")
    a("s_add_u32 s51, s51, 1")
    a("s_cmp_lg_u32 s51, 4")
    a("s_cbranch_scc1 K1_ld_nowrap")
    a(f"s_sub_u32 s50, s50, {4*STAGE}")
    a.label("K1_ld_nowrap")
    a("s_cmp_lt_u32 s51, 8")
    a("s_cbranch_scc1 K1_ld_loop")
    a("s_waitcnt vmcnt(20)")
    a("s_barrier")
    a("s_waitcnt vmcnt(10)")
    a("s_barrier")
    a("s_waitcnt vmcnt(0)")
    a("s_barrier")
    a("s_cmp_lg_u32 s35, 0")
    a("s_cbranch_scc1 K1_end")
    a("s_lshl_b32 s3, s33, 7")
    a("s_lshl_b32 s4, s34, 3")
    a("s_add_u32 s3, s3, s4")
    a("v_lshrrev_b32 v2, 3, v0")
    a("v_add_u32 v2, s3, v2")
    a("v_and_b32 v3, 7, v0")
    a("v_lshlrev_b32 v3, 4, v3")
    a("v_lshlrev_b32 v4, 10, v2")
    a("v_add_u32 v4, v4, v3")
    for j in range(8):
        a(f"buffer_load_dwordx4 {vr(8+4*j,4)}, v4, {sr(SX,4)}, 0 offen offset:{j*128}")
        a(f"buffer_load_dwordx4 {vr(40+4*j,4)}, v3, {sr(SGW,4)}, 0 offen offset:{j*128}")
    a("v_mov_b32 v5, 0")
    a("v_mov_b32 v6, 0")
    a("s_waitcnt vmcnt(0)")
    for j in range(16):
        a(f"v_dot2_f32_bf16 v5, v{8+2*j}, v{40+2*j}, v5")
        a(f"v_dot2_f32_bf16 v6, v{9+2*j}, v{41+2*j}, v6")
    a("s_nop 3")
    a("v_add_f32 v5, v5, v6")
    for off in (0x041F, 0x081F, 0x101F):
        a(f"ds_swizzle_b32 v6, v5 offset:{off}")
        a("s_waitcnt lgkmcnt(0)")
        a("v_add_f32 v5, v5, v6")
    a("v_cvt_pk_bf16_f32 v5, v5, v5")
    a("v_lshlrev_b32 v5, 16, v5")
    a(f"v_mul_f32 v5, {f32bits(-LOG2E):#x}, v5")
    a("v_exp_f32 v5, v5")
    a("s_nop 0")
    a("v_add_f32 v5, 1.0, v5")
    a("v_rcp_f32 v5, v5")
    a("s_nop 0")
    a("v_cvt_pk_bf16_f32 v5, v5, v5")
    a("v_lshlrev_b32 v5, 16, v5")
    a("v_lshlrev_b32 v2, 2, v2")
    a(f"v_add_u32 v2, {WS_G}, v2")
    a(f"buffer_store_dword v5, v2, {sr(SWS,4)}, 0 offen")
    a("s_branch K1_end")

    a.label("K1_compute")
    AQ, AK, AV = 16, 32, 48
    F0, F1 = 64, 80
    WPH = 96
    AX = 4
    AWD = 8
    a("s_and_b32 s35, s32, 3")
    a("s_lshr_b32 s48, s32, 2")
    a("v_and_b32 v1, 31, v0")
    a("v_lshrrev_b32 v2, 5, v0")
    a("v_lshrrev_b32 v3, 1, v1")
    a("v_and_b32 v3, 7, v3")
    a("v_xor_b32 v3, v3, v2")
    a("v_lshlrev_b32 v3, 4, v3")
    a("s_lshl_b32 s3, s35, 5")
    a("v_add_u32 v4, s3, v1")
    a("v_lshlrev_b32 v4, 7, v4")
    a("v_add_u32 v4, v4, v3")
    for t in range(1, 4):
        a(f"v_xor_b32 v{AX+t}, {32*t}, v4")
    a("v_and_b32 v3, 15, v0")
    a("v_lshrrev_b32 v8, 2, v3")
    a("v_lshlrev_b32 v9, 3, v2")
    a("v_add_u32 v8, v8, v9")
    a("v_lshlrev_b32 v8, 6, v8")
    a("v_and_b32 v9, 16, v0")
    a("v_lshlrev_b32 v9, 1, v9")
    a("v_add_u32 v8, v8, v9")
    a("v_and_b32 v9, 3, v0")
    a("v_lshlrev_b32 v9, 3, v9")
    a("v_add_u32 v8, v8, v9")
    a("s_mul_i32 s3, s48, 12288")
    a("s_add_u32 s3, s3, 16384")
    a("v_add_u32 v8, s3, v8")
    for i in range(48):
        a(f"v_mov_b32 v{AQ+i}, 0")
    a("s_cmp_eq_u32 s48, 0")
    a("s_cbranch_scc1 K1_nophi")
    a("v_lshlrev_b32 v9, 1, v3")
    a("v_lshlrev_b32 v10, 7, v2")
    a("v_add_u32 v9, v9, v10")
    a("s_lshl_b32 s3, s34, 10")
    for h in range(2):
        for j in range(8):
            d = j if j < 4 else 8 + j - 4
            a(f"buffer_load_ushort v{104+8*h+j}, v9, {sr(SPHI,4)}, s3 offen offset:{h*512 + d*32}")
    a.label("K1_nophi")

    def read_frags(F, t):
        a(f"ds_read_b128 {vr(F,4)}, v{AX+t}")
        for j in range(3):
            a(f"ds_read_b64_tr_b16 {vr(F+4+4*j,2)}, v{AWD} offset:{j*4096 + t*1024}")
            a(f"ds_read_b64_tr_b16 {vr(F+6+4*j,2)}, v{AWD} offset:{j*4096 + t*1024 + 256}")

    def mm(F):
        mfma(a, AQ, F + 4, F, AQ)
        mfma(a, AK, F + 8, F, AK)
        mfma(a, AV, F, F + 12, AV)

    a("s_mov_b32 s49, 0")
    a("s_barrier")
    read_frags(F0, 0)
    a.label("K1_loop")
    read_frags(F1, 1)
    a("s_waitcnt lgkmcnt(7)")
    mm(F0)
    read_frags(F0, 2)
    a("s_waitcnt lgkmcnt(7)")
    mm(F1)
    read_frags(F1, 3)
    a("s_waitcnt lgkmcnt(7)")
    mm(F0)
    a("s_waitcnt lgkmcnt(0)")
    a("s_cmp_eq_u32 s49, 7")
    a("s_cbranch_scc1 K1_last")
    a("s_barrier")
    a(f"s_mov_b32 s3, {STAGE}")
    a("s_cmp_eq_u32 s49, 3")
    a(f"s_cselect_b32 s3, {(-3*STAGE) & 0xffffffff}, s3")
    for r in range(AX, AWD + 1):
        a(f"v_add_u32 v{r}, s3, v{r}")
    read_frags(F0, 0)
    mm(F1)
    a("s_add_u32 s49, s49, 1")
    a("s_branch K1_loop")
    a.label("K1_last")
    mm(F1)
    a("s_lshl_b32 s50, s33, 2")
    a("s_add_u32 s50, s50, s35")
    a("s_lshl_b32 s51, s34, 7")
    a("s_add_u32 s51, s51, s50")
    a("v_lshlrev_b32 v9, 4, v0")
    a("s_cmp_eq_u32 s48, 0")
    a("s_cbranch_scc0 K1_epiA")
    a("s_nop 7")
    a("s_nop 7")
    a(f"s_mov_b32 s3, {f32bits(0.25*LOG2E):#x}")
    for i in range(16):
        a(f"v_mul_f32 v{AQ+i}, s3, v{AQ+i}")
    for i in range(8):
        a(f"v_cvt_pk_bf16_f32 v{F0+i}, v{AQ+2*i}, v{AQ+2*i+1}")
    for i in range(8):
        a(f"v_cvt_pk_bf16_f32 v{F0+8+i}, v{AK+2*i}, v{AK+2*i+1}")
    for i in range(8):
        a(f"v_cvt_pk_bf16_f32 v{F1+i}, v{AV+2*i}, v{AV+2*i+1}")
    a("s_lshl_b32 s4, s51, 10")
    a(f"s_add_u32 s5, s4, {64*1024}")
    a(f"buffer_store_dwordx4 {vr(F0,4)}, v9, {sr(SWS,4)}, s4 offen")
    a(f"buffer_store_dwordx4 {vr(F0+4,4)}, v9, {sr(SWS,4)}, s5 offen")
    a("s_lshl_b32 s4, s51, 11")
    a(f"s_add_u32 s4, s4, {WS_KVB}")
    a(f"s_add_u32 s5, s4, {64*2048}")
    a(f"buffer_store_dwordx4 {vr(F0+8,4)}, v9, {sr(SWS,4)}, s4 offen")
    a(f"buffer_store_dwordx4 {vr(F0+12,4)}, v9, {sr(SWS,4)}, s5 offen")
    a("v_and_b32 v10, 16, v0")
    a("v_lshlrev_b32 v10, 13, v10")
    a("v_and_b32 v11, 0x2f, v0")
    a("v_lshlrev_b32 v11, 4, v11")
    a("v_add_u32 v10, v10, v11")
    a(f"buffer_store_dwordx4 {vr(F1,4)}, v10, {sr(SWS,4)}, s4 offen offset:1024")
    a(f"buffer_store_dwordx4 {vr(F1+4,4)}, v10, {sr(SWS,4)}, s4 offen offset:1280")
    a("s_branch K1_end")

    a.label("K1_epiA")
    a("s_nop 7")
    a("s_nop 7")
    QF, KF, VF = 64, 72, 80
    for i in range(8):
        a(f"v_cvt_pk_bf16_f32 v{QF+i}, v{AQ+2*i}, v{AQ+2*i+1}")
    for i in range(8):
        a(f"v_cvt_pk_bf16_f32 v{KF+i}, v{AK+2*i}, v{AK+2*i+1}")
    for i in range(8):
        a(f"v_cvt_pk_bf16_f32 v{VF+i}, v{AV+2*i}, v{AV+2*i+1}")
    a("s_waitcnt vmcnt(0)")
    for i in range(8):
        a(f"v_lshl_or_b32 v{WPH+i}, v{105+2*i}, 16, v{104+2*i}")
    a("s_nop 1")
    PD = [16, 32, 48, 104]
    mfma(a, PD[0], WPH, QF, "0")
    mfma(a, PD[1], WPH + 4, QF + 4, "0")
    mfma(a, PD[2], WPH, KF, "0")
    mfma(a, PD[3], WPH + 4, KF + 4, "0")
    IP, IM = 88, 92
    ONE_LO, ONE_HI = 0x3F80, 0x3F800000
    a("v_lshlrev_b32 v10, 2, v2")
    a("v_sub_u32 v10, v1, v10")
    a(f"v_mov_b32 v11, {ONE_LO:#x}")
    a(f"v_mov_b32 v12, {ONE_HI:#x}")
    for base, add in ((IP, 0), (IM, 16)):
        for p in range(4):
            f0 = (2 * p if p < 2 else 8 + 2 * (p - 2)) + add
            a(f"v_cmp_eq_u32 s[4:5], {f0}, v10")
            a(f"v_cmp_eq_u32 s[6:7], {f0+1}, v10")
            a("s_nop 1")
            a(f"v_cndmask_b32 v13, 0, v11, s[4:5]")
            a(f"v_cndmask_b32 v{base+p}, v13, v12, s[6:7]")
    a(f"s_mov_b32 s3, {f32bits(LOG2E):#x}")
    a(f"s_mov_b32 s4, {f32bits(-LOG2E):#x}")
    T0 = 120

    def softmax_pair(P, OUT):
        for i in range(4):
            a(f"v_cvt_pk_bf16_f32 v{T0+i}, v{P+2*i}, v{P+2*i+1}")
        for i in range(4):
            a(f"v_lshlrev_b32 v{P+2*i}, 16, v{T0+i}")
            a(f"v_and_b32 v{P+2*i+1}, 0xffff0000, v{T0+i}")
        a(f"v_max3_f32 v10, v{P}, v{P+1}, v{P+2}")
        a(f"v_min3_f32 v11, v{P}, v{P+1}, v{P+2}")
        a(f"v_max3_f32 v10, v10, v{P+3}, v{P+4}")
        a(f"v_min3_f32 v11, v11, v{P+3}, v{P+4}")
        a(f"v_max3_f32 v10, v10, v{P+5}, v{P+6}")
        a(f"v_min3_f32 v11, v11, v{P+5}, v{P+6}")
        a(f"v_max_f32 v10, v10, v{P+7}")
        a(f"v_min_f32 v11, v11, v{P+7}")
        a("v_mov_b32 v12, v10")
        a("v_mov_b32 v13, v11")
        a("s_nop 1")
        a("v_permlane32_swap_b32 v10, v12")
        a("v_permlane32_swap_b32 v11, v13")
        a("s_nop 1")
        a("v_max_f32 v10, v10, v12")
        a("v_min_f32 v11, v11, v13")
        a("v_mul_f32 v10, s4, v10")
        a("v_mul_f32 v11, s3, v11")
        for i in range(8):
            a(f"v_fma_f32 v{T0+i}, v{P+i}, s3, v10")
            a(f"v_fma_f32 v{T0+8+i}, v{P+i}, s4, v11")
        for i in range(16):
            a(f"v_exp_f32 v{T0+i}, v{T0+i}")
        a("s_nop 0")
        a(f"v_add_f32 v10, v{T0}, v{T0+1}")
        a(f"v_add_f32 v11, v{T0+8}, v{T0+9}")
        for i in range(2, 8):
            a(f"v_add_f32 v10, v10, v{T0+i}")
            a(f"v_add_f32 v11, v11, v{T0+8+i}")
        a("v_mov_b32 v12, v10")
        a("v_mov_b32 v13, v11")
        a("s_nop 1")
        a("v_permlane32_swap_b32 v10, v12")
        a("v_permlane32_swap_b32 v11, v13")
        a("s_nop 1")
        a("v_add_f32 v10, v10, v12")
        a("v_add_f32 v11, v11, v13")
        a("v_rcp_f32 v10, v10")
        a("v_rcp_f32 v11, v11")
        a("s_nop 0")
        for i in range(8):
            a(f"v_mul_f32 v{T0+i}, v{T0+i}, v10")
            a(f"v_mul_f32 v{T0+8+i}, v{T0+8+i}, v11")
        for i in range(8):
            a(f"v_cvt_pk_bf16_f32 v{OUT+i}, v{T0+2*i}, v{T0+2*i+1}")

    a("s_lshl_b32 s5, s51, 11")
    a(f"s_add_u32 s5, s5, {WS_PHIQ}")
    a(f"s_add_u32 s6, s5, {64*2048}")
    for h in range(2):
        softmax_pair(PD[h], PD[h] + 8)
        sreg = "s5" if h == 0 else "s6"
        a(f"buffer_store_dwordx4 {vr(PD[h]+8,4)}, v9, {sr(SWS,4)}, {sreg} offen")
        a(f"buffer_store_dwordx4 {vr(PD[h]+12,4)}, v9, {sr(SWS,4)}, {sreg} offen offset:1024")
    TT = 136
    KV = [152, 64]
    BV = 96
    a("v_and_b32 v14, 16, v0")
    a("v_cmp_ne_u32 s[6:7], 0, v14")
    a(f"v_mov_b32 v15, 0x3f803f80")
    for h in range(2):
        P = PD[2 + h]
        softmax_pair(P, P + 8)
        a("s_nop 1")
        mfma(a, TT, P + 8, IP, "0")
        mfma(a, TT, P + 12, IM, TT)
        for i in range(8):
            if h == 0:
                a(f"v_cndmask_b32 v{BV+i}, v{VF+i}, v15, s[6:7]")
            else:
                a(f"v_cndmask_b32 v{BV+i}, v15, v{VF+i}, s[6:7]")
        a("s_nop 7")
        for i in range(8):
            a(f"v_cvt_pk_bf16_f32 v{P+i}, v{TT+2*i}, v{TT+2*i+1}")
        a("s_nop 1")
        mfma(a, KV[h], P, BV, "0")
        mfma(a, KV[h], P + 4, BV + 4, KV[h])
        a("s_nop 7")
    a("s_nop 7")
    a("s_nop 7")
    a("s_lshl_b32 s3, s35, 13")
    a("v_add_u32 v10, s3, v9")
    for h in range(2):
        for q in range(4):
            a(f"ds_write_b128 v10, {vr(KV[h]+4*q,4)} offset:{h*4096 + q*1024}")
    a("s_waitcnt lgkmcnt(0)")
    a("s_barrier")
    a("s_lshl_b32 s3, s35, 11")
    a("v_add_u32 v10, s3, v9")
    for w in range(4):
        a(f"ds_read_b128 {vr(16+8*w,4)}, v10 offset:{w*8192}")
        a(f"ds_read_b128 {vr(20+8*w,4)}, v10 offset:{w*8192+1024}")
    a("s_waitcnt lgkmcnt(0)")
    for i in range(8):
        a(f"v_add_f32 v{16+i}, v{16+i}, v{24+i}")
        a(f"v_add_f32 v{32+i}, v{32+i}, v{40+i}")
    for i in range(8):
        a(f"v_add_f32 v{16+i}, v{16+i}, v{32+i}")
    a("s_lshr_b32 s3, s35, 1")
    a("s_lshl_b32 s4, s3, 4")
    a("v_xor_b32 v10, s4, v0")
    a("v_lshlrev_b32 v10, 3, v10")
    a("s_lshl_b32 s4, s33, 5")
    a("s_lshl_b32 s5, s34, 1")
    a("s_add_u32 s4, s4, s5")
    a("s_add_u32 s4, s4, s3")
    a("s_lshl_b32 s4, s4, 3")
    a("s_and_b32 s5, s35, 1")
    a("s_lshl_b32 s5, s5, 2")
    a("s_add_u32 s4, s4, s5")
    a("s_lshl_b32 s4, s4, 9")
    a(f"s_add_u32 s4, s4, {WS_KVP}")
    for p in range(4):
        a(f"buffer_store_dwordx2 {vr(16+2*p,2)}, v10, {sr(SWS,4)}, s4 offen offset:{p*512}")
    a.label("K1_end")
    a("s_endpgm")
    return kd(kn, 168, 56)


def gen_k2(a):
    kn = "attn_kernel"
    kernel_begin(a, kn)
    SWS = 8
    UNR = 4
    a("s_cmp_ge_u32 s2, 256")
    a("s_cbranch_scc1 K2_end")
    a("s_load_dwordx2 s[4:5], s[0:1], 80")
    a("v_lshrrev_b32 v1, 6, v0")
    a("v_and_b32 v0, 63, v0")
    a("v_readfirstlane_b32 s12, v1")
    a("s_and_b32 s3, s2, 7")
    a("s_lshl_b32 s13, s3, 2")
    a("s_lshr_b32 s3, s2, 3")
    a("s_and_b32 s3, s3, 3")
    a("s_add_u32 s13, s13, s3")
    a("s_lshr_b32 s14, s2, 5")
    a("s_lshl_b32 s15, s14, 3")
    a("s_add_u32 s15, s15, s12")
    a("s_lshl_b32 s16, s13, 6")
    a("s_add_u32 s16, s16, s15")
    a("v_lshlrev_b32 v1, 4, v0")
    a("s_waitcnt lgkmcnt(0)")
    srd(a, SWS, 4, WS_SIZE)
    QF = 4
    KF = [8, 12]
    VF = [16, 24]
    P = 32
    O = 40
    CN = 56
    S = [72, 88]
    PH = 104
    KP = 72
    a("s_lshl_b32 s17, s13, 17")
    a(f"s_add_u32 s17, s17, {WS_KVB}")
    a("s_lshl_b32 s18, s12, 10")
    a("s_add_u32 s17, s17, s18")
    for i in range(4):
        a(f"s_add_u32 m0, s18, {i*8192}")
        a(f"s_add_u32 s19, s17, {i*8192}")
        a(f"buffer_load_dwordx4 v1, {sr(SWS,4)}, s19 offen lds")
    a("s_lshl_b32 s19, s16, 10")
    a(f"buffer_load_dwordx4 {vr(QF,4)}, v1, {sr(SWS,4)}, s19 offen")
    a("s_lshl_b32 s19, s16, 11")
    a(f"s_add_u32 s19, s19, {WS_PHIQ}")
    a(f"buffer_load_dwordx4 {vr(PH,4)}, v1, {sr(SWS,4)}, s19 offen")
    a(f"buffer_load_dwordx4 {vr(PH+4,4)}, v1, {sr(SWS,4)}, s19 offen offset:1024")
    a("v_lshlrev_b32 v2, 3, v0")
    a("s_lshl_b32 s19, s13, 3")
    a("s_add_u32 s19, s19, s12")
    a("s_lshl_b32 s19, s19, 9")
    a(f"s_add_u32 s19, s19, {WS_KVP}")
    for rb in range(16):
        a(f"buffer_load_dwordx2 {vr(KP+2*rb,2)}, v2, {sr(SWS,4)}, s19 offen")
        if rb < 15:
            a(f"s_add_u32 s19, s19, {32*8*512}")
    for i in range(4, 16):
        a(f"s_add_u32 m0, s18, {i*8192}")
        a(f"s_add_u32 s19, s17, {i*8192}")
        a(f"buffer_load_dwordx4 v1, {sr(SWS,4)}, s19 offen lds")
    for b in range(2):
        for i in range(8):
            a(f"v_mov_b32 v{VF[b]+i}, 0x3f803f80")
    a("s_mov_b32 s20, 0x0000ffff")
    a("s_mov_b32 s21, 0x0000ffff")
    a("s_waitcnt vmcnt(12)")
    for st in (8, 4, 2, 1):
        for i in range(st):
            a(f"v_add_f32 v{KP+2*i}, v{KP+2*i}, v{KP+2*(i+st)}")
            a(f"v_add_f32 v{KP+2*i+1}, v{KP+2*i+1}, v{KP+2*(i+st)+1}")
    a(f"v_cvt_pk_bf16_f32 v{KP}, v{KP}, v{KP+1}")
    a("v_lshlrev_b32 v2, 5, v0")
    a("v_add_u32 v2, 131072, v2")
    a("s_lshl_b32 s19, s12, 2")
    a("v_add_u32 v3, s19, v2")
    a(f"ds_write_b32 v3, v{KP}")
    a("s_waitcnt lgkmcnt(0)")
    a("s_barrier")
    a(f"ds_read_b128 {vr(P,4)}, v2")
    a(f"ds_read_b128 {vr(P+4,4)}, v2 offset:16")
    a(f"ds_read_b128 {vr(KF[0],4)}, v1")
    a("s_waitcnt lgkmcnt(1)")
    mfma(a, S[0], P, PH, "0")
    mfma(a, S[0], P + 4, PH + 4, S[0])
    a("s_waitcnt lgkmcnt(0)")
    mfma(a, S[1], KF[0], QF, "0")
    a("s_nop 7")
    a("s_nop 3")
    a(f"v_add_f32 v2, {f32bits(1e-6):#x}, v{S[0]+8}")
    a("v_rcp_f32 v2, v2")
    a("s_nop 0")
    for i in range(8):
        a(f"v_mul_f32 v{S[0]+i}, v{S[0]+i}, v2")
    for i in range(4):
        a(f"v_cvt_pk_bf16_f32 v{PH+i}, v{S[0]+2*i}, v{S[0]+2*i+1}")
    a("s_lshl_b32 s19, s16, 10")
    a(f"s_add_u32 s19, s19, {WS_O}")
    a(f"buffer_store_dwordx4 {vr(PH,4)}, v1, {sr(SWS,4)}, s19 offen")
    X = S[1]
    a(f"v_max3_f32 v2, v{X}, v{X+1}, v{X+2}")
    for i in range(3, 15, 2):
        a(f"v_max3_f32 v2, v2, v{X+i}, v{X+i+1}")
    a(f"v_max_f32 v2, v2, v{X+15}")
    cross_half(a, "v_max_f32", 2, 3)
    a("s_mov_b32 s22, 0")
    a.label("K2_restart")
    for i in range(16):
        a(f"v_sub_f32 v{CN+i}, 0, v2")
    for i in range(16):
        a(f"v_mov_b32 v{O+i}, 0")
    a("v_mov_b32 v3, v1")
    a(f"ds_read_b128 {vr(KF[0],4)}, v3")
    a(f"ds_read_b128 {vr(KF[1],4)}, v3 offset:2048")
    a("s_mov_b64 exec, s[20:21]")
    a(f"ds_read_b128 {vr(VF[0],4)}, v3 offset:1024")
    a(f"ds_read_b128 {vr(VF[0]+4,4)}, v3 offset:1280")
    a("s_mov_b64 exec, -1")
    a("s_waitcnt lgkmcnt(3)")
    mfma(a, S[0], KF[0], QF, CN)
    a("s_mov_b32 s23, 0")
    a("s_nop 7")
    a.raw("    .p2align 3")
    a.label("K2_loop")
    for u in range(UNR):
        X, Y = S[u & 1], S[(u + 1) & 1]
        Kn = KF[(u + 1) & 1]
        Kp = KF[u & 1]
        Vc = VF[u & 1]
        Vn = VF[(u + 1) & 1]
        a("s_waitcnt lgkmcnt(2)")
        mfma(a, Y, Kn, QF, CN)
        a(f"ds_read_b128 {vr(Kp,4)}, v3 offset:{(u+2)*2048}")
        a("s_mov_b64 exec, s[20:21]")
        a(f"ds_read_b128 {vr(Vn,4)}, v3 offset:{(u+1)*2048+1024}")
        a(f"ds_read_b128 {vr(Vn+4,4)}, v3 offset:{(u+1)*2048+1280}")
        a("s_mov_b64 exec, -1")
        for i in range(8):
            a(f"v_exp_f32 v{X+i}, v{X+i}")
        for i in range(4):
            a(f"v_cvt_pk_bf16_f32 v{P+i}, v{X+2*i}, v{X+2*i+1}")
        for i in range(8, 10):
            a(f"v_exp_f32 v{X+i}, v{X+i}")
        a("s_waitcnt lgkmcnt(3)")
        mfma(a, O, Vc, P, O)
        for i in range(10, 16):
            a(f"v_exp_f32 v{X+i}, v{X+i}")
        for i in range(4, 8):
            a(f"v_cvt_pk_bf16_f32 v{P+i}, v{X+2*i}, v{X+2*i+1}")
        if u == UNR - 1:
            a(f"v_add_u32 v3, {UNR*2048}, v3")
            a(f"s_add_u32 s23, s23, {UNR}")
        else:
            a("s_nop 1")
        mfma(a, O, Vc + 4, P + 4, O)
    a("s_cmp_lg_u32 s23, 8")
    a("s_cbranch_scc1 K2_nosync")
    a("s_cmp_lg_u32 s22, 0")
    a("s_cbranch_scc1 K2_nosync")
    a("s_waitcnt vmcnt(0)")
    a("s_barrier")
    a.label("K2_nosync")
    a("s_cmp_lt_u32 s23, 64")
    a("s_cbranch_scc1 K2_loop")
    a("s_waitcnt lgkmcnt(0)")
    a("s_nop 7")
    a("s_nop 3")
    a("s_cmp_lg_u32 s22, 0")
    a("s_cbranch_scc1 K2_fin")
    a(f"v_mov_b32 v4, {f32bits(2.0**64):#x}")
    a(f"v_cmp_nlt_f32 s[24:25], v{O+8}, v4")
    a("v_mov_b32 v5, 0x7f800000")
    for i in range(8):
        a(f"v_cmp_nlt_f32 s[26:27], abs(v{O+i}), v5")
        a("s_or_b64 s[24:25], s[24:25], s[26:27]")
    a("s_cmp_eq_u64 s[24:25], 0")
    a("s_cbranch_scc1 K2_fin")
    a("s_lshl_b32 s19, s16, 10")
    a(f"buffer_load_dwordx4 {vr(QF,4)}, v1, {sr(SWS,4)}, s19 offen")
    a("v_mov_b32 v3, v1")
    a("v_mov_b32 v2, 0xff800000")
    a("s_mov_b32 s23, 0")
    a("s_waitcnt vmcnt(0)")
    a.label("K2_maxloop")
    a(f"ds_read_b128 {vr(KF[0],4)}, v3")
    a("s_waitcnt lgkmcnt(0)")
    mfma(a, S[0], KF[0], QF, "0")
    a("v_add_u32 v3, 2048, v3")
    a("s_add_u32 s23, s23, 1")
    a("s_nop 7")
    a("s_nop 3")
    for i in range(0, 16, 2):
        a(f"v_max3_f32 v2, v2, v{S[0]+i}, v{S[0]+i+1}")
    a("s_cmp_lt_u32 s23, 64")
    a("s_cbranch_scc1 K2_maxloop")
    cross_half(a, "v_max_f32", 2, 3)
    a("s_mov_b32 s22, 1")
    a("s_branch K2_restart")
    a.label("K2_fin")
    a(f"v_rcp_f32 v2, v{O+8}")
    a("s_nop 0")
    for i in range(8):
        a(f"v_mul_f32 v{O+i}, v{O+i}, v2")
    for i in range(4):
        a(f"v_cvt_pk_bf16_f32 v{P+i}, v{O+2*i}, v{O+2*i+1}")
    a("s_lshl_b32 s19, s16, 10")
    a(f"s_add_u32 s19, s19, {WS_O + 2*MB}")
    a(f"buffer_store_dwordx4 {vr(P,4)}, v1, {sr(SWS,4)}, s19 offen")
    a.label("K2_end")
    a("s_endpgm")
    return kd(kn, 112, 32)


def gen_k3(a):
    kn = "proj_kernel"
    kernel_begin(a, kn)
    SWS, SWO, SOUT = 8, 12, 16
    AHEAD = 6
    a("s_cmp_ge_u32 s2, 256")
    a("s_cbranch_scc1 K3_end")
    a("s_load_dwordx2 s[4:5], s[0:1], 80")
    a("s_load_dwordx2 s[6:7], s[0:1], 24")
    a("s_load_dwordx2 s[24:25], s[0:1], 48")
    a("s_load_dwordx2 s[26:27], s[0:1], 64")
    a("v_lshrrev_b32 v1, 6, v0")
    a("v_and_b32 v0, 63, v0")
    a("v_readfirstlane_b32 s20, v1")
    a("s_and_b32 s3, s2, 3")
    a("s_lshl_b32 s21, s3, 3")
    a("s_lshr_b32 s3, s2, 3")
    a("s_and_b32 s22, s3, 7")
    a("s_add_u32 s21, s21, s22")
    a("s_lshr_b32 s22, s3, 3")
    a("s_and_b32 s3, s2, 4")
    a("s_add_u32 s22, s22, s3")
    a("s_waitcnt lgkmcnt(0)")
    srd(a, SWS, 4, WS_SIZE)
    srd(a, SOUT, 26, 2 * MB)
    a("s_cmp_ge_u32 s20, 2")
    a("s_cselect_b32 s6, s24, s6")
    a("s_cselect_b32 s7, s25, s7")
    srd(a, SWO, 6, 512 * 512 * 2)
    ACC = 16
    OF = 80
    NSL = AHEAD + 1
    WF = 80 + 8 * NSL
    a("v_lshrrev_b32 v2, 3, v0")
    a("v_lshlrev_b32 v3, 10, v2")
    a("v_and_b32 v4, 16, v0")
    a("v_lshrrev_b32 v4, 2, v4")
    a("v_and_b32 v5, 7, v0")
    a("v_xor_b32 v4, v4, v5")
    a("v_lshlrev_b32 v4, 4, v4")
    a("v_add_u32 v2, v3, v4")
    a("v_lshlrev_b32 v1, 4, v0")
    a("s_and_b32 s3, s20, 1")
    a("s_lshl_b32 s28, s3, 18")
    a("s_lshl_b32 s23, s22, 7")
    a("s_add_u32 s28, s28, s23")
    a("s_lshl_b32 s29, s20, 15")
    a("s_lshr_b32 s30, s20, 1")
    a("s_lshl_b32 s30, s30, 21")
    a("s_lshl_b32 s23, s3, 20")
    a("s_add_u32 s30, s30, s23")
    a("s_lshl_b32 s23, s21, 11")
    a("s_add_u32 s30, s30, s23")
    a(f"s_add_u32 s30, s30, {WS_O}")
    a("v_lshrrev_b32 v3, 5, v0")
    a("v_lshlrev_b32 v3, 2, v3")
    a("v_and_b32 v4, 15, v0")
    a("v_lshrrev_b32 v4, 2, v4")
    a("v_add_u32 v3, v3, v4")
    a("v_lshlrev_b32 v3, 7, v3")
    a("v_and_b32 v4, 8, v0")
    a("v_lshlrev_b32 v4, 3, v4")
    a("v_add_u32 v3, v3, v4")
    a("v_and_b32 v4, 16, v0")
    a("v_lshlrev_b32 v4, 1, v4")
    a("v_add_u32 v3, v3, v4")
    a("v_and_b32 v4, 3, v0")
    a("v_lshlrev_b32 v4, 3, v4")
    a("v_add_u32 v3, v3, v4")
    a("v_add_u32 v3, s29, v3")
    a("v_xor_b32 v4, 64, v3")

    def issue(t):
        sl = OF + 8 * (t % NSL)
        a(f"s_add_u32 m0, s29, {t*2048}")
        a(f"s_add_u32 s23, s28, {t*16384}")
        a(f"buffer_load_dwordx4 v2, {sr(SWO,4)}, s23 offen lds")
        a(f"s_add_u32 m0, s29, {t*2048+1024}")
        a(f"s_add_u32 s23, s28, {t*16384+8192}")
        a(f"buffer_load_dwordx4 v2, {sr(SWO,4)}, s23 offen lds")
        a(f"s_add_u32 s23, s30, {t*65536}")
        a(f"buffer_load_dwordx4 {vr(sl,4)}, v1, {sr(SWS,4)}, s23 offen")
        a(f"buffer_load_dwordx4 {vr(sl+4,4)}, v1, {sr(SWS,4)}, s23 offen offset:1024")

    a("v_and_b32 v5, 31, v0")
    a("s_lshl_b32 s23, s21, 6")
    a("s_lshr_b32 s3, s20, 1")
    a("s_lshl_b32 s3, s3, 5")
    a("s_add_u32 s23, s23, s3")
    a("v_add_u32 v5, s23, v5")
    a("v_lshlrev_b32 v6, 2, v5")
    a(f"v_add_u32 v6, {WS_G}, v6")
    a(f"buffer_load_dword v7, v6, {sr(SWS,4)}, 0 offen")
    for t in range(AHEAD):
        issue(t)
    for i in range(64):
        a(f"v_mov_b32 v{ACC+i}, 0")
    for t in range(16):
        if t + AHEAD < 16:
            issue(t + AHEAD)
            a(f"s_waitcnt vmcnt({4*AHEAD})")
        else:
            a(f"s_waitcnt vmcnt({4*(15-t)})")
        W = WF + 8 * (t & 1)
        a(f"ds_read_b64_tr_b16 {vr(W,2)}, v3 offset:{t*2048}")
        a(f"ds_read_b64_tr_b16 {vr(W+2,2)}, v3 offset:{t*2048+1024}")
        a(f"ds_read_b64_tr_b16 {vr(W+4,2)}, v4 offset:{t*2048}")
        a(f"ds_read_b64_tr_b16 {vr(W+6,2)}, v4 offset:{t*2048+1024}")
        sl = OF + 8 * (t % NSL)
        a("s_waitcnt lgkmcnt(2)")
        mfma(a, ACC, W, sl, ACC)
        mfma(a, ACC + 32, W, sl + 4, ACC + 32)
        a("s_waitcnt lgkmcnt(0)")
        mfma(a, ACC + 16, W + 4, sl, ACC + 16)
        mfma(a, ACC + 48, W + 4, sl + 4, ACC + 48)
    a("s_nop 7")
    a("s_nop 7")
    a("v_add_u32 v8, s29, v1")
    for sub in range(4):
        for q in range(4):
            a(f"ds_write_b128 v8, {vr(ACC+16*sub+4*q,4)} offset:{sub*4096+q*1024}")
    a("s_waitcnt lgkmcnt(0)")
    a("s_barrier")
    a("s_lshl_b32 s3, s20, 12")
    a("v_add_u32 v8, s3, v1")
    a("v_add_u32 v9, 65536, v8")
    for w in range(4):
        for q in range(4):
            base = "v8" if w < 2 else "v9"
            a(f"ds_read_b128 {vr(ACC+16*w+4*q,4)}, {base} offset:{(w&1)*32768+q*1024}")
    a("v_sub_f32 v10, 1.0, v7")
    a("v_cvt_pk_bf16_f32 v10, v10, v10")
    a("v_lshlrev_b32 v10, 16, v10")
    a("s_waitcnt lgkmcnt(0)")
    A_, B_ = ACC, ACC + 32
    T = 80
    for i in range(16):
        a(f"v_add_f32 v{A_+i}, v{A_+i}, v{A_+16+i}")
        a(f"v_add_f32 v{B_+i}, v{B_+i}, v{B_+16+i}")

    def rnd(R):
        for i in range(8):
            a(f"v_cvt_pk_bf16_f32 v{T+i}, v{R+2*i}, v{R+2*i+1}")
        for i in range(8):
            a(f"v_lshlrev_b32 v{R+2*i}, 16, v{T+i}")
            a(f"v_and_b32 v{R+2*i+1}, 0xffff0000, v{T+i}")
    rnd(A_)
    rnd(B_)
    for i in range(16):
        a(f"v_mul_f32 v{A_+i}, v{A_+i}, v7")
        a(f"v_mul_f32 v{B_+i}, v{B_+i}, v10")
    rnd(A_)
    rnd(B_)
    for i in range(16):
        a(f"v_add_f32 v{A_+i}, v{A_+i}, v{B_+i}")
    for i in range(8):
        a(f"v_cvt_pk_bf16_f32 v{T+i}, v{A_+2*i}, v{A_+2*i+1}")
    a("s_nop 1")
    a(f"v_permlane32_swap_b32 v{T}, v{T+2}")
    a(f"v_permlane32_swap_b32 v{T+1}, v{T+3}")
    a(f"v_permlane32_swap_b32 v{T+4}, v{T+6}")
    a(f"v_permlane32_swap_b32 v{T+5}, v{T+7}")
    a("v_lshlrev_b32 v5, 10, v5")
    a("v_lshrrev_b32 v6, 5, v0")
    a("v_lshlrev_b32 v6, 4, v6")
    a("v_add_u32 v5, v5, v6")
    a("s_lshl_b32 s3, s22, 7")
    a("s_and_b32 s23, s20, 1")
    a("s_lshl_b32 s23, s23, 6")
    a("s_add_u32 s3, s3, s23")
    a(f"buffer_store_dwordx4 {vr(T,4)}, v5, {sr(SOUT,4)}, s3 offen")
    a(f"buffer_store_dwordx4 {vr(T+4,4)}, v5, {sr(SOUT,4)}, s3 offen offset:32")
    a.label("K3_end")
    a("s_endpgm")
    return kd(kn, WF + 16, 32)


def main():
    a = Asm()
    head = """; gated mix of hedgehog linear attention and softmax attention (generated by dev/gen.py)
; @launch kernel=qkv_kernel grid=(256,1,1) block=(768,1,1) lds=163840
; @launch kernel=attn_kernel grid=(256,1,1) block=(512,1,1) lds=135168
; @launch kernel=proj_kernel grid=(256,1,1) block=(256,1,1) lds=131072
.amdgcn_target "amdgcn-amd-amdhsa--gfx950"
.text
"""
    kds = [gen_k1(a), gen_k2(a), gen_k3(a)]
    out = head + a.text() + '.section .rodata,"a"\n' + "".join(kds)
    path = sys.argv[1] if len(sys.argv) > 1 else f"cdna_kernels/{NAME}.s"
    open(path, "w").write(out)
    print("wrote", path, len(out))


if __name__ == "__main__":
    main()
```

```python
import sys, os

NAME = "gated_mix__linear_kernel_hedgehog__softmax_full_mha__prompt"

MB = 1 << 20
WS_QB = 0
WS_KVB = 2 * MB
WS_PHIQ = 6 * MB
WS_KVP = 10 * MB
WS_ZP = 11 * MB
WS_O = 12 * MB
WS_G = 16 * MB
WS_SIZE = 18 * MB

LOG2E = 1.4426950408889634


def f32bits(x):
    import struct
    return struct.unpack("<I", struct.pack("<f", x))[0]


class Asm:
    def __init__(self):
        self.lines = []

    def __call__(self, s):
        for l in s.strip("\n").split("\n"):
            self.lines.append("    " + l.strip())

    def label(self, l):
        self.lines.append(l + ":")

    def raw(self, s):
        self.lines.append(s)

    def text(self):
        return "\n".join(self.lines) + "\n"


def vr(b, n=1):
    return f"v{b}" if n == 1 else f"v[{b}:{b+n-1}]"


def sr(b, n=1):
    return f"s{b}" if n == 1 else f"s[{b}:{b+n-1}]"


EXP = os.environ.get("EXP", "")


def mfma(a, d, A, B, C):
    c = C if isinstance(C, str) else vr(C, 16)
    a(f"v_mfma_f32_32x32x16_bf16 {vr(d,16)}, {vr(A,4)}, {vr(B,4)}, {c}")


def srd(a, d, ptr, size):
    a(f"s_mov_b32 s{d}, s{ptr}")
    a(f"s_mov_b32 s{d+1}, s{ptr+1}")
    a(f"s_mov_b32 s{d+2}, {size}")
    a(f"s_mov_b32 s{d+3}, 0x00020000")


def kernel_begin(a, name):
    a.raw(f".globl {name}")
    a.raw(".p2align 8")
    a.raw(f".type {name},@function")
    a.label(name)


def kd(name, vgpr, sgpr):
    acc = (vgpr + 3) // 4 * 4
    if STAMP:
        sgpr = 100
    return f""".p2align 6
.amdhsa_kernel {name}
  .amdhsa_next_free_vgpr {vgpr}
  .amdhsa_next_free_sgpr {sgpr}
  .amdhsa_accum_offset {acc}
  .amdhsa_group_segment_fixed_size 0
  .amdhsa_kernarg_size 88
  .amdhsa_user_sgpr_count 2
  .amdhsa_user_sgpr_kernarg_segment_ptr 1
  .amdhsa_system_sgpr_workgroup_id_x 1
.end_amdhsa_kernel
"""


import os
STAMP = os.environ.get("STAMP", "0") == "1"
WS_STAMP = 16 * MB + 65536
STB = 64


def stamp(a, i):
    if STAMP:
        a(f"s_memtime s[{STB+2*i}:{STB+2*i+1}]")


def stamp_flush(a, kidx, n, wave_s, srd_s):
    if not STAMP:
        return
    a(f"s_memrealtime s[{STB+16}:{STB+17}]")
    a(f"s_getreg_b32 s{STB+18}, hwreg(HW_REG_XCC_ID)")
    n = 10
    a("s_waitcnt lgkmcnt(0)")
    a("s_mov_b64 exec, 1")
    a(f"s_lshl_b32 s3, s2, 10")
    a(f"s_lshl_b32 s4, s{wave_s}, 6")
    a("s_add_u32 s3, s3, s4")
    a(f"s_add_u32 s3, s3, {WS_STAMP + kidx*262144}")
    a("v_mov_b32 v1, 0")
    for i in range(n):
        a(f"v_mov_b32 v2, s{STB+2*i}")
        a(f"buffer_store_dword v2, v1, {sr(srd_s,4)}, s3 offen offset:{4*i}")
        a("s_nop 1")


def cross_half(a, op, x, t):
    a(f"v_mov_b32 v{t}, v{x}")
    a("s_nop 1")
    a(f"v_permlane32_swap_b32 v{x}, v{t}")
    a("s_nop 1")
    a(f"{op} v{x}, v{x}, v{t}")


def gen_k1(a):
    kn = "qkv_kernel"
    kernel_begin(a, kn)
    STAGE = 40960
    RED = 81920
    SX, SW0, SW1, SW2, SWS, SPHI, SGW = 8, 12, 16, 20, 24, 28, 52
    a("s_cmp_ge_u32 s2, 256")
    a("s_cbranch_scc1 K1_end")
    stamp(a, 0)
    if STAMP:
        a(f"s_memrealtime s[{STB+14}:{STB+15}]")
    a("s_load_dwordx4 s[36:39], s[0:1], 0")
    a("s_load_dwordx2 s[42:43], s[0:1], 40")
    a("s_load_dwordx2 s[40:41], s[0:1], 16")
    a("s_load_dwordx2 s[44:45], s[0:1], 56")
    a("s_load_dwordx2 s[46:47], s[0:1], 80")
    a("v_lshrrev_b32 v1, 6, v0")
    a("v_and_b32 v0, 63, v0")
    a("v_readfirstlane_b32 s32, v1")
    a("s_and_b32 s3, s2, 1")
    a("s_lshl_b32 s33, s3, 3")
    a("s_lshr_b32 s3, s2, 3")
    a("s_and_b32 s62, s3, 7")
    a("s_add_u32 s33, s33, s62")
    a("s_lshr_b32 s34, s3, 3")
    a("s_and_b32 s4, s2, 6")
    a("s_lshl_b32 s4, s4, 1")
    a("s_add_u32 s34, s34, s4")
    a("s_and_b32 s56, s34, 7")
    a("s_lshr_b32 s57, s34, 3")
    a("s_cmp_lt_u32 s32, 4")
    a("s_cbranch_scc0 K1_compute")

    a("v_lshrrev_b32 v5, 3, v0")
    a("s_lshl_b32 s3, s32, 3")
    a("v_add_u32 v2, s3, v5")
    a("v_lshlrev_b32 v2, 10, v2")
    a("v_lshrrev_b32 v3, 4, v0")
    a("s_and_b32 s3, s32, 1")
    a("s_lshl_b32 s3, s3, 2")
    a("v_add_u32 v3, s3, v3")
    a("v_and_b32 v4, 7, v0")
    a("v_xor_b32 v3, v3, v4")
    a("v_lshlrev_b32 v3, 4, v3")
    a("v_add_u32 v2, v2, v3")
    a("s_lshl_b32 s3, s32, 4")
    a("v_add_u32 v3, s3, v5")
    a("v_mul_u32_u24 v3, 3072, v3")
    a("v_and_b32 v5, 16, v0")
    a("v_lshrrev_b32 v5, 2, v5")
    a("v_xor_b32 v4, v4, v5")
    a("v_lshlrev_b32 v4, 4, v4")
    a("v_add_u32 v3, v3, v4")
    a("s_lshl_b32 s48, s33, 17")
    a("s_lshl_b32 s3, s56, 7")
    a("s_cmp_eq_u32 s57, 0")
    a("s_cselect_b32 s49, 1024, 0")
    a("s_cselect_b32 s58, 2048, 0")
    a("s_max_u32 s59, s58, 1024")
    a("s_add_u32 s49, s49, s3")
    a("s_add_u32 s58, s58, s3")
    a("s_add_u32 s59, s59, s3")
    a("s_lshl_b32 s50, s32, 10")
    a("s_lshl_b32 s60, s32, 11")
    a("s_mov_b32 s51, 0")
    a("s_waitcnt lgkmcnt(0)")
    srd(a, SX, 36, 2 * MB)
    srd(a, SW0, 38, 512 * 1536 * 2)
    srd(a, SW2, 42, 512 * 1536 * 2)
    a("s_cmp_eq_u32 s57, 0")
    a("s_cselect_b32 s4, s38, s42")
    a("s_cselect_b32 s5, s39, s43")
    srd(a, SW1, 4, 512 * 1536 * 2)
    a.label("K1_ld_loop")
    a("s_lshl_b32 s6, s62, 7")
    a("s_add_u32 s6, s6, s48")
    a(f"s_mul_i32 s7, s62, {64*3072}")
    for ii in range(4):
        a(f"s_add_u32 m0, s50, {ii*4096}")
        a(f"s_add_u32 s61, s6, {ii*32768}")
        if "nodma" not in EXP:
            a(f"buffer_load_dwordx4 v2, {sr(SX,4)}, s61 offen lds")
    for j, (S, so) in enumerate(((SW0, 49), (SW1, 58), (SW2, 59))):
        a(f"s_add_u32 m0, s60, {16384 + j*8192}")
        a(f"s_add_u32 s61, s{so}, s7")
        if "nodma" not in EXP:
            a(f"buffer_load_dwordx4 v3, {sr(S,4)}, s61 offen lds")
        a(f"s_add_u32 m0, s60, {16384 + j*8192 + 1024}")
        a(f"s_add_u32 s61, s61, {8*3072}")
        if "nodma" not in EXP:
            a(f"buffer_load_dwordx4 v3, {sr(S,4)}, s61 offen lds")
    a("s_add_u32 s62, s62, 1")
    a("s_and_b32 s62, s62, 7")
    a(f"s_add_u32 s50, s50, {STAGE}")
    a(f"s_add_u32 s60, s60, {STAGE}")
    a(f"s_cmp_lt_u32 s50, {3*STAGE}")
    a("s_cbranch_scc1 K1_ld_nowrap")
    a(f"s_sub_u32 s50, s50, {3*STAGE}")
    a(f"s_sub_u32 s60, s60, {3*STAGE}")
    a.label("K1_ld_nowrap")
    a("s_add_u32 s51, s51, 1")
    a("s_cmp_eq_u32 s51, 1")
    a("s_cbranch_scc1 K1_ld_loop")
    a("s_waitcnt vmcnt(10)")
    a("s_barrier")
    a("s_cmp_lt_u32 s51, 8")
    a("s_cbranch_scc1 K1_ld_loop")
    a("s_waitcnt vmcnt(0)")
    stamp(a, 3)
    a("s_barrier")
    for i_ in (1, 2, 4, 5, 6):
        stamp(a, i_)
    srd(a, SWS, 46, WS_SIZE)
    a("s_cmp_lg_u32 s32, 0")
    a("s_cbranch_scc1 K1_flush" if STAMP else "s_cbranch_scc1 K1_end")
    srd(a, SGW, 44, 1024)
    a("s_lshl_b32 s3, s33, 7")
    a("s_lshl_b32 s4, s34, 3")
    a("s_add_u32 s3, s3, s4")
    a("v_lshrrev_b32 v2, 3, v0")
    a("v_add_u32 v2, s3, v2")
    a("v_and_b32 v3, 7, v0")
    a("v_lshlrev_b32 v3, 4, v3")
    a("v_lshlrev_b32 v4, 10, v2")
    a("v_add_u32 v4, v4, v3")
    for j in range(8):
        a(f"buffer_load_dwordx4 {vr(8+4*j,4)}, v4, {sr(SX,4)}, 0 offen offset:{j*128}")
        a(f"buffer_load_dwordx4 {vr(40+4*j,4)}, v3, {sr(SGW,4)}, 0 offen offset:{j*128}")
    a("v_mov_b32 v5, 0")
    a("v_mov_b32 v6, 0")
    a("s_waitcnt vmcnt(0)")
    for j in range(16):
        a(f"v_dot2_f32_bf16 v5, v{8+2*j}, v{40+2*j}, v5")
        a(f"v_dot2_f32_bf16 v6, v{9+2*j}, v{41+2*j}, v6")
    a("s_nop 3")
    a("v_add_f32 v5, v5, v6")
    for off in (0x041F, 0x081F, 0x101F):
        a(f"ds_swizzle_b32 v6, v5 offset:{off}")
        a("s_waitcnt lgkmcnt(0)")
        a("v_add_f32 v5, v5, v6")
    a("v_cvt_pk_bf16_f32 v5, v5, v5")
    a("v_lshlrev_b32 v5, 16, v5")
    a(f"v_mul_f32 v5, {f32bits(-LOG2E):#x}, v5")
    a("v_exp_f32 v5, v5")
    a("s_nop 0")
    a("v_add_f32 v5, 1.0, v5")
    a("v_rcp_f32 v5, v5")
    a("s_nop 0")
    a("v_cvt_pk_bf16_f32 v5, v5, v5")
    a("v_lshlrev_b32 v5, 16, v5")
    a("v_lshlrev_b32 v2, 2, v2")
    a(f"v_add_u32 v2, {WS_G}, v2")
    a(f"buffer_store_dword v5, v2, {sr(SWS,4)}, 0 offen")
    a("s_branch K1_flush" if STAMP else "s_branch K1_end")

    a.label("K1_compute")
    ACC = lambda rt, j: 16 + 48 * rt + 16 * j
    FS = [112, 132]
    WRAW = 152
    WPH = 168
    AX = 4
    AWD = 8
    a("s_and_b32 s35, s32, 1")
    a("s_lshr_b32 s48, s32, 1")
    a("s_and_b32 s48, s48, 1")
    a("v_and_b32 v1, 31, v0")
    a("v_lshrrev_b32 v2, 5, v0")
    a("v_lshrrev_b32 v3, 1, v1")
    a("v_and_b32 v3, 7, v3")
    a("v_xor_b32 v3, v3, v2")
    a("v_lshlrev_b32 v3, 4, v3")
    a("s_lshl_b32 s3, s35, 6")
    a("v_add_u32 v4, s3, v1")
    a("v_lshlrev_b32 v4, 7, v4")
    a("v_add_u32 v4, v4, v3")
    for t in range(1, 4):
        a(f"v_xor_b32 v{AX+t}, {32*t}, v4")
    a("v_and_b32 v3, 15, v0")
    a("v_lshrrev_b32 v8, 2, v3")
    a("v_lshlrev_b32 v9, 3, v2")
    a("v_add_u32 v8, v8, v9")
    a("v_lshlrev_b32 v8, 7, v8")
    a("v_and_b32 v9, 8, v0")
    a("v_lshlrev_b32 v9, 3, v9")
    a("s_lshl_b32 s3, s48, 6")
    a("v_xor_b32 v9, s3, v9")
    a("v_add_u32 v8, v8, v9")
    a("v_and_b32 v9, 16, v0")
    a("v_lshlrev_b32 v9, 1, v9")
    a("v_add_u32 v8, v8, v9")
    a("v_and_b32 v9, 3, v0")
    a("v_lshlrev_b32 v9, 3, v9")
    a("v_add_u32 v8, v8, v9")
    a("v_add_u32 v8, 16384, v8")
    a("s_lshl_b32 s51, s56, 2")
    a("s_lshl_b32 s3, s48, 1")
    a("s_add_u32 s51, s51, s3")
    a("v_lshlrev_b32 v9, 1, v3")
    a("v_lshlrev_b32 v10, 7, v2")
    a("v_add_u32 v9, v9, v10")
    a("s_lshl_b32 s3, s51, 9")
    a("s_waitcnt lgkmcnt(0)")
    srd(a, SPHI, 40, 32 * 16 * 16 * 2)
    srd(a, SWS, 46, WS_SIZE)
    for h in range(2):
        for j in range(8):
            d = j if j < 4 else 8 + j - 4
            a(f"buffer_load_ushort v{WRAW+8*h+j}, v9, {sr(SPHI,4)}, s3 offen offset:{h*512 + d*32}")
    for i in range(0, 96, 2):
        a(f"v_mov_b64 {vr(16+i,2)}, 0")

    def reads(F, t):
        if "noread" in EXP:
            return ["s_nop 0"] * 8
        w = lambda j, hf: f"ds_read_b64_tr_b16 {vr(F+8+4*j+2*hf,2)}, v{AWD} offset:{j*8192 + t*2048 + 512*hf}"
        return [f"ds_read_b128 {vr(F,4)}, v{AX+t}", w(0, 0), w(0, 1),
                f"ds_read_b128 {vr(F+4,4)}, v{AX+t} offset:4096", w(1, 0), w(1, 1), w(2, 0), w(2, 1)]

    def main_loop(tag, typeK):
        def m(F, k):
            if "nomfma" in EXP:
                return
            rt, j = k & 1, k >> 1
            X, W = F + 4 * rt, F + 8 + 4 * j
            if typeK and j > 0:
                mfma(a, ACC(rt, j), X, W, ACC(rt, j))
            else:
                mfma(a, ACC(rt, j), W, X, ACC(rt, j))

        def step(F, R):
            a("s_waitcnt lgkmcnt(5)")
            m(F, 0)
            a(R[0]); a(R[1])
            a("s_waitcnt lgkmcnt(6)")
            m(F, 1)
            a(R[2]); a(R[3])
            a("s_waitcnt lgkmcnt(6)")
            m(F, 2)
            a(R[4]); a(R[5])
            m(F, 3)
            a(R[6]); a(R[7])
            a("s_waitcnt lgkmcnt(8)")
            m(F, 4)
            m(F, 5)
        a.label(f"K1_loop{tag}")
        step(FS[0], reads(FS[1], 1))
        step(FS[1], reads(FS[0], 2))
        step(FS[0], reads(FS[1], 3))
        F = FS[1]
        a("s_waitcnt lgkmcnt(0)")
        m(F, 0)
        m(F, 1)
        a("s_cmp_eq_u32 s49, 7")
        a(f"s_cbranch_scc1 K1_last{tag}")
        a("s_barrier")
        a("s_add_u32 s50, s50, 1")
        a(f"s_mov_b32 s3, {STAGE}")
        a("s_cmp_eq_u32 s50, 3")
        a(f"s_cselect_b32 s3, {(-2*STAGE) & 0xffffffff}, s3")
        a("s_cselect_b32 s50, 0, s50")
        a(f"v_add_u32 v{AX}, s3, v{AX}")
        a(f"v_add_u32 v{AWD}, s3, v{AWD}")
        R = reads(FS[0], 0)
        a(R[0]); a(R[1]); a(R[2])
        m(F, 2)
        a(R[3]); a(R[4]); a(R[5])
        m(F, 3)
        a(R[6]); a(R[7])
        for r in range(AX + 1, AX + 4):
            a(f"v_add_u32 v{r}, s3, v{r}")
        m(F, 4)
        a("s_add_u32 s49, s49, 1")
        m(F, 5)
        a(f"s_branch K1_loop{tag}")
        a.label(f"K1_last{tag}")
        for k in range(2, 6):
            m(F, k)
        stamp(a, 3)
        stamp(a, 4)
        stamp(a, 5)
        if STAMP:
            a("s_waitcnt lgkmcnt(0)")
        a("s_lshl_b32 s50, s33, 2")
        a("s_lshl_b32 s3, s35, 1")
        a("s_add_u32 s50, s50, s3")
        a("s_lshl_b32 s58, s51, 6")
        a("s_add_u32 s58, s58, s50")
        a("v_lshlrev_b32 v9, 4, v0")
        a("s_waitcnt vmcnt(0)")
        for i in range(8):
            a(f"v_lshl_or_b32 v{WPH+i}, v{WRAW+1+2*i}, 16, v{WRAW+2*i}")
        for rt in range(2):
            for i in range(8):
                a(f"v_cvt_pk_bf16_f32 v{XF[rt]+i}, v{ACC(rt,0)+2*i}, v{ACC(rt,0)+2*i+1}")

    XF = [112, 120]
    VF = [128, 136]
    ST = 144
    PD = [176, 192]
    T0 = [208, 224]
    TT = [16, 32]
    KV = [48, 64]
    IP, IM = 80, 84
    BV = [88, 96]

    a("s_mov_b32 s49, 0")
    a("s_mov_b32 s50, 0")
    stamp(a, 1)
    a("s_barrier")
    stamp(a, 2)
    if STAMP:
        a("s_waitcnt lgkmcnt(0)")
    for r in reads(FS[0], 0):
        a(r)
    a("s_cmp_eq_u32 s57, 0")
    a("s_cbranch_scc1 K1_loopK")

    main_loop("Q", False)
    a(f"s_mov_b32 s60, {f32bits(0.25*LOG2E):#x}")
    a("s_mov_b32 s61, s60")
    a("s_lshl_b32 s4, s58, 10")
    a(f"s_add_u32 s5, s4, {64*1024}")
    a("s_lshl_b32 s6, s58, 11")
    a(f"s_add_u32 s6, s6, {WS_KVB}")
    a(f"s_add_u32 s7, s6, {64*2048}")
    for rt in range(2):
        S0 = ST if rt == 0 else 128
        for i in range(8):
            a(f"v_pk_mul_f32 {vr(ACC(rt,1)+2*i,2)}, {vr(ACC(rt,1)+2*i,2)}, s[60:61]")
        for i in range(8):
            a(f"v_cvt_pk_bf16_f32 v{S0+i}, v{ACC(rt,1)+2*i}, v{ACC(rt,1)+2*i+1}")
        for i in range(8):
            a(f"v_cvt_pk_bf16_f32 v{S0+8+i}, v{ACC(rt,2)+2*i}, v{ACC(rt,2)+2*i+1}")
        a(f"buffer_store_dwordx4 {vr(S0,4)}, v9, {sr(SWS,4)}, s4 offen offset:{rt*1024}")
        a(f"buffer_store_dwordx4 {vr(S0+4,4)}, v9, {sr(SWS,4)}, s5 offen offset:{rt*1024}")
        a(f"buffer_store_dwordx4 {vr(S0+8,4)}, v9, {sr(SWS,4)}, s6 offen offset:{rt*2048}")
        a(f"buffer_store_dwordx4 {vr(S0+12,4)}, v9, {sr(SWS,4)}, s7 offen offset:{rt*2048}")
    a("s_lshl_b32 s4, s58, 11")
    a(f"s_add_u32 s4, s4, {WS_PHIQ}")
    a(f"s_add_u32 s5, s4, {64*2048}")
    a("s_branch K1_feat")

    main_loop("K", True)
    a("v_and_b32 v10, 16, v0")
    a("v_cmp_ne_u32 s[6:7], 0, v10")
    a("v_lshlrev_b32 v10, 13, v10")
    a("v_and_b32 v11, 0x2f, v0")
    a("v_lshlrev_b32 v11, 4, v11")
    a("v_add_u32 v10, v10, v11")
    a("s_lshl_b32 s4, s58, 11")
    a(f"s_add_u32 s4, s4, {WS_KVB}")
    for rt in range(2):
        for i in range(8):
            a(f"v_cvt_pk_bf16_f32 v{ST+8*rt+i}, v{ACC(rt,2)+2*i}, v{ACC(rt,2)+2*i+1}")
        a(f"buffer_store_dwordx4 {vr(ST+8*rt,4)}, v10, {sr(SWS,4)}, s4 offen offset:{rt*2048+1024}")
        a(f"buffer_store_dwordx4 {vr(ST+8*rt+4,4)}, v10, {sr(SWS,4)}, s4 offen offset:{rt*2048+1280}")
    for rt in range(2):
        for i in range(8):
            a(f"v_cvt_pk_bf16_f32 v{VF[rt]+i}, v{ACC(rt,1)+2*i}, v{ACC(rt,1)+2*i+1}")
    a("v_lshlrev_b32 v10, 2, v2")
    a("v_sub_u32 v10, v1, v10")
    a("v_mov_b32 v11, 0x3f80")
    a("v_mov_b32 v12, 0x3f800000")
    a("v_mov_b32 v104, 0x3f803f80")
    for base, add in ((IP, 0), (IM, 16)):
        for p in range(4):
            f0 = (2 * p if p < 2 else 8 + 2 * (p - 2)) + add
            a(f"v_cmp_eq_u32 s[4:5], {f0}, v10")
            a(f"v_cmp_eq_u32 s[62:63], {f0+1}, v10")
            a("s_nop 1")
            a(f"v_cndmask_b32 v13, 0, v11, s[4:5]")
            a(f"v_cndmask_b32 v{base+p}, v13, v12, s[62:63]")
    for i in range(0, 32, 2):
        a(f"v_mov_b64 {vr(KV[0]+i,2)}, 0")

    a.label("K1_feat")
    a(f"s_mov_b32 s60, {f32bits(LOG2E):#x}")
    a("s_mov_b32 s61, s60")
    a("s_mov_b32 s49, 0")
    a.label("K1_featloop")
    mfma(a, PD[0], WPH, XF[0], "0")
    mfma(a, PD[1], WPH + 4, XF[0] + 4, "0")
    a("s_nop 7")
    a("s_nop 2")
    H = (0, 1)
    M = [(10, 12, 240, 241), (14, 242, 243, 244)]
    for h in H:
        P = PD[h]
        a(f"v_max3_f32 v{M[h][0]}, v{P}, v{P+1}, v{P+2}")
        a(f"v_min3_f32 v{M[h][1]}, v{P}, v{P+1}, v{P+2}")
    for o in (3, 5):
        for h in H:
            P = PD[h]
            a(f"v_max3_f32 v{M[h][0]}, v{M[h][0]}, v{P+o}, v{P+o+1}")
            a(f"v_min3_f32 v{M[h][1]}, v{M[h][1]}, v{P+o}, v{P+o+1}")
    for h in H:
        P = PD[h]
        a(f"v_max_f32 v{M[h][0]}, v{M[h][0]}, v{P+7}")
        a(f"v_min_f32 v{M[h][1]}, v{M[h][1]}, v{P+7}")
    for h in H:
        a(f"v_mov_b32 v{M[h][2]}, v{M[h][0]}")
        a(f"v_mov_b32 v{M[h][3]}, v{M[h][1]}")
    a("s_nop 1")
    for h in H:
        a(f"v_permlane32_swap_b32 v{M[h][0]}, v{M[h][2]}")
        a(f"v_permlane32_swap_b32 v{M[h][1]}, v{M[h][3]}")
    a("s_nop 1")
    for h in H:
        a(f"v_max_f32 v{M[h][0]}, v{M[h][0]}, v{M[h][2]}")
        a(f"v_min_f32 v{M[h][1]}, v{M[h][1]}, v{M[h][3]}")
    for h in H:
        a(f"v_mul_f32 v{M[h][0]}, s60, v{M[h][0]}")
        a(f"v_mul_f32 v{M[h][1]}, s60, v{M[h][1]}")
    for i in range(4):
        for h in H:
            a(f"v_pk_fma_f32 {vr(T0[h]+2*i,2)}, {vr(PD[h]+2*i,2)}, s[60:61], {vr(M[h][0],2)} op_sel_hi:[1,1,0] neg_lo:[0,0,1] neg_hi:[0,0,1]")
            a(f"v_pk_fma_f32 {vr(T0[h]+8+2*i,2)}, {vr(PD[h]+2*i,2)}, s[60:61], {vr(M[h][1],2)} op_sel_hi:[1,1,0] neg_lo:[1,0,0] neg_hi:[1,0,0]")
    for i in range(16):
        for h in H:
            a(f"v_exp_f32 v{T0[h]+i}, v{T0[h]+i}")
    for h in H:
        for g in range(2):
            a(f"v_pk_add_f32 {vr(PD[h]+4*g,2)}, {vr(T0[h]+8*g,2)}, {vr(T0[h]+8*g+2,2)}")
            a(f"v_pk_add_f32 {vr(PD[h]+4*g+2,2)}, {vr(T0[h]+8*g+4,2)}, {vr(T0[h]+8*g+6,2)}")
    for h in H:
        for g in range(2):
            a(f"v_pk_add_f32 {vr(PD[h]+4*g,2)}, {vr(PD[h]+4*g,2)}, {vr(PD[h]+4*g+2,2)}")
    for h in H:
        a(f"v_add_f32 v{M[h][0]}, v{PD[h]}, v{PD[h]+1}")
        a(f"v_add_f32 v{M[h][1]}, v{PD[h]+4}, v{PD[h]+5}")
    for h in H:
        a(f"v_mov_b32 v{M[h][2]}, v{M[h][0]}")
        a(f"v_mov_b32 v{M[h][3]}, v{M[h][1]}")
    a("s_nop 1")
    for h in H:
        a(f"v_permlane32_swap_b32 v{M[h][0]}, v{M[h][2]}")
        a(f"v_permlane32_swap_b32 v{M[h][1]}, v{M[h][3]}")
    a("s_nop 1")
    for h in H:
        a(f"v_add_f32 v{M[h][0]}, v{M[h][0]}, v{M[h][2]}")
        a(f"v_add_f32 v{M[h][1]}, v{M[h][1]}, v{M[h][3]}")
    for h in H:
        a(f"v_rcp_f32 v{M[h][0]}, v{M[h][0]}")
        a(f"v_rcp_f32 v{M[h][1]}, v{M[h][1]}")
    a("s_nop 0")
    for i in range(4):
        for h in H:
            a(f"v_pk_mul_f32 {vr(T0[h]+2*i,2)}, {vr(T0[h]+2*i,2)}, {vr(M[h][0],2)} op_sel_hi:[1,0]")
            a(f"v_pk_mul_f32 {vr(T0[h]+8+2*i,2)}, {vr(T0[h]+8+2*i,2)}, {vr(M[h][1],2)} op_sel_hi:[1,0]")
    for i in range(8):
        for h in H:
            a(f"v_cvt_pk_bf16_f32 v{PD[h]+8+i}, v{T0[h]+2*i}, v{T0[h]+2*i+1}")
    a("s_cmp_eq_u32 s57, 0")
    a("s_cbranch_scc1 K1_featK")
    for h in range(2):
        a(f"buffer_store_dwordx4 {vr(PD[h]+8,4)}, v9, {sr(SWS,4)}, s{4+h} offen")
        a(f"buffer_store_dwordx4 {vr(PD[h]+12,4)}, v9, {sr(SWS,4)}, s{4+h} offen offset:1024")
    a("s_add_u32 s4, s4, 2048")
    a("s_add_u32 s5, s5, 2048")
    a("s_branch K1_featnext")
    a.label("K1_featK")
    for h in range(2):
        mfma(a, TT[h], PD[h] + 8, IP, "0")
        mfma(a, TT[h], PD[h] + 12, IM, TT[h])
    for i in range(8):
        a(f"v_cndmask_b32 v{BV[0]+i}, v{VF[0]+i}, v104, s[6:7]")
        a(f"v_cndmask_b32 v{BV[1]+i}, v104, v{VF[0]+i}, s[6:7]")
    for h in range(2):
        for i in range(8):
            a(f"v_cvt_pk_bf16_f32 v{PD[h]+i}, v{TT[h]+2*i}, v{TT[h]+2*i+1}")
    a("s_nop 1")
    for h in range(2):
        mfma(a, KV[h], PD[h], BV[h], KV[h])
        mfma(a, KV[h], PD[h] + 4, BV[h] + 4, KV[h])
    for i in range(0, 8, 2):
        a(f"v_mov_b64 {vr(VF[0]+i,2)}, {vr(VF[1]+i,2)}")
    a.label("K1_featnext")
    for i in range(0, 8, 2):
        a(f"v_mov_b64 {vr(XF[0]+i,2)}, {vr(XF[1]+i,2)}")
    a("s_add_u32 s49, s49, 1")
    a("s_cmp_lt_u32 s49, 2")
    a("s_cbranch_scc1 K1_featloop")
    stamp(a, 4)
    a("s_cmp_eq_u32 s57, 0")
    a("s_cbranch_scc0 K1_flush" if STAMP else "s_cbranch_scc0 K1_end")
    a("s_sub_u32 s3, s32, 4")
    a("s_lshl_b32 s4, s3, 12")
    a(f"s_add_u32 s4, s4, {RED}")
    a("v_add_u32 v10, s4, v9")
    a("v_xor_b32 v11, 4096, v10")
    a("s_cmp_eq_u32 s35, 0")
    a("s_cbranch_scc1 K1_r0")
    for q in range(4):
        a(f"ds_write_b128 v10, {vr(KV[0]+4*q,4)} offset:{q*1024}")
    a("s_waitcnt lgkmcnt(0)")
    for i in range(0, 16, 2):
        a(f"v_mov_b64 {vr(KV[0]+i,2)}, {vr(KV[1]+i,2)}")
    a("s_branch K1_r1")
    a.label("K1_r0")
    for q in range(4):
        a(f"ds_write_b128 v10, {vr(KV[1]+4*q,4)} offset:{q*1024}")
    a.label("K1_r1")
    a("s_lshl_b32 s4, s35, 4")
    a("v_xor_b32 v3, s4, v1")
    a("s_lshl_b32 s4, s33, 5")
    a("s_add_u32 s4, s4, s51")
    a("s_add_u32 s4, s4, s35")
    a("s_lshl_b32 s5, s4, 11")
    a(f"s_add_u32 s5, s5, {WS_KVP}")
    a("s_lshl_b32 s4, s4, 7")
    a(f"s_add_u32 s4, s4, {WS_ZP}")
    a("v_lshlrev_b32 v12, 7, v2")
    a("v_lshlrev_b32 v13, 3, v3")
    a("v_add3_u32 v12, v12, v13, s5")
    a("v_lshlrev_b32 v13, 3, v2")
    a("v_add_u32 v13, s4, v13")
    a("v_cmp_gt_u32 s[4:5], 16, v3")
    a("v_cmp_eq_u32 s[6:7], 16, v3")
    a("v_mov_b32 v14, 0x7ffff000")
    a("v_mov_b32 v15, 256")
    a("v_cndmask_b32 v13, v14, v13, s[6:7]")
    a("v_cndmask_b32 v12, v13, v12, s[4:5]")
    a("v_cndmask_b32 v15, 16, v15, s[4:5]")
    a("s_waitcnt lgkmcnt(0)")
    a("s_barrier")
    for q in range(4):
        a(f"ds_read_b128 {vr(16+4*q,4)}, v11 offset:{q*1024}")
    a("s_waitcnt lgkmcnt(0)")
    for i in range(8):
        a(f"v_pk_add_f32 {vr(16+2*i,2)}, {vr(16+2*i,2)}, {vr(KV[0]+2*i,2)}")
    for p in range(8):
        a(f"buffer_store_dwordx2 {vr(16+2*p,2)}, v12, {sr(SWS,4)}, 0 offen")
        if p < 7:
            a("v_add_u32 v12, v12, v15")
    if STAMP:
        a.label("K1_flush")
        a("s_waitcnt vmcnt(0)")
        stamp(a, 6)
        stamp_flush(a, 0, 8, 32, SWS)
    a.label("K1_end")
    a("s_endpgm")
    return kd(kn, 248, 64)


def gen_k2(a):
    kn = "attn_kernel"
    kernel_begin(a, kn)
    SWS = 8
    UNR = 4
    PRIO = [(32, 2), (52, 1), (60, 0)]
    XCH = 132 * 1024
    CNT = XCH + 2048
    T_LD, T_SUM, T_OA = 12, 24, 56
    a("s_cmp_ge_u32 s2, 256")
    a("s_cbranch_scc1 K2_end")
    stamp(a, 0)
    if STAMP:
        a(f"s_memrealtime s[{STB+14}:{STB+15}]")
    a("s_load_dwordx2 s[4:5], s[0:1], 80")
    a("s_load_dwordx2 s[6:7], s[0:1], 24")
    a("s_load_dwordx2 s[30:31], s[0:1], 48")
    a("v_lshrrev_b32 v1, 6, v0")
    a("v_and_b32 v0, 63, v0")
    a("v_readfirstlane_b32 s28, v1")
    a("s_and_b32 s3, s2, 7")
    a("s_lshl_b32 s13, s3, 2")
    a("s_lshr_b32 s3, s2, 3")
    a("s_and_b32 s3, s3, 3")
    a("s_add_u32 s13, s13, s3")
    a("s_lshr_b32 s14, s2, 5")
    a("v_lshlrev_b32 v1, 4, v0")
    a("s_setprio 3")
    a("s_cmp_lg_u32 s28, 0")
    a("s_cbranch_scc1 K2_compute")
    a("s_lshl_b32 s17, s13, 17")
    a(f"s_add_u32 s17, s17, {WS_KVB}")
    a("s_mov_b32 s18, 0")
    a("s_waitcnt lgkmcnt(0)")
    srd(a, SWS, 4, WS_SIZE)
    a(f"v_mov_b32 v2, {CNT}")
    a("v_mov_b32 v3, 0")
    a("ds_write_b32 v2, v3")
    a.label("K2_ld_loop")
    for i in range(4):
        a(f"s_add_u32 m0, s18, {i*1024}")
        a(f"s_add_u32 s19, s17, {i*1024}")
        a(f"buffer_load_dwordx4 v1, {sr(SWS,4)}, s19 offen lds")
    a("s_add_u32 s17, s17, 4096")
    a("s_add_u32 s18, s18, 4096")
    a(f"s_cmp_lg_u32 s18, {28*1024}")
    a("s_cbranch_scc1 K2_ld_next")
    a("s_waitcnt vmcnt(8) lgkmcnt(0)")
    a("s_barrier")
    a.label("K2_ld_next")
    a(f"s_cmp_lt_u32 s18, {128*1024}")
    a("s_cbranch_scc1 K2_ld_loop")
    a("s_waitcnt vmcnt(0)")
    stamp(a, 1)
    a("s_barrier")
    for i_ in (2, 3, 4, 5):
        stamp(a, i_)
    a("s_setprio 0")
    a.label("K2_ld_poll")
    a("s_sleep 8")
    a("ds_read_b32 v3, v2")
    a("s_waitcnt lgkmcnt(0)")
    a("v_readfirstlane_b32 s3, v3")
    a("s_cmp_lt_u32 s3, 8")
    a("s_cbranch_scc1 K2_ld_poll")
    srd(a, 12, 6, 512 * 512 * 2)
    srd(a, 16, 30, 512 * 512 * 2)
    a("s_lshr_b32 s3, s2, 3")
    a("s_lshl_b32 s3, s3, 14")
    a("s_mov_b32 s20, 0")
    a.label("K2_pf_loop")
    for i in range(4):
        a(f"buffer_load_dwordx4 {vr(4+8*i,4)}, v1, s[12:15], s3 offen offset:{i*1024}")
        a(f"buffer_load_dwordx4 {vr(8+8*i,4)}, v1, s[16:19], s3 offen offset:{i*1024}")
    a("s_add_u32 s3, s3, 4096")
    a("s_add_u32 s20, s20, 1")
    a("s_cmp_lt_u32 s20, 4")
    a("s_cbranch_scc1 K2_pf_loop")
    a("s_branch K2_flush" if STAMP else "s_branch K2_end")

    a.label("K2_compute")
    a("s_sub_u32 s12, s28, 1")
    a("s_lshl_b32 s15, s14, 3")
    a("s_add_u32 s15, s15, s12")
    a("s_lshl_b32 s16, s13, 6")
    a("s_add_u32 s16, s16, s15")
    QF = 4
    KF = [8, 12]
    VF = [16, 24]
    P = 32
    O = 40
    CN = 56
    S = [72, 88]
    PH = 104
    KP = 112
    GV = 144
    a("v_and_b32 v2, 31, v0")
    a("s_lshl_b32 s3, s15, 5")
    a("v_add_u32 v2, s3, v2")
    a("v_lshlrev_b32 v2, 2, v2")
    a(f"v_add_u32 v2, {WS_G}, v2")
    a("s_lshl_b32 s19, s16, 10")
    a("s_waitcnt lgkmcnt(0)")
    srd(a, SWS, 4, WS_SIZE)
    a(f"buffer_load_dwordx4 {vr(QF,4)}, v1, {sr(SWS,4)}, s19 offen")
    a(f"buffer_load_dword v{GV}, v2, {sr(SWS,4)}, 0 offen")
    a("v_and_b32 v2, 27, v0")
    a("v_cmp_eq_u32 s[24:25], 16, v2")
    a("v_mov_b32 v3, 0x3f803f80")
    a("s_mov_b32 s20, 0x0000ffff")
    a("s_mov_b32 s21, 0x0000ffff")
    a(f"v_cndmask_b32 v{VF[0]}, 0, v3, s[24:25]")
    for i in range(1, 16):
        a(f"v_mov_b32 v{VF[0]+i}, v{VF[0]}")
    a("s_lshl_b32 s19, s13, 3")
    a("s_add_u32 s19, s19, s12")
    a("s_lshl_b32 s24, s19, 8")
    a(f"s_add_u32 s24, s24, {WS_KVP}")
    a("s_lshl_b32 s25, s19, 4")
    a(f"s_add_u32 s25, s25, {WS_ZP}")
    a("v_lshrrev_b32 v40, 5, v0")
    a("v_and_b32 v41, 15, v0")
    a("v_lshlrev_b32 v44, 7, v40")
    a("v_lshlrev_b32 v41, 3, v41")
    a("v_add3_u32 v44, v44, v41, s24")
    a("v_lshlrev_b32 v40, 3, v40")
    a("v_add_u32 v40, s25, v40")
    a("v_and_b32 v41, 16, v0")
    a("v_cmp_ne_u32 s[24:25], 0, v41")
    a("v_mov_b32 v42, 4096")
    a("v_mov_b32 v43, 65536")
    a("v_cndmask_b32 v145, v44, v40, s[24:25]")
    a("v_cndmask_b32 v146, v43, v42, s[24:25]")
    stamp(a, 1)
    a("s_waitcnt vmcnt(0)")
    a("s_barrier")
    stamp(a, 2)
    if STAMP:
        a("s_waitcnt lgkmcnt(0)")
    a(f"ds_read_b128 {vr(KF[0],4)}, v1")
    a("s_waitcnt lgkmcnt(0)")
    mfma(a, S[1], KF[0], QF, "0")
    a("s_nop 7")
    a("s_nop 3")
    X = S[1]
    a(f"v_max3_f32 v2, v{X}, v{X+1}, v{X+2}")
    for i in range(3, 15, 2):
        a(f"v_max3_f32 v2, v2, v{X+i}, v{X+i+1}")
    a(f"v_max_f32 v2, v2, v{X+15}")
    cross_half(a, "v_max_f32", 2, 3)
    a("s_mov_b32 s22, 0")
    evmask = 0
    for t_ in [8, T_LD, T_SUM, T_OA] + [p_[0] for p_ in PRIO]:
        evmask |= 1 << (t_ // 4)
    a(f"s_mov_b32 s29, {evmask:#x}")
    a.label("K2_restart")
    a("v_mov_b32 v3, v1")
    a(f"ds_read_b128 {vr(KF[0],4)}, v3")
    a(f"ds_read_b128 {vr(KF[1],4)}, v3 offset:2048")
    a("s_mov_b64 exec, s[20:21]")
    a(f"ds_read_b128 {vr(VF[0],4)}, v3 offset:1024")
    a(f"ds_read_b128 {vr(VF[0]+4,4)}, v3 offset:1280")
    a("s_mov_b64 exec, -1")
    for i in range(16):
        a(f"v_sub_f32 v{CN+i}, 0, v2")
    for i in range(16):
        a(f"v_mov_b32 v{O+i}, 0")
    a("s_waitcnt lgkmcnt(3)")
    mfma(a, S[0], KF[0], QF, CN)
    a("s_mov_b32 s23, 0")
    stamp(a, 3)
    a("s_nop 7")
    a("s_nop 3")
    a.raw("    .p2align 3")
    a.label("K2_loop")
    for u in range(UNR):
        X, Y = S[u & 1], S[(u + 1) & 1]
        Kn = KF[(u + 1) & 1]
        Kp = KF[u & 1]
        Vc = VF[u & 1]
        Vn = VF[(u + 1) & 1]
        a(f"ds_read_b128 {vr(Kp,4)}, v3 offset:{(u+2)*2048}")
        a("s_mov_b64 exec, s[20:21]")
        a(f"ds_read_b128 {vr(Vn,4)}, v3 offset:{(u+1)*2048+1024}")
        a(f"ds_read_b128 {vr(Vn+4,4)}, v3 offset:{(u+1)*2048+1280}")
        a("s_mov_b64 exec, -1")
        for i in range(4):
            a(f"v_exp_f32 v{X+i}, v{X+i}")
        a("s_waitcnt lgkmcnt(3)")
        mfma(a, Y, Kn, QF, CN)
        for i in range(4, 8):
            a(f"v_exp_f32 v{X+i}, v{X+i}")
        for i in range(4):
            a(f"v_cvt_pk_bf16_f32 v{P+i}, v{X+2*i}, v{X+2*i+1}")
        for i in range(8, 10):
            a(f"v_exp_f32 v{X+i}, v{X+i}")
        mfma(a, O, Vc, P, O)
        for i in range(10, 16):
            a(f"v_exp_f32 v{X+i}, v{X+i}")
        for i in range(4, 8):
            a(f"v_cvt_pk_bf16_f32 v{P+i}, v{X+2*i}, v{X+2*i+1}")
        if u == UNR - 1:
            a(f"v_add_u32 v3, {UNR*2048}, v3")
            a(f"s_add_u32 s23, s23, {UNR}")
        else:
            a("s_nop 1")
        mfma(a, O, Vc + 4, P + 4, O)
    a("s_lshr_b32 s3, s23, 2")
    a("s_bitcmp1_b32 s29, s3")
    a("s_cbranch_scc0 K2_noev")
    a("s_cmp_lg_u32 s23, 8")
    a("s_cbranch_scc1 K2_e1")
    a("s_barrier")
    a("s_branch K2_loop")
    a.label("K2_e1")
    a(f"s_cmp_lg_u32 s23, {T_LD}")
    a("s_cbranch_scc1 K2_e2")
    stamp(a, 1)
    a("s_lshl_b32 s19, s16, 11")
    a(f"s_add_u32 s19, s19, {WS_PHIQ}")
    a(f"buffer_load_dwordx4 {vr(PH,4)}, v1, {sr(SWS,4)}, s19 offen")
    a(f"buffer_load_dwordx4 {vr(PH+4,4)}, v1, {sr(SWS,4)}, s19 offen offset:1024")
    for rb in range(16):
        a(f"buffer_load_dwordx2 {vr(KP+2*rb,2)}, v145, {sr(SWS,4)}, 0 offen")
        if rb < 15:
            a("v_add_u32 v145, v145, v146")
    stamp(a, 2)
    if STAMP:
        a("s_waitcnt lgkmcnt(0)")
    a("s_branch K2_loop")
    a.label("K2_e2")
    a(f"s_cmp_lg_u32 s23, {T_SUM}")
    a("s_cbranch_scc1 K2_e3")
    a("s_waitcnt vmcnt(0)")
    for st in (8, 4, 2, 1):
        for i in range(st):
            a(f"v_add_f32 v{KP+2*i}, v{KP+2*i}, v{KP+2*(i+st)}")
            a(f"v_add_f32 v{KP+2*i+1}, v{KP+2*i+1}, v{KP+2*(i+st)+1}")
    a(f"v_cvt_pk_bf16_f32 v{KP}, v{KP}, v{KP+1}")
    a(f"v_lshlrev_b32 v{KP+2}, 5, v0")
    a(f"v_add_u32 v{KP+2}, {XCH}, v{KP+2}")
    a("s_lshl_b32 s19, s12, 2")
    a(f"v_add_u32 v{KP+3}, s19, v{KP+2}")
    a(f"ds_write_b32 v{KP+3}, v{KP}")
    a(f"v_mov_b32 v{KP+12}, {CNT}")
    a(f"v_mov_b32 v{KP+13}, 1")
    a("s_waitcnt lgkmcnt(0)")
    a("s_mov_b64 exec, 1")
    a(f"ds_add_u32 v{KP+12}, v{KP+13}")
    a("s_mov_b64 exec, -1")
    a("s_waitcnt lgkmcnt(0)")
    a("s_branch K2_loop")
    a.label("K2_e3")
    a(f"s_cmp_lg_u32 s23, {T_OA}")
    a("s_cbranch_scc1 K2_e4")
    a.label("K2_poll")
    a(f"ds_read_b32 v{KP+13}, v{KP+12}")
    a("s_waitcnt lgkmcnt(0)")
    a(f"v_readfirstlane_b32 s3, v{KP+13}")
    a("s_cmp_lt_u32 s3, 8")
    a("s_cbranch_scc1 K2_poll")
    a(f"ds_read_b128 {vr(KP+4,4)}, v{KP+2}")
    a(f"ds_read_b128 {vr(KP+8,4)}, v{KP+2} offset:16")
    D = KP + 16
    a("s_waitcnt lgkmcnt(0)")
    mfma(a, D, KP + 4, PH, "0")
    mfma(a, D, KP + 8, PH + 4, D)
    a("s_lshl_b32 s19, s16, 10")
    a(f"s_add_u32 s19, s19, {WS_O}")
    a("s_nop 7")
    a("s_nop 1")
    a(f"v_add_f32 v{KP}, {f32bits(1e-6):#x}, v{D+8}")
    a(f"v_rcp_f32 v{KP}, v{KP}")
    a("s_nop 0")
    a(f"v_mul_f32 v{KP}, v{KP}, v{GV}")
    for i in range(8):
        a(f"v_mul_f32 v{D+i}, v{D+i}, v{KP}")
    for i in range(4):
        a(f"v_cvt_pk_bf16_f32 v{PH+i}, v{D+2*i}, v{D+2*i+1}")
    a(f"buffer_store_dwordx4 {vr(PH,4)}, v1, {sr(SWS,4)}, s19 offen")
    stamp(a, 4)
    if STAMP:
        a("s_waitcnt lgkmcnt(0)")
    a("s_branch K2_loop")
    a.label("K2_e4")
    for k, (tt, pr) in enumerate(PRIO):
        a(f"s_cmp_lg_u32 s23, {tt}")
        a(f"s_cbranch_scc1 K2_p{k}")
        a(f"s_setprio {pr}")
        a.label(f"K2_p{k}")
    a.label("K2_noev")
    a("s_cmp_lt_u32 s23, 64")
    a("s_cbranch_scc1 K2_loop")
    a("s_waitcnt lgkmcnt(0)")
    stamp(a, 5)
    a("s_nop 7")
    a("s_nop 3")
    a("s_cmp_lg_u32 s22, 0")
    a("s_cbranch_scc1 K2_fin")
    a(f"v_mov_b32 v{P}, {f32bits(2.0**64):#x}")
    a(f"v_cmp_nlt_f32 s[24:25], v{O+8}, v{P}")
    a(f"v_mov_b32 v{P+1}, 0x7f800000")
    for i in range(8):
        a(f"v_cmp_nlt_f32 s[26:27], abs(v{O+i}), v{P+1}")
        a("s_or_b64 s[24:25], s[24:25], s[26:27]")
    a("s_cmp_eq_u64 s[24:25], 0")
    a("s_cbranch_scc1 K2_fin")
    a("v_mov_b32 v3, v1")
    a("v_mov_b32 v2, 0xff800000")
    a("s_mov_b32 s23, 0")
    a.label("K2_maxloop")
    a(f"ds_read_b128 {vr(KF[0],4)}, v3")
    a("s_waitcnt lgkmcnt(0)")
    mfma(a, S[0], KF[0], QF, "0")
    a("v_add_u32 v3, 2048, v3")
    a("s_add_u32 s23, s23, 1")
    a("s_nop 7")
    a("s_nop 3")
    for i in range(0, 16, 2):
        a(f"v_max3_f32 v2, v2, v{S[0]+i}, v{S[0]+i+1}")
    a("s_cmp_lt_u32 s23, 64")
    a("s_cbranch_scc1 K2_maxloop")
    cross_half(a, "v_max_f32", 2, 3)
    a("s_mov_b32 s22, 1")
    a("s_mov_b32 s29, 0")
    a("s_branch K2_restart")
    a.label("K2_fin")
    a(f"v_rcp_f32 v2, v{O+8}")
    a(f"v_sub_f32 v3, 1.0, v{GV}")
    a("v_cvt_pk_bf16_f32 v3, v3, v3")
    a("v_lshlrev_b32 v3, 16, v3")
    a("v_mul_f32 v2, v2, v3")
    for i in range(8):
        a(f"v_mul_f32 v{O+i}, v{O+i}, v2")
    for i in range(4):
        a(f"v_cvt_pk_bf16_f32 v{P+i}, v{O+2*i}, v{O+2*i+1}")
    a("s_lshl_b32 s19, s16, 10")
    a(f"s_add_u32 s19, s19, {WS_O + 2*MB}")
    a(f"buffer_store_dwordx4 {vr(P,4)}, v1, {sr(SWS,4)}, s19 offen")
    if STAMP:
        a.label("K2_flush")
        a("s_waitcnt vmcnt(0)")
        stamp(a, 6)
        stamp_flush(a, 1, 8, 28, SWS)
    a.label("K2_end")
    a("s_endpgm")
    return kd(kn, 148, 32)


def gen_k3(a):
    kn = "proj_kernel"
    kernel_begin(a, kn)
    SWS, SWO, SOUT = 8, 12, 16
    AHEAD = 6
    a("s_cmp_ge_u32 s2, 256")
    a("s_cbranch_scc1 K3_end")
    stamp(a, 0)
    if STAMP:
        a(f"s_memrealtime s[{STB+14}:{STB+15}]")
    a("s_load_dwordx2 s[4:5], s[0:1], 80")
    a("s_load_dwordx2 s[6:7], s[0:1], 24")
    a("s_load_dwordx2 s[24:25], s[0:1], 48")
    a("s_load_dwordx2 s[26:27], s[0:1], 64")
    a("v_lshrrev_b32 v1, 6, v0")
    a("v_and_b32 v0, 63, v0")
    a("v_readfirstlane_b32 s20, v1")
    a("s_and_b32 s3, s2, 7")
    a("s_lshl_b32 s21, s3, 2")
    a("s_lshr_b32 s3, s2, 3")
    a("s_and_b32 s22, s3, 3")
    a("s_add_u32 s21, s21, s22")
    a("s_lshr_b32 s22, s3, 2")
    a("s_waitcnt lgkmcnt(0)")
    srd(a, SWS, 4, WS_SIZE)
    srd(a, SOUT, 26, 2 * MB)
    a("s_cmp_ge_u32 s20, 2")
    a("s_cselect_b32 s6, s24, s6")
    a("s_cselect_b32 s7, s25, s7")
    srd(a, SWO, 6, 512 * 512 * 2)
    ACC = 16
    OF = 80
    NSL = AHEAD + 1
    WF = 80 + 8 * NSL
    a("v_lshrrev_b32 v2, 3, v0")
    a("v_lshlrev_b32 v3, 10, v2")
    a("v_and_b32 v4, 16, v0")
    a("v_lshrrev_b32 v4, 2, v4")
    a("v_and_b32 v5, 7, v0")
    a("v_xor_b32 v4, v4, v5")
    a("v_lshlrev_b32 v4, 4, v4")
    a("v_add_u32 v2, v3, v4")
    a("v_lshlrev_b32 v1, 4, v0")
    a("s_and_b32 s3, s20, 1")
    a("s_lshl_b32 s28, s3, 18")
    a("s_lshl_b32 s23, s22, 7")
    a("s_add_u32 s28, s28, s23")
    a("s_lshl_b32 s29, s20, 15")
    a("s_lshr_b32 s30, s20, 1")
    a("s_lshl_b32 s30, s30, 21")
    a("s_lshl_b32 s23, s3, 20")
    a("s_add_u32 s30, s30, s23")
    a("s_lshl_b32 s23, s21, 11")
    a("s_add_u32 s30, s30, s23")
    a(f"s_add_u32 s30, s30, {WS_O}")
    a("v_lshrrev_b32 v3, 5, v0")
    a("v_lshlrev_b32 v3, 2, v3")
    a("v_and_b32 v4, 15, v0")
    a("v_lshrrev_b32 v4, 2, v4")
    a("v_add_u32 v3, v3, v4")
    a("v_lshlrev_b32 v3, 7, v3")
    a("v_and_b32 v4, 8, v0")
    a("v_lshlrev_b32 v4, 3, v4")
    a("v_add_u32 v3, v3, v4")
    a("v_and_b32 v4, 16, v0")
    a("v_lshlrev_b32 v4, 1, v4")
    a("v_add_u32 v3, v3, v4")
    a("v_and_b32 v4, 3, v0")
    a("v_lshlrev_b32 v4, 3, v4")
    a("v_add_u32 v3, v3, v4")
    a("v_add_u32 v3, s29, v3")
    a("v_xor_b32 v4, 64, v3")

    def issue(t):
        sl = OF + 8 * (t % NSL)
        a(f"s_add_u32 m0, s29, {t*2048}")
        a(f"s_add_u32 s23, s28, {t*16384}")
        a(f"buffer_load_dwordx4 v2, {sr(SWO,4)}, s23 offen lds")
        a(f"s_add_u32 m0, s29, {t*2048+1024}")
        a(f"s_add_u32 s23, s28, {t*16384+8192}")
        a(f"buffer_load_dwordx4 v2, {sr(SWO,4)}, s23 offen lds")
        a(f"s_add_u32 s23, s30, {t*65536}")
        a(f"buffer_load_dwordx4 {vr(sl,4)}, v1, {sr(SWS,4)}, s23 offen")
        a(f"buffer_load_dwordx4 {vr(sl+4,4)}, v1, {sr(SWS,4)}, s23 offen offset:1024")

    a("v_and_b32 v5, 31, v0")
    a("s_lshl_b32 s23, s21, 6")
    a("s_lshr_b32 s3, s20, 1")
    a("s_lshl_b32 s3, s3, 5")
    a("s_add_u32 s23, s23, s3")
    a("v_add_u32 v5, s23, v5")
    for t in range(AHEAD):
        issue(t)
    for i in range(64):
        a(f"v_mov_b32 v{ACC+i}, 0")
    stamp(a, 1)
    for t in range(16):
        if t + AHEAD < 16:
            issue(t + AHEAD)
            a(f"s_waitcnt vmcnt({4*AHEAD})")
        else:
            a(f"s_waitcnt vmcnt({4*(15-t)})")
        if t in (0, 8):
            stamp(a, 2 if t == 0 else 3)
            if STAMP:
                a("s_waitcnt lgkmcnt(0)")
        W = WF + 8 * (t & 1)
        a(f"ds_read_b64_tr_b16 {vr(W,2)}, v3 offset:{t*2048}")
        a(f"ds_read_b64_tr_b16 {vr(W+2,2)}, v3 offset:{t*2048+1024}")
        a(f"ds_read_b64_tr_b16 {vr(W+4,2)}, v4 offset:{t*2048}")
        a(f"ds_read_b64_tr_b16 {vr(W+6,2)}, v4 offset:{t*2048+1024}")
        sl = OF + 8 * (t % NSL)
        a("s_waitcnt lgkmcnt(2)")
        mfma(a, ACC, W, sl, ACC)
        mfma(a, ACC + 32, W, sl + 4, ACC + 32)
        a("s_waitcnt lgkmcnt(0)")
        mfma(a, ACC + 16, W + 4, sl, ACC + 16)
        mfma(a, ACC + 48, W + 4, sl + 4, ACC + 48)
    a("s_nop 7")
    a("s_nop 7")
    stamp(a, 4)
    if STAMP:
        a("s_waitcnt lgkmcnt(0)")
    a("v_add_u32 v8, s29, v1")
    for sub in range(4):
        for q in range(4):
            a(f"ds_write_b128 v8, {vr(ACC+16*sub+4*q,4)} offset:{sub*4096+q*1024}")
    a("s_waitcnt lgkmcnt(0)")
    a("s_barrier")
    a("s_lshl_b32 s3, s20, 12")
    a("v_add_u32 v8, s3, v1")
    a("v_add_u32 v9, 65536, v8")
    for w in range(4):
        for q in range(4):
            base = "v8" if w < 2 else "v9"
            a(f"ds_read_b128 {vr(ACC+16*w+4*q,4)}, {base} offset:{(w&1)*32768+q*1024}")
    if STAMP:
        a("s_waitcnt lgkmcnt(0)")
    stamp(a, 5)
    a("s_waitcnt lgkmcnt(0)")
    A_, B_ = ACC, ACC + 32
    T = 80
    for i in range(16):
        a(f"v_add_f32 v{A_+i}, v{A_+i}, v{A_+16+i}")
        a(f"v_add_f32 v{B_+i}, v{B_+i}, v{B_+16+i}")
    for i in range(16):
        a(f"v_add_f32 v{A_+i}, v{A_+i}, v{B_+i}")
    for i in range(8):
        a(f"v_cvt_pk_bf16_f32 v{T+i}, v{A_+2*i}, v{A_+2*i+1}")
    a("s_nop 1")
    a(f"v_permlane32_swap_b32 v{T}, v{T+2}")
    a(f"v_permlane32_swap_b32 v{T+1}, v{T+3}")
    a(f"v_permlane32_swap_b32 v{T+4}, v{T+6}")
    a(f"v_permlane32_swap_b32 v{T+5}, v{T+7}")
    a("v_lshlrev_b32 v5, 10, v5")
    a("v_lshrrev_b32 v6, 5, v0")
    a("v_lshlrev_b32 v6, 4, v6")
    a("v_add_u32 v5, v5, v6")
    a("s_lshl_b32 s3, s22, 7")
    a("s_and_b32 s23, s20, 1")
    a("s_lshl_b32 s23, s23, 6")
    a("s_add_u32 s3, s3, s23")
    a(f"buffer_store_dwordx4 {vr(T,4)}, v5, {sr(SOUT,4)}, s3 offen")
    a(f"buffer_store_dwordx4 {vr(T+4,4)}, v5, {sr(SOUT,4)}, s3 offen offset:32")
    if STAMP:
        a("s_waitcnt vmcnt(0)")
    stamp(a, 6)
    stamp_flush(a, 2, 8, 20, SWS)
    a.label("K3_end")
    a("s_endpgm")
    return kd(kn, WF + 16, 32)


def main():
    a = Asm()
    head = """; gated mix of hedgehog linear attention and softmax attention (generated by dev/gen.py)
; @launch kernel=qkv_kernel grid=(256,1,1) block=(512,1,1) lds=122880
; @launch kernel=attn_kernel grid=(256,1,1) block=(576,1,1) lds=137280
; @launch kernel=proj_kernel grid=(256,1,1) block=(256,1,1) lds=131072
.amdgcn_target "amdgcn-amd-amdhsa--gfx950"
.text
"""
    kds = [gen_k1(a), gen_k2(a), gen_k3(a)]
    out = head + a.text() + '.section .rodata,"a"\n' + "".join(kds)
    path = sys.argv[1] if len(sys.argv) > 1 else f"cdna_kernels/{NAME}.s"
    open(path, "w").write(out)
    print("wrote", path, len(out))


if __name__ == "__main__":
    main()
```

```python
import sys, os

NAME = "gated_mix__linear_kernel_hedgehog__softmax_full_mha__prompt"

MB = 1 << 20
WS_QB = 0
WS_KVB = 2 * MB
WS_PHIQ = 6 * MB
WS_KVP = 10 * MB
WS_ZP = 11 * MB
WS_O = 12 * MB
WS_G = 16 * MB
WS_SIZE = 18 * MB

LOG2E = 1.4426950408889634


def f32bits(x):
    import struct
    return struct.unpack("<I", struct.pack("<f", x))[0]


class Asm:
    def __init__(self):
        self.lines = []

    def __call__(self, s):
        for l in s.strip("\n").split("\n"):
            self.lines.append("    " + l.strip())

    def label(self, l):
        self.lines.append(l + ":")

    def raw(self, s):
        self.lines.append(s)

    def text(self):
        return "\n".join(self.lines) + "\n"


def vr(b, n=1):
    return f"v{b}" if n == 1 else f"v[{b}:{b+n-1}]"


def sr(b, n=1):
    return f"s{b}" if n == 1 else f"s[{b}:{b+n-1}]"


EXP = os.environ.get("EXP", "")


def mfma(a, d, A, B, C):
    c = C if isinstance(C, str) else vr(C, 16)
    a(f"v_mfma_f32_32x32x16_bf16 {vr(d,16)}, {vr(A,4)}, {vr(B,4)}, {c}")


def srd(a, d, ptr, size):
    a(f"s_mov_b32 s{d}, s{ptr}")
    a(f"s_mov_b32 s{d+1}, s{ptr+1}")
    a(f"s_mov_b32 s{d+2}, {size}")
    a(f"s_mov_b32 s{d+3}, 0x00020000")


def kernel_begin(a, name):
    a.raw(f".globl {name}")
    a.raw(".p2align 8")
    a.raw(f".type {name},@function")
    a.label(name)


def kd(name, vgpr, sgpr):
    acc = (vgpr + 3) // 4 * 4
    if STAMP:
        sgpr = 100
    return f""".p2align 6
.amdhsa_kernel {name}
  .amdhsa_next_free_vgpr {vgpr}
  .amdhsa_next_free_sgpr {sgpr}
  .amdhsa_accum_offset {acc}
  .amdhsa_group_segment_fixed_size 0
  .amdhsa_kernarg_size 88
  .amdhsa_user_sgpr_count 2
  .amdhsa_user_sgpr_kernarg_segment_ptr 1
  .amdhsa_system_sgpr_workgroup_id_x 1
.end_amdhsa_kernel
"""


import os
STAMP = os.environ.get("STAMP", "0") == "1"
WS_STAMP = 16 * MB + 65536
STB = 64


def stamp(a, i):
    if STAMP:
        a(f"s_memtime s[{STB+2*i}:{STB+2*i+1}]")


def stamp_flush(a, kidx, n, wave_s, srd_s):
    if not STAMP:
        return
    a(f"s_memrealtime s[{STB+16}:{STB+17}]")
    a(f"s_getreg_b32 s{STB+18}, hwreg(HW_REG_XCC_ID)")
    n = 10
    a("s_waitcnt lgkmcnt(0)")
    a("s_mov_b64 exec, 1")
    a(f"s_lshl_b32 s3, s2, 10")
    a(f"s_lshl_b32 s4, s{wave_s}, 6")
    a("s_add_u32 s3, s3, s4")
    a(f"s_add_u32 s3, s3, {WS_STAMP + kidx*262144}")
    a("v_mov_b32 v1, 0")
    for i in range(n):
        a(f"v_mov_b32 v2, s{STB+2*i}")
        a(f"buffer_store_dword v2, v1, {sr(srd_s,4)}, s3 offen offset:{4*i}")
        a("s_nop 1")


def cross_half(a, op, x, t):
    a(f"v_mov_b32 v{t}, v{x}")
    a("s_nop 1")
    a(f"v_permlane32_swap_b32 v{x}, v{t}")
    a("s_nop 1")
    a(f"{op} v{x}, v{x}, v{t}")


def gen_k1(a):
    kn = "qkv_kernel"
    kernel_begin(a, kn)
    STAGE = 40960
    RED = 81920
    PHL = 122880
    SX, SW0, SW1, SW2, SWS, SPHI, SGW = 8, 12, 16, 20, 24, 28, 52
    a("s_cmp_ge_u32 s2, 256")
    a("s_cbranch_scc1 K1_end")
    stamp(a, 0)
    if STAMP:
        a(f"s_memrealtime s[{STB+14}:{STB+15}]")
    a("s_load_dwordx4 s[36:39], s[0:1], 0")
    a("s_load_dwordx2 s[42:43], s[0:1], 40")
    a("s_load_dwordx2 s[40:41], s[0:1], 16")
    a("s_load_dwordx2 s[44:45], s[0:1], 56")
    a("s_load_dwordx2 s[46:47], s[0:1], 80")
    a("v_lshrrev_b32 v1, 6, v0")
    a("v_and_b32 v0, 63, v0")
    a("v_readfirstlane_b32 s32, v1")
    a("s_and_b32 s3, s2, 1")
    a("s_lshl_b32 s33, s3, 3")
    if "pf" in EXP:
        a("s_xor_b32 s32, s32, 4")
    a("s_lshr_b32 s3, s2, 3")
    a("s_and_b32 s62, s3, 7")
    a("s_add_u32 s33, s33, s62")
    a("s_lshr_b32 s34, s3, 3")
    a("s_and_b32 s4, s2, 6")
    a("s_lshl_b32 s4, s4, 1")
    a("s_add_u32 s34, s34, s4")
    a("s_and_b32 s56, s34, 7")
    a("s_lshr_b32 s57, s34, 3")
    a("s_cmp_lt_u32 s32, 4")
    a("s_cbranch_scc0 K1_compute")

    a("v_lshrrev_b32 v5, 3, v0")
    a("s_lshl_b32 s3, s32, 3")
    a("v_add_u32 v2, s3, v5")
    a("v_lshlrev_b32 v2, 10, v2")
    a("v_lshrrev_b32 v3, 4, v0")
    a("s_and_b32 s3, s32, 1")
    a("s_lshl_b32 s3, s3, 2")
    a("v_add_u32 v3, s3, v3")
    a("v_and_b32 v4, 7, v0")
    a("v_xor_b32 v3, v3, v4")
    a("v_lshlrev_b32 v3, 4, v3")
    a("v_add_u32 v2, v2, v3")
    a("s_lshl_b32 s3, s32, 4")
    a("v_add_u32 v3, s3, v5")
    a("v_mul_u32_u24 v3, 3072, v3")
    a("v_and_b32 v5, 16, v0")
    a("v_lshrrev_b32 v5, 2, v5")
    a("v_xor_b32 v4, v4, v5")
    a("v_lshlrev_b32 v4, 4, v4")
    a("v_add_u32 v3, v3, v4")
    a("s_lshl_b32 s48, s33, 17")
    a("s_lshl_b32 s3, s56, 7")
    a("s_cmp_eq_u32 s57, 0")
    a("s_cselect_b32 s49, 1024, 0")
    a("s_cselect_b32 s58, 2048, 0")
    a("s_max_u32 s59, s58, 1024")
    a("s_add_u32 s49, s49, s3")
    a("s_add_u32 s58, s58, s3")
    a("s_add_u32 s59, s59, s3")
    a("s_lshl_b32 s50, s32, 10")
    a("s_lshl_b32 s60, s32, 11")
    a("s_mov_b32 s51, 0")
    if "rot0" in EXP:
        a("s_mov_b32 s62, 0")
    elif "rotfull" in EXP:
        a("s_and_b32 s3, s34, 3")
        a("s_lshl_b32 s3, s3, 1")
        a("s_add_u32 s62, s62, s3")
        a("s_and_b32 s62, s62, 7")
    elif "rothalf" in EXP:
        a("s_xor_b32 s62, s62, s34")
        a("s_and_b32 s62, s62, 1")
        a("s_lshl_b32 s62, s62, 2")
    elif "rotrb" not in EXP:
        a("s_add_u32 s62, s62, s34")
        a("s_and_b32 s62, s62, 3")
        a("s_lshl_b32 s62, s62, 1")
    a("s_waitcnt lgkmcnt(0)")
    srd(a, SX, 36, 2 * MB)
    srd(a, SW0, 38, 512 * 1536 * 2)
    srd(a, SW2, 42, 512 * 1536 * 2)
    a("s_cmp_eq_u32 s57, 0")
    a("s_cselect_b32 s4, s38, s42")
    a("s_cselect_b32 s5, s39, s43")
    srd(a, SW1, 4, 512 * 1536 * 2)
    if "pf" in EXP:
        a("s_barrier")
    a("s_cmp_ge_u32 s32, 2")
    a("s_cbranch_scc1 K1_ld_loop")
    srd(a, SPHI, 40, 32 * 16 * 16 * 2)
    a("v_lshlrev_b32 v5, 4, v0")
    a(f"s_add_u32 m0, s50, {PHL}")
    a("s_lshl_b32 s6, s56, 11")
    a("s_add_u32 s6, s6, s50")
    a(f"buffer_load_dwordx4 v5, {sr(SPHI,4)}, s6 offen lds")
    a.label("K1_ld_loop")
    a("s_lshl_b32 s6, s62, 7")
    a("s_add_u32 s6, s6, s48")
    a(f"s_mul_i32 s7, s62, {64*3072}")
    for ii in range(4):
        a(f"s_add_u32 m0, s50, {ii*4096}")
        a(f"s_add_u32 s61, s6, {ii*32768}")
        if "nodma" not in EXP:
            a(f"buffer_load_dwordx4 v2, {sr(SX,4)}, s61 offen lds")
    for j, (S, so) in enumerate(((SW0, 49), (SW1, 58), (SW2, 59))):
        a(f"s_add_u32 m0, s60, {16384 + j*8192}")
        a(f"s_add_u32 s61, s{so}, s7")
        if "nodma" not in EXP:
            a(f"buffer_load_dwordx4 v3, {sr(S,4)}, s61 offen lds")
        a(f"s_add_u32 m0, s60, {16384 + j*8192 + 1024}")
        a(f"s_add_u32 s61, s61, {8*3072}")
        if "nodma" not in EXP:
            a(f"buffer_load_dwordx4 v3, {sr(S,4)}, s61 offen lds")
    a("s_add_u32 s62, s62, 1")
    a("s_and_b32 s62, s62, 7")
    a(f"s_add_u32 s50, s50, {STAGE}")
    a(f"s_add_u32 s60, s60, {STAGE}")
    a(f"s_cmp_lt_u32 s50, {3*STAGE}")
    a("s_cbranch_scc1 K1_ld_nowrap")
    a(f"s_sub_u32 s50, s50, {3*STAGE}")
    a(f"s_sub_u32 s60, s60, {3*STAGE}")
    a.label("K1_ld_nowrap")
    a("s_add_u32 s51, s51, 1")
    a("s_cmp_eq_u32 s51, 1")
    a("s_cbranch_scc1 K1_ld_loop")
    a("s_waitcnt vmcnt(10)")
    a("s_barrier")
    a("s_cmp_lt_u32 s51, 8")
    a("s_cbranch_scc1 K1_ld_loop")
    a("s_waitcnt vmcnt(0)")
    stamp(a, 3)
    a("s_barrier")
    for i_ in (1, 2, 4, 5, 6):
        stamp(a, i_)
    srd(a, SWS, 46, WS_SIZE)
    a("s_cmp_lg_u32 s32, 0")
    a("s_cbranch_scc1 K1_flush" if STAMP else "s_cbranch_scc1 K1_end")
    srd(a, SGW, 44, 1024)
    a("s_lshl_b32 s3, s33, 7")
    a("s_lshl_b32 s4, s34, 3")
    a("s_add_u32 s3, s3, s4")
    a("v_lshrrev_b32 v2, 3, v0")
    a("v_add_u32 v2, s3, v2")
    a("v_and_b32 v3, 7, v0")
    a("v_lshlrev_b32 v3, 4, v3")
    a("v_lshlrev_b32 v4, 10, v2")
    a("v_add_u32 v4, v4, v3")
    for j in range(8):
        a(f"buffer_load_dwordx4 {vr(8+4*j,4)}, v4, {sr(SX,4)}, 0 offen offset:{j*128}")
        a(f"buffer_load_dwordx4 {vr(40+4*j,4)}, v3, {sr(SGW,4)}, 0 offen offset:{j*128}")
    a("v_mov_b32 v5, 0")
    a("v_mov_b32 v6, 0")
    a("s_waitcnt vmcnt(0)")
    for j in range(16):
        a(f"v_dot2_f32_bf16 v5, v{8+2*j}, v{40+2*j}, v5")
        a(f"v_dot2_f32_bf16 v6, v{9+2*j}, v{41+2*j}, v6")
    a("s_nop 3")
    a("v_add_f32 v5, v5, v6")
    for off in (0x041F, 0x081F, 0x101F):
        a(f"ds_swizzle_b32 v6, v5 offset:{off}")
        a("s_waitcnt lgkmcnt(0)")
        a("v_add_f32 v5, v5, v6")
    a("v_cvt_pk_bf16_f32 v5, v5, v5")
    a("v_lshlrev_b32 v5, 16, v5")
    a(f"v_mul_f32 v5, {f32bits(-LOG2E):#x}, v5")
    a("v_exp_f32 v5, v5")
    a("s_nop 0")
    a("v_add_f32 v5, 1.0, v5")
    a("v_rcp_f32 v5, v5")
    a("s_nop 0")
    a("v_cvt_pk_bf16_f32 v5, v5, v5")
    a("v_lshlrev_b32 v5, 16, v5")
    a("v_lshlrev_b32 v2, 2, v2")
    a(f"v_add_u32 v2, {WS_G}, v2")
    a(f"buffer_store_dword v5, v2, {sr(SWS,4)}, 0 offen")
    a("s_branch K1_flush" if STAMP else "s_branch K1_end")

    a.label("K1_compute")
    ACC = lambda rt, j: 16 + 48 * rt + 16 * j
    FS = [112, 132]
    WRAW = 152
    WPH = 168
    AX = 4
    AWD = 8
    if "pf" in EXP:
        a("s_sub_u32 s3, s32, 4")
        a("s_and_b32 s4, s34, 3")
        a("s_lshl_b32 s4, s4, 5")
        a("s_lshl_b32 s5, s3, 3")
        a("s_add_u32 s4, s4, s5")
        a("s_lshl_b32 s5, s33, 7")
        a("s_add_u32 s4, s4, s5")
        a("v_lshrrev_b32 v10, 3, v0")
        a("v_and_b32 v11, 7, v0")
        a("v_lshlrev_b32 v11, 4, v11")
        a("v_add_u32 v12, s4, v10")
        a("v_lshlrev_b32 v12, 10, v12")
        a("v_add_u32 v12, v12, v11")
        a("s_lshl_b32 s4, s62, 3")
        a("v_add_u32 v13, s4, v10")
        a("v_mul_u32_u24 v13, 3072, v13")
        a("v_add_u32 v13, v13, v11")
        a("s_cmp_eq_u32 s57, 0")
        a("s_cselect_b32 s4, 1024, 0")
        a("s_cselect_b32 s5, 2048, 0")
        a("s_max_u32 s6, s5, 1024")
        a("s_cmp_eq_u32 s3, 1")
        a("s_cselect_b32 s4, s5, s4")
        a("s_cmp_eq_u32 s3, 2")
        a("s_cselect_b32 s4, s6, s4")
        a("s_lshl_b32 s5, s56, 7")
        a("s_add_u32 s4, s4, s5")
        a("s_waitcnt lgkmcnt(0)")
        srd(a, SX, 36, 2 * MB)
        a("s_add_u32 s5, s3, s57")
        a("s_cmp_lt_u32 s5, 2")
        a("s_cselect_b32 s6, s38, s42")
        a("s_cselect_b32 s7, s39, s43")
        a("s_cmp_eq_u32 s3, 0")
        a("s_cselect_b32 s6, s38, s6")
        a("s_cselect_b32 s7, s39, s7")
        srd(a, SW0, 6, 512 * 1536 * 2)
        a("s_cmp_eq_u32 s3, 3")
        a("s_cselect_b32 s4, 0x7ff00000, s4")
        for c in range(0, 8):
            a(f"buffer_load_dwordx4 {vr(176+8*c,4)}, v12, {sr(SX,4)}, 0 offen offset:{c*128}")
            a(f"s_add_u32 s5, s4, {c*64*3072}")
            a(f"buffer_load_dwordx4 {vr(180+8*c,4)}, v13, {sr(SW0,4)}, s5 offen")
        a("s_barrier")
    a("s_and_b32 s35, s32, 1")
    a("s_lshr_b32 s48, s32, 1")
    a("s_and_b32 s48, s48, 1")
    a("v_and_b32 v1, 31, v0")
    a("v_lshrrev_b32 v2, 5, v0")
    a("v_lshrrev_b32 v3, 1, v1")
    a("v_and_b32 v3, 7, v3")
    a("v_xor_b32 v3, v3, v2")
    a("v_lshlrev_b32 v3, 4, v3")
    a("s_lshl_b32 s3, s35, 6")
    a("v_add_u32 v4, s3, v1")
    a("v_lshlrev_b32 v4, 7, v4")
    a("v_add_u32 v4, v4, v3")
    for t in range(1, 4):
        a(f"v_xor_b32 v{AX+t}, {32*t}, v4")
    a("v_and_b32 v3, 15, v0")
    a("v_lshrrev_b32 v8, 2, v3")
    a("v_lshlrev_b32 v9, 3, v2")
    a("v_add_u32 v8, v8, v9")
    a("v_lshlrev_b32 v8, 7, v8")
    a("v_and_b32 v9, 8, v0")
    a("v_lshlrev_b32 v9, 3, v9")
    a("s_lshl_b32 s3, s48, 6")
    a("v_xor_b32 v9, s3, v9")
    a("v_add_u32 v8, v8, v9")
    a("v_and_b32 v9, 16, v0")
    a("v_lshlrev_b32 v9, 1, v9")
    a("v_add_u32 v8, v8, v9")
    a("v_and_b32 v9, 3, v0")
    a("v_lshlrev_b32 v9, 3, v9")
    a("v_add_u32 v8, v8, v9")
    a("v_add_u32 v8, 16384, v8")
    a("s_lshl_b32 s51, s56, 2")
    a("s_lshl_b32 s3, s48, 1")
    a("s_add_u32 s51, s51, s3")
    a("v_lshrrev_b32 v9, 2, v3")
    a("v_lshlrev_b32 v10, 2, v2")
    a("v_add_u32 v9, v9, v10")
    a("v_lshlrev_b32 v9, 5, v9")
    a("v_and_b32 v10, 3, v0")
    a("v_lshlrev_b32 v10, 3, v10")
    a("s_lshl_b32 s3, s48, 10")
    a(f"s_add_u32 s3, s3, {PHL}")
    a(f"v_add3_u32 v{WRAW}, v9, v10, s3")
    a("s_waitcnt lgkmcnt(0)")
    srd(a, SWS, 46, WS_SIZE)
    for i in range(0, 96, 2):
        a(f"v_mov_b64 {vr(16+i,2)}, 0")

    def reads(F, t):
        if "noread" in EXP:
            return ["s_nop 0"] * 8
        w = lambda j, hf: f"ds_read_b64_tr_b16 {vr(F+8+4*j+2*hf,2)}, v{AWD} offset:{j*8192 + t*2048 + 512*hf}"
        return [f"ds_read_b128 {vr(F,4)}, v{AX+t}", w(0, 0), w(0, 1),
                f"ds_read_b128 {vr(F+4,4)}, v{AX+t} offset:4096", w(1, 0), w(1, 1), w(2, 0), w(2, 1)]

    def main_loop(tag, typeK):
        def m(F, k):
            if "nomfma" in EXP:
                return
            rt, j = k & 1, k >> 1
            X, W = F + 4 * rt, F + 8 + 4 * j
            if typeK and j > 0:
                mfma(a, ACC(rt, j), X, W, ACC(rt, j))
            else:
                mfma(a, ACC(rt, j), W, X, ACC(rt, j))

        def step(F, R):
            a("s_waitcnt lgkmcnt(5)")
            m(F, 0)
            a(R[0]); a(R[1])
            a("s_waitcnt lgkmcnt(6)")
            m(F, 1)
            a(R[2]); a(R[3])
            a("s_waitcnt lgkmcnt(6)")
            m(F, 2)
            a(R[4]); a(R[5])
            m(F, 3)
            a(R[6]); a(R[7])
            a("s_waitcnt lgkmcnt(8)")
            m(F, 4)
            m(F, 5)
        a.label(f"K1_loop{tag}")
        step(FS[0], reads(FS[1], 1))
        step(FS[1], reads(FS[0], 2))
        step(FS[0], reads(FS[1], 3))
        F = FS[1]
        a("s_waitcnt lgkmcnt(0)")
        m(F, 0)
        m(F, 1)
        a("s_cmp_eq_u32 s49, 7")
        a(f"s_cbranch_scc1 K1_last{tag}")
        a("s_barrier")
        a("s_add_u32 s50, s50, 1")
        a(f"s_mov_b32 s3, {STAGE}")
        a("s_cmp_eq_u32 s50, 3")
        a(f"s_cselect_b32 s3, {(-2*STAGE) & 0xffffffff}, s3")
        a("s_cselect_b32 s50, 0, s50")
        a(f"v_add_u32 v{AX}, s3, v{AX}")
        a(f"v_add_u32 v{AWD}, s3, v{AWD}")
        R = reads(FS[0], 0)
        a(R[0]); a(R[1]); a(R[2])
        m(F, 2)
        a(R[3]); a(R[4]); a(R[5])
        m(F, 3)
        a(R[6]); a(R[7])
        for r in range(AX + 1, AX + 4):
            a(f"v_add_u32 v{r}, s3, v{r}")
        m(F, 4)
        a("s_add_u32 s49, s49, 1")
        m(F, 5)
        a(f"s_branch K1_loop{tag}")
        a.label(f"K1_last{tag}")
        for k in range(2, 6):
            m(F, k)
        stamp(a, 3)
        stamp(a, 4)
        stamp(a, 5)
        if STAMP:
            a("s_waitcnt lgkmcnt(0)")
        a("s_lshl_b32 s50, s33, 2")
        a("s_lshl_b32 s3, s35, 1")
        a("s_add_u32 s50, s50, s3")
        a("s_lshl_b32 s58, s51, 6")
        a("s_add_u32 s58, s58, s50")
        a("v_lshlrev_b32 v9, 4, v0")
        a("s_waitcnt vmcnt(0)")
        for h in range(2):
            a(f"ds_read_b64_tr_b16 {vr(WPH+4*h,2)}, v{WRAW} offset:{h*512}")
            a(f"ds_read_b64_tr_b16 {vr(WPH+4*h+2,2)}, v{WRAW} offset:{h*512+256}")
        a("s_nop 3")
        for rt in range(2):
            for i in range(8):
                a(f"v_cvt_pk_bf16_f32 v{XF[rt]+i}, v{ACC(rt,0)+2*i}, v{ACC(rt,0)+2*i+1}")

    XF = [112, 120]
    VF = [128, 136]
    ST = 144
    PD = [176, 192]
    T0 = [208, 224]
    TT = [16, 32]
    KV = [48, 64]
    IP, IM = 80, 84
    BV = [88, 96]

    a("s_mov_b32 s49, 0")
    a("s_mov_b32 s50, 0")
    stamp(a, 1)
    a("s_barrier")
    stamp(a, 2)
    if STAMP:
        a("s_waitcnt lgkmcnt(0)")
    for r in reads(FS[0], 0):
        a(r)
    a("s_cmp_eq_u32 s57, 0")
    a("s_cbranch_scc1 K1_loopK")

    main_loop("Q", False)
    a(f"s_mov_b32 s60, {f32bits(0.25*LOG2E):#x}")
    a("s_mov_b32 s61, s60")
    a("s_lshl_b32 s4, s58, 10")
    a(f"s_add_u32 s5, s4, {64*1024}")
    a("s_lshl_b32 s6, s58, 11")
    a(f"s_add_u32 s6, s6, {WS_KVB}")
    a(f"s_add_u32 s7, s6, {64*2048}")
    for rt in range(2):
        S0 = ST if rt == 0 else 128
        for i in range(8):
            a(f"v_pk_mul_f32 {vr(ACC(rt,1)+2*i,2)}, {vr(ACC(rt,1)+2*i,2)}, s[60:61]")
        for i in range(8):
            a(f"v_cvt_pk_bf16_f32 v{S0+i}, v{ACC(rt,1)+2*i}, v{ACC(rt,1)+2*i+1}")
        for i in range(8):
            a(f"v_cvt_pk_bf16_f32 v{S0+8+i}, v{ACC(rt,2)+2*i}, v{ACC(rt,2)+2*i+1}")
        a(f"buffer_store_dwordx4 {vr(S0,4)}, v9, {sr(SWS,4)}, s4 offen offset:{rt*1024}")
        a(f"buffer_store_dwordx4 {vr(S0+4,4)}, v9, {sr(SWS,4)}, s5 offen offset:{rt*1024}")
        a(f"buffer_store_dwordx4 {vr(S0+8,4)}, v9, {sr(SWS,4)}, s6 offen offset:{rt*2048}")
        a(f"buffer_store_dwordx4 {vr(S0+12,4)}, v9, {sr(SWS,4)}, s7 offen offset:{rt*2048}")
    a("s_lshl_b32 s4, s58, 11")
    a(f"s_add_u32 s4, s4, {WS_PHIQ}")
    a(f"s_add_u32 s5, s4, {64*2048}")
    a("s_branch K1_feat")

    main_loop("K", True)
    a("v_and_b32 v10, 16, v0")
    a("v_cmp_ne_u32 s[6:7], 0, v10")
    a("v_lshlrev_b32 v10, 13, v10")
    a("v_and_b32 v11, 0x2f, v0")
    a("v_lshlrev_b32 v11, 4, v11")
    a("v_add_u32 v10, v10, v11")
    a("s_lshl_b32 s4, s58, 11")
    a(f"s_add_u32 s4, s4, {WS_KVB}")
    for rt in range(2):
        for i in range(8):
            a(f"v_cvt_pk_bf16_f32 v{ST+8*rt+i}, v{ACC(rt,2)+2*i}, v{ACC(rt,2)+2*i+1}")
        a(f"buffer_store_dwordx4 {vr(ST+8*rt,4)}, v10, {sr(SWS,4)}, s4 offen offset:{rt*2048+1024}")
        a(f"buffer_store_dwordx4 {vr(ST+8*rt+4,4)}, v10, {sr(SWS,4)}, s4 offen offset:{rt*2048+1280}")
    for rt in range(2):
        for i in range(8):
            a(f"v_cvt_pk_bf16_f32 v{VF[rt]+i}, v{ACC(rt,1)+2*i}, v{ACC(rt,1)+2*i+1}")
    a("v_lshlrev_b32 v10, 2, v2")
    a("v_sub_u32 v10, v1, v10")
    a("v_mov_b32 v11, 0x3f80")
    a("v_mov_b32 v12, 0x3f800000")
    a("v_mov_b32 v104, 0x3f803f80")
    for base, add in ((IP, 0), (IM, 16)):
        for p in range(4):
            f0 = (2 * p if p < 2 else 8 + 2 * (p - 2)) + add
            a(f"v_cmp_eq_u32 s[4:5], {f0}, v10")
            a(f"v_cmp_eq_u32 s[62:63], {f0+1}, v10")
            a("s_nop 1")
            a(f"v_cndmask_b32 v13, 0, v11, s[4:5]")
            a(f"v_cndmask_b32 v{base+p}, v13, v12, s[62:63]")
    for i in range(0, 32, 2):
        a(f"v_mov_b64 {vr(KV[0]+i,2)}, 0")

    a.label("K1_feat")
    a(f"s_mov_b32 s60, {f32bits(LOG2E):#x}")
    a("s_mov_b32 s61, s60")
    a("s_mov_b32 s49, 0")
    a("s_waitcnt lgkmcnt(0)")
    a.label("K1_featloop")
    mfma(a, PD[0], WPH, XF[0], "0")
    mfma(a, PD[1], WPH + 4, XF[0] + 4, "0")
    a("s_nop 7")
    a("s_nop 2")
    H = (0, 1)
    M = [(10, 12, 240, 241), (14, 242, 243, 244)]
    for h in H:
        P = PD[h]
        a(f"v_max3_f32 v{M[h][0]}, v{P}, v{P+1}, v{P+2}")
        a(f"v_min3_f32 v{M[h][1]}, v{P}, v{P+1}, v{P+2}")
    for o in (3, 5):
        for h in H:
            P = PD[h]
            a(f"v_max3_f32 v{M[h][0]}, v{M[h][0]}, v{P+o}, v{P+o+1}")
            a(f"v_min3_f32 v{M[h][1]}, v{M[h][1]}, v{P+o}, v{P+o+1}")
    for h in H:
        P = PD[h]
        a(f"v_max_f32 v{M[h][0]}, v{M[h][0]}, v{P+7}")
        a(f"v_min_f32 v{M[h][1]}, v{M[h][1]}, v{P+7}")
    for h in H:
        a(f"v_mov_b32 v{M[h][2]}, v{M[h][0]}")
        a(f"v_mov_b32 v{M[h][3]}, v{M[h][1]}")
    a("s_nop 1")
    for h in H:
        a(f"v_permlane32_swap_b32 v{M[h][0]}, v{M[h][2]}")
        a(f"v_permlane32_swap_b32 v{M[h][1]}, v{M[h][3]}")
    a("s_nop 1")
    for h in H:
        a(f"v_max_f32 v{M[h][0]}, v{M[h][0]}, v{M[h][2]}")
        a(f"v_min_f32 v{M[h][1]}, v{M[h][1]}, v{M[h][3]}")
    for h in H:
        a(f"v_mul_f32 v{M[h][0]}, s60, v{M[h][0]}")
        a(f"v_mul_f32 v{M[h][1]}, s60, v{M[h][1]}")
    for i in range(4):
        for h in H:
            a(f"v_pk_fma_f32 {vr(T0[h]+2*i,2)}, {vr(PD[h]+2*i,2)}, s[60:61], {vr(M[h][0],2)} op_sel_hi:[1,1,0] neg_lo:[0,0,1] neg_hi:[0,0,1]")
            a(f"v_pk_fma_f32 {vr(T0[h]+8+2*i,2)}, {vr(PD[h]+2*i,2)}, s[60:61], {vr(M[h][1],2)} op_sel_hi:[1,1,0] neg_lo:[1,0,0] neg_hi:[1,0,0]")
    for i in range(16):
        for h in H:
            a(f"v_exp_f32 v{T0[h]+i}, v{T0[h]+i}")
    for h in H:
        for g in range(2):
            a(f"v_pk_add_f32 {vr(PD[h]+4*g,2)}, {vr(T0[h]+8*g,2)}, {vr(T0[h]+8*g+2,2)}")
            a(f"v_pk_add_f32 {vr(PD[h]+4*g+2,2)}, {vr(T0[h]+8*g+4,2)}, {vr(T0[h]+8*g+6,2)}")
    for h in H:
        for g in range(2):
            a(f"v_pk_add_f32 {vr(PD[h]+4*g,2)}, {vr(PD[h]+4*g,2)}, {vr(PD[h]+4*g+2,2)}")
    for h in H:
        a(f"v_add_f32 v{M[h][0]}, v{PD[h]}, v{PD[h]+1}")
        a(f"v_add_f32 v{M[h][1]}, v{PD[h]+4}, v{PD[h]+5}")
    for h in H:
        a(f"v_mov_b32 v{M[h][2]}, v{M[h][0]}")
        a(f"v_mov_b32 v{M[h][3]}, v{M[h][1]}")
    a("s_nop 1")
    for h in H:
        a(f"v_permlane32_swap_b32 v{M[h][0]}, v{M[h][2]}")
        a(f"v_permlane32_swap_b32 v{M[h][1]}, v{M[h][3]}")
    a("s_nop 1")
    for h in H:
        a(f"v_add_f32 v{M[h][0]}, v{M[h][0]}, v{M[h][2]}")
        a(f"v_add_f32 v{M[h][1]}, v{M[h][1]}, v{M[h][3]}")
    for h in H:
        a(f"v_rcp_f32 v{M[h][0]}, v{M[h][0]}")
        a(f"v_rcp_f32 v{M[h][1]}, v{M[h][1]}")
    a("s_nop 0")
    for i in range(4):
        for h in H:
            a(f"v_pk_mul_f32 {vr(T0[h]+2*i,2)}, {vr(T0[h]+2*i,2)}, {vr(M[h][0],2)} op_sel_hi:[1,0]")
            a(f"v_pk_mul_f32 {vr(T0[h]+8+2*i,2)}, {vr(T0[h]+8+2*i,2)}, {vr(M[h][1],2)} op_sel_hi:[1,0]")
    for i in range(8):
        for h in H:
            a(f"v_cvt_pk_bf16_f32 v{PD[h]+8+i}, v{T0[h]+2*i}, v{T0[h]+2*i+1}")
    a("s_cmp_eq_u32 s57, 0")
    a("s_cbranch_scc1 K1_featK")
    for h in range(2):
        a(f"buffer_store_dwordx4 {vr(PD[h]+8,4)}, v9, {sr(SWS,4)}, s{4+h} offen")
        a(f"buffer_store_dwordx4 {vr(PD[h]+12,4)}, v9, {sr(SWS,4)}, s{4+h} offen offset:1024")
    a("s_add_u32 s4, s4, 2048")
    a("s_add_u32 s5, s5, 2048")
    a("s_branch K1_featnext")
    a.label("K1_featK")
    for h in range(2):
        mfma(a, TT[h], PD[h] + 8, IP, "0")
        mfma(a, TT[h], PD[h] + 12, IM, TT[h])
    for i in range(8):
        a(f"v_cndmask_b32 v{BV[0]+i}, v{VF[0]+i}, v104, s[6:7]")
        a(f"v_cndmask_b32 v{BV[1]+i}, v104, v{VF[0]+i}, s[6:7]")
    for h in range(2):
        for i in range(8):
            a(f"v_cvt_pk_bf16_f32 v{PD[h]+i}, v{TT[h]+2*i}, v{TT[h]+2*i+1}")
    a("s_nop 1")
    for h in range(2):
        mfma(a, KV[h], PD[h], BV[h], KV[h])
        mfma(a, KV[h], PD[h] + 4, BV[h] + 4, KV[h])
    for i in range(0, 8, 2):
        a(f"v_mov_b64 {vr(VF[0]+i,2)}, {vr(VF[1]+i,2)}")
    a.label("K1_featnext")
    for i in range(0, 8, 2):
        a(f"v_mov_b64 {vr(XF[0]+i,2)}, {vr(XF[1]+i,2)}")
    a("s_add_u32 s49, s49, 1")
    a("s_cmp_lt_u32 s49, 2")
    a("s_cbranch_scc1 K1_featloop")
    stamp(a, 4)
    a("s_cmp_eq_u32 s57, 0")
    a("s_cbranch_scc0 K1_flush" if STAMP else "s_cbranch_scc0 K1_end")
    a("s_sub_u32 s3, s32, 4")
    a("s_lshl_b32 s4, s3, 12")
    a(f"s_add_u32 s4, s4, {RED}")
    a("v_add_u32 v10, s4, v9")
    a("v_xor_b32 v11, 4096, v10")
    a("s_cmp_eq_u32 s35, 0")
    a("s_cbranch_scc1 K1_r0")
    for q in range(4):
        a(f"ds_write_b128 v10, {vr(KV[0]+4*q,4)} offset:{q*1024}")
    a("s_waitcnt lgkmcnt(0)")
    for i in range(0, 16, 2):
        a(f"v_mov_b64 {vr(KV[0]+i,2)}, {vr(KV[1]+i,2)}")
    a("s_branch K1_r1")
    a.label("K1_r0")
    for q in range(4):
        a(f"ds_write_b128 v10, {vr(KV[1]+4*q,4)} offset:{q*1024}")
    a.label("K1_r1")
    a("s_lshl_b32 s4, s35, 4")
    a("v_xor_b32 v3, s4, v1")
    a("s_lshl_b32 s4, s33, 5")
    a("s_add_u32 s4, s4, s51")
    a("s_add_u32 s4, s4, s35")
    a("s_lshl_b32 s5, s4, 11")
    a(f"s_add_u32 s5, s5, {WS_KVP}")
    a("s_lshl_b32 s4, s4, 7")
    a(f"s_add_u32 s4, s4, {WS_ZP}")
    a("v_lshlrev_b32 v12, 7, v2")
    a("v_lshlrev_b32 v13, 3, v3")
    a("v_add3_u32 v12, v12, v13, s5")
    a("v_lshlrev_b32 v13, 3, v2")
    a("v_add_u32 v13, s4, v13")
    a("v_cmp_gt_u32 s[4:5], 16, v3")
    a("v_cmp_eq_u32 s[6:7], 16, v3")
    a("v_mov_b32 v14, 0x7ffff000")
    a("v_mov_b32 v15, 256")
    a("v_cndmask_b32 v13, v14, v13, s[6:7]")
    a("v_cndmask_b32 v12, v13, v12, s[4:5]")
    a("v_cndmask_b32 v15, 16, v15, s[4:5]")
    a("s_waitcnt lgkmcnt(0)")
    a("s_barrier")
    for q in range(4):
        a(f"ds_read_b128 {vr(16+4*q,4)}, v11 offset:{q*1024}")
    a("s_waitcnt lgkmcnt(0)")
    for i in range(8):
        a(f"v_pk_add_f32 {vr(16+2*i,2)}, {vr(16+2*i,2)}, {vr(KV[0]+2*i,2)}")
    for p in range(8):
        a(f"buffer_store_dwordx2 {vr(16+2*p,2)}, v12, {sr(SWS,4)}, 0 offen")
        if p < 7:
            a("v_add_u32 v12, v12, v15")
    if STAMP:
        a.label("K1_flush")
        a("s_waitcnt vmcnt(0)")
        stamp(a, 6)
        stamp_flush(a, 0, 8, 32, SWS)
    a.label("K1_end")
    a("s_endpgm")
    return kd(kn, 248, 64)


def gen_k2(a):
    kn = "attn_kernel"
    kernel_begin(a, kn)
    SWS = 8
    UNR = 4
    PRIO = [(32, 2), (52, 1), (60, 0)]
    XCH = 132 * 1024
    CNT = XCH + 2048
    a("s_cmp_ge_u32 s2, 256")
    a("s_cbranch_scc1 K2_end")
    stamp(a, 0)
    if STAMP:
        a(f"s_memrealtime s[{STB+14}:{STB+15}]")
    a("s_load_dwordx2 s[4:5], s[0:1], 80")
    a("s_load_dwordx2 s[6:7], s[0:1], 24")
    a("s_load_dwordx2 s[30:31], s[0:1], 48")
    a("v_lshrrev_b32 v1, 6, v0")
    a("v_and_b32 v0, 63, v0")
    a("v_readfirstlane_b32 s28, v1")
    a("s_and_b32 s3, s2, 7")
    a("s_lshl_b32 s13, s3, 2")
    a("s_lshr_b32 s3, s2, 3")
    a("s_and_b32 s3, s3, 3")
    a("s_add_u32 s13, s13, s3")
    a("s_lshr_b32 s14, s2, 5")
    a("v_lshlrev_b32 v1, 4, v0")
    a("s_cmp_ge_u32 s28, 4")
    a("s_cbranch_scc1 K2_compute")
    a("s_setprio 3")
    a("s_lshl_b32 s18, s28, 10")
    a("s_lshl_b32 s17, s13, 17")
    a(f"s_add_u32 s17, s17, {WS_KVB}")
    a("s_add_u32 s17, s17, s18")
    a(f"v_mov_b32 v2, {CNT}")
    a("v_mov_b32 v3, 0")
    a("ds_write_b32 v2, v3")
    a("s_waitcnt lgkmcnt(0)")
    srd(a, SWS, 4, WS_SIZE)
    a("s_mov_b32 s20, 0")
    a.label("K2_ld_loop")
    for i in range(4):
        a(f"s_add_u32 m0, s18, {i*4096}")
        a(f"s_add_u32 s19, s17, {i*4096}")
        a(f"buffer_load_dwordx4 v1, {sr(SWS,4)}, s19 offen lds")
    a("s_add_u32 s17, s17, 16384")
    a("s_add_u32 s18, s18, 16384")
    a("s_add_u32 s20, s20, 1")
    a("s_cmp_lg_u32 s20, 2")
    a("s_cbranch_scc1 K2_ld_next")
    a("s_waitcnt vmcnt(3)")
    a("s_barrier")
    a.label("K2_ld_next")
    a("s_cmp_lt_u32 s20, 8")
    a("s_cbranch_scc1 K2_ld_loop")
    KP = 16
    PH = 80
    GV = 96
    a("s_lshl_b32 s19, s13, 3")
    a("s_lshl_b32 s3, s28, 1")
    a("s_add_u32 s19, s19, s3")
    a("s_lshl_b32 s24, s19, 8")
    a(f"s_add_u32 s24, s24, {WS_KVP}")
    a("s_lshl_b32 s25, s19, 4")
    a(f"s_add_u32 s25, s25, {WS_ZP}")
    a("v_lshrrev_b32 v4, 5, v0")
    a("v_and_b32 v5, 15, v0")
    a("v_lshlrev_b32 v6, 7, v4")
    a("v_lshlrev_b32 v5, 3, v5")
    a("v_add3_u32 v6, v6, v5, s24")
    a("v_lshlrev_b32 v4, 3, v4")
    a("v_add_u32 v4, s25, v4")
    a("v_and_b32 v5, 16, v0")
    a("v_cmp_ne_u32 s[24:25], 0, v5")
    a("v_mov_b32 v7, 4096")
    a("v_mov_b32 v8, 65536")
    a("v_mov_b32 v9, 256")
    a("v_cndmask_b32 v6, v6, v4, s[24:25]")
    a("v_cndmask_b32 v7, v8, v7, s[24:25]")
    a("v_cndmask_b32 v9, v9, 16, s[24:25]")
    a("v_add_u32 v8, v6, v9")
    a("s_waitcnt vmcnt(0)")
    stamp(a, 1)
    a("s_barrier")
    for rb in range(16):
        a(f"buffer_load_dwordx2 {vr(KP+2*rb,2)}, v6, {sr(SWS,4)}, 0 offen")
        a(f"buffer_load_dwordx2 {vr(KP+32+2*rb,2)}, v8, {sr(SWS,4)}, 0 offen")
        if rb < 15:
            a("v_add_u32 v6, v6, v7")
            a("v_add_u32 v8, v8, v7")
    a("s_lshl_b32 s15, s14, 3")
    a("s_add_u32 s15, s15, s3")
    a("s_lshl_b32 s16, s13, 6")
    a("s_add_u32 s16, s16, s15")
    a("s_lshl_b32 s19, s16, 11")
    a(f"s_add_u32 s19, s19, {WS_PHIQ}")
    for k in range(4):
        a(f"buffer_load_dwordx4 {vr(PH+4*k,4)}, v1, {sr(SWS,4)}, s19 offen offset:{k*1024}")
    a("v_and_b32 v4, 31, v0")
    a("s_lshl_b32 s3, s15, 5")
    a("v_add_u32 v4, s3, v4")
    a("v_lshlrev_b32 v4, 2, v4")
    a(f"v_add_u32 v4, {WS_G}, v4")
    a(f"buffer_load_dword v{GV}, v4, {sr(SWS,4)}, 0 offen")
    a(f"buffer_load_dword v{GV+1}, v4, {sr(SWS,4)}, 0 offen offset:128")
    a("v_lshlrev_b32 v4, 5, v0")
    a(f"v_add_u32 v4, {XCH}, v4")
    a("s_lshl_b32 s3, s28, 3")
    a("v_add_u32 v5, s3, v4")
    a("v_mov_b32 v3, 1")
    a("s_waitcnt vmcnt(6)")
    stamp(a, 2)
    for st in (8, 4, 2, 1):
        for i in range(st):
            for g in range(2):
                b = KP + 32 * g
                a(f"v_pk_add_f32 {vr(b+2*i,2)}, {vr(b+2*i,2)}, {vr(b+2*(i+st),2)}")
    a(f"v_cvt_pk_bf16_f32 v{KP}, v{KP}, v{KP+1}")
    a(f"v_cvt_pk_bf16_f32 v{KP+1}, v{KP+32}, v{KP+33}")
    a(f"ds_write_b64 v5, {vr(KP,2)}")
    a("s_waitcnt lgkmcnt(0)")
    a("s_mov_b64 exec, 1")
    a("ds_add_u32 v2, v3")
    a("s_mov_b64 exec, -1")
    a.label("K2_poll")
    a("ds_read_b32 v3, v2")
    a("s_waitcnt lgkmcnt(0)")
    a("v_readfirstlane_b32 s3, v3")
    a("s_cmp_lt_u32 s3, 4")
    a("s_cbranch_scc1 K2_poll")
    a(f"ds_read_b128 {vr(KP,4)}, v4")
    a(f"ds_read_b128 {vr(KP+4,4)}, v4 offset:16")
    D = [32, 48]
    a("s_waitcnt vmcnt(0) lgkmcnt(0)")
    for k in range(2):
        mfma(a, D[k], KP, PH + 8 * k, "0")
        mfma(a, D[k], KP + 4, PH + 8 * k + 4, D[k])
    a("s_lshl_b32 s20, s16, 10")
    a(f"s_add_u32 s20, s20, {WS_O}")
    srd(a, 12, 6, 512 * 512 * 2)
    srd(a, 16, 30, 512 * 512 * 2)
    a("s_nop 1")
    for k in range(2):
        a(f"v_add_f32 v{10+2*k}, {f32bits(1e-6):#x}, v{D[k]+8}")
    for k in range(2):
        a(f"v_rcp_f32 v{10+2*k}, v{10+2*k}")
    a("s_nop 0")
    for k in range(2):
        a(f"v_mul_f32 v{10+2*k}, v{10+2*k}, v{GV+k}")
    for k in range(2):
        for i in range(4):
            a(f"v_pk_mul_f32 {vr(D[k]+2*i,2)}, {vr(D[k]+2*i,2)}, {vr(10+2*k,2)} op_sel_hi:[1,0]")
    for k in range(2):
        for i in range(4):
            a(f"v_cvt_pk_bf16_f32 v{64+4*k+i}, v{D[k]+2*i}, v{D[k]+2*i+1}")
        a(f"buffer_store_dwordx4 {vr(64+4*k,4)}, v1, {sr(SWS,4)}, s20 offen offset:{k*1024}")
    stamp(a, 3)
    a("s_lshr_b32 s3, s2, 3")
    a("s_lshl_b32 s3, s3, 2")
    a("s_add_u32 s3, s3, s28")
    a("s_lshl_b32 s3, s3, 12")
    for i in range(4):
        a(f"buffer_load_dwordx4 {vr(16+8*i,4)}, v1, s[12:15], s3 offen offset:{i*1024}")
        a(f"buffer_load_dwordx4 {vr(20+8*i,4)}, v1, s[16:19], s3 offen offset:{i*1024}")
    for i_ in (4, 5):
        stamp(a, i_)
    a("s_branch K2_flush" if STAMP else "s_branch K2_end")

    a.label("K2_compute")
    a("s_setprio 3")
    a("s_sub_u32 s12, s28, 4")
    a("s_lshl_b32 s15, s14, 3")
    a("s_add_u32 s15, s15, s12")
    a("s_lshl_b32 s16, s13, 6")
    a("s_add_u32 s16, s16, s15")
    QF = 4
    KF = [8, 12]
    VF = [16, 24]
    P = 32
    O = 40
    CN = 56
    S = [72, 88]
    GV = 104
    a("v_and_b32 v2, 31, v0")
    a("s_lshl_b32 s3, s15, 5")
    a("v_add_u32 v2, s3, v2")
    a("v_lshlrev_b32 v2, 2, v2")
    a(f"v_add_u32 v2, {WS_G}, v2")
    a("s_lshl_b32 s19, s16, 10")
    a("s_waitcnt lgkmcnt(0)")
    srd(a, SWS, 4, WS_SIZE)
    a(f"buffer_load_dwordx4 {vr(QF,4)}, v1, {sr(SWS,4)}, s19 offen")
    a(f"buffer_load_dword v{GV}, v2, {sr(SWS,4)}, 0 offen")
    a("v_and_b32 v2, 27, v0")
    a("v_cmp_eq_u32 s[24:25], 16, v2")
    a("v_mov_b32 v3, 0x3f803f80")
    a("s_mov_b32 s20, 0x0000ffff")
    a("s_mov_b32 s21, 0x0000ffff")
    a(f"v_cndmask_b32 v{VF[0]}, 0, v3, s[24:25]")
    for i in range(1, 16):
        a(f"v_mov_b32 v{VF[0]+i}, v{VF[0]}")
    a("s_mov_b32 s22, 0")
    evmask = 0
    for t_ in [8] + [p_[0] for p_ in PRIO]:
        evmask |= 1 << (t_ // 4)
    a(f"s_mov_b32 s29, {evmask:#x}")
    stamp(a, 1)
    a("s_waitcnt vmcnt(0)")
    a("s_barrier")
    stamp(a, 2)
    if STAMP:
        a("s_waitcnt lgkmcnt(0)")
    a(f"ds_read_b128 {vr(KF[0],4)}, v1")
    a("s_waitcnt lgkmcnt(0)")
    mfma(a, S[1], KF[0], QF, "0")
    a("s_nop 7")
    a("s_nop 3")
    X = S[1]
    a(f"v_max3_f32 v2, v{X}, v{X+1}, v{X+2}")
    for i in range(3, 15, 2):
        a(f"v_max3_f32 v2, v2, v{X+i}, v{X+i+1}")
    a(f"v_max_f32 v2, v2, v{X+15}")
    cross_half(a, "v_max_f32", 2, 3)
    a.label("K2_restart")
    a("v_mov_b32 v3, v1")
    a(f"ds_read_b128 {vr(KF[0],4)}, v3")
    a(f"ds_read_b128 {vr(KF[1],4)}, v3 offset:2048")
    a("s_mov_b64 exec, s[20:21]")
    a(f"ds_read_b128 {vr(VF[0],4)}, v3 offset:1024")
    a(f"ds_read_b128 {vr(VF[0]+4,4)}, v3 offset:1280")
    a("s_mov_b64 exec, -1")
    a(f"v_sub_f32 v{CN}, 0, v2")
    a(f"v_sub_f32 v{CN+1}, 0, v2")
    for i in range(2, 16, 2):
        a(f"v_mov_b64 {vr(CN+i,2)}, {vr(CN,2)}")
    for i in range(0, 16, 2):
        a(f"v_mov_b64 {vr(O+i,2)}, 0")
    a("s_waitcnt lgkmcnt(3)")
    mfma(a, S[0], KF[0], QF, CN)
    a("s_mov_b32 s23, 0")
    stamp(a, 3)
    stamp(a, 4)
    a("s_nop 7")
    a("s_nop 3")
    a.raw("    .p2align 3")
    a.label("K2_loop")
    for u in range(UNR):
        X, Y = S[u & 1], S[(u + 1) & 1]
        Kn = KF[(u + 1) & 1]
        Kp = KF[u & 1]
        Vc = VF[u & 1]
        Vn = VF[(u + 1) & 1]
        a(f"ds_read_b128 {vr(Kp,4)}, v3 offset:{(u+2)*2048}")
        a("s_mov_b64 exec, s[20:21]")
        a(f"ds_read_b128 {vr(Vn,4)}, v3 offset:{(u+1)*2048+1024}")
        a(f"ds_read_b128 {vr(Vn+4,4)}, v3 offset:{(u+1)*2048+1280}")
        a("s_mov_b64 exec, -1")
        for i in range(4):
            a(f"v_exp_f32 v{X+i}, v{X+i}")
        a("s_waitcnt lgkmcnt(3)")
        mfma(a, Y, Kn, QF, CN)
        for i in range(4, 8):
            a(f"v_exp_f32 v{X+i}, v{X+i}")
        for i in range(4):
            a(f"v_cvt_pk_bf16_f32 v{P+i}, v{X+2*i}, v{X+2*i+1}")
        for i in range(8, 10):
            a(f"v_exp_f32 v{X+i}, v{X+i}")
        mfma(a, O, Vc, P, O)
        for i in range(10, 16):
            a(f"v_exp_f32 v{X+i}, v{X+i}")
        for i in range(4, 8):
            a(f"v_cvt_pk_bf16_f32 v{P+i}, v{X+2*i}, v{X+2*i+1}")
        if u == UNR - 1:
            a(f"v_add_u32 v3, {UNR*2048}, v3")
            a(f"s_add_u32 s23, s23, {UNR}")
        else:
            a("s_nop 1")
        mfma(a, O, Vc + 4, P + 4, O)
    a("s_lshr_b32 s3, s23, 2")
    a("s_bitcmp1_b32 s29, s3")
    a("s_cbranch_scc0 K2_noev")
    a("s_cmp_lg_u32 s23, 8")
    a("s_cbranch_scc1 K2_e4")
    a("s_barrier")
    stamp(a, 4)
    if STAMP:
        a("s_waitcnt lgkmcnt(0)")
    a("s_branch K2_loop")
    a.label("K2_e4")
    for k, (tt, pr) in enumerate(PRIO):
        a(f"s_cmp_lg_u32 s23, {tt}")
        a(f"s_cbranch_scc1 K2_p{k}")
        a(f"s_setprio {pr}")
        a.label(f"K2_p{k}")
    a.label("K2_noev")
    a("s_cmp_lt_u32 s23, 64")
    a("s_cbranch_scc1 K2_loop")
    a("s_waitcnt lgkmcnt(0)")
    stamp(a, 5)
    a("s_nop 7")
    a("s_nop 3")
    a("s_cmp_lg_u32 s22, 0")
    a("s_cbranch_scc1 K2_fin")
    a(f"v_mov_b32 v{P}, {f32bits(2.0**64):#x}")
    a(f"v_cmp_nlt_f32 s[24:25], v{O+8}, v{P}")
    a(f"v_mov_b32 v{P+1}, 0x7f800000")
    for i in range(8):
        a(f"v_cmp_nlt_f32 s[26:27], abs(v{O+i}), v{P+1}")
        a("s_or_b64 s[24:25], s[24:25], s[26:27]")
    a("s_cmp_eq_u64 s[24:25], 0")
    a("s_cbranch_scc1 K2_fin")
    a("v_mov_b32 v3, v1")
    a("v_mov_b32 v2, 0xff800000")
    a("s_mov_b32 s23, 0")
    a.label("K2_maxloop")
    a(f"ds_read_b128 {vr(KF[0],4)}, v3")
    a("s_waitcnt lgkmcnt(0)")
    mfma(a, S[0], KF[0], QF, "0")
    a("v_add_u32 v3, 2048, v3")
    a("s_add_u32 s23, s23, 1")
    a("s_nop 7")
    a("s_nop 3")
    for i in range(0, 16, 2):
        a(f"v_max3_f32 v2, v2, v{S[0]+i}, v{S[0]+i+1}")
    a("s_cmp_lt_u32 s23, 64")
    a("s_cbranch_scc1 K2_maxloop")
    cross_half(a, "v_max_f32", 2, 3)
    a("s_mov_b32 s22, 1")
    a("s_mov_b32 s29, 0")
    a("s_branch K2_restart")
    a.label("K2_fin")
    a(f"v_rcp_f32 v2, v{O+8}")
    a(f"v_sub_f32 v3, 1.0, v{GV}")
    a("v_cvt_pk_bf16_f32 v3, v3, v3")
    a("v_lshlrev_b32 v3, 16, v3")
    a("v_mul_f32 v2, v2, v3")
    for i in range(4):
        a(f"v_pk_mul_f32 {vr(O+2*i,2)}, {vr(O+2*i,2)}, v[2:3] op_sel_hi:[1,0]")
    for i in range(4):
        a(f"v_cvt_pk_bf16_f32 v{P+i}, v{O+2*i}, v{O+2*i+1}")
    a("s_lshl_b32 s19, s16, 10")
    a(f"s_add_u32 s19, s19, {WS_O + 2*MB}")
    a(f"buffer_store_dwordx4 {vr(P,4)}, v1, {sr(SWS,4)}, s19 offen")
    if STAMP:
        a.label("K2_flush")
        a("s_waitcnt vmcnt(0)")
        stamp(a, 6)
        stamp_flush(a, 1, 8, 28, SWS)
    a.label("K2_end")
    a("s_endpgm")
    return kd(kn, 108, 32)


def gen_k3(a):
    kn = "proj_kernel"
    kernel_begin(a, kn)
    SWS, SWO, SOUT = 8, 12, 16
    AHEAD = 6
    a("s_cmp_ge_u32 s2, 256")
    a("s_cbranch_scc1 K3_end")
    stamp(a, 0)
    if STAMP:
        a(f"s_memrealtime s[{STB+14}:{STB+15}]")
    a("s_load_dwordx2 s[4:5], s[0:1], 80")
    a("s_load_dwordx2 s[6:7], s[0:1], 24")
    a("s_load_dwordx2 s[24:25], s[0:1], 48")
    a("s_load_dwordx2 s[26:27], s[0:1], 64")
    a("v_lshrrev_b32 v1, 6, v0")
    a("v_and_b32 v0, 63, v0")
    a("v_readfirstlane_b32 s20, v1")
    a("s_and_b32 s3, s2, 7")
    a("s_lshl_b32 s21, s3, 2")
    a("s_lshr_b32 s3, s2, 3")
    a("s_and_b32 s22, s3, 3")
    a("s_add_u32 s21, s21, s22")
    a("s_lshr_b32 s22, s3, 2")
    a("s_waitcnt lgkmcnt(0)")
    srd(a, SWS, 4, WS_SIZE)
    srd(a, SOUT, 26, 2 * MB)
    a("s_cmp_ge_u32 s20, 2")
    a("s_cselect_b32 s6, s24, s6")
    a("s_cselect_b32 s7, s25, s7")
    srd(a, SWO, 6, 512 * 512 * 2)
    ACC = 16
    OF = 80
    NSL = AHEAD + 1
    WF = 80 + 8 * NSL
    a("v_lshrrev_b32 v2, 3, v0")
    a("v_lshlrev_b32 v3, 10, v2")
    a("v_and_b32 v4, 16, v0")
    a("v_lshrrev_b32 v4, 2, v4")
    a("v_and_b32 v5, 7, v0")
    a("v_xor_b32 v4, v4, v5")
    a("v_lshlrev_b32 v4, 4, v4")
    a("v_add_u32 v2, v3, v4")
    a("v_lshlrev_b32 v1, 4, v0")
    a("s_and_b32 s3, s20, 1")
    a("s_lshl_b32 s28, s3, 18")
    a("s_lshl_b32 s23, s22, 7")
    a("s_add_u32 s28, s28, s23")
    a("s_lshl_b32 s29, s20, 15")
    a("s_lshr_b32 s30, s20, 1")
    a("s_lshl_b32 s30, s30, 21")
    a("s_lshl_b32 s23, s3, 20")
    a("s_add_u32 s30, s30, s23")
    a("s_lshl_b32 s23, s21, 11")
    a("s_add_u32 s30, s30, s23")
    a(f"s_add_u32 s30, s30, {WS_O}")
    a("v_lshrrev_b32 v3, 5, v0")
    a("v_lshlrev_b32 v3, 2, v3")
    a("v_and_b32 v4, 15, v0")
    a("v_lshrrev_b32 v4, 2, v4")
    a("v_add_u32 v3, v3, v4")
    a("v_lshlrev_b32 v3, 7, v3")
    a("v_and_b32 v4, 8, v0")
    a("v_lshlrev_b32 v4, 3, v4")
    a("v_add_u32 v3, v3, v4")
    a("v_and_b32 v4, 16, v0")
    a("v_lshlrev_b32 v4, 1, v4")
    a("v_add_u32 v3, v3, v4")
    a("v_and_b32 v4, 3, v0")
    a("v_lshlrev_b32 v4, 3, v4")
    a("v_add_u32 v3, v3, v4")
    a("v_add_u32 v3, s29, v3")
    a("v_xor_b32 v4, 64, v3")

    def issue(t):
        sl = OF + 8 * (t % NSL)
        a(f"s_add_u32 m0, s29, {t*2048}")
        a(f"s_add_u32 s23, s28, {t*16384}")
        a(f"buffer_load_dwordx4 v2, {sr(SWO,4)}, s23 offen lds")
        a(f"s_add_u32 m0, s29, {t*2048+1024}")
        a(f"s_add_u32 s23, s28, {t*16384+8192}")
        a(f"buffer_load_dwordx4 v2, {sr(SWO,4)}, s23 offen lds")
        a(f"s_add_u32 s23, s30, {t*65536}")
        a(f"buffer_load_dwordx4 {vr(sl,4)}, v1, {sr(SWS,4)}, s23 offen")
        a(f"buffer_load_dwordx4 {vr(sl+4,4)}, v1, {sr(SWS,4)}, s23 offen offset:1024")

    a("v_and_b32 v5, 31, v0")
    a("s_lshl_b32 s23, s21, 6")
    a("s_lshr_b32 s3, s20, 1")
    a("s_lshl_b32 s3, s3, 5")
    a("s_add_u32 s23, s23, s3")
    a("v_add_u32 v5, s23, v5")
    for t in range(AHEAD):
        issue(t)
    for i in range(64):
        a(f"v_mov_b32 v{ACC+i}, 0")
    stamp(a, 1)
    for t in range(16):
        if t + AHEAD < 16:
            issue(t + AHEAD)
            a(f"s_waitcnt vmcnt({4*AHEAD})")
        else:
            a(f"s_waitcnt vmcnt({4*(15-t)})")
        if t in (0, 8):
            stamp(a, 2 if t == 0 else 3)
            if STAMP:
                a("s_waitcnt lgkmcnt(0)")
        W = WF + 8 * (t & 1)
        a(f"ds_read_b64_tr_b16 {vr(W,2)}, v3 offset:{t*2048}")
        a(f"ds_read_b64_tr_b16 {vr(W+2,2)}, v3 offset:{t*2048+1024}")
        a(f"ds_read_b64_tr_b16 {vr(W+4,2)}, v4 offset:{t*2048}")
        a(f"ds_read_b64_tr_b16 {vr(W+6,2)}, v4 offset:{t*2048+1024}")
        sl = OF + 8 * (t % NSL)
        a("s_waitcnt lgkmcnt(2)")
        mfma(a, ACC, W, sl, ACC)
        mfma(a, ACC + 32, W, sl + 4, ACC + 32)
        a("s_waitcnt lgkmcnt(0)")
        mfma(a, ACC + 16, W + 4, sl, ACC + 16)
        mfma(a, ACC + 48, W + 4, sl + 4, ACC + 48)
    a("s_nop 7")
    a("s_nop 7")
    stamp(a, 4)
    if STAMP:
        a("s_waitcnt lgkmcnt(0)")
    a("v_add_u32 v8, s29, v1")
    for sub in range(4):
        for q in range(4):
            a(f"ds_write_b128 v8, {vr(ACC+16*sub+4*q,4)} offset:{sub*4096+q*1024}")
    a("s_waitcnt lgkmcnt(0)")
    a("s_barrier")
    a("s_lshl_b32 s3, s20, 12")
    a("v_add_u32 v8, s3, v1")
    a("v_add_u32 v9, 65536, v8")
    for w in range(4):
        for q in range(4):
            base = "v8" if w < 2 else "v9"
            a(f"ds_read_b128 {vr(ACC+16*w+4*q,4)}, {base} offset:{(w&1)*32768+q*1024}")
    if STAMP:
        a("s_waitcnt lgkmcnt(0)")
    stamp(a, 5)
    a("s_waitcnt lgkmcnt(0)")
    A_, B_ = ACC, ACC + 32
    T = 80
    for i in range(16):
        a(f"v_add_f32 v{A_+i}, v{A_+i}, v{A_+16+i}")
        a(f"v_add_f32 v{B_+i}, v{B_+i}, v{B_+16+i}")
    for i in range(16):
        a(f"v_add_f32 v{A_+i}, v{A_+i}, v{B_+i}")
    for i in range(8):
        a(f"v_cvt_pk_bf16_f32 v{T+i}, v{A_+2*i}, v{A_+2*i+1}")
    a("s_nop 1")
    a(f"v_permlane32_swap_b32 v{T}, v{T+2}")
    a(f"v_permlane32_swap_b32 v{T+1}, v{T+3}")
    a(f"v_permlane32_swap_b32 v{T+4}, v{T+6}")
    a(f"v_permlane32_swap_b32 v{T+5}, v{T+7}")
    a("v_lshlrev_b32 v5, 10, v5")
    a("v_lshrrev_b32 v6, 5, v0")
    a("v_lshlrev_b32 v6, 4, v6")
    a("v_add_u32 v5, v5, v6")
    a("s_lshl_b32 s3, s22, 7")
    a("s_and_b32 s23, s20, 1")
    a("s_lshl_b32 s23, s23, 6")
    a("s_add_u32 s3, s3, s23")
    a(f"buffer_store_dwordx4 {vr(T,4)}, v5, {sr(SOUT,4)}, s3 offen")
    a(f"buffer_store_dwordx4 {vr(T+4,4)}, v5, {sr(SOUT,4)}, s3 offen offset:32")
    if STAMP:
        a("s_waitcnt vmcnt(0)")
    stamp(a, 6)
    stamp_flush(a, 2, 8, 20, SWS)
    a.label("K3_end")
    a("s_endpgm")
    return kd(kn, WF + 16, 32)


def main():
    a = Asm()
    head = """; gated mix of hedgehog linear attention and softmax attention (generated by dev/gen.py)
; @launch kernel=qkv_kernel grid=(256,1,1) block=(512,1,1) lds=124928
; @launch kernel=attn_kernel grid=(256,1,1) block=(768,1,1) lds=137280
; @launch kernel=proj_kernel grid=(256,1,1) block=(256,1,1) lds=131072
.amdgcn_target "amdgcn-amd-amdhsa--gfx950"
.text
"""
    kds = [gen_k1(a), gen_k2(a), gen_k3(a)]
    out = head + a.text() + '.section .rodata,"a"\n' + "".join(kds)
    path = sys.argv[1] if len(sys.argv) > 1 else f"cdna_kernels/{NAME}.s"
    open(path, "w").write(out)
    print("wrote", path, len(out))


if __name__ == "__main__":
    main()
```

```python
import sys, os
from gen import *
import gen as G

WS_FL = 16 * MB + 32768
SP = 131072
XCH = SP + 2048
CNTS = SP + 4096
RING = SP + 8192
C_XCH, C_OA, F_3A, C_OB, F_3B, C_AR, L_TAG = 0, 4, 8, 12, 16, 20, 24
TAG = 34
_uid = [0]


def uid(p):
    _uid[0] += 1
    return f"{p}{_uid[0]}"


def lds_poll(a, vaddr, vt, off, target, sleep=1):
    L = uid("Lp")
    a.label(L)
    a(f"ds_read_b32 v{vt}, v{vaddr} offset:{off}")
    a("s_waitcnt lgkmcnt(0)")
    a(f"v_readfirstlane_b32 s3, v{vt}")
    a(f"s_cmp_ge_u32 s3, {target}")
    L2 = uid("Lq")
    a(f"s_cbranch_scc1 {L2}")
    a(f"s_sleep {sleep}")
    a(f"s_branch {L}")
    a.label(L2)


def lds_add(a, vaddr, vt, off, rtn=False):
    a(f"v_mov_b32 v{vt}, 1")
    a("s_mov_b64 exec, 1")
    if rtn:
        a(f"ds_add_rtn_u32 v{vt}, v{vaddr}, v{vt} offset:{off}")
        a("s_waitcnt lgkmcnt(0)")
        a(f"v_readfirstlane_b32 s3, v{vt}")
    else:
        a(f"ds_add_u32 v{vaddr}, v{vt} offset:{off}")
    a("s_mov_b64 exec, -1")


def flag_write(a, vt, soff, SWS):
    a(f"v_mov_b32 v{vt}, s{TAG}")
    a(f"v_mov_b32 v{vt+1}, s{TAG+1}")
    a(f"v_mov_b32 v{vt+2}, 0")
    a("s_mov_b64 exec, 1")
    a(f"buffer_store_dwordx2 {vr(vt,2)}, v{vt+2}, {sr(SWS,4)}, s{soff} offen sc1")
    a("s_mov_b64 exec, -1")


def flag_poll(a, vt, soff, SWS):
    a(f"v_and_b32 v{vt+2}, 31, v0")
    a(f"v_lshlrev_b32 v{vt+2}, 3, v{vt+2}")
    a("s_mov_b32 s3, 0")
    L, L2 = uid("Lf"), uid("Lg")
    a.label(L)
    a(f"buffer_load_dwordx2 {vr(vt,2)}, v{vt+2}, {sr(SWS,4)}, s{soff} offen sc1")
    a("s_waitcnt vmcnt(0)")
    a(f"v_cmp_ne_u64 vcc, s[{TAG}:{TAG+1}], {vr(vt,2)}")
    a("s_add_u32 s3, s3, 1")
    a(f"s_cbranch_vccz {L2}")
    a("s_cmp_gt_u32 s3, 0x400000")
    a(f"s_cbranch_scc1 {L2}")
    a("s_sleep 1")
    a(f"s_branch {L}")
    a.label(L2)


def proj_addr(a, wsel, ldsbase_s, vd, v_w0, v_w1, v_o):
    a("v_lshrrev_b32 v10, 3, v0")
    a("v_lshlrev_b32 v11, 10, v10")
    a("v_and_b32 v12, 16, v0")
    a("v_lshrrev_b32 v12, 2, v12")
    a("v_and_b32 v13, 7, v0")
    a("v_xor_b32 v12, v12, v13")
    a("v_lshlrev_b32 v12, 4, v12")
    a(f"v_add_u32 v{vd}, v11, v12")
    a("v_lshrrev_b32 v10, 5, v0")
    a("v_lshlrev_b32 v10, 2, v10")
    a("v_and_b32 v11, 15, v0")
    a("v_lshrrev_b32 v11, 2, v11")
    a("v_add_u32 v10, v10, v11")
    a("v_lshlrev_b32 v10, 7, v10")
    a("v_and_b32 v11, 8, v0")
    a("v_lshlrev_b32 v11, 3, v11")
    a(f"s_and_b32 s3, s{wsel}, 1")
    a("s_lshl_b32 s3, s3, 6")
    a("v_xor_b32 v11, s3, v11")
    a("v_add_u32 v10, v10, v11")
    a("v_and_b32 v11, 16, v0")
    a("v_lshlrev_b32 v11, 1, v11")
    a("v_add_u32 v10, v10, v11")
    a("v_and_b32 v11, 3, v0")
    a("v_lshlrev_b32 v11, 3, v11")
    a("v_add_u32 v10, v10, v11")
    a(f"v_xor_b32 v{v_w1}, 64, v10")
    a(f"v_add_u32 v{v_w0}, s{ldsbase_s}, v10")
    a(f"v_add_u32 v{v_w1}, s{ldsbase_s}, v{v_w1}")
    a(f"s_lshr_b32 s3, s{wsel}, 1")
    a("s_lshl_b32 s3, s3, 10")
    a(f"v_add_u32 v{v_o}, s3, v1")
    a(f"v_xor_b32 v{v_o+1}, 1024, v{v_o}")


def gen_k23(a):
    kn = "attnproj_kernel"
    kernel_begin(a, kn)
    SWS, SWO, SOUT, SDBG = 8, 40, 48, 52
    UNR = 4
    PRIO = [(32, 2), (52, 1), (60, 0)]
    a("s_cmp_ge_u32 s2, 256")
    a("s_cbranch_scc1 K2_end")
    stamp(a, 0)
    if STAMP:
        a(f"s_memrealtime s[{STB+14}:{STB+15}]")
    a("s_load_dwordx2 s[4:5], s[0:1], 80")
    a("s_load_dwordx2 s[6:7], s[0:1], 24")
    a("s_load_dwordx2 s[30:31], s[0:1], 48")
    a("s_load_dwordx4 s[56:59], s[0:1], 64")
    a("v_lshrrev_b32 v1, 6, v0")
    a("v_and_b32 v0, 63, v0")
    a("v_readfirstlane_b32 s28, v1")
    a("s_and_b32 s38, s2, 7")
    a("s_lshl_b32 s13, s38, 2")
    a("s_lshr_b32 s3, s2, 3")
    a("s_and_b32 s36, s3, 3")
    a("s_lshr_b32 s37, s3, 2")
    a("s_add_u32 s13, s13, s36")
    a("s_mov_b32 s36, s13")
    a("s_lshr_b32 s14, s2, 5")
    a("v_lshlrev_b32 v1, 4, v0")
    a(f"v_mov_b32 v2, {CNTS}")
    a("s_setprio 3")
    a("s_cmp_ge_u32 s28, 4")
    a("s_cbranch_scc1 K2_compute")
    a("s_lshl_b32 s18, s28, 10")
    a("s_lshl_b32 s17, s13, 17")
    a(f"s_add_u32 s17, s17, {WS_KVB}")
    a("s_add_u32 s17, s17, s18")
    a("v_lshlrev_b32 v3, 2, v0")
    a("v_add_u32 v3, v2, v3")
    a("v_mov_b32 v4, 0")
    a("ds_write_b32 v3, v4")
    a("s_waitcnt lgkmcnt(0)")
    srd(a, SWS, 4, WS_SIZE)
    srd(a, SDBG, 58, 256)
    a("s_or_b32 s3, s2, s28")
    a("s_cmp_lg_u32 s3, 0")
    a("s_cbranch_scc1 K2_nononce")
    a("s_memrealtime s[32:33]")
    a("s_waitcnt lgkmcnt(0)")
    a("s_or_b32 s32, s32, 1")
    a("v_mov_b32 v10, s32")
    a("v_mov_b32 v11, s33")
    a("s_mov_b64 exec, 1")
    a(f"buffer_store_dwordx2 v[10:11], off, {sr(SDBG,4)}, 0 sc1")
    a("s_mov_b64 exec, -1")
    a.label("K2_nononce")
    a("s_mov_b32 s20, 0")
    a.label("K2_ld_loop")
    for i in range(4):
        a(f"s_add_u32 m0, s18, {i*4096}")
        a(f"s_add_u32 s19, s17, {i*4096}")
        a(f"buffer_load_dwordx4 v1, {sr(SWS,4)}, s19 offen lds")
    a("s_add_u32 s17, s17, 16384")
    a("s_add_u32 s18, s18, 16384")
    a("s_add_u32 s20, s20, 1")
    a("s_cmp_lg_u32 s20, 2")
    a("s_cbranch_scc1 K2_ld_next")
    a("s_waitcnt vmcnt(3)")
    a("s_barrier")
    a.label("K2_ld_next")
    a("s_cmp_lt_u32 s20, 8")
    a("s_cbranch_scc1 K2_ld_loop")
    KP = 16
    PH = 80
    a("s_lshl_b32 s19, s13, 3")
    a("s_lshl_b32 s21, s28, 1")
    a("s_add_u32 s19, s19, s21")
    a("s_lshl_b32 s24, s19, 8")
    a(f"s_add_u32 s24, s24, {WS_KVP}")
    a("s_lshl_b32 s25, s19, 4")
    a(f"s_add_u32 s25, s25, {WS_ZP}")
    a("v_lshrrev_b32 v4, 5, v0")
    a("v_and_b32 v5, 15, v0")
    a("v_lshlrev_b32 v6, 7, v4")
    a("v_lshlrev_b32 v5, 3, v5")
    a("v_add3_u32 v6, v6, v5, s24")
    a("v_lshlrev_b32 v4, 3, v4")
    a("v_add_u32 v4, s25, v4")
    a("v_and_b32 v5, 16, v0")
    a("v_cmp_ne_u32 s[24:25], 0, v5")
    a("v_mov_b32 v7, 4096")
    a("v_mov_b32 v8, 65536")
    a("v_mov_b32 v9, 256")
    a("v_cndmask_b32 v6, v6, v4, s[24:25]")
    a("v_cndmask_b32 v7, v8, v7, s[24:25]")
    a("v_cndmask_b32 v9, v9, 16, s[24:25]")
    a("v_add_u32 v8, v6, v9")
    a("s_waitcnt vmcnt(0)")
    stamp(a, 1)
    a("s_barrier")
    a("s_cmp_lg_u32 s28, 0")
    a("s_cbranch_scc1 K2_notag")
    a("s_mov_b32 s3, 0")
    a.label("K2_tagpoll")
    a(f"buffer_load_dwordx2 v[10:11], off, {sr(SDBG,4)}, 0 sc1")
    a("s_add_u32 s3, s3, 1")
    a("s_waitcnt vmcnt(0)")
    a("v_cmp_eq_u32 vcc, 0, v10")
    a("s_cmp_gt_u32 s3, 0x400000")
    a("s_cbranch_scc1 K2_tagdone")
    a("s_cbranch_vccnz K2_tagpoll")
    a.label("K2_tagdone")
    a(f"ds_write_b64 v2, v[10:11] offset:{L_TAG}")
    a.label("K2_notag")
    for rb in range(16):
        a(f"buffer_load_dwordx2 {vr(KP+2*rb,2)}, v6, {sr(SWS,4)}, 0 offen")
        a(f"buffer_load_dwordx2 {vr(KP+32+2*rb,2)}, v8, {sr(SWS,4)}, 0 offen")
        if rb < 15:
            a("v_add_u32 v6, v6, v7")
            a("v_add_u32 v8, v8, v7")
    a("s_lshl_b32 s15, s14, 3")
    a("s_add_u32 s15, s15, s21")
    a("s_lshl_b32 s16, s13, 6")
    a("s_add_u32 s16, s16, s15")
    a("s_lshl_b32 s19, s16, 11")
    a(f"s_add_u32 s19, s19, {WS_PHIQ}")
    for k in range(4):
        a(f"buffer_load_dwordx4 {vr(PH+4*k,4)}, v1, {sr(SWS,4)}, s19 offen offset:{k*1024}")
    a("v_lshlrev_b32 v4, 5, v0")
    a(f"v_add_u32 v4, {XCH}, v4")
    a("s_lshl_b32 s3, s28, 3")
    a("v_add_u32 v5, s3, v4")
    a("s_waitcnt vmcnt(4)")
    for st in (8, 4, 2, 1):
        for i in range(st):
            for g in range(2):
                b = KP + 32 * g
                a(f"v_pk_add_f32 {vr(b+2*i,2)}, {vr(b+2*i,2)}, {vr(b+2*(i+st),2)}")
    a(f"v_cvt_pk_bf16_f32 v{KP}, v{KP}, v{KP+1}")
    a(f"v_cvt_pk_bf16_f32 v{KP+1}, v{KP+32}, v{KP+33}")
    a(f"ds_write_b64 v5, {vr(KP,2)}")
    a("s_waitcnt lgkmcnt(0)")
    lds_add(a, 2, 3, C_XCH)
    lds_poll(a, 2, 3, C_XCH, 4)
    a(f"ds_read_b128 {vr(KP,4)}, v4")
    a(f"ds_read_b128 {vr(KP+4,4)}, v4 offset:16")
    a(f"ds_read_b64 v[10:11], v2 offset:{L_TAG}")
    D = [32, 48]
    a("s_waitcnt vmcnt(0) lgkmcnt(0)")
    a(f"v_readfirstlane_b32 s{TAG}, v10")
    a(f"v_readfirstlane_b32 s{TAG+1}, v11")
    for k in range(2):
        mfma(a, D[k], KP, PH + 8 * k, "0")
        mfma(a, D[k], KP + 4, PH + 8 * k + 4, D[k])
    a("s_lshl_b32 s20, s16, 10")
    a(f"s_add_u32 s20, s20, {WS_O}")
    srd(a, SWO, 6, 512 * 512 * 2)
    a("s_nop 5")
    for k in range(2):
        a(f"v_add_f32 v{10+2*k}, {f32bits(1e-6):#x}, v{D[k]+8}")
    for k in range(2):
        a(f"v_rcp_f32 v{10+2*k}, v{10+2*k}")
    a("s_nop 0")
    for k in range(2):
        for i in range(4):
            a(f"v_pk_mul_f32 {vr(D[k]+2*i,2)}, {vr(D[k]+2*i,2)}, {vr(10+2*k,2)} op_sel_hi:[1,0]")
    for k in range(2):
        for i in range(4):
            a(f"v_cvt_pk_bf16_f32 v{64+4*k+i}, v{D[k]+2*i}, v{D[k]+2*i+1}")
        a(f"buffer_store_dwordx4 {vr(64+4*k,4)}, v1, {sr(SWS,4)}, s20 offen offset:{k*1024} sc1")
    a(f"s_mul_i32 s21, s28, 6144")
    a(f"s_add_u32 s21, s21, {RING}")
    VD, VW0, VW1, VO = 4, 5, 6, 8
    proj_addr(a, 28, 21, VD, VW0, VW1, VO)
    a("s_lshl_b32 s22, s28, 17")
    a("s_lshl_b32 s3, s37, 7")
    a("s_add_u32 s22, s22, s3")
    a("s_lshl_b32 s23, s28, 19")
    a("s_lshl_b32 s3, s36, 11")
    a("s_add_u32 s23, s23, s3")
    a(f"s_add_u32 s23, s23, {WS_O}")
    a("s_waitcnt vmcnt(0)")
    lds_add(a, 2, 3, C_OA, rtn=True)
    a("s_cmp_lg_u32 s3, 3")
    a("s_cbranch_scc1 K2_h1")
    a("s_lshl_b32 s19, s14, 8")
    a("s_lshl_b32 s3, s13, 3")
    a("s_add_u32 s19, s19, s3")
    a(f"s_add_u32 s19, s19, {WS_FL}")
    flag_write(a, 10, 19, SWS)
    a.label("K2_h1")
    stamp(a, 2)
    a("s_cmp_lg_u32 s28, 0")
    a("s_cbranch_scc1 K2_h2")
    a("s_lshl_b32 s19, s38, 8")
    a(f"s_add_u32 s19, s19, {WS_FL}")
    flag_poll(a, 10, 19, SWS)
    lds_add(a, 2, 3, F_3A)
    a.label("K2_h2")
    lds_poll(a, 2, 3, F_3A, 1, sleep=4)
    stamp(a, 3)
    ACC = 16
    OF = 80
    WF = 104

    def issueA(t):
        sl = OF + 8 * (t % 3)
        a(f"s_add_u32 m0, s21, {(t%3)*2048}")
        a(f"s_add_u32 s3, s22, {t*16384}")
        a(f"buffer_load_dwordx4 v{VD}, {sr(SWO,4)}, s3 offen lds")
        a(f"s_add_u32 m0, s21, {(t%3)*2048+1024}")
        a(f"s_add_u32 s3, s22, {t*16384+8192}")
        a(f"buffer_load_dwordx4 v{VD}, {sr(SWO,4)}, s3 offen lds")
        a(f"s_add_u32 s3, s23, {t*65536}")
        a(f"buffer_load_dwordx4 {vr(sl,4)}, v{VO}, {sr(SWS,4)}, s3 offen sc1")
        a(f"buffer_load_dwordx4 {vr(sl+4,4)}, v{VO+1}, {sr(SWS,4)}, s3 offen sc1")

    a("v_and_b32 v12, 31, v0")
    a("s_lshl_b32 s3, s36, 6")
    a("s_lshr_b32 s19, s28, 1")
    a("s_lshl_b32 s19, s19, 5")
    a("s_add_u32 s3, s3, s19")
    a("v_add_u32 v12, s3, v12")
    a("v_lshlrev_b32 v12, 2, v12")
    a(f"v_add_u32 v12, {WS_G}, v12")
    a(f"buffer_load_dword v14, v12, {sr(SWS,4)}, 0 offen sc1")
    issueA(0)
    issueA(1)
    for i in range(0, 64, 2):
        a(f"v_mov_b64 {vr(ACC+i,2)}, 0")
    for t in range(8):
        if t + 2 < 8:
            issueA(t + 2)
            a("s_waitcnt vmcnt(8)")
        else:
            a(f"s_waitcnt vmcnt({4*(7-t)})")
        o = (t % 3) * 2048
        a(f"ds_read_b64_tr_b16 {vr(WF,2)}, v{VW0} offset:{o}")
        a(f"ds_read_b64_tr_b16 {vr(WF+2,2)}, v{VW0} offset:{o+1024}")
        a(f"ds_read_b64_tr_b16 {vr(WF+4,2)}, v{VW1} offset:{o}")
        a(f"ds_read_b64_tr_b16 {vr(WF+6,2)}, v{VW1} offset:{o+1024}")
        sl = OF + 8 * (t % 3)
        a("s_waitcnt lgkmcnt(0)")
        mfma(a, ACC, WF, sl, ACC)
        mfma(a, ACC + 32, WF, sl + 4, ACC + 32)
        mfma(a, ACC + 16, WF + 4, sl, ACC + 16)
        mfma(a, ACC + 48, WF + 4, sl + 4, ACC + 48)
    stamp(a, 4)
    srd(a, 44, 30, 512 * 512 * 2)
    a("s_lshr_b32 s3, s2, 3")
    a("s_lshl_b32 s3, s3, 2")
    a("s_add_u32 s3, s3, s28")
    a("s_lshl_b32 s3, s3, 12")
    for i in range(4):
        a(f"buffer_load_dwordx4 {vr(112+4*i,4)}, v1, s[44:47], s3 offen offset:{i*1024}")
    a("s_setprio 0")
    lds_poll(a, 2, 3, C_OB, 8, sleep=8)
    a("s_setprio 3")
    a("s_lshl_b32 s19, s28, 14")
    a("s_add_u32 s19, s19, 65536")
    a("v_add_u32 v10, s19, v1")
    for j in range(1, 4):
        for q in range(4):
            a(f"ds_write_b128 v10, {vr(ACC+16*j+4*q,4)} offset:{j*4096+q*1024}")
    a("s_waitcnt lgkmcnt(0)")
    lds_add(a, 2, 3, C_AR)
    lds_poll(a, 2, 3, C_AR, 4)
    for j in range(1, 4):
        a(f"v_xor_b32 v11, {j*16384}, v10")
        for q in range(4):
            a(f"ds_read_b128 {vr(ACC+16*j+4*q,4)}, v11 offset:{j*4096+q*1024}")
    a("s_waitcnt lgkmcnt(0)")
    for i in range(8):
        a(f"v_pk_add_f32 {vr(ACC+2*i,2)}, {vr(ACC+2*i,2)}, {vr(ACC+16+2*i,2)}")
        a(f"v_pk_add_f32 {vr(ACC+32+2*i,2)}, {vr(ACC+32+2*i,2)}, {vr(ACC+48+2*i,2)}")
    for i in range(8):
        a(f"v_pk_add_f32 {vr(ACC+2*i,2)}, {vr(ACC+2*i,2)}, {vr(ACC+32+2*i,2)}")
    for i in range(8):
        a(f"v_pk_mul_f32 {vr(ACC+2*i,2)}, {vr(ACC+2*i,2)}, v[14:15] op_sel_hi:[1,0]")
    for q in range(4):
        a(f"ds_write_b128 v10, {vr(ACC+4*q,4)} offset:{q*1024}")
    a("s_waitcnt lgkmcnt(0)")
    stamp(a, 5)
    a("s_barrier")
    a("s_branch K2_flush" if STAMP else "s_branch K2_end")

    a.label("K2_compute")
    a("s_sub_u32 s12, s28, 4")
    a("s_lshl_b32 s15, s14, 3")
    a("s_add_u32 s15, s15, s12")
    a("s_lshl_b32 s16, s13, 6")
    a("s_add_u32 s16, s16, s15")
    QF = 4
    KF = [8, 12]
    VF = [16, 24]
    P = 32
    O = 40
    CN = 56
    S = [72, 88]
    NC = 104
    a("s_lshl_b32 s19, s16, 10")
    a("v_mov_b32 v108, v2")
    a("s_waitcnt lgkmcnt(0)")
    srd(a, SWS, 4, WS_SIZE)
    a(f"buffer_load_dwordx4 {vr(QF,4)}, v1, {sr(SWS,4)}, s19 offen")
    a("v_and_b32 v2, 27, v0")
    a("v_cmp_eq_u32 s[24:25], 16, v2")
    a("v_mov_b32 v3, 0x3f803f80")
    a("s_mov_b32 s20, 0x0000ffff")
    a("s_mov_b32 s21, 0x0000ffff")
    a(f"v_cndmask_b32 v{VF[0]}, 0, v3, s[24:25]")
    for i in range(1, 16):
        a(f"v_mov_b32 v{VF[0]+i}, v{VF[0]}")
    a("s_mov_b32 s22, 0")
    evmask = 0
    for t_ in [8] + [p_[0] for p_ in PRIO]:
        evmask |= 1 << (t_ // 4)
    a(f"s_mov_b32 s29, {evmask:#x}")
    stamp(a, 1)
    a("s_waitcnt vmcnt(0)")
    a("s_barrier")
    stamp(a, 2)
    if STAMP:
        a("s_waitcnt lgkmcnt(0)")
    a(f"ds_read_b128 {vr(KF[0],4)}, v1")
    a("s_waitcnt lgkmcnt(0)")
    mfma(a, S[1], KF[0], QF, "0")
    a("s_nop 7")
    a("s_nop 3")
    X = S[1]
    a(f"v_max3_f32 v2, v{X}, v{X+1}, v{X+2}")
    for i in range(3, 15, 2):
        a(f"v_max3_f32 v2, v2, v{X+i}, v{X+i+1}")
    a(f"v_max_f32 v2, v2, v{X+15}")
    cross_half(a, "v_max_f32", 2, 3)
    a.label("K2_restart")
    a("v_mov_b32 v3, v1")
    a(f"ds_read_b128 {vr(KF[0],4)}, v3")
    a(f"ds_read_b128 {vr(KF[1],4)}, v3 offset:2048")
    a("s_mov_b64 exec, s[20:21]")
    a(f"ds_read_b128 {vr(VF[0],4)}, v3 offset:1024")
    a(f"ds_read_b128 {vr(VF[0]+4,4)}, v3 offset:1280")
    a("s_mov_b64 exec, -1")
    a(f"v_sub_f32 v{CN}, 0, v2")
    a(f"v_sub_f32 v{CN+1}, 0, v2")
    for i in range(2, 16, 2):
        a(f"v_mov_b64 {vr(CN+i,2)}, {vr(CN,2)}")
    for i in range(0, 16, 2):
        a(f"v_mov_b64 {vr(O+i,2)}, 0")
    a("s_waitcnt lgkmcnt(3)")
    mfma(a, S[0], KF[0], QF, CN)
    a("s_mov_b32 s23, 0")
    a("s_nop 7")
    a("s_nop 3")
    a.raw("    .p2align 3")
    a.label("K2_loop")
    for u in range(UNR):
        X, Y = S[u & 1], S[(u + 1) & 1]
        Kn = KF[(u + 1) & 1]
        Kp = KF[u & 1]
        Vc = VF[u & 1]
        Vn = VF[(u + 1) & 1]
        a(f"ds_read_b128 {vr(Kp,4)}, v3 offset:{(u+2)*2048}")
        a("s_mov_b64 exec, s[20:21]")
        a(f"ds_read_b128 {vr(Vn,4)}, v3 offset:{(u+1)*2048+1024}")
        a(f"ds_read_b128 {vr(Vn+4,4)}, v3 offset:{(u+1)*2048+1280}")
        a("s_mov_b64 exec, -1")
        for i in range(4):
            a(f"v_exp_f32 v{X+i}, v{X+i}")
        a("s_waitcnt lgkmcnt(3)")
        mfma(a, Y, Kn, QF, CN)
        for i in range(4, 8):
            a(f"v_exp_f32 v{X+i}, v{X+i}")
        for i in range(4):
            a(f"v_cvt_pk_bf16_f32 v{P+i}, v{X+2*i}, v{X+2*i+1}")
        for i in range(8, 10):
            a(f"v_exp_f32 v{X+i}, v{X+i}")
        mfma(a, O, Vc, P, O)
        for i in range(10, 16):
            a(f"v_exp_f32 v{X+i}, v{X+i}")
        for i in range(4, 8):
            a(f"v_cvt_pk_bf16_f32 v{P+i}, v{X+2*i}, v{X+2*i+1}")
        if u == UNR - 1:
            a(f"v_add_u32 v3, {UNR*2048}, v3")
            a(f"s_add_u32 s23, s23, {UNR}")
        else:
            a("s_nop 1")
        mfma(a, O, Vc + 4, P + 4, O)
    a("s_lshr_b32 s3, s23, 2")
    a("s_bitcmp1_b32 s29, s3")
    a("s_cbranch_scc0 K2_noev")
    a("s_cmp_lg_u32 s23, 8")
    a("s_cbranch_scc1 K2_e4")
    a("s_barrier")
    a("s_branch K2_loop")
    a.label("K2_e4")
    for k, (tt, pr) in enumerate(PRIO):
        a(f"s_cmp_lg_u32 s23, {tt}")
        a(f"s_cbranch_scc1 K2_p{k}")
        a(f"s_setprio {pr}")
        a.label(f"K2_p{k}")
    a.label("K2_noev")
    a("s_cmp_lt_u32 s23, 64")
    a("s_cbranch_scc1 K2_loop")
    a("s_waitcnt lgkmcnt(0)")
    stamp(a, 3)
    lds_poll(a, 108, NC, C_XCH, 4)
    a(f"ds_read_b64 {vr(NC,2)}, v108 offset:{L_TAG}")
    a("s_waitcnt lgkmcnt(0)")
    a(f"v_readfirstlane_b32 s{TAG}, v{NC}")
    a(f"v_readfirstlane_b32 s{TAG+1}, v{NC+1}")
    a("s_nop 7")
    a("s_nop 1")
    a("s_cmp_lg_u32 s22, 0")
    a("s_cbranch_scc1 K2_fin")
    a(f"v_mov_b32 v{P}, {f32bits(2.0**64):#x}")
    a(f"v_cmp_nlt_f32 s[24:25], v{O+8}, v{P}")
    a(f"v_mov_b32 v{P+1}, 0x7f800000")
    for i in range(8):
        a(f"v_cmp_nlt_f32 s[26:27], abs(v{O+i}), v{P+1}")
        a("s_or_b64 s[24:25], s[24:25], s[26:27]")
    a("s_cmp_eq_u64 s[24:25], 0")
    a("s_cbranch_scc1 K2_fin")
    a("v_mov_b32 v3, v1")
    a("v_mov_b32 v2, 0xff800000")
    a("s_mov_b32 s23, 0")
    a.label("K2_maxloop")
    a(f"ds_read_b128 {vr(KF[0],4)}, v3")
    a("s_waitcnt lgkmcnt(0)")
    mfma(a, S[0], KF[0], QF, "0")
    a("v_add_u32 v3, 2048, v3")
    a("s_add_u32 s23, s23, 1")
    a("s_nop 7")
    a("s_nop 3")
    for i in range(0, 16, 2):
        a(f"v_max3_f32 v2, v2, v{S[0]+i}, v{S[0]+i+1}")
    a("s_cmp_lt_u32 s23, 64")
    a("s_cbranch_scc1 K2_maxloop")
    cross_half(a, "v_max_f32", 2, 3)
    a("s_mov_b32 s22, 1")
    a("s_mov_b32 s29, 0")
    a("s_branch K2_restart")
    a.label("K2_fin")
    a(f"v_rcp_f32 v2, v{O+8}")
    a("s_lshl_b32 s19, s16, 10")
    for i in range(4):
        a(f"v_pk_mul_f32 {vr(O+2*i,2)}, {vr(O+2*i,2)}, v[2:3] op_sel_hi:[1,0]")
    for i in range(4):
        a(f"v_cvt_pk_bf16_f32 v{P+i}, v{O+2*i}, v{O+2*i+1}")
    a(f"s_add_u32 s19, s19, {WS_O + 2*MB}")
    a(f"buffer_store_dwordx4 {vr(P,4)}, v1, {sr(SWS,4)}, s19 offen sc1")
    a("v_mov_b32 v2, v108")
    a("s_lshl_b32 s21, s12, 14")
    proj_addr(a, 12, 21, VD, VW0, VW1, VO)
    srd(a, SWO, 30, 512 * 512 * 2)
    srd(a, SOUT, 56, 2 * MB)
    a("s_waitcnt vmcnt(0)")
    lds_add(a, 2, 3, C_OB, rtn=True)
    a("s_cmp_lg_u32 s3, 7")
    a("s_cbranch_scc1 K2_c1")
    a("s_lshl_b32 s19, s14, 8")
    a("s_lshl_b32 s3, s13, 3")
    a("s_add_u32 s19, s19, s3")
    a(f"s_add_u32 s19, s19, {WS_FL + 2048}")
    flag_write(a, 10, 19, SWS)
    a.label("K2_c1")
    stamp(a, 4)
    stamp(a, 5)
    a("s_cmp_ge_u32 s12, 4")
    a("s_cbranch_scc1 K2_flush" if STAMP else "s_cbranch_scc1 K2_end")
    a("s_setprio 3")
    a("s_lshl_b32 s22, s12, 17")
    a("s_lshl_b32 s3, s37, 7")
    a("s_add_u32 s22, s22, s3")
    a("s_lshl_b32 s23, s12, 19")
    a("s_lshl_b32 s3, s36, 11")
    a("s_add_u32 s23, s23, s3")
    a(f"s_add_u32 s23, s23, {WS_O + 2*MB}")
    a("v_and_b32 v12, 31, v0")
    a("s_lshl_b32 s3, s36, 6")
    a("s_lshr_b32 s19, s12, 1")
    a("s_lshl_b32 s19, s19, 5")
    a("s_add_u32 s3, s3, s19")
    a("v_add_u32 v7, s3, v12")
    a("v_lshlrev_b32 v12, 2, v7")
    a(f"v_add_u32 v12, {WS_G}, v12")
    a(f"buffer_load_dword v14, v12, {sr(SWS,4)}, 0 offen sc1")
    for i in range(0, 64, 2):
        a(f"v_mov_b64 {vr(ACC+i,2)}, 0")
    lds_poll(a, 2, 3, C_OB, 8)
    for t in range(16):
        a(f"s_add_u32 m0, s21, {t*1024}")
        a(f"s_add_u32 s3, s22, {t*8192}")
        a(f"buffer_load_dwordx4 v{VD}, {sr(SWO,4)}, s3 offen lds")
    a("s_cmp_lg_u32 s12, 0")
    a("s_cbranch_scc1 K2_b2")
    a("s_lshl_b32 s19, s38, 8")
    a(f"s_add_u32 s19, s19, {WS_FL + 2048}")
    flag_poll(a, 10, 19, SWS)
    lds_add(a, 2, 3, F_3B)
    a.label("K2_b2")
    lds_poll(a, 2, 3, F_3B, 1)
    stamp(a, 5)
    OFB = 80
    WFB = 144
    for t in range(8):
        a(f"s_add_u32 s3, s23, {t*65536}")
        a(f"buffer_load_dwordx4 {vr(OFB+8*t,4)}, v{VO}, {sr(SWS,4)}, s3 offen sc1")
        a(f"buffer_load_dwordx4 {vr(OFB+8*t+4,4)}, v{VO+1}, {sr(SWS,4)}, s3 offen sc1")
    a("s_waitcnt vmcnt(16)")
    a("v_sub_f32 v14, 1.0, v14")
    a("v_cvt_pk_bf16_f32 v14, v14, v14")
    a("v_lshlrev_b32 v14, 16, v14")

    def wread(t):
        W = WFB + 8 * (t & 1)
        a(f"ds_read_b64_tr_b16 {vr(W,2)}, v{VW0} offset:{t*2048}")
        a(f"ds_read_b64_tr_b16 {vr(W+2,2)}, v{VW0} offset:{t*2048+1024}")
        a(f"ds_read_b64_tr_b16 {vr(W+4,2)}, v{VW1} offset:{t*2048}")
        a(f"ds_read_b64_tr_b16 {vr(W+6,2)}, v{VW1} offset:{t*2048+1024}")
    wread(0)
    for t in range(8):
        W = WFB + 8 * (t & 1)
        sl = OFB + 8 * t
        if t < 7:
            wread(t + 1)
            a(f"s_waitcnt vmcnt({2*(7-t)}) lgkmcnt(4)")
        else:
            a("s_waitcnt vmcnt(0) lgkmcnt(0)")
        mfma(a, ACC + 16, W + 4, sl, ACC + 16)
        mfma(a, ACC + 32, W, sl + 4, ACC + 32)
        mfma(a, ACC + 48, W + 4, sl + 4, ACC + 48)
        mfma(a, ACC, W, sl, ACC)
    a("v_add_u32 v10, s21, v1")
    a("s_nop 7")
    for j in range(1, 4):
        for q in range(4):
            a(f"ds_write_b128 v10, {vr(ACC+16*j+4*q,4)} offset:{j*4096+q*1024}")
    a("v_lshlrev_b32 v7, 10, v7")
    a("v_lshrrev_b32 v12, 5, v0")
    a("v_lshlrev_b32 v12, 4, v12")
    a("v_add_u32 v7, v7, v12")
    a("s_lshl_b32 s19, s37, 7")
    a("s_and_b32 s3, s12, 1")
    a("s_lshl_b32 s3, s3, 6")
    a("s_add_u32 s19, s19, s3")
    a("v_add_u32 v12, 65536, v10")
    a("s_waitcnt lgkmcnt(0)")
    a("s_barrier")
    for j in range(1, 4):
        a(f"v_xor_b32 v11, {j*16384}, v10")
        for q in range(4):
            a(f"ds_read_b128 {vr(ACC+16*j+4*q,4)}, v11 offset:{j*4096+q*1024}")
    AF = 80
    a("s_waitcnt lgkmcnt(8)")
    for q in range(4):
        a(f"ds_read_b128 {vr(AF+4*q,4)}, v12 offset:{q*1024}")
    a("s_waitcnt lgkmcnt(4)")
    for i in range(8):
        a(f"v_pk_add_f32 {vr(ACC+2*i,2)}, {vr(ACC+2*i,2)}, {vr(ACC+16+2*i,2)}")
        a(f"v_pk_add_f32 {vr(ACC+32+2*i,2)}, {vr(ACC+32+2*i,2)}, {vr(ACC+48+2*i,2)}")
    for i in range(8):
        a(f"v_pk_add_f32 {vr(ACC+2*i,2)}, {vr(ACC+2*i,2)}, {vr(ACC+32+2*i,2)}")
    a("s_waitcnt lgkmcnt(0)")
    for i in range(8):
        a(f"v_pk_fma_f32 {vr(ACC+2*i,2)}, {vr(ACC+2*i,2)}, v[14:15], {vr(AF+2*i,2)} op_sel_hi:[1,0,1]")
    T = 96
    for i in range(8):
        a(f"v_cvt_pk_bf16_f32 v{T+i}, v{ACC+2*i}, v{ACC+2*i+1}")
    a("s_nop 1")
    a(f"v_permlane32_swap_b32 v{T}, v{T+2}")
    a(f"v_permlane32_swap_b32 v{T+1}, v{T+3}")
    a(f"v_permlane32_swap_b32 v{T+4}, v{T+6}")
    a(f"v_permlane32_swap_b32 v{T+5}, v{T+7}")
    a(f"buffer_store_dwordx4 {vr(T,4)}, v7, {sr(SOUT,4)}, s19 offen")
    a(f"buffer_store_dwordx4 {vr(T+4,4)}, v7, {sr(SOUT,4)}, s19 offen offset:32")
    if STAMP:
        a.label("K2_flush")
        a("s_waitcnt vmcnt(0)")
        stamp(a, 6)
        stamp_flush(a, 1, 8, 28, SWS)
    a.label("K2_end")
    a("s_endpgm")
    return kd(kn, 160, 64)


def main():
    a = Asm()
    head = """; gated mix of hedgehog linear attention and softmax attention (generated by dev/gen2.py)
; @launch kernel=qkv_kernel grid=(256,1,1) block=(512,1,1) lds=124928
; @launch kernel=attnproj_kernel grid=(256,1,1) block=(768,1,1) lds=163840
.amdgcn_target "amdgcn-amd-amdhsa--gfx950"
.text
"""
    kds = [gen_k1(a), gen_k23(a)]
    out = head + a.text() + '.section .rodata,"a"\n' + "".join(kds)
    path = sys.argv[1] if len(sys.argv) > 1 else f"f23.s"
    open(path, "w").write(out)
    print("wrote", path, len(out))


if __name__ == "__main__":
    main()
```

```python
import sys, os

NAME = "gated_mix__linear_kernel_hedgehog__softmax_full_mha__prompt"

MB = 1 << 20
WS_QB = 0
WS_KVB = 2 * MB
WS_PHIQ = 6 * MB
WS_KVP = 10 * MB
WS_ZP = 11 * MB
WS_O = 12 * MB
WS_G = 16 * MB
WS_SIZE = 18 * MB

LOG2E = 1.4426950408889634


def f32bits(x):
    import struct
    return struct.unpack("<I", struct.pack("<f", x))[0]


class Asm:
    def __init__(self):
        self.lines = []

    def __call__(self, s):
        for l in s.strip("\n").split("\n"):
            self.lines.append("    " + l.strip())

    def label(self, l):
        self.lines.append(l + ":")

    def raw(self, s):
        self.lines.append(s)

    def text(self):
        return "\n".join(self.lines) + "\n"


def vr(b, n=1):
    return f"v{b}" if n == 1 else f"v[{b}:{b+n-1}]"


def sr(b, n=1):
    return f"s{b}" if n == 1 else f"s[{b}:{b+n-1}]"


EXP = os.environ.get("EXP", "")


def mfma(a, d, A, B, C):
    c = C if isinstance(C, str) else vr(C, 16)
    a(f"v_mfma_f32_32x32x16_bf16 {vr(d,16)}, {vr(A,4)}, {vr(B,4)}, {c}")


def srd(a, d, ptr, size):
    a(f"s_mov_b32 s{d}, s{ptr}")
    a(f"s_mov_b32 s{d+1}, s{ptr+1}")
    a(f"s_mov_b32 s{d+2}, {size}")
    a(f"s_mov_b32 s{d+3}, 0x00020000")


def kernel_begin(a, name):
    a.raw(f".globl {name}")
    a.raw(".p2align 8")
    a.raw(f".type {name},@function")
    a.label(name)


def kd(name, vgpr, sgpr):
    acc = (vgpr + 3) // 4 * 4
    if STAMP:
        sgpr = 100
    return f""".p2align 6
.amdhsa_kernel {name}
  .amdhsa_next_free_vgpr {vgpr}
  .amdhsa_next_free_sgpr {sgpr}
  .amdhsa_accum_offset {acc}
  .amdhsa_group_segment_fixed_size 0
  .amdhsa_kernarg_size 88
  .amdhsa_user_sgpr_count 2
  .amdhsa_user_sgpr_kernarg_segment_ptr 1
  .amdhsa_system_sgpr_workgroup_id_x 1
.end_amdhsa_kernel
"""


import os
STAMP = os.environ.get("STAMP", "0") == "1"
WS_STAMP = 16 * MB + 65536
STB = 64


DBG = os.environ.get("DBG", "0") == "1"


def stamp(a, i):
    if STAMP:
        a(f"s_memrealtime s[{STB+2*i}:{STB+2*i+1}]" if DBG else f"s_memtime s[{STB+2*i}:{STB+2*i+1}]")


def stamp_flush(a, kidx, n, wave_s, srd_s):
    if not STAMP:
        return
    a(f"s_memrealtime s[{STB+16}:{STB+17}]")
    if "first" not in EXP:
        a(f"s_getreg_b32 s{STB+18}, hwreg(HW_REG_XCC_ID)")
    n = 10
    a("s_waitcnt lgkmcnt(0)")
    a("s_mov_b64 exec, 1")
    a(f"s_lshl_b32 s3, s2, 10")
    a(f"s_lshl_b32 s4, s{wave_s}, 6")
    a("s_add_u32 s3, s3, s4")
    a(f"s_add_u32 s3, s3, {WS_STAMP + kidx*262144}")
    a("v_mov_b32 v1, 0")
    for i in range(n):
        a(f"v_mov_b32 v2, s{STB+2*i}")
        a(f"buffer_store_dword v2, v1, {sr(srd_s,4)}, s3 offen offset:{4*i}")
        a("s_nop 1")


def cross_half(a, op, x, t):
    a(f"v_mov_b32 v{t}, v{x}")
    a("s_nop 1")
    a(f"v_permlane32_swap_b32 v{x}, v{t}")
    a("s_nop 1")
    a(f"{op} v{x}, v{x}, v{t}")


def gen_k1(a):
    kn = "qkv_kernel"
    kernel_begin(a, kn)
    STAGE = 40960
    RED = 81920
    PHL = 122880
    SX, SW0, SW1, SW2, SWS, SPHI, SGW = 8, 12, 16, 20, 24, 28, 52
    a("s_cmp_ge_u32 s2, 256")
    a("s_cbranch_scc1 K1_end")
    stamp(a, 0)
    if STAMP:
        a(f"s_memrealtime s[{STB+14}:{STB+15}]")
    a("s_load_dwordx4 s[36:39], s[0:1], 0")
    a("s_load_dwordx2 s[42:43], s[0:1], 40")
    a("s_load_dwordx2 s[40:41], s[0:1], 16")
    a("s_load_dwordx2 s[44:45], s[0:1], 56")
    a("s_load_dwordx2 s[46:47], s[0:1], 80")
    a("v_lshrrev_b32 v1, 6, v0")
    a("v_and_b32 v0, 63, v0")
    a("v_readfirstlane_b32 s32, v1")
    a("s_and_b32 s3, s2, 1")
    a("s_lshl_b32 s33, s3, 3")
    if "pf" in EXP:
        a("s_xor_b32 s32, s32, 4")
    a("s_lshr_b32 s3, s2, 3")
    a("s_and_b32 s62, s3, 7")
    a("s_add_u32 s33, s33, s62")
    a("s_lshr_b32 s34, s3, 3")
    a("s_and_b32 s4, s2, 6")
    a("s_lshl_b32 s4, s4, 1")
    a("s_add_u32 s34, s34, s4")
    a("s_and_b32 s56, s34, 7")
    a("s_lshr_b32 s57, s34, 3")
    a("s_cmp_lt_u32 s32, 4")
    a("s_cbranch_scc0 K1_compute")

    a("v_lshrrev_b32 v5, 3, v0")
    a("s_lshl_b32 s3, s32, 3")
    a("v_add_u32 v2, s3, v5")
    a("v_lshlrev_b32 v2, 10, v2")
    a("v_lshrrev_b32 v3, 4, v0")
    a("s_and_b32 s3, s32, 1")
    a("s_lshl_b32 s3, s3, 2")
    a("v_add_u32 v3, s3, v3")
    a("v_and_b32 v4, 7, v0")
    a("v_xor_b32 v3, v3, v4")
    a("v_lshlrev_b32 v3, 4, v3")
    a("v_add_u32 v2, v2, v3")
    a("s_lshl_b32 s3, s32, 4")
    a("v_add_u32 v3, s3, v5")
    a("v_mul_u32_u24 v3, 3072, v3")
    a("v_and_b32 v5, 16, v0")
    a("v_lshrrev_b32 v5, 2, v5")
    a("v_xor_b32 v4, v4, v5")
    a("v_lshlrev_b32 v4, 4, v4")
    a("v_add_u32 v3, v3, v4")
    a("s_lshl_b32 s48, s33, 17")
    a("s_lshl_b32 s3, s56, 7")
    a("s_cmp_eq_u32 s57, 0")
    a("s_cselect_b32 s49, 1024, 0")
    a("s_cselect_b32 s58, 2048, 0")
    a("s_max_u32 s59, s58, 1024")
    a("s_add_u32 s49, s49, s3")
    a("s_add_u32 s58, s58, s3")
    a("s_add_u32 s59, s59, s3")
    a("s_lshl_b32 s50, s32, 10")
    a("s_lshl_b32 s60, s32, 11")
    a("s_mov_b32 s51, 0")
    if "rot0" in EXP:
        a("s_mov_b32 s62, 0")
    elif "rotfull" in EXP:
        a("s_and_b32 s3, s34, 3")
        a("s_lshl_b32 s3, s3, 1")
        a("s_add_u32 s62, s62, s3")
        a("s_and_b32 s62, s62, 7")
    elif "rothalf" in EXP:
        a("s_xor_b32 s62, s62, s34")
        a("s_and_b32 s62, s62, 1")
        a("s_lshl_b32 s62, s62, 2")
    elif "rotrb" not in EXP:
        a("s_add_u32 s62, s62, s34")
        a("s_and_b32 s62, s62, 3")
        a("s_lshl_b32 s62, s62, 1")
    a("s_waitcnt lgkmcnt(0)")
    srd(a, SX, 36, 2 * MB)
    srd(a, SW0, 38, 512 * 1536 * 2)
    srd(a, SW2, 42, 512 * 1536 * 2)
    a("s_cmp_eq_u32 s57, 0")
    a("s_cselect_b32 s4, s38, s42")
    a("s_cselect_b32 s5, s39, s43")
    srd(a, SW1, 4, 512 * 1536 * 2)
    if "pf" in EXP:
        a("s_barrier")
    a("s_cmp_ge_u32 s32, 2")
    a("s_cbranch_scc1 K1_ld_loop")
    srd(a, SPHI, 40, 32 * 16 * 16 * 2)
    a("v_lshlrev_b32 v5, 4, v0")
    a(f"s_add_u32 m0, s50, {PHL}")
    a("s_lshl_b32 s6, s56, 11")
    a("s_add_u32 s6, s6, s50")
    a(f"buffer_load_dwordx4 v5, {sr(SPHI,4)}, s6 offen lds")
    a.label("K1_ld_loop")
    a("s_lshl_b32 s6, s62, 7")
    a("s_add_u32 s6, s6, s48")
    a(f"s_mul_i32 s7, s62, {64*3072}")
    for ii in range(4):
        a(f"s_add_u32 m0, s50, {ii*4096}")
        a(f"s_add_u32 s61, s6, {ii*32768}")
        if "nodma" not in EXP:
            a(f"buffer_load_dwordx4 v2, {sr(SX,4)}, s61 offen lds")
    for j, (S, so) in enumerate(((SW0, 49), (SW1, 58), (SW2, 59))):
        a(f"s_add_u32 m0, s60, {16384 + j*8192}")
        a(f"s_add_u32 s61, s{so}, s7")
        if "nodma" not in EXP:
            a(f"buffer_load_dwordx4 v3, {sr(S,4)}, s61 offen lds")
        a(f"s_add_u32 m0, s60, {16384 + j*8192 + 1024}")
        a(f"s_add_u32 s61, s61, {8*3072}")
        if "nodma" not in EXP:
            a(f"buffer_load_dwordx4 v3, {sr(S,4)}, s61 offen lds")
    a("s_add_u32 s62, s62, 1")
    a("s_and_b32 s62, s62, 7")
    a(f"s_add_u32 s50, s50, {STAGE}")
    a(f"s_add_u32 s60, s60, {STAGE}")
    a(f"s_cmp_lt_u32 s50, {3*STAGE}")
    a("s_cbranch_scc1 K1_ld_nowrap")
    a(f"s_sub_u32 s50, s50, {3*STAGE}")
    a(f"s_sub_u32 s60, s60, {3*STAGE}")
    a.label("K1_ld_nowrap")
    a("s_add_u32 s51, s51, 1")
    a("s_cmp_eq_u32 s51, 1")
    a("s_cbranch_scc1 K1_ld_loop")
    a("s_waitcnt vmcnt(10)")
    a("s_barrier")
    a("s_cmp_lt_u32 s51, 8")
    a("s_cbranch_scc1 K1_ld_loop")
    a("s_waitcnt vmcnt(0)")
    stamp(a, 3)
    a("s_barrier")
    for i_ in (1, 2, 4, 5, 6):
        stamp(a, i_)
    srd(a, SWS, 46, WS_SIZE)
    a("s_cmp_lg_u32 s32, 0")
    a("s_cbranch_scc1 K1_flush" if STAMP else "s_cbranch_scc1 K1_end")
    srd(a, SGW, 44, 1024)
    a("s_lshl_b32 s3, s33, 7")
    a("s_lshl_b32 s4, s34, 3")
    a("s_add_u32 s3, s3, s4")
    a("v_lshrrev_b32 v2, 3, v0")
    a("v_add_u32 v2, s3, v2")
    a("v_and_b32 v3, 7, v0")
    a("v_lshlrev_b32 v3, 4, v3")
    a("v_lshlrev_b32 v4, 10, v2")
    a("v_add_u32 v4, v4, v3")
    for j in range(8):
        a(f"buffer_load_dwordx4 {vr(8+4*j,4)}, v4, {sr(SX,4)}, 0 offen offset:{j*128}")
        a(f"buffer_load_dwordx4 {vr(40+4*j,4)}, v3, {sr(SGW,4)}, 0 offen offset:{j*128}")
    a("v_mov_b32 v5, 0")
    a("v_mov_b32 v6, 0")
    a("s_waitcnt vmcnt(0)")
    for j in range(16):
        a(f"v_dot2_f32_bf16 v5, v{8+2*j}, v{40+2*j}, v5")
        a(f"v_dot2_f32_bf16 v6, v{9+2*j}, v{41+2*j}, v6")
    a("s_nop 3")
    a("v_add_f32 v5, v5, v6")
    for off in (0x041F, 0x081F, 0x101F):
        a(f"ds_swizzle_b32 v6, v5 offset:{off}")
        a("s_waitcnt lgkmcnt(0)")
        a("v_add_f32 v5, v5, v6")
    a("v_cvt_pk_bf16_f32 v5, v5, v5")
    a("v_lshlrev_b32 v5, 16, v5")
    a(f"v_mul_f32 v5, {f32bits(-LOG2E):#x}, v5")
    a("v_exp_f32 v5, v5")
    a("s_nop 0")
    a("v_add_f32 v5, 1.0, v5")
    a("v_rcp_f32 v5, v5")
    a("s_nop 0")
    a("v_cvt_pk_bf16_f32 v5, v5, v5")
    a("v_lshlrev_b32 v5, 16, v5")
    a("v_lshlrev_b32 v2, 2, v2")
    a(f"v_add_u32 v2, {WS_G}, v2")
    a(f"buffer_store_dword v5, v2, {sr(SWS,4)}, 0 offen")
    a("s_branch K1_flush" if STAMP else "s_branch K1_end")

    a.label("K1_compute")
    ACC = lambda rt, j: 16 + 48 * rt + 16 * j
    FS = [112, 132]
    WRAW = 152
    WPH = 168
    AX = 4
    AWD = 8
    if "pf" in EXP:
        a("s_sub_u32 s3, s32, 4")
        a("s_and_b32 s4, s34, 3")
        a("s_lshl_b32 s4, s4, 5")
        a("s_lshl_b32 s5, s3, 3")
        a("s_add_u32 s4, s4, s5")
        a("s_lshl_b32 s5, s33, 7")
        a("s_add_u32 s4, s4, s5")
        a("v_lshrrev_b32 v10, 3, v0")
        a("v_and_b32 v11, 7, v0")
        a("v_lshlrev_b32 v11, 4, v11")
        a("v_add_u32 v12, s4, v10")
        a("v_lshlrev_b32 v12, 10, v12")
        a("v_add_u32 v12, v12, v11")
        a("s_lshl_b32 s4, s62, 3")
        a("v_add_u32 v13, s4, v10")
        a("v_mul_u32_u24 v13, 3072, v13")
        a("v_add_u32 v13, v13, v11")
        a("s_cmp_eq_u32 s57, 0")
        a("s_cselect_b32 s4, 1024, 0")
        a("s_cselect_b32 s5, 2048, 0")
        a("s_max_u32 s6, s5, 1024")
        a("s_cmp_eq_u32 s3, 1")
        a("s_cselect_b32 s4, s5, s4")
        a("s_cmp_eq_u32 s3, 2")
        a("s_cselect_b32 s4, s6, s4")
        a("s_lshl_b32 s5, s56, 7")
        a("s_add_u32 s4, s4, s5")
        a("s_waitcnt lgkmcnt(0)")
        srd(a, SX, 36, 2 * MB)
        a("s_add_u32 s5, s3, s57")
        a("s_cmp_lt_u32 s5, 2")
        a("s_cselect_b32 s6, s38, s42")
        a("s_cselect_b32 s7, s39, s43")
        a("s_cmp_eq_u32 s3, 0")
        a("s_cselect_b32 s6, s38, s6")
        a("s_cselect_b32 s7, s39, s7")
        srd(a, SW0, 6, 512 * 1536 * 2)
        a("s_cmp_eq_u32 s3, 3")
        a("s_cselect_b32 s4, 0x7ff00000, s4")
        for c in range(0, 8):
            a(f"buffer_load_dwordx4 {vr(176+8*c,4)}, v12, {sr(SX,4)}, 0 offen offset:{c*128}")
            a(f"s_add_u32 s5, s4, {c*64*3072}")
            a(f"buffer_load_dwordx4 {vr(180+8*c,4)}, v13, {sr(SW0,4)}, s5 offen")
        a("s_barrier")
    a("s_and_b32 s35, s32, 1")
    a("s_lshr_b32 s48, s32, 1")
    a("s_and_b32 s48, s48, 1")
    a("v_and_b32 v1, 31, v0")
    a("v_lshrrev_b32 v2, 5, v0")
    a("v_lshrrev_b32 v3, 1, v1")
    a("v_and_b32 v3, 7, v3")
    a("v_xor_b32 v3, v3, v2")
    a("v_lshlrev_b32 v3, 4, v3")
    a("s_lshl_b32 s3, s35, 6")
    a("v_add_u32 v4, s3, v1")
    a("v_lshlrev_b32 v4, 7, v4")
    a("v_add_u32 v4, v4, v3")
    for t in range(1, 4):
        a(f"v_xor_b32 v{AX+t}, {32*t}, v4")
    a("v_and_b32 v3, 15, v0")
    a("v_lshrrev_b32 v8, 2, v3")
    a("v_lshlrev_b32 v9, 3, v2")
    a("v_add_u32 v8, v8, v9")
    a("v_lshlrev_b32 v8, 7, v8")
    a("v_and_b32 v9, 8, v0")
    a("v_lshlrev_b32 v9, 3, v9")
    a("s_lshl_b32 s3, s48, 6")
    a("v_xor_b32 v9, s3, v9")
    a("v_add_u32 v8, v8, v9")
    a("v_and_b32 v9, 16, v0")
    a("v_lshlrev_b32 v9, 1, v9")
    a("v_add_u32 v8, v8, v9")
    a("v_and_b32 v9, 3, v0")
    a("v_lshlrev_b32 v9, 3, v9")
    a("v_add_u32 v8, v8, v9")
    a("v_add_u32 v8, 16384, v8")
    a("s_lshl_b32 s51, s56, 2")
    a("s_lshl_b32 s3, s48, 1")
    a("s_add_u32 s51, s51, s3")
    a("v_lshrrev_b32 v9, 2, v3")
    a("v_lshlrev_b32 v10, 2, v2")
    a("v_add_u32 v9, v9, v10")
    a("v_lshlrev_b32 v9, 5, v9")
    a("v_and_b32 v10, 3, v0")
    a("v_lshlrev_b32 v10, 3, v10")
    a("s_lshl_b32 s3, s48, 10")
    a(f"s_add_u32 s3, s3, {PHL}")
    a(f"v_add3_u32 v{WRAW}, v9, v10, s3")
    a("s_waitcnt lgkmcnt(0)")
    srd(a, SWS, 46, WS_SIZE)
    for i in range(0, 96, 2):
        a(f"v_mov_b64 {vr(16+i,2)}, 0")

    def reads(F, t):
        if "noread" in EXP:
            return ["s_nop 0"] * 8
        w = lambda j, hf: f"ds_read_b64_tr_b16 {vr(F+8+4*j+2*hf,2)}, v{AWD} offset:{j*8192 + t*2048 + 512*hf}"
        return [f"ds_read_b128 {vr(F,4)}, v{AX+t}", w(0, 0), w(0, 1),
                f"ds_read_b128 {vr(F+4,4)}, v{AX+t} offset:4096", w(1, 0), w(1, 1), w(2, 0), w(2, 1)]

    def main_loop(tag, typeK):
        def m(F, k):
            if "nomfma" in EXP:
                return
            rt, j = k & 1, k >> 1
            X, W = F + 4 * rt, F + 8 + 4 * j
            if typeK and j > 0:
                mfma(a, ACC(rt, j), X, W, ACC(rt, j))
            else:
                mfma(a, ACC(rt, j), W, X, ACC(rt, j))

        def step(F, R):
            a("s_waitcnt lgkmcnt(5)")
            m(F, 0)
            a(R[0]); a(R[1])
            a("s_waitcnt lgkmcnt(6)")
            m(F, 1)
            a(R[2]); a(R[3])
            a("s_waitcnt lgkmcnt(6)")
            m(F, 2)
            a(R[4]); a(R[5])
            m(F, 3)
            a(R[6]); a(R[7])
            a("s_waitcnt lgkmcnt(8)")
            m(F, 4)
            m(F, 5)
        a.label(f"K1_loop{tag}")
        step(FS[0], reads(FS[1], 1))
        step(FS[1], reads(FS[0], 2))
        step(FS[0], reads(FS[1], 3))
        F = FS[1]
        a("s_waitcnt lgkmcnt(0)")
        m(F, 0)
        m(F, 1)
        a("s_cmp_eq_u32 s49, 7")
        a(f"s_cbranch_scc1 K1_last{tag}")
        a("s_barrier")
        a("s_add_u32 s50, s50, 1")
        a(f"s_mov_b32 s3, {STAGE}")
        a("s_cmp_eq_u32 s50, 3")
        a(f"s_cselect_b32 s3, {(-2*STAGE) & 0xffffffff}, s3")
        a("s_cselect_b32 s50, 0, s50")
        a(f"v_add_u32 v{AX}, s3, v{AX}")
        a(f"v_add_u32 v{AWD}, s3, v{AWD}")
        R = reads(FS[0], 0)
        a(R[0]); a(R[1]); a(R[2])
        m(F, 2)
        a(R[3]); a(R[4]); a(R[5])
        m(F, 3)
        a(R[6]); a(R[7])
        for r in range(AX + 1, AX + 4):
            a(f"v_add_u32 v{r}, s3, v{r}")
        m(F, 4)
        a("s_add_u32 s49, s49, 1")
        m(F, 5)
        a(f"s_branch K1_loop{tag}")
        a.label(f"K1_last{tag}")
        for k in range(2, 6):
            m(F, k)
        stamp(a, 3)
        stamp(a, 4)
        stamp(a, 5)
        if STAMP:
            a("s_waitcnt lgkmcnt(0)")
        a("s_lshl_b32 s50, s33, 2")
        a("s_lshl_b32 s3, s35, 1")
        a("s_add_u32 s50, s50, s3")
        a("s_lshl_b32 s58, s51, 6")
        a("s_add_u32 s58, s58, s50")
        a("v_lshlrev_b32 v9, 4, v0")
        a("s_waitcnt vmcnt(0)")
        for h in range(2):
            a(f"ds_read_b64_tr_b16 {vr(WPH+4*h,2)}, v{WRAW} offset:{h*512}")
            a(f"ds_read_b64_tr_b16 {vr(WPH+4*h+2,2)}, v{WRAW} offset:{h*512+256}")
        a("s_nop 3")
        for rt in range(2):
            for i in range(8):
                a(f"v_cvt_pk_bf16_f32 v{XF[rt]+i}, v{ACC(rt,0)+2*i}, v{ACC(rt,0)+2*i+1}")

    XF = [112, 120]
    VF = [128, 136]
    ST = 144
    PD = [176, 192]
    T0 = [208, 224]
    TT = [16, 32]
    KV = [48, 64]
    IP, IM = 80, 84
    BV = [88, 96]

    a("s_mov_b32 s49, 0")
    a("s_mov_b32 s50, 0")
    stamp(a, 1)
    a("s_barrier")
    stamp(a, 2)
    if STAMP:
        a("s_waitcnt lgkmcnt(0)")
    for r in reads(FS[0], 0):
        a(r)
    a("s_cmp_eq_u32 s57, 0")
    a("s_cbranch_scc1 K1_loopK")

    main_loop("Q", False)
    a(f"s_mov_b32 s60, {f32bits(0.25*LOG2E):#x}")
    a("s_mov_b32 s61, s60")
    a("s_lshl_b32 s4, s58, 10")
    a(f"s_add_u32 s5, s4, {64*1024}")
    a("s_lshl_b32 s6, s58, 11")
    a(f"s_add_u32 s6, s6, {WS_KVB}")
    a(f"s_add_u32 s7, s6, {64*2048}")
    for rt in range(2):
        S0 = ST if rt == 0 else 128
        for i in range(8):
            a(f"v_pk_mul_f32 {vr(ACC(rt,1)+2*i,2)}, {vr(ACC(rt,1)+2*i,2)}, s[60:61]")
        for i in range(8):
            a(f"v_cvt_pk_bf16_f32 v{S0+i}, v{ACC(rt,1)+2*i}, v{ACC(rt,1)+2*i+1}")
        for i in range(8):
            a(f"v_cvt_pk_bf16_f32 v{S0+8+i}, v{ACC(rt,2)+2*i}, v{ACC(rt,2)+2*i+1}")
        a(f"buffer_store_dwordx4 {vr(S0,4)}, v9, {sr(SWS,4)}, s4 offen offset:{rt*1024}")
        a(f"buffer_store_dwordx4 {vr(S0+4,4)}, v9, {sr(SWS,4)}, s5 offen offset:{rt*1024}")
        a(f"buffer_store_dwordx4 {vr(S0+8,4)}, v9, {sr(SWS,4)}, s6 offen offset:{rt*2048}")
        a(f"buffer_store_dwordx4 {vr(S0+12,4)}, v9, {sr(SWS,4)}, s7 offen offset:{rt*2048}")
    a("s_lshl_b32 s4, s58, 11")
    a(f"s_add_u32 s4, s4, {WS_PHIQ}")
    a(f"s_add_u32 s5, s4, {64*2048}")
    a("s_branch K1_feat")

    main_loop("K", True)
    a("v_and_b32 v10, 16, v0")
    a("v_cmp_ne_u32 s[6:7], 0, v10")
    a("v_lshlrev_b32 v10, 13, v10")
    a("v_and_b32 v11, 0x2f, v0")
    a("v_lshlrev_b32 v11, 4, v11")
    a("v_add_u32 v10, v10, v11")
    a("s_lshl_b32 s4, s58, 11")
    a(f"s_add_u32 s4, s4, {WS_KVB}")
    for rt in range(2):
        for i in range(8):
            a(f"v_cvt_pk_bf16_f32 v{ST+8*rt+i}, v{ACC(rt,2)+2*i}, v{ACC(rt,2)+2*i+1}")
        a(f"buffer_store_dwordx4 {vr(ST+8*rt,4)}, v10, {sr(SWS,4)}, s4 offen offset:{rt*2048+1024}")
        a(f"buffer_store_dwordx4 {vr(ST+8*rt+4,4)}, v10, {sr(SWS,4)}, s4 offen offset:{rt*2048+1280}")
    for rt in range(2):
        for i in range(8):
            a(f"v_cvt_pk_bf16_f32 v{VF[rt]+i}, v{ACC(rt,1)+2*i}, v{ACC(rt,1)+2*i+1}")
    a("v_lshlrev_b32 v10, 2, v2")
    a("v_sub_u32 v10, v1, v10")
    a("v_mov_b32 v11, 0x3f80")
    a("v_mov_b32 v12, 0x3f800000")
    a("v_mov_b32 v104, 0x3f803f80")
    for base, add in ((IP, 0), (IM, 16)):
        for p in range(4):
            f0 = (2 * p if p < 2 else 8 + 2 * (p - 2)) + add
            a(f"v_cmp_eq_u32 s[4:5], {f0}, v10")
            a(f"v_cmp_eq_u32 s[62:63], {f0+1}, v10")
            a("s_nop 1")
            a(f"v_cndmask_b32 v13, 0, v11, s[4:5]")
            a(f"v_cndmask_b32 v{base+p}, v13, v12, s[62:63]")
    for i in range(0, 32, 2):
        a(f"v_mov_b64 {vr(KV[0]+i,2)}, 0")

    a.label("K1_feat")
    a(f"s_mov_b32 s60, {f32bits(LOG2E):#x}")
    a("s_mov_b32 s61, s60")
    a("s_mov_b32 s49, 0")
    a("s_waitcnt lgkmcnt(0)")
    a.label("K1_featloop")
    mfma(a, PD[0], WPH, XF[0], "0")
    mfma(a, PD[1], WPH + 4, XF[0] + 4, "0")
    a("s_nop 7")
    a("s_nop 2")
    H = (0, 1)
    M = [(10, 12, 240, 241), (14, 242, 243, 244)]
    for h in H:
        P = PD[h]
        a(f"v_max3_f32 v{M[h][0]}, v{P}, v{P+1}, v{P+2}")
        a(f"v_min3_f32 v{M[h][1]}, v{P}, v{P+1}, v{P+2}")
    for o in (3, 5):
        for h in H:
            P = PD[h]
            a(f"v_max3_f32 v{M[h][0]}, v{M[h][0]}, v{P+o}, v{P+o+1}")
            a(f"v_min3_f32 v{M[h][1]}, v{M[h][1]}, v{P+o}, v{P+o+1}")
    for h in H:
        P = PD[h]
        a(f"v_max_f32 v{M[h][0]}, v{M[h][0]}, v{P+7}")
        a(f"v_min_f32 v{M[h][1]}, v{M[h][1]}, v{P+7}")
    for h in H:
        a(f"v_mov_b32 v{M[h][2]}, v{M[h][0]}")
        a(f"v_mov_b32 v{M[h][3]}, v{M[h][1]}")
    a("s_nop 1")
    for h in H:
        a(f"v_permlane32_swap_b32 v{M[h][0]}, v{M[h][2]}")
        a(f"v_permlane32_swap_b32 v{M[h][1]}, v{M[h][3]}")
    a("s_nop 1")
    for h in H:
        a(f"v_max_f32 v{M[h][0]}, v{M[h][0]}, v{M[h][2]}")
        a(f"v_min_f32 v{M[h][1]}, v{M[h][1]}, v{M[h][3]}")
    for h in H:
        a(f"v_mul_f32 v{M[h][0]}, s60, v{M[h][0]}")
        a(f"v_mul_f32 v{M[h][1]}, s60, v{M[h][1]}")
    for i in range(4):
        for h in H:
            a(f"v_pk_fma_f32 {vr(T0[h]+2*i,2)}, {vr(PD[h]+2*i,2)}, s[60:61], {vr(M[h][0],2)} op_sel_hi:[1,1,0] neg_lo:[0,0,1] neg_hi:[0,0,1]")
            a(f"v_pk_fma_f32 {vr(T0[h]+8+2*i,2)}, {vr(PD[h]+2*i,2)}, s[60:61], {vr(M[h][1],2)} op_sel_hi:[1,1,0] neg_lo:[1,0,0] neg_hi:[1,0,0]")
    for i in range(16):
        for h in H:
            a(f"v_exp_f32 v{T0[h]+i}, v{T0[h]+i}")
    for h in H:
        for g in range(2):
            a(f"v_pk_add_f32 {vr(PD[h]+4*g,2)}, {vr(T0[h]+8*g,2)}, {vr(T0[h]+8*g+2,2)}")
            a(f"v_pk_add_f32 {vr(PD[h]+4*g+2,2)}, {vr(T0[h]+8*g+4,2)}, {vr(T0[h]+8*g+6,2)}")
    for h in H:
        for g in range(2):
            a(f"v_pk_add_f32 {vr(PD[h]+4*g,2)}, {vr(PD[h]+4*g,2)}, {vr(PD[h]+4*g+2,2)}")
    for h in H:
        a(f"v_add_f32 v{M[h][0]}, v{PD[h]}, v{PD[h]+1}")
        a(f"v_add_f32 v{M[h][1]}, v{PD[h]+4}, v{PD[h]+5}")
    for h in H:
        a(f"v_mov_b32 v{M[h][2]}, v{M[h][0]}")
        a(f"v_mov_b32 v{M[h][3]}, v{M[h][1]}")
    a("s_nop 1")
    for h in H:
        a(f"v_permlane32_swap_b32 v{M[h][0]}, v{M[h][2]}")
        a(f"v_permlane32_swap_b32 v{M[h][1]}, v{M[h][3]}")
    a("s_nop 1")
    for h in H:
        a(f"v_add_f32 v{M[h][0]}, v{M[h][0]}, v{M[h][2]}")
        a(f"v_add_f32 v{M[h][1]}, v{M[h][1]}, v{M[h][3]}")
    for h in H:
        a(f"v_rcp_f32 v{M[h][0]}, v{M[h][0]}")
        a(f"v_rcp_f32 v{M[h][1]}, v{M[h][1]}")
    a("s_nop 0")
    for i in range(4):
        for h in H:
            a(f"v_pk_mul_f32 {vr(T0[h]+2*i,2)}, {vr(T0[h]+2*i,2)}, {vr(M[h][0],2)} op_sel_hi:[1,0]")
            a(f"v_pk_mul_f32 {vr(T0[h]+8+2*i,2)}, {vr(T0[h]+8+2*i,2)}, {vr(M[h][1],2)} op_sel_hi:[1,0]")
    for i in range(8):
        for h in H:
            a(f"v_cvt_pk_bf16_f32 v{PD[h]+8+i}, v{T0[h]+2*i}, v{T0[h]+2*i+1}")
    a("s_cmp_eq_u32 s57, 0")
    a("s_cbranch_scc1 K1_featK")
    for h in range(2):
        a(f"buffer_store_dwordx4 {vr(PD[h]+8,4)}, v9, {sr(SWS,4)}, s{4+h} offen")
        a(f"buffer_store_dwordx4 {vr(PD[h]+12,4)}, v9, {sr(SWS,4)}, s{4+h} offen offset:1024")
    a("s_add_u32 s4, s4, 2048")
    a("s_add_u32 s5, s5, 2048")
    a("s_branch K1_featnext")
    a.label("K1_featK")
    for h in range(2):
        mfma(a, TT[h], PD[h] + 8, IP, "0")
        mfma(a, TT[h], PD[h] + 12, IM, TT[h])
    for i in range(8):
        a(f"v_cndmask_b32 v{BV[0]+i}, v{VF[0]+i}, v104, s[6:7]")
        a(f"v_cndmask_b32 v{BV[1]+i}, v104, v{VF[0]+i}, s[6:7]")
    for h in range(2):
        for i in range(8):
            a(f"v_cvt_pk_bf16_f32 v{PD[h]+i}, v{TT[h]+2*i}, v{TT[h]+2*i+1}")
    a("s_nop 1")
    for h in range(2):
        mfma(a, KV[h], PD[h], BV[h], KV[h])
        mfma(a, KV[h], PD[h] + 4, BV[h] + 4, KV[h])
    for i in range(0, 8, 2):
        a(f"v_mov_b64 {vr(VF[0]+i,2)}, {vr(VF[1]+i,2)}")
    a.label("K1_featnext")
    for i in range(0, 8, 2):
        a(f"v_mov_b64 {vr(XF[0]+i,2)}, {vr(XF[1]+i,2)}")
    a("s_add_u32 s49, s49, 1")
    a("s_cmp_lt_u32 s49, 2")
    a("s_cbranch_scc1 K1_featloop")
    stamp(a, 4)
    a("s_cmp_eq_u32 s57, 0")
    a("s_cbranch_scc0 K1_flush" if STAMP else "s_cbranch_scc0 K1_end")
    a("s_sub_u32 s3, s32, 4")
    a("s_lshl_b32 s4, s3, 12")
    a(f"s_add_u32 s4, s4, {RED}")
    a("v_add_u32 v10, s4, v9")
    a("v_xor_b32 v11, 4096, v10")
    a("s_cmp_eq_u32 s35, 0")
    a("s_cbranch_scc1 K1_r0")
    for q in range(4):
        a(f"ds_write_b128 v10, {vr(KV[0]+4*q,4)} offset:{q*1024}")
    a("s_waitcnt lgkmcnt(0)")
    for i in range(0, 16, 2):
        a(f"v_mov_b64 {vr(KV[0]+i,2)}, {vr(KV[1]+i,2)}")
    a("s_branch K1_r1")
    a.label("K1_r0")
    for q in range(4):
        a(f"ds_write_b128 v10, {vr(KV[1]+4*q,4)} offset:{q*1024}")
    a.label("K1_r1")
    a("s_lshl_b32 s4, s35, 4")
    a("v_xor_b32 v3, s4, v1")
    a("s_lshl_b32 s4, s33, 5")
    a("s_add_u32 s4, s4, s51")
    a("s_add_u32 s4, s4, s35")
    a("s_lshl_b32 s5, s4, 11")
    a(f"s_add_u32 s5, s5, {WS_KVP}")
    a("s_lshl_b32 s4, s4, 7")
    a(f"s_add_u32 s4, s4, {WS_ZP}")
    a("v_lshlrev_b32 v12, 7, v2")
    a("v_lshlrev_b32 v13, 3, v3")
    a("v_add3_u32 v12, v12, v13, s5")
    a("v_lshlrev_b32 v13, 3, v2")
    a("v_add_u32 v13, s4, v13")
    a("v_cmp_gt_u32 s[4:5], 16, v3")
    a("v_cmp_eq_u32 s[6:7], 16, v3")
    a("v_mov_b32 v14, 0x7ffff000")
    a("v_mov_b32 v15, 256")
    a("v_cndmask_b32 v13, v14, v13, s[6:7]")
    a("v_cndmask_b32 v12, v13, v12, s[4:5]")
    a("v_cndmask_b32 v15, 16, v15, s[4:5]")
    a("s_waitcnt lgkmcnt(0)")
    a("s_barrier")
    for q in range(4):
        a(f"ds_read_b128 {vr(16+4*q,4)}, v11 offset:{q*1024}")
    a("s_waitcnt lgkmcnt(0)")
    for i in range(8):
        a(f"v_pk_add_f32 {vr(16+2*i,2)}, {vr(16+2*i,2)}, {vr(KV[0]+2*i,2)}")
    for p in range(8):
        a(f"buffer_store_dwordx2 {vr(16+2*p,2)}, v12, {sr(SWS,4)}, 0 offen")
        if p < 7:
            a("v_add_u32 v12, v12, v15")
    if STAMP:
        a.label("K1_flush")
        a("s_waitcnt vmcnt(0)")
        stamp(a, 6)
        stamp_flush(a, 0, 8, 32, SWS)
    a.label("K1_end")
    a("s_endpgm")
    return kd(kn, 248, 64)


def gen_k2(a):
    kn = "attn_kernel"
    kernel_begin(a, kn)
    SWS = 8
    UNR = 4
    PRIO = [(32, 2), (52, 1), (60, 0)]
    XCH = 132 * 1024
    CNT = XCH + 2048
    a("s_cmp_ge_u32 s2, 256")
    a("s_cbranch_scc1 K2_end")
    stamp(a, 0)
    if STAMP:
        a(f"s_memrealtime s[{STB+14}:{STB+15}]")
    a("s_load_dwordx2 s[4:5], s[0:1], 80")
    a("s_load_dwordx2 s[6:7], s[0:1], 24")
    a("s_load_dwordx2 s[30:31], s[0:1], 48")
    a("v_lshrrev_b32 v1, 6, v0")
    a("v_and_b32 v0, 63, v0")
    a("v_readfirstlane_b32 s28, v1")
    a("s_and_b32 s3, s2, 7")
    a("s_lshl_b32 s13, s3, 2")
    a("s_lshr_b32 s3, s2, 3")
    a("s_and_b32 s3, s3, 3")
    a("s_add_u32 s13, s13, s3")
    a("s_lshr_b32 s14, s2, 5")
    a("v_lshlrev_b32 v1, 4, v0")
    a("s_cmp_ge_u32 s28, 4")
    a("s_cbranch_scc1 K2_compute")
    a("s_setprio 3")
    a("s_lshl_b32 s18, s28, 10")
    a("s_lshl_b32 s17, s13, 17")
    a(f"s_add_u32 s17, s17, {WS_KVB}")
    a("s_add_u32 s17, s17, s18")
    a(f"v_mov_b32 v2, {CNT}")
    a("v_mov_b32 v3, 0")
    a("ds_write_b32 v2, v3")
    a("s_waitcnt lgkmcnt(0)")
    srd(a, SWS, 4, WS_SIZE)
    a("s_mov_b32 s20, 0")
    a.label("K2_ld_loop")
    for i in range(4):
        a(f"s_add_u32 m0, s18, {i*4096}")
        a(f"s_add_u32 s19, s17, {i*4096}")
        a(f"buffer_load_dwordx4 v1, {sr(SWS,4)}, s19 offen lds")
    a("s_add_u32 s17, s17, 16384")
    a("s_add_u32 s18, s18, 16384")
    a("s_add_u32 s20, s20, 1")
    a("s_cmp_lg_u32 s20, 2")
    a("s_cbranch_scc1 K2_ld_next")
    a("s_waitcnt vmcnt(3)")
    a("s_barrier")
    a.label("K2_ld_next")
    a("s_cmp_lt_u32 s20, 8")
    a("s_cbranch_scc1 K2_ld_loop")
    KP = 16
    PH = 80
    GV = 96
    a("s_lshl_b32 s19, s13, 3")
    a("s_lshl_b32 s3, s28, 1")
    a("s_add_u32 s19, s19, s3")
    a("s_lshl_b32 s24, s19, 8")
    a(f"s_add_u32 s24, s24, {WS_KVP}")
    a("s_lshl_b32 s25, s19, 4")
    a(f"s_add_u32 s25, s25, {WS_ZP}")
    a("v_lshrrev_b32 v4, 5, v0")
    a("v_and_b32 v5, 15, v0")
    a("v_lshlrev_b32 v6, 7, v4")
    a("v_lshlrev_b32 v5, 3, v5")
    a("v_add3_u32 v6, v6, v5, s24")
    a("v_lshlrev_b32 v4, 3, v4")
    a("v_add_u32 v4, s25, v4")
    a("v_and_b32 v5, 16, v0")
    a("v_cmp_ne_u32 s[24:25], 0, v5")
    a("v_mov_b32 v7, 4096")
    a("v_mov_b32 v8, 65536")
    a("v_mov_b32 v9, 256")
    a("v_cndmask_b32 v6, v6, v4, s[24:25]")
    a("v_cndmask_b32 v7, v8, v7, s[24:25]")
    a("v_cndmask_b32 v9, v9, 16, s[24:25]")
    a("v_add_u32 v8, v6, v9")
    a("s_waitcnt vmcnt(0)")
    stamp(a, 1)
    a("s_barrier")
    for rb in range(16):
        a(f"buffer_load_dwordx2 {vr(KP+2*rb,2)}, v6, {sr(SWS,4)}, 0 offen")
        a(f"buffer_load_dwordx2 {vr(KP+32+2*rb,2)}, v8, {sr(SWS,4)}, 0 offen")
        if rb < 15:
            a("v_add_u32 v6, v6, v7")
            a("v_add_u32 v8, v8, v7")
    a("s_lshl_b32 s15, s14, 3")
    a("s_add_u32 s15, s15, s3")
    a("s_lshl_b32 s16, s13, 6")
    a("s_add_u32 s16, s16, s15")
    a("s_lshl_b32 s19, s16, 11")
    a(f"s_add_u32 s19, s19, {WS_PHIQ}")
    for k in range(4):
        a(f"buffer_load_dwordx4 {vr(PH+4*k,4)}, v1, {sr(SWS,4)}, s19 offen offset:{k*1024}")
    a("v_and_b32 v4, 31, v0")
    a("s_lshl_b32 s3, s15, 5")
    a("v_add_u32 v4, s3, v4")
    a("v_lshlrev_b32 v4, 2, v4")
    a(f"v_add_u32 v4, {WS_G}, v4")
    a(f"buffer_load_dword v{GV}, v4, {sr(SWS,4)}, 0 offen")
    a(f"buffer_load_dword v{GV+1}, v4, {sr(SWS,4)}, 0 offen offset:128")
    a("v_lshlrev_b32 v4, 5, v0")
    a(f"v_add_u32 v4, {XCH}, v4")
    a("s_lshl_b32 s3, s28, 3")
    a("v_add_u32 v5, s3, v4")
    a("v_mov_b32 v3, 1")
    a("s_waitcnt vmcnt(6)")
    stamp(a, 2)
    for st in (8, 4, 2, 1):
        for i in range(st):
            for g in range(2):
                b = KP + 32 * g
                a(f"v_pk_add_f32 {vr(b+2*i,2)}, {vr(b+2*i,2)}, {vr(b+2*(i+st),2)}")
    a(f"v_cvt_pk_bf16_f32 v{KP}, v{KP}, v{KP+1}")
    a(f"v_cvt_pk_bf16_f32 v{KP+1}, v{KP+32}, v{KP+33}")
    a(f"ds_write_b64 v5, {vr(KP,2)}")
    a("s_waitcnt lgkmcnt(0)")
    a("s_mov_b64 exec, 1")
    a("ds_add_u32 v2, v3")
    a("s_mov_b64 exec, -1")
    a.label("K2_poll")
    a("ds_read_b32 v3, v2")
    a("s_waitcnt lgkmcnt(0)")
    a("v_readfirstlane_b32 s3, v3")
    a("s_cmp_lt_u32 s3, 4")
    a("s_cbranch_scc1 K2_poll")
    a(f"ds_read_b128 {vr(KP,4)}, v4")
    a(f"ds_read_b128 {vr(KP+4,4)}, v4 offset:16")
    D = [32, 48]
    a("s_waitcnt vmcnt(0) lgkmcnt(0)")
    for k in range(2):
        mfma(a, D[k], KP, PH + 8 * k, "0")
        mfma(a, D[k], KP + 4, PH + 8 * k + 4, D[k])
    a("s_lshl_b32 s20, s16, 10")
    a(f"s_add_u32 s20, s20, {WS_O}")
    srd(a, 12, 6, 512 * 512 * 2)
    srd(a, 16, 30, 512 * 512 * 2)
    a("s_nop 1")
    for k in range(2):
        a(f"v_add_f32 v{10+2*k}, {f32bits(1e-6):#x}, v{D[k]+8}")
    for k in range(2):
        a(f"v_rcp_f32 v{10+2*k}, v{10+2*k}")
    a("s_nop 0")
    for k in range(2):
        a(f"v_mul_f32 v{10+2*k}, v{10+2*k}, v{GV+k}")
    for k in range(2):
        for i in range(4):
            a(f"v_pk_mul_f32 {vr(D[k]+2*i,2)}, {vr(D[k]+2*i,2)}, {vr(10+2*k,2)} op_sel_hi:[1,0]")
    for k in range(2):
        for i in range(4):
            a(f"v_cvt_pk_bf16_f32 v{64+4*k+i}, v{D[k]+2*i}, v{D[k]+2*i+1}")
        a(f"buffer_store_dwordx4 {vr(64+4*k,4)}, v1, {sr(SWS,4)}, s20 offen offset:{k*1024}")
    stamp(a, 3)
    a("s_lshr_b32 s3, s2, 3")
    a("s_lshl_b32 s3, s3, 2")
    a("s_add_u32 s3, s3, s28")
    a("s_lshl_b32 s3, s3, 12")
    for i in range(4):
        a(f"buffer_load_dwordx4 {vr(16+8*i,4)}, v1, s[12:15], s3 offen offset:{i*1024}")
        a(f"buffer_load_dwordx4 {vr(20+8*i,4)}, v1, s[16:19], s3 offen offset:{i*1024}")
    for i_ in (4, 5):
        stamp(a, i_)
    a("s_branch K2_flush" if STAMP else "s_branch K2_end")

    a.label("K2_compute")
    a("s_setprio 3")
    a("s_sub_u32 s12, s28, 4")
    a("s_lshl_b32 s15, s14, 3")
    a("s_add_u32 s15, s15, s12")
    a("s_lshl_b32 s16, s13, 6")
    a("s_add_u32 s16, s16, s15")
    QF = 4
    KF = [8, 12]
    VF = [16, 24]
    P = 32
    O = 40
    CN = 56
    S = [72, 88]
    GV = 104
    a("v_and_b32 v2, 31, v0")
    a("s_lshl_b32 s3, s15, 5")
    a("v_add_u32 v2, s3, v2")
    a("v_lshlrev_b32 v2, 2, v2")
    a(f"v_add_u32 v2, {WS_G}, v2")
    a("s_lshl_b32 s19, s16, 10")
    a("s_waitcnt lgkmcnt(0)")
    srd(a, SWS, 4, WS_SIZE)
    a(f"buffer_load_dwordx4 {vr(QF,4)}, v1, {sr(SWS,4)}, s19 offen")
    a(f"buffer_load_dword v{GV}, v2, {sr(SWS,4)}, 0 offen")
    a("v_and_b32 v2, 27, v0")
    a("v_cmp_eq_u32 s[24:25], 16, v2")
    a("v_mov_b32 v3, 0x3f803f80")
    a("s_mov_b32 s20, 0x0000ffff")
    a("s_mov_b32 s21, 0x0000ffff")
    a(f"v_cndmask_b32 v{VF[0]}, 0, v3, s[24:25]")
    for i in range(1, 16):
        a(f"v_mov_b32 v{VF[0]+i}, v{VF[0]}")
    a("s_mov_b32 s22, 0")
    evmask = 0
    for t_ in [8] + [p_[0] for p_ in PRIO]:
        evmask |= 1 << (t_ // 4)
    a(f"s_mov_b32 s29, {evmask:#x}")
    stamp(a, 1)
    a("s_waitcnt vmcnt(0)")
    a("s_barrier")
    stamp(a, 2)
    if STAMP:
        a("s_waitcnt lgkmcnt(0)")
    a(f"ds_read_b128 {vr(KF[0],4)}, v1")
    a("s_waitcnt lgkmcnt(0)")
    mfma(a, S[1], KF[0], QF, "0")
    a("s_nop 7")
    a("s_nop 3")
    X = S[1]
    a(f"v_max3_f32 v2, v{X}, v{X+1}, v{X+2}")
    for i in range(3, 15, 2):
        a(f"v_max3_f32 v2, v2, v{X+i}, v{X+i+1}")
    a(f"v_max_f32 v2, v2, v{X+15}")
    cross_half(a, "v_max_f32", 2, 3)
    a.label("K2_restart")
    a("v_mov_b32 v3, v1")
    a(f"ds_read_b128 {vr(KF[0],4)}, v3")
    a(f"ds_read_b128 {vr(KF[1],4)}, v3 offset:2048")
    a("s_mov_b64 exec, s[20:21]")
    a(f"ds_read_b128 {vr(VF[0],4)}, v3 offset:1024")
    a(f"ds_read_b128 {vr(VF[0]+4,4)}, v3 offset:1280")
    a("s_mov_b64 exec, -1")
    a(f"v_sub_f32 v{CN}, 0, v2")
    a(f"v_sub_f32 v{CN+1}, 0, v2")
    for i in range(2, 16, 2):
        a(f"v_mov_b64 {vr(CN+i,2)}, {vr(CN,2)}")
    for i in range(0, 16, 2):
        a(f"v_mov_b64 {vr(O+i,2)}, 0")
    a("s_waitcnt lgkmcnt(3)")
    mfma(a, S[0], KF[0], QF, CN)
    a("s_mov_b32 s23, 0")
    stamp(a, 3)
    stamp(a, 4)
    a("s_nop 7")
    a("s_nop 3")
    a.raw("    .p2align 3")
    a.label("K2_loop")
    for u in range(UNR):
        X, Y = S[u & 1], S[(u + 1) & 1]
        Kn = KF[(u + 1) & 1]
        Kp = KF[u & 1]
        Vc = VF[u & 1]
        Vn = VF[(u + 1) & 1]
        a(f"ds_read_b128 {vr(Kp,4)}, v3 offset:{(u+2)*2048}")
        a("s_mov_b64 exec, s[20:21]")
        a(f"ds_read_b128 {vr(Vn,4)}, v3 offset:{(u+1)*2048+1024}")
        a(f"ds_read_b128 {vr(Vn+4,4)}, v3 offset:{(u+1)*2048+1280}")
        a("s_mov_b64 exec, -1")
        for i in range(4):
            a(f"v_exp_f32 v{X+i}, v{X+i}")
        a("s_waitcnt lgkmcnt(3)")
        mfma(a, Y, Kn, QF, CN)
        for i in range(4, 8):
            a(f"v_exp_f32 v{X+i}, v{X+i}")
        for i in range(4):
            a(f"v_cvt_pk_bf16_f32 v{P+i}, v{X+2*i}, v{X+2*i+1}")
        for i in range(8, 10):
            a(f"v_exp_f32 v{X+i}, v{X+i}")
        mfma(a, O, Vc, P, O)
        for i in range(10, 16):
            a(f"v_exp_f32 v{X+i}, v{X+i}")
        for i in range(4, 8):
            a(f"v_cvt_pk_bf16_f32 v{P+i}, v{X+2*i}, v{X+2*i+1}")
        if u == UNR - 1:
            a(f"v_add_u32 v3, {UNR*2048}, v3")
            a(f"s_add_u32 s23, s23, {UNR}")
        else:
            a("s_nop 1")
        mfma(a, O, Vc + 4, P + 4, O)
    a("s_lshr_b32 s3, s23, 2")
    a("s_bitcmp1_b32 s29, s3")
    a("s_cbranch_scc0 K2_noev")
    a("s_cmp_lg_u32 s23, 8")
    a("s_cbranch_scc1 K2_e4")
    a("s_barrier")
    stamp(a, 4)
    if STAMP:
        a("s_waitcnt lgkmcnt(0)")
    a("s_branch K2_loop")
    a.label("K2_e4")
    for k, (tt, pr) in enumerate(PRIO):
        a(f"s_cmp_lg_u32 s23, {tt}")
        a(f"s_cbranch_scc1 K2_p{k}")
        a(f"s_setprio {pr}")
        a.label(f"K2_p{k}")
    a.label("K2_noev")
    a("s_cmp_lt_u32 s23, 64")
    a("s_cbranch_scc1 K2_loop")
    a("s_waitcnt lgkmcnt(0)")
    stamp(a, 5)
    a("s_nop 7")
    a("s_nop 3")
    a("s_cmp_lg_u32 s22, 0")
    a("s_cbranch_scc1 K2_fin")
    a(f"v_mov_b32 v{P}, {f32bits(2.0**64):#x}")
    a(f"v_cmp_nlt_f32 s[24:25], v{O+8}, v{P}")
    a(f"v_mov_b32 v{P+1}, 0x7f800000")
    for i in range(8):
        a(f"v_cmp_nlt_f32 s[26:27], abs(v{O+i}), v{P+1}")
        a("s_or_b64 s[24:25], s[24:25], s[26:27]")
    a("s_cmp_eq_u64 s[24:25], 0")
    a("s_cbranch_scc1 K2_fin")
    a("v_mov_b32 v3, v1")
    a("v_mov_b32 v2, 0xff800000")
    a("s_mov_b32 s23, 0")
    a.label("K2_maxloop")
    a(f"ds_read_b128 {vr(KF[0],4)}, v3")
    a("s_waitcnt lgkmcnt(0)")
    mfma(a, S[0], KF[0], QF, "0")
    a("v_add_u32 v3, 2048, v3")
    a("s_add_u32 s23, s23, 1")
    a("s_nop 7")
    a("s_nop 3")
    for i in range(0, 16, 2):
        a(f"v_max3_f32 v2, v2, v{S[0]+i}, v{S[0]+i+1}")
    a("s_cmp_lt_u32 s23, 64")
    a("s_cbranch_scc1 K2_maxloop")
    cross_half(a, "v_max_f32", 2, 3)
    a("s_mov_b32 s22, 1")
    a("s_mov_b32 s29, 0")
    a("s_branch K2_restart")
    a.label("K2_fin")
    a(f"v_rcp_f32 v2, v{O+8}")
    a(f"v_sub_f32 v3, 1.0, v{GV}")
    a("v_cvt_pk_bf16_f32 v3, v3, v3")
    a("v_lshlrev_b32 v3, 16, v3")
    a("v_mul_f32 v2, v2, v3")
    for i in range(4):
        a(f"v_pk_mul_f32 {vr(O+2*i,2)}, {vr(O+2*i,2)}, v[2:3] op_sel_hi:[1,0]")
    for i in range(4):
        a(f"v_cvt_pk_bf16_f32 v{P+i}, v{O+2*i}, v{O+2*i+1}")
    a("s_lshl_b32 s19, s16, 10")
    a(f"s_add_u32 s19, s19, {WS_O + 2*MB}")
    a(f"buffer_store_dwordx4 {vr(P,4)}, v1, {sr(SWS,4)}, s19 offen")
    if STAMP:
        a.label("K2_flush")
        a("s_waitcnt vmcnt(0)")
        stamp(a, 6)
        stamp_flush(a, 1, 8, 28, SWS)
    a.label("K2_end")
    a("s_endpgm")
    return kd(kn, 108, 32)


def gen_k3(a):
    kn = "proj_kernel"
    kernel_begin(a, kn)
    SWS, SWO, SOUT = 8, 12, 16
    AHEAD = 6
    a("s_cmp_ge_u32 s2, 256")
    a("s_cbranch_scc1 K3_end")
    stamp(a, 0)
    if STAMP:
        a(f"s_memrealtime s[{STB+14}:{STB+15}]")
    a("s_load_dwordx2 s[4:5], s[0:1], 80")
    a("s_load_dwordx2 s[6:7], s[0:1], 24")
    a("s_load_dwordx2 s[24:25], s[0:1], 48")
    a("s_load_dwordx2 s[26:27], s[0:1], 64")
    a("v_lshrrev_b32 v1, 6, v0")
    a("v_and_b32 v0, 63, v0")
    a("v_readfirstlane_b32 s20, v1")
    a("s_and_b32 s3, s2, 7")
    a("s_lshl_b32 s21, s3, 2")
    a("s_lshr_b32 s3, s2, 3")
    a("s_and_b32 s22, s3, 3")
    a("s_add_u32 s21, s21, s22")
    a("s_lshr_b32 s22, s3, 2")
    a("s_waitcnt lgkmcnt(0)")
    srd(a, SWS, 4, WS_SIZE)
    srd(a, SOUT, 26, 2 * MB)
    a("s_cmp_ge_u32 s20, 2")
    a("s_cselect_b32 s6, s24, s6")
    a("s_cselect_b32 s7, s25, s7")
    srd(a, SWO, 6, 512 * 512 * 2)
    ACC = 16
    OF = 80
    NSL = AHEAD + 1
    WF = 80 + 8 * NSL
    a("v_lshrrev_b32 v2, 3, v0")
    a("v_lshlrev_b32 v3, 10, v2")
    a("v_and_b32 v4, 16, v0")
    a("v_lshrrev_b32 v4, 2, v4")
    a("v_and_b32 v5, 7, v0")
    a("v_xor_b32 v4, v4, v5")
    a("v_lshlrev_b32 v4, 4, v4")
    a("v_add_u32 v2, v3, v4")
    a("v_lshlrev_b32 v1, 4, v0")
    a("s_and_b32 s3, s20, 1")
    a("s_lshl_b32 s28, s3, 18")
    a("s_lshl_b32 s23, s22, 7")
    a("s_add_u32 s28, s28, s23")
    a("s_lshl_b32 s29, s20, 15")
    a("s_lshr_b32 s30, s20, 1")
    a("s_lshl_b32 s30, s30, 21")
    a("s_lshl_b32 s23, s3, 20")
    a("s_add_u32 s30, s30, s23")
    a("s_lshl_b32 s23, s21, 11")
    a("s_add_u32 s30, s30, s23")
    a(f"s_add_u32 s30, s30, {WS_O}")
    a("v_lshrrev_b32 v3, 5, v0")
    a("v_lshlrev_b32 v3, 2, v3")
    a("v_and_b32 v4, 15, v0")
    a("v_lshrrev_b32 v4, 2, v4")
    a("v_add_u32 v3, v3, v4")
    a("v_lshlrev_b32 v3, 7, v3")
    a("v_and_b32 v4, 8, v0")
    a("v_lshlrev_b32 v4, 3, v4")
    a("v_add_u32 v3, v3, v4")
    a("v_and_b32 v4, 16, v0")
    a("v_lshlrev_b32 v4, 1, v4")
    a("v_add_u32 v3, v3, v4")
    a("v_and_b32 v4, 3, v0")
    a("v_lshlrev_b32 v4, 3, v4")
    a("v_add_u32 v3, v3, v4")
    a("v_add_u32 v3, s29, v3")
    a("v_xor_b32 v4, 64, v3")

    def issue(t):
        sl = OF + 8 * (t % NSL)
        a(f"s_add_u32 m0, s29, {t*2048}")
        a(f"s_add_u32 s23, s28, {t*16384}")
        a(f"buffer_load_dwordx4 v2, {sr(SWO,4)}, s23 offen lds")
        a(f"s_add_u32 m0, s29, {t*2048+1024}")
        a(f"s_add_u32 s23, s28, {t*16384+8192}")
        a(f"buffer_load_dwordx4 v2, {sr(SWO,4)}, s23 offen lds")
        a(f"s_add_u32 s23, s30, {t*65536}")
        a(f"buffer_load_dwordx4 {vr(sl,4)}, v1, {sr(SWS,4)}, s23 offen")
        a(f"buffer_load_dwordx4 {vr(sl+4,4)}, v1, {sr(SWS,4)}, s23 offen offset:1024")

    a("v_and_b32 v5, 31, v0")
    a("s_lshl_b32 s23, s21, 6")
    a("s_lshr_b32 s3, s20, 1")
    a("s_lshl_b32 s3, s3, 5")
    a("s_add_u32 s23, s23, s3")
    a("v_add_u32 v5, s23, v5")
    for t in range(AHEAD):
        issue(t)
    for i in range(64):
        a(f"v_mov_b32 v{ACC+i}, 0")
    stamp(a, 1)
    for t in range(16):
        if t + AHEAD < 16:
            issue(t + AHEAD)
            a(f"s_waitcnt vmcnt({4*AHEAD})")
        else:
            a(f"s_waitcnt vmcnt({4*(15-t)})")
        if t in (0, 8):
            stamp(a, 2 if t == 0 else 3)
            if STAMP:
                a("s_waitcnt lgkmcnt(0)")
        W = WF + 8 * (t & 1)
        a(f"ds_read_b64_tr_b16 {vr(W,2)}, v3 offset:{t*2048}")
        a(f"ds_read_b64_tr_b16 {vr(W+2,2)}, v3 offset:{t*2048+1024}")
        a(f"ds_read_b64_tr_b16 {vr(W+4,2)}, v4 offset:{t*2048}")
        a(f"ds_read_b64_tr_b16 {vr(W+6,2)}, v4 offset:{t*2048+1024}")
        sl = OF + 8 * (t % NSL)
        a("s_waitcnt lgkmcnt(2)")
        mfma(a, ACC, W, sl, ACC)
        mfma(a, ACC + 32, W, sl + 4, ACC + 32)
        a("s_waitcnt lgkmcnt(0)")
        mfma(a, ACC + 16, W + 4, sl, ACC + 16)
        mfma(a, ACC + 48, W + 4, sl + 4, ACC + 48)
    a("s_nop 7")
    a("s_nop 7")
    stamp(a, 4)
    if STAMP:
        a("s_waitcnt lgkmcnt(0)")
    a("v_add_u32 v8, s29, v1")
    for sub in range(4):
        for q in range(4):
            a(f"ds_write_b128 v8, {vr(ACC+16*sub+4*q,4)} offset:{sub*4096+q*1024}")
    a("s_waitcnt lgkmcnt(0)")
    a("s_barrier")
    a("s_lshl_b32 s3, s20, 12")
    a("v_add_u32 v8, s3, v1")
    a("v_add_u32 v9, 65536, v8")
    for w in range(4):
        for q in range(4):
            base = "v8" if w < 2 else "v9"
            a(f"ds_read_b128 {vr(ACC+16*w+4*q,4)}, {base} offset:{(w&1)*32768+q*1024}")
    if STAMP:
        a("s_waitcnt lgkmcnt(0)")
    stamp(a, 5)
    a("s_waitcnt lgkmcnt(0)")
    A_, B_ = ACC, ACC + 32
    T = 80
    for i in range(16):
        a(f"v_add_f32 v{A_+i}, v{A_+i}, v{A_+16+i}")
        a(f"v_add_f32 v{B_+i}, v{B_+i}, v{B_+16+i}")
    for i in range(16):
        a(f"v_add_f32 v{A_+i}, v{A_+i}, v{B_+i}")
    for i in range(8):
        a(f"v_cvt_pk_bf16_f32 v{T+i}, v{A_+2*i}, v{A_+2*i+1}")
    a("s_nop 1")
    a(f"v_permlane32_swap_b32 v{T}, v{T+2}")
    a(f"v_permlane32_swap_b32 v{T+1}, v{T+3}")
    a(f"v_permlane32_swap_b32 v{T+4}, v{T+6}")
    a(f"v_permlane32_swap_b32 v{T+5}, v{T+7}")
    a("v_lshlrev_b32 v5, 10, v5")
    a("v_lshrrev_b32 v6, 5, v0")
    a("v_lshlrev_b32 v6, 4, v6")
    a("v_add_u32 v5, v5, v6")
    a("s_lshl_b32 s3, s22, 7")
    a("s_and_b32 s23, s20, 1")
    a("s_lshl_b32 s23, s23, 6")
    a("s_add_u32 s3, s3, s23")
    a(f"buffer_store_dwordx4 {vr(T,4)}, v5, {sr(SOUT,4)}, s3 offen")
    a(f"buffer_store_dwordx4 {vr(T+4,4)}, v5, {sr(SOUT,4)}, s3 offen offset:32")
    if STAMP:
        a("s_waitcnt vmcnt(0)")
    stamp(a, 6)
    stamp_flush(a, 2, 8, 20, SWS)
    a.label("K3_end")
    a("s_endpgm")
    return kd(kn, WF + 16, 32)


def main():
    a = Asm()
    head = """; gated mix of hedgehog linear attention and softmax attention (generated by dev/gen.py)
; @launch kernel=qkv_kernel grid=(256,1,1) block=(512,1,1) lds=124928
; @launch kernel=attn_kernel grid=(256,1,1) block=(768,1,1) lds=137280
; @launch kernel=proj_kernel grid=(256,1,1) block=(256,1,1) lds=131072
.amdgcn_target "amdgcn-amd-amdhsa--gfx950"
.text
"""
    kds = [gen_k1(a), gen_k2(a), gen_k3(a)]
    out = head + a.text() + '.section .rodata,"a"\n' + "".join(kds)
    path = sys.argv[1] if len(sys.argv) > 1 else f"cdna_kernels/{NAME}.s"
    open(path, "w").write(out)
    print("wrote", path, len(out))


if __name__ == "__main__":
    main()
```

```python
import sys, os
from gen import *
import gen as G

WS_FL = 16 * MB + 32768
SP = 131072
XCH = SP + 2048
CNTS = SP + 4096
RING = SP + 8192
C_XCH, C_OA, F_3A, C_OB, F_3B, C_AR, L_TAG = 0, 4, 8, 12, 16, 20, 24
TAG = 34
_uid = [0]


def uid(p):
    _uid[0] += 1
    return f"{p}{_uid[0]}"


def lds_poll(a, vaddr, vt, off, target, sleep=1):
    L = uid("Lp")
    a.label(L)
    a(f"ds_read_b32 v{vt}, v{vaddr} offset:{off}")
    a("s_waitcnt lgkmcnt(0)")
    a(f"v_readfirstlane_b32 s3, v{vt}")
    a(f"s_cmp_ge_u32 s3, {target}")
    L2 = uid("Lq")
    a(f"s_cbranch_scc1 {L2}")
    a(f"s_sleep {sleep}")
    a(f"s_branch {L}")
    a.label(L2)


def lds_add(a, vaddr, vt, off, rtn=False):
    a(f"v_mov_b32 v{vt}, 1")
    a("s_mov_b64 exec, 1")
    if rtn:
        a(f"ds_add_rtn_u32 v{vt}, v{vaddr}, v{vt} offset:{off}")
        a("s_waitcnt lgkmcnt(0)")
        a(f"v_readfirstlane_b32 s3, v{vt}")
    else:
        a(f"ds_add_u32 v{vaddr}, v{vt} offset:{off}")
    a("s_mov_b64 exec, -1")


def flag_write(a, vt, soff, SWS):
    a(f"v_mov_b32 v{vt}, s{TAG}")
    a(f"v_mov_b32 v{vt+1}, s{TAG+1}")
    a(f"v_mov_b32 v{vt+2}, 0")
    a("s_mov_b64 exec, 1")
    a(f"buffer_store_dwordx2 {vr(vt,2)}, v{vt+2}, {sr(SWS,4)}, s{soff} offen sc1")
    a("s_mov_b64 exec, -1")


def flag_poll(a, vt, soff, SWS, mask=31):
    a(f"v_and_b32 v{vt+2}, {mask}, v0")
    a(f"v_lshlrev_b32 v{vt+2}, 3, v{vt+2}")
    a("s_mov_b32 s3, 0")
    L, L2 = uid("Lf"), uid("Lg")
    a.label(L)
    a(f"buffer_load_dwordx2 {vr(vt,2)}, v{vt+2}, {sr(SWS,4)}, s{soff} offen sc1")
    a("s_waitcnt vmcnt(0)")
    a(f"v_cmp_ne_u64 vcc, s[{TAG}:{TAG+1}], {vr(vt,2)}")
    a("s_add_u32 s3, s3, 1")
    a(f"s_cbranch_vccz {L2}")
    a("s_cmp_gt_u32 s3, 0x400000")
    a(f"s_cbranch_scc1 {L2}")
    a("s_sleep 1")
    a(f"s_branch {L}")
    a.label(L2)


def proj_addr(a, wsel, ldsbase_s, vd, v_w0, v_w1, v_o):
    a("v_lshrrev_b32 v10, 3, v0")
    a("v_lshlrev_b32 v11, 10, v10")
    a("v_and_b32 v12, 16, v0")
    a("v_lshrrev_b32 v12, 2, v12")
    a("v_and_b32 v13, 7, v0")
    a("v_xor_b32 v12, v12, v13")
    a("v_lshlrev_b32 v12, 4, v12")
    a(f"v_add_u32 v{vd}, v11, v12")
    a("v_lshrrev_b32 v10, 5, v0")
    a("v_lshlrev_b32 v10, 2, v10")
    a("v_and_b32 v11, 15, v0")
    a("v_lshrrev_b32 v11, 2, v11")
    a("v_add_u32 v10, v10, v11")
    a("v_lshlrev_b32 v10, 7, v10")
    a("v_and_b32 v11, 8, v0")
    a("v_lshlrev_b32 v11, 3, v11")
    a(f"s_and_b32 s3, s{wsel}, 1")
    a("s_lshl_b32 s3, s3, 6")
    a("v_xor_b32 v11, s3, v11")
    a("v_add_u32 v10, v10, v11")
    a("v_and_b32 v11, 16, v0")
    a("v_lshlrev_b32 v11, 1, v11")
    a("v_add_u32 v10, v10, v11")
    a("v_and_b32 v11, 3, v0")
    a("v_lshlrev_b32 v11, 3, v11")
    a("v_add_u32 v10, v10, v11")
    a(f"v_xor_b32 v{v_w1}, 64, v10")
    a(f"v_add_u32 v{v_w0}, s{ldsbase_s}, v10")
    a(f"v_add_u32 v{v_w1}, s{ldsbase_s}, v{v_w1}")
    a(f"s_lshr_b32 s3, s{wsel}, 1")
    a("s_lshl_b32 s3, s3, 10")
    a(f"v_add_u32 v{v_o}, s3, v1")
    a(f"v_xor_b32 v{v_o+1}, 1024, v{v_o}")


def gen_k23(a):
    kn = "attnproj_kernel"
    kernel_begin(a, kn)
    SWS, SWO, SOUT, SDBG = 8, 40, 48, 52
    UNR = 4
    PRIO = [(32, 2), (52, 1), (60, 0)]
    a("s_cmp_ge_u32 s2, 256")
    a("s_cbranch_scc1 K2_end")
    stamp(a, 0)
    if STAMP:
        a(f"s_memrealtime s[{STB+14}:{STB+15}]")
    a("s_load_dwordx2 s[4:5], s[0:1], 80")
    a("s_load_dwordx2 s[6:7], s[0:1], 24")
    a("s_load_dwordx2 s[30:31], s[0:1], 48")
    a("s_load_dwordx4 s[56:59], s[0:1], 64")
    a("v_lshrrev_b32 v1, 6, v0")
    a("v_and_b32 v0, 63, v0")
    a("v_readfirstlane_b32 s28, v1")
    a("s_and_b32 s38, s2, 7")
    a("s_lshl_b32 s13, s38, 2")
    a("s_lshr_b32 s3, s2, 3")
    a("s_and_b32 s36, s3, 3")
    a("s_lshr_b32 s37, s3, 2")
    a("s_add_u32 s13, s13, s36")
    a("s_mov_b32 s36, s13")
    a("s_lshr_b32 s14, s2, 5")
    a("v_lshlrev_b32 v1, 4, v0")
    a(f"v_mov_b32 v2, {CNTS}")
    a("s_setprio 3")
    a("s_cmp_ge_u32 s28, 4")
    a("s_cbranch_scc1 K2_compute")
    a("s_lshl_b32 s18, s28, 10")
    a("s_lshl_b32 s17, s13, 17")
    a(f"s_add_u32 s17, s17, {WS_KVB}")
    a("s_add_u32 s17, s17, s18")
    a("v_lshlrev_b32 v3, 2, v0")
    a("v_add_u32 v3, v2, v3")
    a("v_mov_b32 v4, 0")
    a("ds_write_b32 v3, v4")
    a("s_waitcnt lgkmcnt(0)")
    srd(a, SWS, 4, WS_SIZE)
    srd(a, SDBG, 58, 256)
    a("s_or_b32 s3, s2, s28")
    a("s_cmp_lg_u32 s3, 0")
    a("s_cbranch_scc1 K2_nononce")
    a("s_memrealtime s[32:33]")
    a("s_waitcnt lgkmcnt(0)")
    a("s_or_b32 s32, s32, 1")
    a("v_mov_b32 v10, s32")
    a("v_mov_b32 v11, s33")
    a("s_mov_b64 exec, 1")
    a(f"buffer_store_dwordx2 v[10:11], off, {sr(SDBG,4)}, 0 sc1")
    a("s_mov_b64 exec, -1")
    a.label("K2_nononce")
    a("s_mov_b32 s20, 0")
    a.label("K2_ld_loop")
    for i in range(4):
        a(f"s_add_u32 m0, s18, {i*4096}")
        a(f"s_add_u32 s19, s17, {i*4096}")
        a(f"buffer_load_dwordx4 v1, {sr(SWS,4)}, s19 offen lds")
    a("s_add_u32 s17, s17, 16384")
    a("s_add_u32 s18, s18, 16384")
    a("s_add_u32 s20, s20, 1")
    a("s_cmp_lg_u32 s20, 2")
    a("s_cbranch_scc1 K2_ld_next")
    a("s_waitcnt vmcnt(3)")
    a("s_barrier")
    a.label("K2_ld_next")
    a("s_cmp_lt_u32 s20, 8")
    a("s_cbranch_scc1 K2_ld_loop")
    KP = 16
    PH = 80
    a("s_lshl_b32 s19, s13, 3")
    a("s_lshl_b32 s21, s28, 1")
    a("s_add_u32 s19, s19, s21")
    a("s_lshl_b32 s24, s19, 8")
    a(f"s_add_u32 s24, s24, {WS_KVP}")
    a("s_lshl_b32 s25, s19, 4")
    a(f"s_add_u32 s25, s25, {WS_ZP}")
    a("v_lshrrev_b32 v4, 5, v0")
    a("v_and_b32 v5, 15, v0")
    a("v_lshlrev_b32 v6, 7, v4")
    a("v_lshlrev_b32 v5, 3, v5")
    a("v_add3_u32 v6, v6, v5, s24")
    a("v_lshlrev_b32 v4, 3, v4")
    a("v_add_u32 v4, s25, v4")
    a("v_and_b32 v5, 16, v0")
    a("v_cmp_ne_u32 s[24:25], 0, v5")
    a("v_mov_b32 v7, 4096")
    a("v_mov_b32 v8, 65536")
    a("v_mov_b32 v9, 256")
    a("v_cndmask_b32 v6, v6, v4, s[24:25]")
    a("v_cndmask_b32 v7, v8, v7, s[24:25]")
    a("v_cndmask_b32 v9, v9, 16, s[24:25]")
    a("v_add_u32 v8, v6, v9")
    a("s_waitcnt vmcnt(0)")
    stamp(a, 1)
    a("s_barrier")
    a("s_cmp_lg_u32 s28, 0")
    a("s_cbranch_scc1 K2_notag")
    a("s_mov_b32 s3, 0")
    a.label("K2_tagpoll")
    a(f"buffer_load_dwordx2 v[10:11], off, {sr(SDBG,4)}, 0 sc1")
    a("s_add_u32 s3, s3, 1")
    a("s_waitcnt vmcnt(0)")
    a("v_cmp_eq_u32 vcc, 0, v10")
    a("s_cmp_gt_u32 s3, 0x400000")
    a("s_cbranch_scc1 K2_tagdone")
    a("s_cbranch_vccnz K2_tagpoll")
    a.label("K2_tagdone")
    a(f"ds_write_b64 v2, v[10:11] offset:{L_TAG}")
    a.label("K2_notag")
    for rb in range(16):
        a(f"buffer_load_dwordx2 {vr(KP+2*rb,2)}, v6, {sr(SWS,4)}, 0 offen")
        a(f"buffer_load_dwordx2 {vr(KP+32+2*rb,2)}, v8, {sr(SWS,4)}, 0 offen")
        if rb < 15:
            a("v_add_u32 v6, v6, v7")
            a("v_add_u32 v8, v8, v7")
    a("s_lshl_b32 s15, s14, 3")
    a("s_add_u32 s15, s15, s21")
    a("s_lshl_b32 s16, s13, 6")
    a("s_add_u32 s16, s16, s15")
    a("s_lshl_b32 s19, s16, 11")
    a(f"s_add_u32 s19, s19, {WS_PHIQ}")
    for k in range(4):
        a(f"buffer_load_dwordx4 {vr(PH+4*k,4)}, v1, {sr(SWS,4)}, s19 offen offset:{k*1024}")
    a("v_lshlrev_b32 v4, 5, v0")
    a(f"v_add_u32 v4, {XCH}, v4")
    a("s_lshl_b32 s3, s28, 3")
    a("v_add_u32 v5, s3, v4")
    a("s_waitcnt vmcnt(4)")
    for st in (8, 4, 2, 1):
        for i in range(st):
            for g in range(2):
                b = KP + 32 * g
                a(f"v_pk_add_f32 {vr(b+2*i,2)}, {vr(b+2*i,2)}, {vr(b+2*(i+st),2)}")
    a(f"v_cvt_pk_bf16_f32 v{KP}, v{KP}, v{KP+1}")
    a(f"v_cvt_pk_bf16_f32 v{KP+1}, v{KP+32}, v{KP+33}")
    a(f"ds_write_b64 v5, {vr(KP,2)}")
    a("s_waitcnt lgkmcnt(0)")
    lds_add(a, 2, 3, C_XCH)
    lds_poll(a, 2, 3, C_XCH, 4)
    a(f"ds_read_b128 {vr(KP,4)}, v4")
    a(f"ds_read_b128 {vr(KP+4,4)}, v4 offset:16")
    a(f"ds_read_b64 v[10:11], v2 offset:{L_TAG}")
    D = [32, 48]
    a("s_waitcnt vmcnt(0) lgkmcnt(0)")
    a(f"v_readfirstlane_b32 s{TAG}, v10")
    a(f"v_readfirstlane_b32 s{TAG+1}, v11")
    for k in range(2):
        mfma(a, D[k], KP, PH + 8 * k, "0")
        mfma(a, D[k], KP + 4, PH + 8 * k + 4, D[k])
    a("s_lshl_b32 s20, s16, 10")
    a(f"s_add_u32 s20, s20, {WS_O}")
    srd(a, SWO, 6, 512 * 512 * 2)
    a("s_nop 5")
    for k in range(2):
        a(f"v_add_f32 v{10+2*k}, {f32bits(1e-6):#x}, v{D[k]+8}")
    for k in range(2):
        a(f"v_rcp_f32 v{10+2*k}, v{10+2*k}")
    a("s_nop 0")
    for k in range(2):
        for i in range(4):
            a(f"v_pk_mul_f32 {vr(D[k]+2*i,2)}, {vr(D[k]+2*i,2)}, {vr(10+2*k,2)} op_sel_hi:[1,0]")
    for k in range(2):
        for i in range(4):
            a(f"v_cvt_pk_bf16_f32 v{64+4*k+i}, v{D[k]+2*i}, v{D[k]+2*i+1}")
        a(f"buffer_store_dwordx4 {vr(64+4*k,4)}, v1, {sr(SWS,4)}, s20 offen offset:{k*1024} sc1")
    a(f"s_mul_i32 s21, s28, 6144")
    a(f"s_add_u32 s21, s21, {RING}")
    VD, VW0, VW1, VO = 4, 5, 6, 8
    proj_addr(a, 28, 21, VD, VW0, VW1, VO)
    a("s_lshl_b32 s22, s28, 17")
    a("s_lshl_b32 s3, s37, 7")
    a("s_add_u32 s22, s22, s3")
    a("s_lshl_b32 s23, s28, 19")
    a("s_lshl_b32 s3, s36, 11")
    a("s_add_u32 s23, s23, s3")
    a(f"s_add_u32 s23, s23, {WS_O}")
    a("s_waitcnt vmcnt(0)")
    lds_add(a, 2, 3, C_OA, rtn=True)
    a("s_cmp_lg_u32 s3, 3")
    a("s_cbranch_scc1 K2_h1")
    a("s_lshl_b32 s19, s14, 8")
    a("s_lshl_b32 s3, s13, 3")
    a("s_add_u32 s19, s19, s3")
    a(f"s_add_u32 s19, s19, {WS_FL}")
    flag_write(a, 10, 19, SWS)
    a.label("K2_h1")
    stamp(a, 2)
    a("s_cmp_lg_u32 s28, 0")
    a("s_cbranch_scc1 K2_h2")
    a("s_lshl_b32 s19, s38, 8")
    a(f"s_add_u32 s19, s19, {WS_FL}")
    flag_poll(a, 10, 19, SWS)
    lds_add(a, 2, 3, F_3A)
    a.label("K2_h2")
    lds_poll(a, 2, 3, F_3A, 1, sleep=4)
    stamp(a, 3)
    ACC = 16
    OF = 80
    WF = 104

    def issueA(t):
        sl = OF + 8 * (t % 3)
        a(f"s_add_u32 m0, s21, {(t%3)*2048}")
        a(f"s_add_u32 s3, s22, {t*16384}")
        a(f"buffer_load_dwordx4 v{VD}, {sr(SWO,4)}, s3 offen lds")
        a(f"s_add_u32 m0, s21, {(t%3)*2048+1024}")
        a(f"s_add_u32 s3, s22, {t*16384+8192}")
        a(f"buffer_load_dwordx4 v{VD}, {sr(SWO,4)}, s3 offen lds")
        a(f"s_add_u32 s3, s23, {t*65536}")
        a(f"buffer_load_dwordx4 {vr(sl,4)}, v{VO}, {sr(SWS,4)}, s3 offen sc1")
        a(f"buffer_load_dwordx4 {vr(sl+4,4)}, v{VO+1}, {sr(SWS,4)}, s3 offen sc1")

    a("v_and_b32 v12, 31, v0")
    a("s_lshl_b32 s3, s36, 6")
    a("s_lshr_b32 s19, s28, 1")
    a("s_lshl_b32 s19, s19, 5")
    a("s_add_u32 s3, s3, s19")
    a("v_add_u32 v12, s3, v12")
    a("v_lshlrev_b32 v12, 2, v12")
    a(f"v_add_u32 v12, {WS_G}, v12")
    a(f"buffer_load_dword v14, v12, {sr(SWS,4)}, 0 offen sc1")
    issueA(0)
    issueA(1)
    for i in range(0, 64, 2):
        a(f"v_mov_b64 {vr(ACC+i,2)}, 0")
    for t in range(8):
        if t + 2 < 8:
            issueA(t + 2)
            a("s_waitcnt vmcnt(8)")
        else:
            a(f"s_waitcnt vmcnt({4*(7-t)})")
        o = (t % 3) * 2048
        a(f"ds_read_b64_tr_b16 {vr(WF,2)}, v{VW0} offset:{o}")
        a(f"ds_read_b64_tr_b16 {vr(WF+2,2)}, v{VW0} offset:{o+1024}")
        a(f"ds_read_b64_tr_b16 {vr(WF+4,2)}, v{VW1} offset:{o}")
        a(f"ds_read_b64_tr_b16 {vr(WF+6,2)}, v{VW1} offset:{o+1024}")
        sl = OF + 8 * (t % 3)
        a("s_waitcnt lgkmcnt(0)")
        mfma(a, ACC, WF, sl, ACC)
        mfma(a, ACC + 32, WF, sl + 4, ACC + 32)
        mfma(a, ACC + 16, WF + 4, sl, ACC + 16)
        mfma(a, ACC + 48, WF + 4, sl + 4, ACC + 48)
    stamp(a, 4)
    srd(a, 44, 30, 512 * 512 * 2)
    a("s_lshr_b32 s3, s2, 3")
    a("s_lshl_b32 s3, s3, 2")
    a("s_add_u32 s3, s3, s28")
    a("s_lshl_b32 s3, s3, 12")
    for i in range(4):
        a(f"buffer_load_dwordx4 {vr(112+4*i,4)}, v1, s[44:47], s3 offen offset:{i*1024}")
    a("s_setprio 0")
    lds_poll(a, 2, 3, C_OB, 8, sleep=8)
    a("s_setprio 3")
    a("s_lshl_b32 s19, s28, 14")
    a("s_add_u32 s19, s19, 65536")
    a("v_add_u32 v10, s19, v1")
    for j in range(1, 4):
        for q in range(4):
            a(f"ds_write_b128 v10, {vr(ACC+16*j+4*q,4)} offset:{j*4096+q*1024}")
    a("s_waitcnt lgkmcnt(0)")
    lds_add(a, 2, 3, C_AR)
    lds_poll(a, 2, 3, C_AR, 4)
    for j in range(1, 4):
        a(f"v_xor_b32 v11, {j*16384}, v10")
        for q in range(4):
            a(f"ds_read_b128 {vr(ACC+16*j+4*q,4)}, v11 offset:{j*4096+q*1024}")
    a("s_waitcnt lgkmcnt(0)")
    for i in range(8):
        a(f"v_pk_add_f32 {vr(ACC+2*i,2)}, {vr(ACC+2*i,2)}, {vr(ACC+16+2*i,2)}")
        a(f"v_pk_add_f32 {vr(ACC+32+2*i,2)}, {vr(ACC+32+2*i,2)}, {vr(ACC+48+2*i,2)}")
    for i in range(8):
        a(f"v_pk_add_f32 {vr(ACC+2*i,2)}, {vr(ACC+2*i,2)}, {vr(ACC+32+2*i,2)}")
    for i in range(8):
        a(f"v_pk_mul_f32 {vr(ACC+2*i,2)}, {vr(ACC+2*i,2)}, v[14:15] op_sel_hi:[1,0]")
    for q in range(4):
        a(f"ds_write_b128 v10, {vr(ACC+4*q,4)} offset:{q*1024}")
    a("s_waitcnt lgkmcnt(0)")
    stamp(a, 5)
    a("s_barrier")
    a("s_branch K2_flush" if STAMP else "s_branch K2_end")

    a.label("K2_compute")
    a("s_sub_u32 s12, s28, 4")
    a("s_lshl_b32 s15, s14, 3")
    a("s_add_u32 s15, s15, s12")
    a("s_lshl_b32 s16, s13, 6")
    a("s_add_u32 s16, s16, s15")
    QF = 4
    KF = [8, 12]
    VF = [16, 24]
    P = 32
    O = 40
    CN = 56
    S = [72, 88]
    NC = 104
    a("s_lshl_b32 s19, s16, 10")
    a("v_mov_b32 v108, v2")
    a("s_waitcnt lgkmcnt(0)")
    srd(a, SWS, 4, WS_SIZE)
    a(f"buffer_load_dwordx4 {vr(QF,4)}, v1, {sr(SWS,4)}, s19 offen")
    a("v_and_b32 v2, 27, v0")
    a("v_cmp_eq_u32 s[24:25], 16, v2")
    a("v_mov_b32 v3, 0x3f803f80")
    a("s_mov_b32 s20, 0x0000ffff")
    a("s_mov_b32 s21, 0x0000ffff")
    a(f"v_cndmask_b32 v{VF[0]}, 0, v3, s[24:25]")
    for i in range(1, 16):
        a(f"v_mov_b32 v{VF[0]+i}, v{VF[0]}")
    a("s_mov_b32 s22, 0")
    evmask = 0
    for t_ in [8] + [p_[0] for p_ in PRIO]:
        evmask |= 1 << (t_ // 4)
    a(f"s_mov_b32 s29, {evmask:#x}")
    stamp(a, 1)
    a("s_waitcnt vmcnt(0)")
    a("s_barrier")
    stamp(a, 2)
    if STAMP:
        a("s_waitcnt lgkmcnt(0)")
    a(f"ds_read_b128 {vr(KF[0],4)}, v1")
    a("s_waitcnt lgkmcnt(0)")
    mfma(a, S[1], KF[0], QF, "0")
    a("s_nop 7")
    a("s_nop 3")
    X = S[1]
    a(f"v_max3_f32 v2, v{X}, v{X+1}, v{X+2}")
    for i in range(3, 15, 2):
        a(f"v_max3_f32 v2, v2, v{X+i}, v{X+i+1}")
    a(f"v_max_f32 v2, v2, v{X+15}")
    cross_half(a, "v_max_f32", 2, 3)
    a.label("K2_restart")
    a("v_mov_b32 v3, v1")
    a(f"ds_read_b128 {vr(KF[0],4)}, v3")
    a(f"ds_read_b128 {vr(KF[1],4)}, v3 offset:2048")
    a("s_mov_b64 exec, s[20:21]")
    a(f"ds_read_b128 {vr(VF[0],4)}, v3 offset:1024")
    a(f"ds_read_b128 {vr(VF[0]+4,4)}, v3 offset:1280")
    a("s_mov_b64 exec, -1")
    a(f"v_sub_f32 v{CN}, 0, v2")
    a(f"v_sub_f32 v{CN+1}, 0, v2")
    for i in range(2, 16, 2):
        a(f"v_mov_b64 {vr(CN+i,2)}, {vr(CN,2)}")
    for i in range(0, 16, 2):
        a(f"v_mov_b64 {vr(O+i,2)}, 0")
    a("s_waitcnt lgkmcnt(3)")
    mfma(a, S[0], KF[0], QF, CN)
    a("s_mov_b32 s23, 0")
    a("s_nop 7")
    a("s_nop 3")
    a.raw("    .p2align 3")
    a.label("K2_loop")
    for u in range(UNR):
        X, Y = S[u & 1], S[(u + 1) & 1]
        Kn = KF[(u + 1) & 1]
        Kp = KF[u & 1]
        Vc = VF[u & 1]
        Vn = VF[(u + 1) & 1]
        a(f"ds_read_b128 {vr(Kp,4)}, v3 offset:{(u+2)*2048}")
        a("s_mov_b64 exec, s[20:21]")
        a(f"ds_read_b128 {vr(Vn,4)}, v3 offset:{(u+1)*2048+1024}")
        a(f"ds_read_b128 {vr(Vn+4,4)}, v3 offset:{(u+1)*2048+1280}")
        a("s_mov_b64 exec, -1")
        for i in range(4):
            a(f"v_exp_f32 v{X+i}, v{X+i}")
        a("s_waitcnt lgkmcnt(3)")
        mfma(a, Y, Kn, QF, CN)
        for i in range(4, 8):
            a(f"v_exp_f32 v{X+i}, v{X+i}")
        for i in range(4):
            a(f"v_cvt_pk_bf16_f32 v{P+i}, v{X+2*i}, v{X+2*i+1}")
        for i in range(8, 10):
            a(f"v_exp_f32 v{X+i}, v{X+i}")
        mfma(a, O, Vc, P, O)
        for i in range(10, 16):
            a(f"v_exp_f32 v{X+i}, v{X+i}")
        for i in range(4, 8):
            a(f"v_cvt_pk_bf16_f32 v{P+i}, v{X+2*i}, v{X+2*i+1}")
        if u == UNR - 1:
            a(f"v_add_u32 v3, {UNR*2048}, v3")
            a(f"s_add_u32 s23, s23, {UNR}")
        else:
            a("s_nop 1")
        mfma(a, O, Vc + 4, P + 4, O)
    a("s_lshr_b32 s3, s23, 2")
    a("s_bitcmp1_b32 s29, s3")
    a("s_cbranch_scc0 K2_noev")
    a("s_cmp_lg_u32 s23, 8")
    a("s_cbranch_scc1 K2_e4")
    a("s_barrier")
    a("s_branch K2_loop")
    a.label("K2_e4")
    for k, (tt, pr) in enumerate(PRIO):
        a(f"s_cmp_lg_u32 s23, {tt}")
        a(f"s_cbranch_scc1 K2_p{k}")
        a(f"s_setprio {pr}")
        a.label(f"K2_p{k}")
    a.label("K2_noev")
    a("s_cmp_lt_u32 s23, 64")
    a("s_cbranch_scc1 K2_loop")
    a("s_waitcnt lgkmcnt(0)")
    stamp(a, 3)
    lds_poll(a, 108, NC, C_XCH, 4)
    a(f"ds_read_b64 {vr(NC,2)}, v108 offset:{L_TAG}")
    a("s_waitcnt lgkmcnt(0)")
    a(f"v_readfirstlane_b32 s{TAG}, v{NC}")
    a(f"v_readfirstlane_b32 s{TAG+1}, v{NC+1}")
    a("s_nop 7")
    a("s_nop 1")
    a("s_cmp_lg_u32 s22, 0")
    a("s_cbranch_scc1 K2_fin")
    a(f"v_mov_b32 v{P}, {f32bits(2.0**64):#x}")
    a(f"v_cmp_nlt_f32 s[24:25], v{O+8}, v{P}")
    a(f"v_mov_b32 v{P+1}, 0x7f800000")
    for i in range(8):
        a(f"v_cmp_nlt_f32 s[26:27], abs(v{O+i}), v{P+1}")
        a("s_or_b64 s[24:25], s[24:25], s[26:27]")
    a("s_cmp_eq_u64 s[24:25], 0")
    a("s_cbranch_scc1 K2_fin")
    a("v_mov_b32 v3, v1")
    a("v_mov_b32 v2, 0xff800000")
    a("s_mov_b32 s23, 0")
    a.label("K2_maxloop")
    a(f"ds_read_b128 {vr(KF[0],4)}, v3")
    a("s_waitcnt lgkmcnt(0)")
    mfma(a, S[0], KF[0], QF, "0")
    a("v_add_u32 v3, 2048, v3")
    a("s_add_u32 s23, s23, 1")
    a("s_nop 7")
    a("s_nop 3")
    for i in range(0, 16, 2):
        a(f"v_max3_f32 v2, v2, v{S[0]+i}, v{S[0]+i+1}")
    a("s_cmp_lt_u32 s23, 64")
    a("s_cbranch_scc1 K2_maxloop")
    cross_half(a, "v_max_f32", 2, 3)
    a("s_mov_b32 s22, 1")
    a("s_mov_b32 s29, 0")
    a("s_branch K2_restart")
    a.label("K2_fin")
    a(f"v_rcp_f32 v2, v{O+8}")
    a("s_lshl_b32 s19, s16, 10")
    for i in range(4):
        a(f"v_pk_mul_f32 {vr(O+2*i,2)}, {vr(O+2*i,2)}, v[2:3] op_sel_hi:[1,0]")
    for i in range(4):
        a(f"v_cvt_pk_bf16_f32 v{P+i}, v{O+2*i}, v{O+2*i+1}")
    a(f"s_add_u32 s19, s19, {WS_O + 2*MB}")
    a(f"buffer_store_dwordx4 {vr(P,4)}, v1, {sr(SWS,4)}, s19 offen sc1")
    a("v_mov_b32 v2, v108")
    a("s_lshl_b32 s21, s12, 14")
    proj_addr(a, 12, 21, VD, VW0, VW1, VO)
    srd(a, SWO, 30, 512 * 512 * 2)
    srd(a, SOUT, 56, 2 * MB)
    a("s_waitcnt vmcnt(0)")
    lds_add(a, 2, 3, C_OB, rtn=True)
    a("s_cmp_lg_u32 s3, 7")
    a("s_cbranch_scc1 K2_c1")
    a("s_lshl_b32 s19, s14, 8")
    a("s_lshl_b32 s3, s13, 3")
    a("s_add_u32 s19, s19, s3")
    a(f"s_add_u32 s19, s19, {WS_FL + 2048}")
    flag_write(a, 10, 19, SWS)
    a.label("K2_c1")
    stamp(a, 4)
    stamp(a, 5)
    a("s_cmp_ge_u32 s12, 4")
    a("s_cbranch_scc1 K2_flush" if STAMP else "s_cbranch_scc1 K2_end")
    a("s_setprio 3")
    a("s_lshl_b32 s22, s12, 17")
    a("s_lshl_b32 s3, s37, 7")
    a("s_add_u32 s22, s22, s3")
    a("s_lshl_b32 s23, s12, 19")
    a("s_lshl_b32 s3, s36, 11")
    a("s_add_u32 s23, s23, s3")
    a(f"s_add_u32 s23, s23, {WS_O + 2*MB}")
    a("v_and_b32 v12, 31, v0")
    a("s_lshl_b32 s3, s36, 6")
    a("s_lshr_b32 s19, s12, 1")
    a("s_lshl_b32 s19, s19, 5")
    a("s_add_u32 s3, s3, s19")
    a("v_add_u32 v7, s3, v12")
    a("v_lshlrev_b32 v12, 2, v7")
    a(f"v_add_u32 v12, {WS_G}, v12")
    a(f"buffer_load_dword v14, v12, {sr(SWS,4)}, 0 offen sc1")
    for i in range(0, 64, 2):
        a(f"v_mov_b64 {vr(ACC+i,2)}, 0")
    lds_poll(a, 2, 3, C_OB, 8)
    for t in range(16):
        a(f"s_add_u32 m0, s21, {t*1024}")
        a(f"s_add_u32 s3, s22, {t*8192}")
        a(f"buffer_load_dwordx4 v{VD}, {sr(SWO,4)}, s3 offen lds")
    a("s_cmp_lg_u32 s12, 0")
    a("s_cbranch_scc1 K2_b2")
    a("s_lshl_b32 s19, s38, 8")
    a(f"s_add_u32 s19, s19, {WS_FL + 2048}")
    flag_poll(a, 10, 19, SWS)
    lds_add(a, 2, 3, F_3B)
    a.label("K2_b2")
    lds_poll(a, 2, 3, F_3B, 1)
    stamp(a, 5)
    OFB = 80
    WFB = 144
    for t in range(8):
        a(f"s_add_u32 s3, s23, {t*65536}")
        a(f"buffer_load_dwordx4 {vr(OFB+8*t,4)}, v{VO}, {sr(SWS,4)}, s3 offen sc1")
        a(f"buffer_load_dwordx4 {vr(OFB+8*t+4,4)}, v{VO+1}, {sr(SWS,4)}, s3 offen sc1")
    a("s_waitcnt vmcnt(16)")
    a("v_sub_f32 v14, 1.0, v14")
    a("v_cvt_pk_bf16_f32 v14, v14, v14")
    a("v_lshlrev_b32 v14, 16, v14")

    def wread(t):
        W = WFB + 8 * (t & 1)
        a(f"ds_read_b64_tr_b16 {vr(W,2)}, v{VW0} offset:{t*2048}")
        a(f"ds_read_b64_tr_b16 {vr(W+2,2)}, v{VW0} offset:{t*2048+1024}")
        a(f"ds_read_b64_tr_b16 {vr(W+4,2)}, v{VW1} offset:{t*2048}")
        a(f"ds_read_b64_tr_b16 {vr(W+6,2)}, v{VW1} offset:{t*2048+1024}")
    wread(0)
    for t in range(8):
        W = WFB + 8 * (t & 1)
        sl = OFB + 8 * t
        if t < 7:
            wread(t + 1)
            a(f"s_waitcnt vmcnt({2*(7-t)}) lgkmcnt(4)")
        else:
            a("s_waitcnt vmcnt(0) lgkmcnt(0)")
        mfma(a, ACC + 16, W + 4, sl, ACC + 16)
        mfma(a, ACC + 32, W, sl + 4, ACC + 32)
        mfma(a, ACC + 48, W + 4, sl + 4, ACC + 48)
        mfma(a, ACC, W, sl, ACC)
    a("v_add_u32 v10, s21, v1")
    a("s_nop 7")
    for j in range(1, 4):
        for q in range(4):
            a(f"ds_write_b128 v10, {vr(ACC+16*j+4*q,4)} offset:{j*4096+q*1024}")
    a("v_lshlrev_b32 v7, 10, v7")
    a("v_lshrrev_b32 v12, 5, v0")
    a("v_lshlrev_b32 v12, 4, v12")
    a("v_add_u32 v7, v7, v12")
    a("s_lshl_b32 s19, s37, 7")
    a("s_and_b32 s3, s12, 1")
    a("s_lshl_b32 s3, s3, 6")
    a("s_add_u32 s19, s19, s3")
    a("v_add_u32 v12, 65536, v10")
    a("s_waitcnt lgkmcnt(0)")
    a("s_barrier")
    for j in range(1, 4):
        a(f"v_xor_b32 v11, {j*16384}, v10")
        for q in range(4):
            a(f"ds_read_b128 {vr(ACC+16*j+4*q,4)}, v11 offset:{j*4096+q*1024}")
    AF = 80
    a("s_waitcnt lgkmcnt(8)")
    for q in range(4):
        a(f"ds_read_b128 {vr(AF+4*q,4)}, v12 offset:{q*1024}")
    a("s_waitcnt lgkmcnt(4)")
    for i in range(8):
        a(f"v_pk_add_f32 {vr(ACC+2*i,2)}, {vr(ACC+2*i,2)}, {vr(ACC+16+2*i,2)}")
        a(f"v_pk_add_f32 {vr(ACC+32+2*i,2)}, {vr(ACC+32+2*i,2)}, {vr(ACC+48+2*i,2)}")
    for i in range(8):
        a(f"v_pk_add_f32 {vr(ACC+2*i,2)}, {vr(ACC+2*i,2)}, {vr(ACC+32+2*i,2)}")
    a("s_waitcnt lgkmcnt(0)")
    for i in range(8):
        a(f"v_pk_fma_f32 {vr(ACC+2*i,2)}, {vr(ACC+2*i,2)}, v[14:15], {vr(AF+2*i,2)} op_sel_hi:[1,0,1]")
    T = 96
    for i in range(8):
        a(f"v_cvt_pk_bf16_f32 v{T+i}, v{ACC+2*i}, v{ACC+2*i+1}")
    a("s_nop 1")
    a(f"v_permlane32_swap_b32 v{T}, v{T+2}")
    a(f"v_permlane32_swap_b32 v{T+1}, v{T+3}")
    a(f"v_permlane32_swap_b32 v{T+4}, v{T+6}")
    a(f"v_permlane32_swap_b32 v{T+5}, v{T+7}")
    a(f"buffer_store_dwordx4 {vr(T,4)}, v7, {sr(SOUT,4)}, s19 offen")
    a(f"buffer_store_dwordx4 {vr(T+4,4)}, v7, {sr(SOUT,4)}, s19 offen offset:32")
    if STAMP:
        a.label("K2_flush")
        a("s_waitcnt vmcnt(0)")
        stamp(a, 6)
        stamp_flush(a, 1, 8, 28, SWS)
        if DBG:
            DW = int(os.environ.get("DW", "0"))
            a(f"s_cmp_lg_u32 s2, {DW}")
            a("s_cbranch_scc1 K2_end")
            a("s_cmp_lg_u32 s28, 4")
            a("s_cbranch_scc1 K2_end")
            srd(a, SDBG, 58, 256)
            a("s_mov_b64 exec, 0x7f")
            a("v_lshlrev_b32 v1, 2, v0")
            a(f"s_mov_b32 s3, {WS_STAMP + DW*1024 + 5*64}")
            a(f"buffer_load_dword v2, v1, {sr(SWS,4)}, s3 offen")
            a("s_waitcnt vmcnt(0)")
            a(f"buffer_store_dword v2, v1, {sr(SDBG,4)}, 0 offen offset:8")
            a("s_mov_b64 exec, 1")
            a("v_mov_b32 v1, 0")
            for i in range(7):
                a(f"v_mov_b32 v2, s{STB+2*i}")
                a(f"buffer_store_dword v2, v1, {sr(SDBG,4)}, 0 offen offset:{36+4*i}")
                a("s_nop 1")
    a.label("K2_end")
    a("s_endpgm")
    return kd(kn, 160, 64)


def main():
    a = Asm()
    head = """; gated mix of hedgehog linear attention and softmax attention (generated by dev/gen2.py)
; @launch kernel=qkv_kernel grid=(256,1,1) block=(512,1,1) lds=124928
; @launch kernel=attnproj_kernel grid=(256,1,1) block=(768,1,1) lds=163840
.amdgcn_target "amdgcn-amd-amdhsa--gfx950"
.text
"""
    kds = [gen_k1(a), gen_k23(a)]
    out = head + a.text() + '.section .rodata,"a"\n' + "".join(kds)
    path = sys.argv[1] if len(sys.argv) > 1 else f"f23.s"
    open(path, "w").write(out)
    print("wrote", path, len(out))


if __name__ == "__main__":
    main()
```

```python
import sys, os
import gen as G
G.STB = 80
from gen import *
STB = 80
import gen2 as G2
from gen2 import lds_poll, lds_add, flag_write, flag_poll, proj_addr, uid, TAG

WS_FL = 16 * MB + 32768
SP = 131072
PHL = SP
XCH = SP + 2048
CNTS = SP + 4096
RING = SP + 8192
RED = 65536
(C_XCH, C_OA, F_3A, C_OB, F_3B, C_AR, L_TAG, _, C_B, C_A, C_RED1, C_RED2, F_F1, C_S0, C_S1, F_F2, C_H, C_Q, F_Q) = [4 * i for i in range(19)]
P_X, P_WA, P_PHI, P_WOA, P_WB, P_WOB, P_GW = 64, 66, 68, 70, 74, 76, 78
P_OUT, P_DBG, P_WS = 56, 58, 60


def gen_fused(a):
    kn = NAME + "_kernel"
    kernel_begin(a, kn)
    STAGE = 40960
    SWS, SX, SW0, SW1, SW2, SPHI, SGW = 8, 12, 16, 20, 24, 40, 44
    SWO, SOUT, SDBG = 40, 48, 52
    a("s_cmp_ge_u32 s2, 256")
    a("s_cbranch_scc1 K_end")
    stamp(a, 0)
    if STAMP:
        a(f"s_memrealtime s[{STB+14}:{STB+15}]")
    a("s_load_dwordx16 s[64:79], s[0:1], 0")
    a("s_load_dwordx4 s[56:59], s[0:1], 64")
    a("s_load_dwordx2 s[60:61], s[0:1], 80")
    a("v_lshrrev_b32 v1, 6, v0")
    a("v_and_b32 v0, 63, v0")
    a("v_readfirstlane_b32 s28, v1")
    a("s_and_b32 s3, s2, 1")
    a("s_lshl_b32 s33, s3, 3")
    a("s_lshr_b32 s3, s2, 3")
    a("s_and_b32 s39, s3, 7")
    a("s_add_u32 s33, s33, s39")
    a("s_lshr_b32 s36, s3, 3")
    a("s_and_b32 s4, s2, 6")
    a("s_lshl_b32 s4, s4, 1")
    a("s_add_u32 s36, s36, s4")
    a("s_and_b32 s37, s36, 7")
    a("s_lshr_b32 s38, s36, 3")
    a("s_cmp_ge_u32 s28, 4")
    a("s_cbranch_scc1 P1_compute")

    a("v_lshrrev_b32 v5, 3, v0")
    a("s_lshl_b32 s3, s28, 3")
    a("v_add_u32 v6, s3, v5")
    a("v_lshlrev_b32 v6, 10, v6")
    a("v_lshrrev_b32 v3, 4, v0")
    a("s_and_b32 s3, s28, 1")
    a("s_lshl_b32 s3, s3, 2")
    a("v_add_u32 v3, s3, v3")
    a("v_and_b32 v4, 7, v0")
    a("v_xor_b32 v3, v3, v4")
    a("v_lshlrev_b32 v3, 4, v3")
    a("v_add_u32 v6, v6, v3")
    a("s_lshl_b32 s3, s28, 4")
    a("v_add_u32 v7, s3, v5")
    a("v_mul_u32_u24 v7, 3072, v7")
    a("v_and_b32 v5, 16, v0")
    a("v_lshrrev_b32 v5, 2, v5")
    a("v_xor_b32 v4, v4, v5")
    a("v_lshlrev_b32 v4, 4, v4")
    a("v_add_u32 v7, v7, v4")
    a("v_lshlrev_b32 v1, 4, v0")
    a(f"v_mov_b32 v2, {CNTS}")
    a("v_lshlrev_b32 v3, 2, v0")
    a("v_add_u32 v3, v2, v3")
    a("v_mov_b32 v4, 0")
    a("ds_write_b32 v3, v4")
    a("s_lshl_b32 s48, s33, 17")
    a("s_lshl_b32 s3, s37, 7")
    a("s_cmp_eq_u32 s38, 0")
    a("s_cselect_b32 s49, 1024, 0")
    a("s_cselect_b32 s29, 2048, 0")
    a("s_max_u32 s30, s29, 1024")
    a("s_add_u32 s49, s49, s3")
    a("s_add_u32 s29, s29, s3")
    a("s_add_u32 s30, s30, s3")
    a("s_lshl_b32 s50, s28, 10")
    a("s_lshl_b32 s31, s28, 11")
    a("s_mov_b32 s51, 0")
    a("s_add_u32 s39, s39, s36")
    a("s_and_b32 s39, s39, 3")
    a("s_lshl_b32 s39, s39, 1")
    a("s_waitcnt lgkmcnt(0)")
    srd(a, SX, P_X, 2 * MB)
    srd(a, SW0, P_WA, 512 * 1536 * 2)
    srd(a, SW2, P_WB, 512 * 1536 * 2)
    a("s_cmp_eq_u32 s38, 0")
    a(f"s_cselect_b32 s4, s{P_WA}, s{P_WB}")
    a(f"s_cselect_b32 s5, s{P_WA+1}, s{P_WB+1}")
    srd(a, SW1, 4, 512 * 1536 * 2)
    srd(a, SDBG, P_DBG, 256)
    a("s_cmp_ge_u32 s28, 2")
    a("s_cbranch_scc1 P1_nophi")
    srd(a, SPHI, P_PHI, 32 * 16 * 16 * 2)
    a(f"s_add_u32 m0, s50, {PHL}")
    a("s_lshl_b32 s6, s37, 11")
    a("s_add_u32 s6, s6, s50")
    a(f"buffer_load_dwordx4 v1, {sr(SPHI,4)}, s6 offen lds")
    a("s_branch P1_ld_loop")
    a.label("P1_nophi")
    a("s_cmp_lg_u32 s2, 0")
    a("s_cbranch_scc1 P1_ld_loop")
    a("s_cmp_lg_u32 s28, 3")
    a("s_cbranch_scc1 P1_ld_loop")
    a("s_memrealtime s[6:7]")
    a("s_waitcnt lgkmcnt(0)")
    a("s_or_b32 s6, s6, 1")
    a("v_mov_b32 v10, s6")
    a("v_mov_b32 v11, s7")
    a("s_mov_b64 exec, 1")
    a(f"buffer_store_dwordx2 v[10:11], off, {sr(SDBG,4)}, 0 sc1")
    a("s_mov_b64 exec, -1")
    a.label("P1_ld_loop")
    a("s_lshl_b32 s6, s39, 7")
    a("s_add_u32 s6, s6, s48")
    a(f"s_mul_i32 s7, s39, {64*3072}")
    for ii in range(4):
        a(f"s_add_u32 m0, s50, {ii*4096}")
        a(f"s_add_u32 s32, s6, {ii*32768}")
        a(f"buffer_load_dwordx4 v6, {sr(SX,4)}, s32 offen lds")
    for j, (S, so) in enumerate(((SW0, 49), (SW1, 29), (SW2, 30))):
        a(f"s_add_u32 m0, s31, {16384 + j*8192}")
        a(f"s_add_u32 s32, s{so}, s7")
        a(f"buffer_load_dwordx4 v7, {sr(S,4)}, s32 offen lds")
        a(f"s_add_u32 m0, s31, {16384 + j*8192 + 1024}")
        a(f"s_add_u32 s32, s32, {8*3072}")
        a(f"buffer_load_dwordx4 v7, {sr(S,4)}, s32 offen lds")
    a("s_add_u32 s39, s39, 1")
    a("s_and_b32 s39, s39, 7")
    a(f"s_add_u32 s50, s50, {STAGE}")
    a(f"s_add_u32 s31, s31, {STAGE}")
    a(f"s_cmp_lt_u32 s50, {3*STAGE}")
    a("s_cbranch_scc1 P1_ld_nowrap")
    a(f"s_sub_u32 s50, s50, {3*STAGE}")
    a(f"s_sub_u32 s31, s31, {3*STAGE}")
    a.label("P1_ld_nowrap")
    a("s_add_u32 s51, s51, 1")
    a("s_cmp_eq_u32 s51, 1")
    a("s_cbranch_scc1 P1_ld_loop")
    a("s_waitcnt vmcnt(10)")
    a("s_barrier")
    a("s_cmp_lt_u32 s51, 8")
    a("s_cbranch_scc1 P1_ld_loop")
    srd(a, SWS, P_WS, WS_SIZE)
    a("s_waitcnt vmcnt(0)")
    stamp(a, 1)
    a("s_barrier")
    a("s_cmp_lg_u32 s28, 3")
    a("s_cbranch_scc1 P1_notag")
    a("s_mov_b32 s3, 0")
    a.label("P1_tagpoll")
    a(f"buffer_load_dwordx2 v[10:11], off, {sr(SDBG,4)}, 0 sc1")
    a("s_add_u32 s3, s3, 1")
    a("s_waitcnt vmcnt(0)")
    a("v_cmp_eq_u32 vcc, 0, v10")
    a("s_cmp_gt_u32 s3, 0x400000")
    a("s_cbranch_scc1 P1_tagdone")
    a("s_cbranch_vccnz P1_tagpoll")
    a.label("P1_tagdone")
    a(f"ds_write_b64 v2, v[10:11] offset:{L_TAG}")
    a.label("P1_notag")
    a("s_lshl_b32 s62, s37, 8")
    a("s_lshl_b32 s3, s33, 4")
    a("s_add_u32 s62, s62, s3")
    a("s_lshl_b32 s3, s38, 3")
    a("s_add_u32 s62, s62, s3")
    a(f"s_add_u32 s62, s62, {WS_FL + 6144}")
    a("s_waitcnt lgkmcnt(0)")
    a("s_barrier")
    a(f"ds_read_b64 v[10:11], v2 offset:{L_TAG}")
    a("s_setprio 3")
    a("s_waitcnt lgkmcnt(0)")
    a(f"v_readfirstlane_b32 s{TAG}, v10")
    a(f"v_readfirstlane_b32 s{TAG+1}, v11")
    a("s_cmp_lg_u32 s28, 0")
    a("s_cbranch_scc1 H_nogate")
    srd(a, SGW, P_GW, 1024)
    a("s_lshl_b32 s3, s33, 7")
    a("s_lshl_b32 s4, s36, 3")
    a("s_add_u32 s3, s3, s4")
    a("v_lshrrev_b32 v8, 3, v0")
    a("v_add_u32 v8, s3, v8")
    a("v_and_b32 v3, 7, v0")
    a("v_lshlrev_b32 v3, 4, v3")
    a("v_lshlrev_b32 v4, 10, v8")
    a("v_add_u32 v4, v4, v3")
    for j in range(8):
        a(f"buffer_load_dwordx4 {vr(16+4*j,4)}, v4, {sr(SX,4)}, 0 offen offset:{j*128}")
        a(f"buffer_load_dwordx4 {vr(48+4*j,4)}, v3, {sr(SGW,4)}, 0 offen offset:{j*128}")
    a("v_mov_b32 v5, 0")
    a("v_mov_b32 v6, 0")
    a("s_waitcnt vmcnt(0)")
    for j in range(16):
        a(f"v_dot2_f32_bf16 v5, v{16+2*j}, v{48+2*j}, v5")
        a(f"v_dot2_f32_bf16 v6, v{17+2*j}, v{49+2*j}, v6")
    a("s_nop 3")
    a("v_add_f32 v5, v5, v6")
    for off in (0x041F, 0x081F, 0x101F):
        a(f"ds_swizzle_b32 v6, v5 offset:{off}")
        a("s_waitcnt lgkmcnt(0)")
        a("v_add_f32 v5, v5, v6")
    a("v_cvt_pk_bf16_f32 v5, v5, v5")
    a("v_lshlrev_b32 v5, 16, v5")
    a(f"v_mul_f32 v5, {f32bits(-LOG2E):#x}, v5")
    a("v_exp_f32 v5, v5")
    a("s_nop 0")
    a("v_add_f32 v5, 1.0, v5")
    a("v_rcp_f32 v5, v5")
    a("s_nop 0")
    a("v_cvt_pk_bf16_f32 v5, v5, v5")
    a("v_lshlrev_b32 v5, 16, v5")
    a("v_lshlrev_b32 v8, 2, v8")
    a(f"v_add_u32 v8, {WS_G}, v8")
    a(f"buffer_store_dword v5, v8, {sr(SWS,4)}, 0 offen sc1")
    a("s_waitcnt vmcnt(0)")
    lds_add(a, 2, 3, C_A, rtn=True)
    a("s_cmp_lg_u32 s3, 8")
    a("s_cbranch_scc1 H_nogate")
    flag_write(a, 10, 62, SWS)
    a.label("H_nogate")
    a("s_mov_b32 s63, s38")
    a("s_and_b32 s38, s2, 7")
    a("s_lshl_b32 s13, s38, 2")
    a("s_lshr_b32 s3, s2, 3")
    a("s_and_b32 s36, s3, 3")
    a("s_lshr_b32 s37, s3, 2")
    a("s_add_u32 s13, s13, s36")
    a("s_mov_b32 s36, s13")
    a("s_lshr_b32 s14, s2, 5")
    a("s_cmp_lg_u32 s28, 2")
    a("s_cbranch_scc1 H_nf1")
    a("s_lshl_b32 s19, s38, 8")
    a(f"s_add_u32 s19, s19, {WS_FL + 4096}")
    flag_poll(a, 10, 19, SWS)
    lds_add(a, 2, 3, F_F1)
    a.label("H_nf1")
    lds_poll(a, 2, 3, F_F1, 1, sleep=2)
    stamp(a, 2)
    a("s_lshl_b32 s18, s28, 10")
    a("s_lshl_b32 s17, s13, 17")
    a(f"s_add_u32 s17, s17, {WS_KVB}")
    a("s_add_u32 s17, s17, s18")
    a("v_add_u32 v4, s18, v1")
    R = [16, 48]

    def kv_issue(Rb):
        for i in range(8):
            a(f"s_add_u32 s19, s17, {i*4096}")
            a(f"buffer_load_dwordx4 {vr(Rb+4*i,4)}, v1, {sr(SWS,4)}, s19 offen sc1")
        a("s_add_u32 s17, s17, 32768")

    def kv_write(Rb, later, first=False):
        for i in range(8):
            a(f"s_waitcnt vmcnt({later + 7 - i})")
            a(f"ds_write_b128 v4, {vr(Rb+4*i,4)} offset:{i*4096}")
            if first and i == 4:
                a("s_waitcnt lgkmcnt(0)")
                lds_add(a, 2, 3, C_S0)
        a("v_add_u32 v4, 32768, v4")
        a("s_waitcnt lgkmcnt(0)")
    kv_issue(R[0])
    kv_issue(R[1])
    kv_write(R[0], 8, first=True)
    a("s_cmp_lg_u32 s28, 1")
    a("s_cbranch_scc1 H_nfq")
    a("s_lshl_b32 s19, s38, 7")
    a("s_lshl_b32 s3, s14, 4")
    a("s_add_u32 s19, s19, s3")
    a(f"s_add_u32 s19, s19, {WS_FL + 8192}")
    flag_poll(a, 10, 19, SWS, mask=1)
    lds_add(a, 2, 3, F_Q)
    a.label("H_nfq")
    kv_issue(R[0])
    kv_write(R[1], 8)
    kv_issue(R[1])
    a("s_cmp_lg_u32 s63, 0")
    a("s_cbranch_scc1 H_nored")
    lds_poll(a, 2, 3, C_RED2, 8)
    a.label("H_nored")
    kv_write(R[0], 8)
    kv_write(R[1], 0)
    lds_add(a, 2, 3, C_S1)
    stamp(a, 3)
    KP = 16
    PH = 80
    a("s_lshl_b32 s19, s13, 3")
    a("s_lshl_b32 s21, s28, 1")
    a("s_add_u32 s19, s19, s21")
    a("s_lshl_b32 s24, s19, 8")
    a(f"s_add_u32 s24, s24, {WS_KVP}")
    a("s_lshl_b32 s25, s19, 4")
    a(f"s_add_u32 s25, s25, {WS_ZP}")
    a("v_lshrrev_b32 v4, 5, v0")
    a("v_and_b32 v5, 15, v0")
    a("v_lshlrev_b32 v6, 7, v4")
    a("v_lshlrev_b32 v5, 3, v5")
    a("v_add3_u32 v6, v6, v5, s24")
    a("v_lshlrev_b32 v4, 3, v4")
    a("v_add_u32 v4, s25, v4")
    a("v_and_b32 v5, 16, v0")
    a("v_cmp_ne_u32 s[24:25], 0, v5")
    a("v_mov_b32 v7, 4096")
    a("v_mov_b32 v8, 65536")
    a("v_mov_b32 v9, 256")
    a("v_cndmask_b32 v6, v6, v4, s[24:25]")
    a("v_cndmask_b32 v7, v8, v7, s[24:25]")
    a("v_cndmask_b32 v9, v9, 16, s[24:25]")
    a("v_add_u32 v8, v6, v9")
    a("s_cmp_lg_u32 s28, 0")
    a("s_cbranch_scc1 H_nf2")
    a("s_lshl_b32 s19, s38, 8")
    a(f"s_add_u32 s19, s19, {WS_FL + 6144}")
    flag_poll(a, 10, 19, SWS)
    lds_add(a, 2, 3, F_F2)
    a.label("H_nf2")
    lds_poll(a, 2, 3, F_F2, 1, sleep=4)
    for rb in range(16):
        a(f"buffer_load_dwordx2 {vr(KP+2*rb,2)}, v6, {sr(SWS,4)}, 0 offen sc1")
        a(f"buffer_load_dwordx2 {vr(KP+32+2*rb,2)}, v8, {sr(SWS,4)}, 0 offen sc1")
        if rb < 15:
            a("v_add_u32 v6, v6, v7")
            a("v_add_u32 v8, v8, v7")
    a("s_lshl_b32 s15, s14, 3")
    a("s_add_u32 s15, s15, s21")
    a("s_lshl_b32 s16, s13, 6")
    a("s_add_u32 s16, s16, s15")
    a("s_lshl_b32 s19, s16, 11")
    a(f"s_add_u32 s19, s19, {WS_PHIQ}")
    for k in range(4):
        a(f"buffer_load_dwordx4 {vr(PH+4*k,4)}, v1, {sr(SWS,4)}, s19 offen offset:{k*1024} sc1")
    a("v_lshlrev_b32 v4, 5, v0")
    a(f"v_add_u32 v4, {XCH}, v4")
    a("s_lshl_b32 s3, s28, 3")
    a("v_add_u32 v5, s3, v4")
    a("s_waitcnt vmcnt(4)")
    for st in (8, 4, 2, 1):
        for i in range(st):
            for g in range(2):
                b = KP + 32 * g
                a(f"v_pk_add_f32 {vr(b+2*i,2)}, {vr(b+2*i,2)}, {vr(b+2*(i+st),2)}")
    a(f"v_cvt_pk_bf16_f32 v{KP}, v{KP}, v{KP+1}")
    a(f"v_cvt_pk_bf16_f32 v{KP+1}, v{KP+32}, v{KP+33}")
    a(f"ds_write_b64 v5, {vr(KP,2)}")
    a("s_waitcnt lgkmcnt(0)")
    lds_add(a, 2, 3, C_XCH)
    lds_poll(a, 2, 3, C_XCH, 4)
    a(f"ds_read_b128 {vr(KP,4)}, v4")
    a(f"ds_read_b128 {vr(KP+4,4)}, v4 offset:16")
    D = [32, 48]
    a("s_waitcnt vmcnt(0) lgkmcnt(0)")
    for k in range(2):
        mfma(a, D[k], KP, PH + 8 * k, "0")
        mfma(a, D[k], KP + 4, PH + 8 * k + 4, D[k])
    a("s_lshl_b32 s20, s16, 10")
    a(f"s_add_u32 s20, s20, {WS_O}")
    srd(a, SWO, P_WOA, 512 * 512 * 2)
    a("s_nop 5")
    for k in range(2):
        a(f"v_add_f32 v{10+2*k}, {f32bits(1e-6):#x}, v{D[k]+8}")
    for k in range(2):
        a(f"v_rcp_f32 v{10+2*k}, v{10+2*k}")
    a("s_nop 0")
    for k in range(2):
        for i in range(4):
            a(f"v_pk_mul_f32 {vr(D[k]+2*i,2)}, {vr(D[k]+2*i,2)}, {vr(10+2*k,2)} op_sel_hi:[1,0]")
    for k in range(2):
        for i in range(4):
            a(f"v_cvt_pk_bf16_f32 v{64+4*k+i}, v{D[k]+2*i}, v{D[k]+2*i+1}")
        a(f"buffer_store_dwordx4 {vr(64+4*k,4)}, v1, {sr(SWS,4)}, s20 offen offset:{k*1024} sc1")
    a(f"s_mul_i32 s21, s28, 6144")
    a(f"s_add_u32 s21, s21, {RING}")
    VD, VW0, VW1, VO = 4, 5, 6, 8
    proj_addr(a, 28, 21, VD, VW0, VW1, VO)
    a("s_lshl_b32 s22, s28, 17")
    a("s_lshl_b32 s3, s37, 7")
    a("s_add_u32 s22, s22, s3")
    a("s_lshl_b32 s23, s28, 19")
    a("s_lshl_b32 s3, s36, 11")
    a("s_add_u32 s23, s23, s3")
    a(f"s_add_u32 s23, s23, {WS_O}")
    a("s_waitcnt vmcnt(0)")
    lds_add(a, 2, 3, C_OA, rtn=True)
    a("s_cmp_lg_u32 s3, 3")
    a("s_cbranch_scc1 H_h1")
    a("s_lshl_b32 s19, s14, 8")
    a("s_lshl_b32 s3, s13, 3")
    a("s_add_u32 s19, s19, s3")
    a(f"s_add_u32 s19, s19, {WS_FL}")
    flag_write(a, 10, 19, SWS)
    a.label("H_h1")
    a("s_cmp_lg_u32 s28, 0")
    a("s_cbranch_scc1 H_h2")
    a("s_lshl_b32 s19, s38, 8")
    a(f"s_add_u32 s19, s19, {WS_FL}")
    flag_poll(a, 10, 19, SWS)
    lds_add(a, 2, 3, F_3A)
    a.label("H_h2")
    lds_poll(a, 2, 3, F_3A, 1, sleep=4)
    ACC = 16
    OF = 80
    WF = 104

    def issueA(t):
        sl = OF + 8 * (t % 3)
        a(f"s_add_u32 m0, s21, {(t%3)*2048}")
        a(f"s_add_u32 s3, s22, {t*16384}")
        a(f"buffer_load_dwordx4 v{VD}, {sr(SWO,4)}, s3 offen lds")
        a(f"s_add_u32 m0, s21, {(t%3)*2048+1024}")
        a(f"s_add_u32 s3, s22, {t*16384+8192}")
        a(f"buffer_load_dwordx4 v{VD}, {sr(SWO,4)}, s3 offen lds")
        a(f"s_add_u32 s3, s23, {t*65536}")
        a(f"buffer_load_dwordx4 {vr(sl,4)}, v{VO}, {sr(SWS,4)}, s3 offen sc1")
        a(f"buffer_load_dwordx4 {vr(sl+4,4)}, v{VO+1}, {sr(SWS,4)}, s3 offen sc1")

    a("v_and_b32 v12, 31, v0")
    a("s_lshl_b32 s3, s36, 6")
    a("s_lshr_b32 s19, s28, 1")
    a("s_lshl_b32 s19, s19, 5")
    a("s_add_u32 s3, s3, s19")
    a("v_add_u32 v12, s3, v12")
    a("v_lshlrev_b32 v12, 2, v12")
    a(f"v_add_u32 v12, {WS_G}, v12")
    a(f"buffer_load_dword v14, v12, {sr(SWS,4)}, 0 offen sc1")
    issueA(0)
    issueA(1)
    for i in range(0, 64, 2):
        a(f"v_mov_b64 {vr(ACC+i,2)}, 0")
    for t in range(8):
        if t + 2 < 8:
            issueA(t + 2)
            a("s_waitcnt vmcnt(8)")
        else:
            a(f"s_waitcnt vmcnt({4*(7-t)})")
        o = (t % 3) * 2048
        a(f"ds_read_b64_tr_b16 {vr(WF,2)}, v{VW0} offset:{o}")
        a(f"ds_read_b64_tr_b16 {vr(WF+2,2)}, v{VW0} offset:{o+1024}")
        a(f"ds_read_b64_tr_b16 {vr(WF+4,2)}, v{VW1} offset:{o}")
        a(f"ds_read_b64_tr_b16 {vr(WF+6,2)}, v{VW1} offset:{o+1024}")
        sl = OF + 8 * (t % 3)
        a("s_waitcnt lgkmcnt(0)")
        mfma(a, ACC, WF, sl, ACC)
        mfma(a, ACC + 32, WF, sl + 4, ACC + 32)
        mfma(a, ACC + 16, WF + 4, sl, ACC + 16)
        mfma(a, ACC + 48, WF + 4, sl + 4, ACC + 48)
    stamp(a, 4)
    srd(a, 44, P_WOB, 512 * 512 * 2)
    a("s_lshr_b32 s3, s2, 3")
    a("s_lshl_b32 s3, s3, 2")
    a("s_add_u32 s3, s3, s28")
    a("s_lshl_b32 s3, s3, 12")
    for i in range(4):
        a(f"buffer_load_dwordx4 {vr(112+4*i,4)}, v1, s[44:47], s3 offen offset:{i*1024}")
    a("s_setprio 0")
    lds_poll(a, 2, 3, C_OB, 8, sleep=8)
    a("s_setprio 3")
    a("s_lshl_b32 s19, s28, 14")
    a("s_add_u32 s19, s19, 65536")
    a("v_add_u32 v10, s19, v1")
    for j in range(1, 4):
        for q in range(4):
            a(f"ds_write_b128 v10, {vr(ACC+16*j+4*q,4)} offset:{j*4096+q*1024}")
    a("s_waitcnt lgkmcnt(0)")
    lds_add(a, 2, 3, C_AR)
    lds_poll(a, 2, 3, C_AR, 4)
    for j in range(1, 4):
        a(f"v_xor_b32 v11, {j*16384}, v10")
        for q in range(4):
            a(f"ds_read_b128 {vr(ACC+16*j+4*q,4)}, v11 offset:{j*4096+q*1024}")
    a("s_waitcnt lgkmcnt(0)")
    for i in range(8):
        a(f"v_pk_add_f32 {vr(ACC+2*i,2)}, {vr(ACC+2*i,2)}, {vr(ACC+16+2*i,2)}")
        a(f"v_pk_add_f32 {vr(ACC+32+2*i,2)}, {vr(ACC+32+2*i,2)}, {vr(ACC+48+2*i,2)}")
    for i in range(8):
        a(f"v_pk_add_f32 {vr(ACC+2*i,2)}, {vr(ACC+2*i,2)}, {vr(ACC+32+2*i,2)}")
    for i in range(8):
        a(f"v_pk_mul_f32 {vr(ACC+2*i,2)}, {vr(ACC+2*i,2)}, v[14:15] op_sel_hi:[1,0]")
    for q in range(4):
        a(f"ds_write_b128 v10, {vr(ACC+4*q,4)} offset:{q*1024}")
    a("s_waitcnt lgkmcnt(0)")
    stamp(a, 5)
    a("s_barrier")
    a("s_branch K_flush" if STAMP else "s_branch K_end")

    a.label("P1_compute")
    ACC1 = lambda rt, j: 16 + 48 * rt + 16 * j
    FS = [112, 132]
    F0 = 64
    VF = 72
    WPH = 96
    PD = [104, 120]
    T0 = [136, 152]
    AX, AWD = 4, 8
    IP, IM = 88, 92
    BV = [96, 64]
    TT = [16, 32]
    KV = [136, 152]
    a("s_sub_u32 s12, s28, 4")
    a("s_and_b32 s30, s12, 1")
    a("s_lshr_b32 s48, s12, 1")
    a("s_and_b32 s48, s48, 1")
    a("s_lshr_b32 s31, s12, 2")
    a("s_lshl_b32 s32, s30, 1")
    a("s_add_u32 s32, s32, s31")
    a("v_and_b32 v1, 31, v0")
    a("v_lshrrev_b32 v2, 5, v0")
    a("v_lshrrev_b32 v3, 1, v1")
    a("v_and_b32 v3, 7, v3")
    a("v_xor_b32 v3, v3, v2")
    a("v_lshlrev_b32 v3, 4, v3")
    a("s_lshl_b32 s3, s30, 6")
    a("v_add_u32 v4, s3, v1")
    a("v_lshlrev_b32 v4, 7, v4")
    a("v_add_u32 v4, v4, v3")
    for t in range(1, 4):
        a(f"v_xor_b32 v{AX+t}, {32*t}, v4")
    a("v_and_b32 v3, 15, v0")
    a("v_lshrrev_b32 v8, 2, v3")
    a("v_lshlrev_b32 v9, 3, v2")
    a("v_add_u32 v8, v8, v9")
    a("v_lshlrev_b32 v8, 7, v8")
    a("v_and_b32 v9, 8, v0")
    a("v_lshlrev_b32 v9, 3, v9")
    a("s_lshl_b32 s3, s48, 6")
    a("v_xor_b32 v9, s3, v9")
    a("v_add_u32 v8, v8, v9")
    a("v_and_b32 v9, 16, v0")
    a("v_cmp_ne_u32 s[6:7], 0, v9")
    a("v_lshlrev_b32 v9, 1, v9")
    a("v_add_u32 v8, v8, v9")
    a("v_and_b32 v9, 3, v0")
    a("v_lshlrev_b32 v9, 3, v9")
    a("v_add_u32 v8, v8, v9")
    a("v_add_u32 v8, 16384, v8")
    a("s_lshl_b32 s51, s37, 2")
    a("s_lshl_b32 s3, s48, 1")
    a("s_add_u32 s51, s51, s3")
    a("v_lshrrev_b32 v10, 2, v3")
    a("v_lshlrev_b32 v11, 2, v2")
    a("v_add_u32 v10, v10, v11")
    a("v_lshlrev_b32 v10, 5, v10")
    a("s_lshl_b32 s3, s48, 10")
    a(f"s_add_u32 s3, s3, {PHL}")
    a("v_add3_u32 v10, v10, v9, s3")
    a("v_lshlrev_b32 v9, 4, v0")
    a(f"v_mov_b32 v3, {CNTS}")
    a("s_and_b32 s3, s12, 3")
    a("s_lshl_b32 s3, s3, 12")
    a(f"s_add_u32 s3, s3, {RING}")
    a("v_add_u32 v11, s3, v9")
    a("s_lshl_b32 s62, s37, 8")
    a("s_lshl_b32 s3, s33, 4")
    a("s_add_u32 s62, s62, s3")
    a("s_lshl_b32 s3, s38, 3")
    a("s_add_u32 s62, s62, s3")
    a(f"s_add_u32 s63, s62, {WS_FL + 4096}")
    a(f"s_add_u32 s62, s62, {WS_FL + 6144}")
    a("s_lshl_b32 s39, s37, 7")
    a("s_lshl_b32 s3, s33, 3")
    a("s_add_u32 s39, s39, s3")
    a(f"s_add_u32 s39, s39, {WS_FL + 8192}")
    a("s_lshl_b32 s50, s33, 2")
    a("s_add_u32 s50, s50, s32")
    a("s_lshl_b32 s29, s51, 6")
    a("s_add_u32 s29, s29, s50")
    a("s_waitcnt lgkmcnt(0)")
    srd(a, SWS, P_WS, WS_SIZE)
    a("s_cmp_lt_u32 s12, 4")
    a("s_cbranch_scc1 P1_gemm")
    a("s_mov_b32 s49, 0")
    a.label("P1_idle")
    a("s_barrier")
    a("s_add_u32 s49, s49, 1")
    a("s_cmp_lt_u32 s49, 9")
    a("s_cbranch_scc1 P1_idle")
    for h in range(2):
        a(f"ds_read_b64_tr_b16 {vr(WPH+4*h,2)}, v10 offset:{h*512}")
        a(f"ds_read_b64_tr_b16 {vr(WPH+4*h+2,2)}, v10 offset:{h*512+256}")
    a(f"ds_read_b64 v[12:13], v3 offset:{L_TAG}")
    for i_ in (1, 2, 3, 4):
        stamp(a, i_)
    a("s_waitcnt lgkmcnt(0)")
    a(f"v_readfirstlane_b32 s{TAG}, v12")
    a(f"v_readfirstlane_b32 s{TAG+1}, v13")
    lds_poll(a, 3, 12, C_H, 4)
    for q in range(4):
        a(f"ds_read_b128 {vr(F0+4*q,4)}, v11 offset:{q*1024}")
    a("s_waitcnt lgkmcnt(0)")
    a("s_branch P1_feat")

    a.label("P1_gemm")
    for i in range(0, 96, 2):
        a(f"v_mov_b64 {vr(16+i,2)}, 0")

    def reads(F, t):
        w = lambda j, hf: f"ds_read_b64_tr_b16 {vr(F+8+4*j+2*hf,2)}, v{AWD} offset:{j*8192 + t*2048 + 512*hf}"
        return [f"ds_read_b128 {vr(F,4)}, v{AX+t}", w(2, 0), w(2, 1),
                f"ds_read_b128 {vr(F+4,4)}, v{AX+t} offset:4096", w(1, 0), w(1, 1), w(0, 0), w(0, 1)]

    def main_loop(tag, typeK):
        def m(F, k):
            rt, j = k & 1, 2 - (k >> 1)
            X, W = F + 4 * rt, F + 8 + 4 * j
            if typeK and j > 0:
                mfma(a, ACC1(rt, j), X, W, ACC1(rt, j))
            else:
                mfma(a, ACC1(rt, j), W, X, ACC1(rt, j))

        def step(F, R):
            a("s_waitcnt lgkmcnt(5)")
            m(F, 0)
            a(R[0]); a(R[1])
            a("s_waitcnt lgkmcnt(6)")
            m(F, 1)
            a(R[2]); a(R[3])
            a("s_waitcnt lgkmcnt(6)")
            m(F, 2)
            a(R[4]); a(R[5])
            m(F, 3)
            a(R[6]); a(R[7])
            a("s_waitcnt lgkmcnt(8)")
            m(F, 4)
            m(F, 5)
        a.label(f"P1_loop{tag}")
        step(FS[0], reads(FS[1], 1))
        step(FS[1], reads(FS[0], 2))
        step(FS[0], reads(FS[1], 3))
        F = FS[1]
        a("s_waitcnt lgkmcnt(0)")
        m(F, 0)
        m(F, 1)
        a("s_barrier")
        a("s_cmp_eq_u32 s49, 7")
        a(f"s_cbranch_scc1 P1_last{tag}")
        a("s_add_u32 s50, s50, 1")
        a(f"s_mov_b32 s3, {STAGE}")
        a("s_cmp_eq_u32 s50, 3")
        a(f"s_cselect_b32 s3, {(-2*STAGE) & 0xffffffff}, s3")
        a("s_cselect_b32 s50, 0, s50")
        a(f"v_add_u32 v{AX}, s3, v{AX}")
        a(f"v_add_u32 v{AWD}, s3, v{AWD}")
        R = reads(FS[0], 0)
        a(R[0]); a(R[1]); a(R[2])
        m(F, 2)
        a(R[3]); a(R[4]); a(R[5])
        m(F, 3)
        a(R[6]); a(R[7])
        for r in range(AX + 1, AX + 4):
            a(f"v_add_u32 v{r}, s3, v{r}")
        m(F, 4)
        a("s_add_u32 s49, s49, 1")
        m(F, 5)
        a(f"s_branch P1_loop{tag}")
        a.label(f"P1_last{tag}")
        for k in range(2, 6):
            m(F, k)
        a(f"ds_read_b64 v[12:13], v3 offset:{L_TAG}")
        stamp(a, 3)
        a("s_lshl_b32 s4, s29, 11")
        a(f"s_add_u32 s4, s4, {WS_KVB}")
        a(f"s_add_u32 s5, s4, {64*2048}")
        a("s_nop 3")
        for rt in range(2):
            for i in range(8):
                a(f"v_cvt_pk_bf16_f32 v{112+8*rt+i}, v{ACC1(rt,2)+2*i}, v{ACC1(rt,2)+2*i+1}")

    a("s_mov_b32 s49, 0")
    a("s_mov_b32 s50, 0")
    stamp(a, 1)
    a("s_barrier")
    stamp(a, 2)
    if STAMP:
        a("s_waitcnt lgkmcnt(0)")
    for r in reads(FS[0], 0):
        a(r)
    a("s_cmp_eq_u32 s38, 0")
    a("s_cbranch_scc1 P1_loopK")
    main_loop("Q", False)
    for rt in range(2):
        a(f"buffer_store_dwordx4 {vr(112+8*rt,4)}, v9, {sr(SWS,4)}, s4 offen offset:{rt*2048} sc1")
        a(f"buffer_store_dwordx4 {vr(116+8*rt,4)}, v9, {sr(SWS,4)}, s5 offen offset:{rt*2048} sc1")
    a("s_branch P1_hand")
    main_loop("K", True)
    a("v_and_b32 v14, 16, v0")
    a("v_lshlrev_b32 v14, 13, v14")
    a("v_and_b32 v15, 0x2f, v0")
    a("v_lshlrev_b32 v15, 4, v15")
    a("v_add_u32 v14, v14, v15")
    for rt in range(2):
        a(f"buffer_store_dwordx4 {vr(112+8*rt,4)}, v14, {sr(SWS,4)}, s4 offen offset:{rt*2048+1024} sc1")
        a(f"buffer_store_dwordx4 {vr(116+8*rt,4)}, v14, {sr(SWS,4)}, s4 offen offset:{rt*2048+1280} sc1")
    a.label("P1_hand")
    for i in range(8):
        a(f"v_cvt_pk_bf16_f32 v{136+i}, v{ACC1(1,0)+2*i}, v{ACC1(1,0)+2*i+1}")
    for i in range(8):
        a(f"v_cvt_pk_bf16_f32 v{144+i}, v{ACC1(1,1)+2*i}, v{ACC1(1,1)+2*i+1}")
    for q in range(4):
        a(f"ds_write_b128 v11, {vr(136+4*q,4)} offset:{q*1024}")
    for h in range(2):
        a(f"ds_read_b64_tr_b16 {vr(WPH+4*h,2)}, v10 offset:{h*512}")
        a(f"ds_read_b64_tr_b16 {vr(WPH+4*h+2,2)}, v10 offset:{h*512+256}")
    for i in range(8):
        a(f"v_cvt_pk_bf16_f32 v{F0+i}, v{ACC1(0,0)+2*i}, v{ACC1(0,0)+2*i+1}")
    for i in range(8):
        a(f"v_cvt_pk_bf16_f32 v{VF+i}, v{ACC1(0,1)+2*i}, v{ACC1(0,1)+2*i+1}")
    a("s_waitcnt lgkmcnt(0)")
    a(f"v_readfirstlane_b32 s{TAG}, v12")
    a(f"v_readfirstlane_b32 s{TAG+1}, v13")
    lds_add(a, 3, 12, C_H)
    a("s_waitcnt vmcnt(0)")
    lds_add(a, 3, 6, C_B, rtn=True)
    a("s_cmp_lg_u32 s3, 3")
    a("s_cbranch_scc1 P1_nofl1")
    flag_write(a, 6, 63, SWS)
    a.label("P1_nofl1")
    stamp(a, 4)
    a("s_cmp_eq_u32 s38, 0")
    a("s_cbranch_scc1 P1_feat")
    a(f"s_mov_b32 s30, {f32bits(0.25*LOG2E):#x}")
    a("s_mov_b32 s31, s30")
    a("s_lshl_b32 s4, s29, 10")
    a(f"s_add_u32 s5, s4, {64*1024}")
    for rt in range(2):
        for i in range(8):
            a(f"v_pk_mul_f32 {vr(ACC1(rt,1)+2*i,2)}, {vr(ACC1(rt,1)+2*i,2)}, s[30:31]")
        for i in range(8):
            a(f"v_cvt_pk_bf16_f32 v{16+8*rt+i}, v{ACC1(rt,1)+2*i}, v{ACC1(rt,1)+2*i+1}")
        a(f"buffer_store_dwordx4 {vr(16+8*rt,4)}, v9, {sr(SWS,4)}, s4 offen offset:{rt*1024} sc1")
        a(f"buffer_store_dwordx4 {vr(20+8*rt,4)}, v9, {sr(SWS,4)}, s5 offen offset:{rt*1024} sc1")
    a.label("P1_feat")
    a(f"s_mov_b32 s30, {f32bits(LOG2E):#x}")
    a("s_mov_b32 s31, s30")
    mfma(a, PD[0], WPH, F0, "0")
    mfma(a, PD[1], WPH + 4, F0 + 4, "0")
    a("s_nop 7")
    a("s_nop 2")
    H = (0, 1)
    M = [(10, 12, 11, 13), (14, 4, 15, 5)]
    for h in H:
        P = PD[h]
        a(f"v_max3_f32 v{M[h][0]}, v{P}, v{P+1}, v{P+2}")
        a(f"v_min3_f32 v{M[h][1]}, v{P}, v{P+1}, v{P+2}")
    for o in (3, 5):
        for h in H:
            P = PD[h]
            a(f"v_max3_f32 v{M[h][0]}, v{M[h][0]}, v{P+o}, v{P+o+1}")
            a(f"v_min3_f32 v{M[h][1]}, v{M[h][1]}, v{P+o}, v{P+o+1}")
    for h in H:
        P = PD[h]
        a(f"v_max_f32 v{M[h][0]}, v{M[h][0]}, v{P+7}")
        a(f"v_min_f32 v{M[h][1]}, v{M[h][1]}, v{P+7}")
    for h in H:
        a(f"v_mov_b32 v{M[h][2]}, v{M[h][0]}")
        a(f"v_mov_b32 v{M[h][3]}, v{M[h][1]}")
    a("s_nop 1")
    for h in H:
        a(f"v_permlane32_swap_b32 v{M[h][0]}, v{M[h][2]}")
        a(f"v_permlane32_swap_b32 v{M[h][1]}, v{M[h][3]}")
    a("s_nop 1")
    for h in H:
        a(f"v_max_f32 v{M[h][0]}, v{M[h][0]}, v{M[h][2]}")
        a(f"v_min_f32 v{M[h][1]}, v{M[h][1]}, v{M[h][3]}")
    for h in H:
        a(f"v_mul_f32 v{M[h][0]}, s30, v{M[h][0]}")
        a(f"v_mul_f32 v{M[h][1]}, s30, v{M[h][1]}")
    for i in range(4):
        for h in H:
            a(f"v_pk_fma_f32 {vr(T0[h]+2*i,2)}, {vr(PD[h]+2*i,2)}, s[30:31], {vr(M[h][0],2)} op_sel_hi:[1,1,0] neg_lo:[0,0,1] neg_hi:[0,0,1]")
            a(f"v_pk_fma_f32 {vr(T0[h]+8+2*i,2)}, {vr(PD[h]+2*i,2)}, s[30:31], {vr(M[h][1],2)} op_sel_hi:[1,1,0] neg_lo:[1,0,0] neg_hi:[1,0,0]")
    for i in range(16):
        for h in H:
            a(f"v_exp_f32 v{T0[h]+i}, v{T0[h]+i}")
    for h in H:
        for g in range(2):
            a(f"v_pk_add_f32 {vr(PD[h]+4*g,2)}, {vr(T0[h]+8*g,2)}, {vr(T0[h]+8*g+2,2)}")
            a(f"v_pk_add_f32 {vr(PD[h]+4*g+2,2)}, {vr(T0[h]+8*g+4,2)}, {vr(T0[h]+8*g+6,2)}")
    for h in H:
        for g in range(2):
            a(f"v_pk_add_f32 {vr(PD[h]+4*g,2)}, {vr(PD[h]+4*g,2)}, {vr(PD[h]+4*g+2,2)}")
    for h in H:
        a(f"v_add_f32 v{M[h][0]}, v{PD[h]}, v{PD[h]+1}")
        a(f"v_add_f32 v{M[h][1]}, v{PD[h]+4}, v{PD[h]+5}")
    for h in H:
        a(f"v_mov_b32 v{M[h][2]}, v{M[h][0]}")
        a(f"v_mov_b32 v{M[h][3]}, v{M[h][1]}")
    a("s_nop 1")
    for h in H:
        a(f"v_permlane32_swap_b32 v{M[h][0]}, v{M[h][2]}")
        a(f"v_permlane32_swap_b32 v{M[h][1]}, v{M[h][3]}")
    a("s_nop 1")
    for h in H:
        a(f"v_add_f32 v{M[h][0]}, v{M[h][0]}, v{M[h][2]}")
        a(f"v_add_f32 v{M[h][1]}, v{M[h][1]}, v{M[h][3]}")
    for h in H:
        a(f"v_rcp_f32 v{M[h][0]}, v{M[h][0]}")
        a(f"v_rcp_f32 v{M[h][1]}, v{M[h][1]}")
    a("s_nop 0")
    for i in range(4):
        for h in H:
            a(f"v_pk_mul_f32 {vr(T0[h]+2*i,2)}, {vr(T0[h]+2*i,2)}, {vr(M[h][0],2)} op_sel_hi:[1,0]")
            a(f"v_pk_mul_f32 {vr(T0[h]+8+2*i,2)}, {vr(T0[h]+8+2*i,2)}, {vr(M[h][1],2)} op_sel_hi:[1,0]")
    for i in range(8):
        for h in H:
            a(f"v_cvt_pk_bf16_f32 v{PD[h]+8+i}, v{T0[h]+2*i}, v{T0[h]+2*i+1}")
    a("s_cmp_eq_u32 s38, 0")
    a("s_cbranch_scc1 P1_featK")
    a("s_lshl_b32 s4, s29, 11")
    a(f"s_add_u32 s4, s4, {WS_PHIQ}")
    a(f"s_add_u32 s5, s4, {64*2048}")
    a("s_cmp_ge_u32 s12, 4")
    a("s_cbranch_scc1 P1_done")
    a("s_waitcnt vmcnt(0)")
    lds_add(a, 3, 6, C_Q, rtn=True)
    a("s_cmp_lg_u32 s3, 3")
    a("s_cbranch_scc1 P1_done")
    flag_write(a, 6, 39, SWS)
    a("s_branch P1_done")
    a.label("P1_featK")
    a("v_lshlrev_b32 v10, 2, v2")
    a("v_sub_u32 v10, v1, v10")
    a("v_mov_b32 v11, 0x3f80")
    a("v_mov_b32 v12, 0x3f800000")
    a("v_mov_b32 v15, 0x3f803f80")
    for base, add in ((IP, 0), (IM, 16)):
        for p in range(4):
            f0 = (2 * p if p < 2 else 8 + 2 * (p - 2)) + add
            a(f"v_cmp_eq_u32 s[4:5], {f0}, v10")
            a(f"v_cmp_eq_u32 s[30:31], {f0+1}, v10")
            a("s_nop 1")
            a(f"v_cndmask_b32 v13, 0, v11, s[4:5]")
            a(f"v_cndmask_b32 v{base+p}, v13, v12, s[30:31]")
    a("s_nop 1")
    for h in range(2):
        mfma(a, TT[h], PD[h] + 8, IP, "0")
        mfma(a, TT[h], PD[h] + 12, IM, TT[h])
    for i in range(8):
        a(f"v_cndmask_b32 v{BV[0]+i}, v{VF+i}, v15, s[6:7]")
        a(f"v_cndmask_b32 v{BV[1]+i}, v15, v{VF+i}, s[6:7]")
    for h in range(2):
        for i in range(8):
            a(f"v_cvt_pk_bf16_f32 v{PD[h]+i}, v{TT[h]+2*i}, v{TT[h]+2*i+1}")
    a("s_nop 1")
    for h in range(2):
        mfma(a, KV[h], PD[h], BV[h], "0")
        mfma(a, KV[h], PD[h] + 4, BV[h] + 4, KV[h])
    a("s_lshl_b32 s3, s48, 2")
    a("s_add_u32 s3, s3, s32")
    a("s_lshl_b32 s3, s3, 13")
    a(f"s_add_u32 s3, s3, {RED}")
    a("v_add_u32 v10, s3, v9")
    a("s_lshl_b32 s3, s32, 11")
    a("s_lshl_b32 s4, s48, 15")
    a("s_add_u32 s3, s3, s4")
    a(f"s_add_u32 s3, s3, {RED}")
    a("v_add_u32 v6, s3, v9")
    a("s_lshr_b32 s3, s32, 1")
    a("s_lshl_b32 s4, s3, 4")
    a("v_xor_b32 v11, s4, v1")
    a("s_lshl_b32 s4, s33, 5")
    a("s_add_u32 s4, s4, s51")
    a("s_add_u32 s4, s4, s3")
    a("s_lshl_b32 s4, s4, 3")
    a("s_and_b32 s5, s32, 1")
    a("s_lshl_b32 s5, s5, 2")
    a("s_add_u32 s4, s4, s5")
    a("s_lshl_b32 s5, s4, 8")
    a(f"s_add_u32 s5, s5, {WS_KVP}")
    a("s_lshl_b32 s4, s4, 4")
    a(f"s_add_u32 s4, s4, {WS_ZP}")
    for h in range(2):
        for q in range(4):
            a(f"ds_write_b128 v10, {vr(KV[h]+4*q,4)} offset:{h*4096 + q*1024}")
    a("v_lshlrev_b32 v12, 7, v2")
    a("v_lshlrev_b32 v13, 3, v11")
    a("v_add3_u32 v12, v12, v13, s5")
    a("v_lshlrev_b32 v13, 3, v2")
    a("v_add_u32 v13, s4, v13")
    a("v_cmp_gt_u32 s[4:5], 16, v11")
    a("v_cmp_eq_u32 s[6:7], 16, v11")
    a("v_mov_b32 v14, 0x7ffff000")
    a("v_mov_b32 v15, 256")
    a("v_cndmask_b32 v13, v14, v13, s[6:7]")
    a("v_cndmask_b32 v12, v13, v12, s[4:5]")
    a("v_cndmask_b32 v15, 16, v15, s[4:5]")
    a("s_waitcnt lgkmcnt(0)")
    lds_add(a, 3, 10, C_RED1)
    lds_poll(a, 3, 10, C_RED1, 8)
    for w in range(4):
        a(f"ds_read_b128 {vr(16+8*w,4)}, v6 offset:{w*8192}")
        a(f"ds_read_b128 {vr(20+8*w,4)}, v6 offset:{w*8192+1024}")
    a("s_waitcnt lgkmcnt(0)")
    lds_add(a, 3, 10, C_RED2)
    for i in range(4):
        a(f"v_pk_add_f32 {vr(16+2*i,2)}, {vr(16+2*i,2)}, {vr(24+2*i,2)}")
        a(f"v_pk_add_f32 {vr(32+2*i,2)}, {vr(32+2*i,2)}, {vr(40+2*i,2)}")
    for i in range(4):
        a(f"v_pk_add_f32 {vr(136+2*i,2)}, {vr(16+2*i,2)}, {vr(32+2*i,2)}")
    a("v_mov_b32 v144, v12")
    a("v_mov_b32 v145, v15")
    a.label("P1_done")
    a("s_mov_b32 s63, s38")

    UNR = 4
    PRIO = [(32, 2), (52, 1), (60, 0)]
    QF = 4
    KF = [8, 12]
    VFa = [16, 24]
    P = 32
    O = 40
    CN = 56
    S = [72, 88]
    NC = 104
    a("v_mov_b32 v108, v3")
    a("v_mov_b32 v1, v9")
    a("s_and_b32 s38, s2, 7")
    a("s_lshl_b32 s13, s38, 2")
    a("s_lshr_b32 s3, s2, 3")
    a("s_and_b32 s36, s3, 3")
    a("s_lshr_b32 s37, s3, 2")
    a("s_add_u32 s13, s13, s36")
    a("s_mov_b32 s36, s13")
    a("s_lshr_b32 s14, s2, 5")
    a("s_lshl_b32 s15, s14, 3")
    a("s_add_u32 s15, s15, s12")
    a("s_lshl_b32 s16, s13, 6")
    a("s_add_u32 s16, s16, s15")
    a("v_and_b32 v2, 27, v0")
    a("v_cmp_eq_u32 s[24:25], 16, v2")
    a("v_mov_b32 v3, 0x3f803f80")
    a("s_mov_b32 s20, 0x0000ffff")
    a("s_mov_b32 s21, 0x0000ffff")
    a(f"v_cndmask_b32 v{VFa[0]}, 0, v3, s[24:25]")
    for i in range(1, 16):
        a(f"v_mov_b32 v{VFa[0]+i}, v{VFa[0]}")
    a("s_mov_b32 s22, 0")
    evmask = 0
    for t_ in [4, 8, 12] + [p_[0] for p_ in PRIO]:
        evmask |= 1 << (t_ // 4)
    a(f"s_mov_b32 s29, {evmask:#x}")
    lds_poll(a, 108, NC, F_Q, 1, sleep=2)
    a("s_lshl_b32 s19, s16, 10")
    a(f"buffer_load_dwordx4 {vr(QF,4)}, v1, {sr(SWS,4)}, s19 offen sc1")
    lds_poll(a, 108, NC, C_S0, 4)
    a("s_setprio 3")
    a(f"ds_read_b128 {vr(KF[0],4)}, v1")
    a("s_waitcnt vmcnt(0) lgkmcnt(0)")
    stamp(a, 5)
    mfma(a, S[1], KF[0], QF, "0")
    a("s_nop 7")
    a("s_nop 3")
    X = S[1]
    a(f"v_max3_f32 v2, v{X}, v{X+1}, v{X+2}")
    for i in range(3, 15, 2):
        a(f"v_max3_f32 v2, v2, v{X+i}, v{X+i+1}")
    a(f"v_max_f32 v2, v2, v{X+15}")
    cross_half(a, "v_max_f32", 2, 3)
    if STAMP:
        a("s_waitcnt lgkmcnt(0)")
    a.label("P2_restart")
    a("v_mov_b32 v3, v1")
    a(f"ds_read_b128 {vr(KF[0],4)}, v3")
    a(f"ds_read_b128 {vr(KF[1],4)}, v3 offset:2048")
    a("s_mov_b64 exec, s[20:21]")
    a(f"ds_read_b128 {vr(VFa[0],4)}, v3 offset:1024")
    a(f"ds_read_b128 {vr(VFa[0]+4,4)}, v3 offset:1280")
    a("s_mov_b64 exec, -1")
    a(f"v_sub_f32 v{CN}, 0, v2")
    a(f"v_sub_f32 v{CN+1}, 0, v2")
    for i in range(2, 16, 2):
        a(f"v_mov_b64 {vr(CN+i,2)}, {vr(CN,2)}")
    for i in range(0, 16, 2):
        a(f"v_mov_b64 {vr(O+i,2)}, 0")
    a("s_waitcnt lgkmcnt(3)")
    mfma(a, S[0], KF[0], QF, CN)
    a("s_mov_b32 s23, 0")
    a("s_nop 7")
    a("s_nop 3")
    a.raw("    .p2align 3")
    a.label("P2_loop")
    for u in range(UNR):
        X, Y = S[u & 1], S[(u + 1) & 1]
        Kn = KF[(u + 1) & 1]
        Kp = KF[u & 1]
        Vc = VFa[u & 1]
        Vn = VFa[(u + 1) & 1]
        a(f"ds_read_b128 {vr(Kp,4)}, v3 offset:{(u+2)*2048}")
        a("s_mov_b64 exec, s[20:21]")
        a(f"ds_read_b128 {vr(Vn,4)}, v3 offset:{(u+1)*2048+1024}")
        a(f"ds_read_b128 {vr(Vn+4,4)}, v3 offset:{(u+1)*2048+1280}")
        a("s_mov_b64 exec, -1")
        for i in range(4):
            a(f"v_exp_f32 v{X+i}, v{X+i}")
        a("s_waitcnt lgkmcnt(3)")
        mfma(a, Y, Kn, QF, CN)
        for i in range(4, 8):
            a(f"v_exp_f32 v{X+i}, v{X+i}")
        for i in range(4):
            a(f"v_cvt_pk_bf16_f32 v{P+i}, v{X+2*i}, v{X+2*i+1}")
        for i in range(8, 10):
            a(f"v_exp_f32 v{X+i}, v{X+i}")
        mfma(a, O, Vc, P, O)
        for i in range(10, 16):
            a(f"v_exp_f32 v{X+i}, v{X+i}")
        for i in range(4, 8):
            a(f"v_cvt_pk_bf16_f32 v{P+i}, v{X+2*i}, v{X+2*i+1}")
        if u == UNR - 1:
            a(f"v_add_u32 v3, {UNR*2048}, v3")
            a(f"s_add_u32 s23, s23, {UNR}")
        else:
            a("s_nop 1")
        mfma(a, O, Vc + 4, P + 4, O)
    a("s_lshr_b32 s3, s23, 2")
    a("s_bitcmp1_b32 s29, s3")
    a("s_cbranch_scc0 P2_noev")
    a("s_cmp_lg_u32 s23, 8")
    a("s_cbranch_scc1 P2_e4")
    lds_poll(a, 108, NC, C_S1, 4)
    a("s_branch P2_loop")
    a.label("P2_e4")
    a("s_cmp_lg_u32 s23, 4")
    a("s_cbranch_scc1 P2_e5")
    a("s_cmp_eq_u32 s63, 0")
    a("s_cbranch_scc1 P2_stK")
    for h in range(2):
        a(f"buffer_store_dwordx4 {vr(PD[h]+8,4)}, v1, {sr(SWS,4)}, s{4+h} offen sc1")
        a(f"buffer_store_dwordx4 {vr(PD[h]+12,4)}, v1, {sr(SWS,4)}, s{4+h} offen offset:1024 sc1")
    a("s_branch P2_loop")
    a.label("P2_stK")
    for p in range(4):
        a(f"buffer_store_dwordx2 {vr(136+2*p,2)}, v144, {sr(SWS,4)}, 0 offen sc1")
        if p < 3:
            a("v_add_u32 v144, v144, v145")
    a("s_branch P2_loop")
    a.label("P2_e5")
    a("s_cmp_lg_u32 s23, 12")
    a("s_cbranch_scc1 P2_e6")
    a("s_waitcnt vmcnt(0)")
    lds_add(a, 108, NC, C_A, rtn=True)
    a("s_cmp_lg_u32 s3, 8")
    a("s_cbranch_scc1 P2_loop")
    flag_write(a, NC, 62, SWS)
    a("s_branch P2_loop")
    a.label("P2_e6")
    for k, (tt, pr) in enumerate(PRIO):
        a(f"s_cmp_lg_u32 s23, {tt}")
        a(f"s_cbranch_scc1 P2_p{k}")
        a(f"s_setprio {pr}")
        a.label(f"P2_p{k}")
    a.label("P2_noev")
    a("s_cmp_lt_u32 s23, 64")
    a("s_cbranch_scc1 P2_loop")
    a("s_waitcnt lgkmcnt(0)")
    stamp(a, 1)
    a("s_nop 7")
    a("s_nop 1")
    a("s_cmp_lg_u32 s22, 0")
    a("s_cbranch_scc1 P2_fin")
    a(f"v_mov_b32 v{P}, {f32bits(2.0**64):#x}")
    a(f"v_cmp_nlt_f32 s[24:25], v{O+8}, v{P}")
    a(f"v_mov_b32 v{P+1}, 0x7f800000")
    for i in range(8):
        a(f"v_cmp_nlt_f32 s[26:27], abs(v{O+i}), v{P+1}")
        a("s_or_b64 s[24:25], s[24:25], s[26:27]")
    a("s_cmp_eq_u64 s[24:25], 0")
    a("s_cbranch_scc1 P2_fin")
    a("v_mov_b32 v3, v1")
    a("v_mov_b32 v2, 0xff800000")
    a("s_mov_b32 s23, 0")
    a.label("P2_maxloop")
    a(f"ds_read_b128 {vr(KF[0],4)}, v3")
    a("s_waitcnt lgkmcnt(0)")
    mfma(a, S[0], KF[0], QF, "0")
    a("v_add_u32 v3, 2048, v3")
    a("s_add_u32 s23, s23, 1")
    a("s_nop 7")
    a("s_nop 3")
    for i in range(0, 16, 2):
        a(f"v_max3_f32 v2, v2, v{S[0]+i}, v{S[0]+i+1}")
    a("s_cmp_lt_u32 s23, 64")
    a("s_cbranch_scc1 P2_maxloop")
    cross_half(a, "v_max_f32", 2, 3)
    a("s_mov_b32 s22, 1")
    a("s_mov_b32 s29, 0")
    a("s_branch P2_restart")
    a.label("P2_fin")
    a(f"v_rcp_f32 v2, v{O+8}")
    a("s_lshl_b32 s19, s16, 10")
    for i in range(4):
        a(f"v_pk_mul_f32 {vr(O+2*i,2)}, {vr(O+2*i,2)}, v[2:3] op_sel_hi:[1,0]")
    for i in range(4):
        a(f"v_cvt_pk_bf16_f32 v{P+i}, v{O+2*i}, v{O+2*i+1}")
    a(f"s_add_u32 s19, s19, {WS_O + 2*MB}")
    a(f"buffer_store_dwordx4 {vr(P,4)}, v1, {sr(SWS,4)}, s19 offen sc1")
    a("v_mov_b32 v2, v108")
    a("s_lshl_b32 s21, s12, 14")
    proj_addr(a, 12, 21, VD, VW0, VW1, VO)
    srd(a, SWO, P_WOB, 512 * 512 * 2)
    srd(a, SOUT, P_OUT, 2 * MB)
    a("s_waitcnt vmcnt(0)")
    lds_add(a, 2, 3, C_OB, rtn=True)
    a("s_cmp_lg_u32 s3, 7")
    a("s_cbranch_scc1 P3_c1")
    a("s_lshl_b32 s19, s14, 8")
    a("s_lshl_b32 s3, s13, 3")
    a("s_add_u32 s19, s19, s3")
    a(f"s_add_u32 s19, s19, {WS_FL + 2048}")
    flag_write(a, 10, 19, SWS)
    a.label("P3_c1")
    a("s_cmp_ge_u32 s12, 4")
    a("s_cbranch_scc1 K_flush" if STAMP else "s_cbranch_scc1 K_end")
    a("s_setprio 3")
    a("s_lshl_b32 s22, s12, 17")
    a("s_lshl_b32 s3, s37, 7")
    a("s_add_u32 s22, s22, s3")
    a("s_lshl_b32 s23, s12, 19")
    a("s_lshl_b32 s3, s36, 11")
    a("s_add_u32 s23, s23, s3")
    a(f"s_add_u32 s23, s23, {WS_O + 2*MB}")
    a("v_and_b32 v12, 31, v0")
    a("s_lshl_b32 s3, s36, 6")
    a("s_lshr_b32 s19, s12, 1")
    a("s_lshl_b32 s19, s19, 5")
    a("s_add_u32 s3, s3, s19")
    a("v_add_u32 v7, s3, v12")
    a("v_lshlrev_b32 v13, 2, v7")
    a(f"v_add_u32 v13, {WS_G}, v13")
    for i in range(0, 64, 2):
        a(f"v_mov_b64 {vr(ACC+i,2)}, 0")
    lds_poll(a, 2, 3, C_OB, 8)
    for t in range(16):
        a(f"s_add_u32 m0, s21, {t*1024}")
        a(f"s_add_u32 s3, s22, {t*8192}")
        a(f"buffer_load_dwordx4 v{VD}, {sr(SWO,4)}, s3 offen lds")
    a("s_cmp_lg_u32 s12, 0")
    a("s_cbranch_scc1 P3_b2")
    a("s_lshl_b32 s19, s38, 8")
    a(f"s_add_u32 s19, s19, {WS_FL + 2048}")
    flag_poll(a, 10, 19, SWS)
    lds_add(a, 2, 3, F_3B)
    a.label("P3_b2")
    lds_poll(a, 2, 3, F_3B, 1)
    lds_poll(a, 2, 3, F_3A, 1)
    stamp(a, 2)
    OFB = 80
    WFB = 144
    a(f"buffer_load_dword v14, v13, {sr(SWS,4)}, 0 offen sc1")
    for t in range(8):
        a(f"s_add_u32 s3, s23, {t*65536}")
        a(f"buffer_load_dwordx4 {vr(OFB+8*t,4)}, v{VO}, {sr(SWS,4)}, s3 offen sc1")
        a(f"buffer_load_dwordx4 {vr(OFB+8*t+4,4)}, v{VO+1}, {sr(SWS,4)}, s3 offen sc1")
    a("s_waitcnt vmcnt(17)")

    def wread(t):
        W = WFB + 8 * (t & 1)
        a(f"ds_read_b64_tr_b16 {vr(W,2)}, v{VW0} offset:{t*2048}")
        a(f"ds_read_b64_tr_b16 {vr(W+2,2)}, v{VW0} offset:{t*2048+1024}")
        a(f"ds_read_b64_tr_b16 {vr(W+4,2)}, v{VW1} offset:{t*2048}")
        a(f"ds_read_b64_tr_b16 {vr(W+6,2)}, v{VW1} offset:{t*2048+1024}")
    if STAMP:
        a("s_waitcnt lgkmcnt(0)")
    wread(0)
    for t in range(8):
        W = WFB + 8 * (t & 1)
        sl = OFB + 8 * t
        if t < 7:
            wread(t + 1)
            a(f"s_waitcnt vmcnt({2*(7-t)}) lgkmcnt(4)")
        else:
            a("s_waitcnt vmcnt(0) lgkmcnt(0)")
        mfma(a, ACC + 16, W + 4, sl, ACC + 16)
        mfma(a, ACC + 32, W, sl + 4, ACC + 32)
        mfma(a, ACC + 48, W + 4, sl + 4, ACC + 48)
        mfma(a, ACC, W, sl, ACC)
    a("v_add_u32 v10, s21, v1")
    a("v_sub_f32 v14, 1.0, v14")
    a("v_cvt_pk_bf16_f32 v14, v14, v14")
    a("v_lshlrev_b32 v14, 16, v14")
    a("s_nop 4")
    for j in range(1, 4):
        for q in range(4):
            a(f"ds_write_b128 v10, {vr(ACC+16*j+4*q,4)} offset:{j*4096+q*1024}")
    a("v_lshlrev_b32 v7, 10, v7")
    a("v_lshrrev_b32 v12, 5, v0")
    a("v_lshlrev_b32 v12, 4, v12")
    a("v_add_u32 v7, v7, v12")
    a("s_lshl_b32 s19, s37, 7")
    a("s_and_b32 s3, s12, 1")
    a("s_lshl_b32 s3, s3, 6")
    a("s_add_u32 s19, s19, s3")
    a("v_add_u32 v12, 65536, v10")
    a("s_waitcnt lgkmcnt(0)")
    a("s_barrier")
    for j in range(1, 4):
        a(f"v_xor_b32 v11, {j*16384}, v10")
        for q in range(4):
            a(f"ds_read_b128 {vr(ACC+16*j+4*q,4)}, v11 offset:{j*4096+q*1024}")
    AF = 80
    a("s_waitcnt lgkmcnt(8)")
    for q in range(4):
        a(f"ds_read_b128 {vr(AF+4*q,4)}, v12 offset:{q*1024}")
    a("s_waitcnt lgkmcnt(4)")
    for i in range(8):
        a(f"v_pk_add_f32 {vr(ACC+2*i,2)}, {vr(ACC+2*i,2)}, {vr(ACC+16+2*i,2)}")
        a(f"v_pk_add_f32 {vr(ACC+32+2*i,2)}, {vr(ACC+32+2*i,2)}, {vr(ACC+48+2*i,2)}")
    for i in range(8):
        a(f"v_pk_add_f32 {vr(ACC+2*i,2)}, {vr(ACC+2*i,2)}, {vr(ACC+32+2*i,2)}")
    a("s_waitcnt lgkmcnt(0)")
    for i in range(8):
        a(f"v_pk_fma_f32 {vr(ACC+2*i,2)}, {vr(ACC+2*i,2)}, v[14:15], {vr(AF+2*i,2)} op_sel_hi:[1,0,1]")
    T = 96
    for i in range(8):
        a(f"v_cvt_pk_bf16_f32 v{T+i}, v{ACC+2*i}, v{ACC+2*i+1}")
    a("s_nop 1")
    a(f"v_permlane32_swap_b32 v{T}, v{T+2}")
    a(f"v_permlane32_swap_b32 v{T+1}, v{T+3}")
    a(f"v_permlane32_swap_b32 v{T+4}, v{T+6}")
    a(f"v_permlane32_swap_b32 v{T+5}, v{T+7}")
    a(f"buffer_store_dwordx4 {vr(T,4)}, v7, {sr(SOUT,4)}, s19 offen")
    a(f"buffer_store_dwordx4 {vr(T+4,4)}, v7, {sr(SOUT,4)}, s19 offen offset:32")
    if STAMP:
        a.label("K_flush")
        a("s_waitcnt vmcnt(0)")
        stamp(a, 6)
        stamp_flush(a, 0, 8, 28, SWS)
    a.label("K_end")
    a("s_endpgm")
    return kd(kn, 168, 80)


def main():
    a = Asm()
    head = f"""; gated mix of hedgehog linear attention and softmax attention (generated by dev/gen3.py)
; @launch kernel={NAME}_kernel grid=(256,1,1) block=(768,1,1) lds=163840
.amdgcn_target "amdgcn-amd-amdhsa--gfx950"
.text
"""
    kds = [gen_fused(a)]
    out = head + a.text() + '.section .rodata,"a"\n' + "".join(kds)
    path = sys.argv[1] if len(sys.argv) > 1 else f"f123.s"
    open(path, "w").write(out)
    print("wrote", path, len(out))


if __name__ == "__main__":
    main()
```

```python
import sys, os
from gen import *
import gen as G

WS_FL = 16 * MB + 32768
SP = 131072
XCH = SP + 2048
CNTS = SP + 4096
RING = SP + 8192
C_XCH, C_OA, F_3A, C_OB, F_3B, C_AR, L_TAG = 0, 4, 8, 12, 16, 20, 24
TAG = 34
FSH = 3
_uid = [0]


def uid(p):
    _uid[0] += 1
    return f"{p}{_uid[0]}"


def lds_poll(a, vaddr, vt, off, target, sleep=1):
    L = uid("Lp")
    a.label(L)
    a(f"ds_read_b32 v{vt}, v{vaddr} offset:{off}")
    a("s_waitcnt lgkmcnt(0)")
    a(f"v_readfirstlane_b32 s3, v{vt}")
    a(f"s_cmp_ge_u32 s3, {target}")
    L2 = uid("Lq")
    a(f"s_cbranch_scc1 {L2}")
    a(f"s_sleep {sleep}")
    a(f"s_branch {L}")
    a.label(L2)


def lds_add(a, vaddr, vt, off, rtn=False):
    a(f"v_mov_b32 v{vt}, 1")
    a("s_mov_b64 exec, 1")
    if rtn:
        a(f"ds_add_rtn_u32 v{vt}, v{vaddr}, v{vt} offset:{off}")
        a("s_waitcnt lgkmcnt(0)")
        a(f"v_readfirstlane_b32 s3, v{vt}")
    else:
        a(f"ds_add_u32 v{vaddr}, v{vt} offset:{off}")
    a("s_mov_b64 exec, -1")


def flag_write(a, vt, soff, SWS):
    a(f"v_mov_b32 v{vt}, s{TAG}")
    a(f"v_mov_b32 v{vt+1}, s{TAG+1}")
    a(f"v_mov_b32 v{vt+2}, 0")
    a("s_mov_b64 exec, 1")
    a(f"buffer_store_dwordx2 {vr(vt,2)}, v{vt+2}, {sr(SWS,4)}, s{soff} offen sc1")
    a("s_mov_b64 exec, -1")


def flag_poll(a, vt, soff, SWS, mask=31, sleep=1):
    a(f"v_lshlrev_b32 v{vt+2}, {FSH}, v0")
    a("s_mov_b32 s3, 0")
    a(f"s_mov_b64 exec, {(1 << (mask+1)) - 1:#x}")
    L, L2 = uid("Lf"), uid("Lg")
    a.label(L)
    a(f"buffer_load_dwordx2 {vr(vt,2)}, v{vt+2}, {sr(SWS,4)}, s{soff} offen sc1")
    a("s_waitcnt vmcnt(0)")
    a(f"v_cmp_ne_u64 vcc, s[{TAG}:{TAG+1}], {vr(vt,2)}")
    a("s_add_u32 s3, s3, 1")
    a("s_cmp_gt_u32 s3, 0x200000")
    a(f"s_cbranch_scc1 {L2}")
    a(f"s_cbranch_vccz {L2}")
    a("s_mov_b64 exec, vcc")
    a(f"s_sleep {sleep}")
    a(f"s_branch {L}")
    a.label(L2)
    a("s_mov_b64 exec, -1")


def proj_addr(a, wsel, ldsbase_s, vd, v_w0, v_w1, v_o):
    a("v_lshrrev_b32 v10, 3, v0")
    a("v_lshlrev_b32 v11, 10, v10")
    a("v_and_b32 v12, 16, v0")
    a("v_lshrrev_b32 v12, 2, v12")
    a("v_and_b32 v13, 7, v0")
    a("v_xor_b32 v12, v12, v13")
    a("v_lshlrev_b32 v12, 4, v12")
    a(f"v_add_u32 v{vd}, v11, v12")
    a("v_lshrrev_b32 v10, 5, v0")
    a("v_lshlrev_b32 v10, 2, v10")
    a("v_and_b32 v11, 15, v0")
    a("v_lshrrev_b32 v11, 2, v11")
    a("v_add_u32 v10, v10, v11")
    a("v_lshlrev_b32 v10, 7, v10")
    a("v_and_b32 v11, 8, v0")
    a("v_lshlrev_b32 v11, 3, v11")
    a(f"s_and_b32 s3, s{wsel}, 1")
    a("s_lshl_b32 s3, s3, 6")
    a("v_xor_b32 v11, s3, v11")
    a("v_add_u32 v10, v10, v11")
    a("v_and_b32 v11, 16, v0")
    a("v_lshlrev_b32 v11, 1, v11")
    a("v_add_u32 v10, v10, v11")
    a("v_and_b32 v11, 3, v0")
    a("v_lshlrev_b32 v11, 3, v11")
    a("v_add_u32 v10, v10, v11")
    a(f"v_xor_b32 v{v_w1}, 64, v10")
    a(f"v_add_u32 v{v_w0}, s{ldsbase_s}, v10")
    a(f"v_add_u32 v{v_w1}, s{ldsbase_s}, v{v_w1}")
    a(f"s_lshr_b32 s3, s{wsel}, 1")
    a("s_lshl_b32 s3, s3, 10")
    a(f"v_add_u32 v{v_o}, s3, v1")
    a(f"v_xor_b32 v{v_o+1}, 1024, v{v_o}")


def gen_k23(a):
    kn = "attnproj_kernel"
    kernel_begin(a, kn)
    SWS, SWO, SOUT, SDBG = 8, 40, 48, 52
    UNR = 4
    PRIO = [(32, 2), (52, 1), (60, 0)]
    a("s_cmp_ge_u32 s2, 256")
    a("s_cbranch_scc1 K2_end")
    stamp(a, 0)
    if STAMP:
        a(f"s_memrealtime s[{STB+14}:{STB+15}]")
    a("s_load_dwordx2 s[4:5], s[0:1], 80")
    a("s_load_dwordx2 s[6:7], s[0:1], 24")
    a("s_load_dwordx2 s[30:31], s[0:1], 48")
    a("s_load_dwordx4 s[56:59], s[0:1], 64")
    a("v_lshrrev_b32 v1, 6, v0")
    a("v_and_b32 v0, 63, v0")
    a("v_readfirstlane_b32 s28, v1")
    a("s_and_b32 s38, s2, 7")
    a("s_lshl_b32 s13, s38, 2")
    a("s_lshr_b32 s3, s2, 3")
    a("s_and_b32 s36, s3, 3")
    a("s_lshr_b32 s37, s3, 2")
    a("s_add_u32 s13, s13, s36")
    a("s_mov_b32 s36, s13")
    a("s_lshr_b32 s14, s2, 5")
    a("v_lshlrev_b32 v1, 4, v0")
    a(f"v_mov_b32 v2, {CNTS}")
    a("s_setprio 3")
    a("s_cmp_ge_u32 s28, 4")
    a("s_cbranch_scc1 K2_compute")
    a("s_lshl_b32 s18, s28, 10")
    a("s_lshl_b32 s17, s13, 17")
    a(f"s_add_u32 s17, s17, {WS_KVB}")
    a("s_add_u32 s17, s17, s18")
    a("v_lshlrev_b32 v3, 2, v0")
    a("v_add_u32 v3, v2, v3")
    a("v_mov_b32 v4, 0")
    a("ds_write_b32 v3, v4")
    a("s_waitcnt lgkmcnt(0)")
    srd(a, SWS, 4, WS_SIZE)
    srd(a, SDBG, 58, 256)
    a("s_or_b32 s3, s2, s28")
    a("s_cmp_lg_u32 s3, 0")
    a("s_cbranch_scc1 K2_nononce")
    a("s_memrealtime s[32:33]")
    a("s_waitcnt lgkmcnt(0)")
    a("s_or_b32 s32, s32, 1")
    a("v_mov_b32 v10, s32")
    a("v_mov_b32 v11, s33")
    a("s_mov_b64 exec, 1")
    a(f"buffer_store_dwordx2 v[10:11], off, {sr(SDBG,4)}, 0 sc1")
    a("s_mov_b64 exec, -1")
    a.label("K2_nononce")
    a("s_mov_b32 s20, 0")
    a.label("K2_ld_loop")
    for i in range(4):
        a(f"s_add_u32 m0, s18, {i*4096}")
        a(f"s_add_u32 s19, s17, {i*4096}")
        a(f"buffer_load_dwordx4 v1, {sr(SWS,4)}, s19 offen lds")
    a("s_add_u32 s17, s17, 16384")
    a("s_add_u32 s18, s18, 16384")
    a("s_add_u32 s20, s20, 1")
    a("s_cmp_lg_u32 s20, 2")
    a("s_cbranch_scc1 K2_ld_next")
    a("s_waitcnt vmcnt(3)")
    a("s_barrier")
    a.label("K2_ld_next")
    a("s_cmp_lt_u32 s20, 8")
    a("s_cbranch_scc1 K2_ld_loop")
    KP = 16
    PH = 80
    a("s_lshl_b32 s19, s13, 3")
    a("s_lshl_b32 s21, s28, 1")
    a("s_add_u32 s19, s19, s21")
    a("s_lshl_b32 s24, s19, 8")
    a(f"s_add_u32 s24, s24, {WS_KVP}")
    a("s_lshl_b32 s25, s19, 4")
    a(f"s_add_u32 s25, s25, {WS_ZP}")
    a("v_lshrrev_b32 v4, 5, v0")
    a("v_and_b32 v5, 15, v0")
    a("v_lshlrev_b32 v6, 7, v4")
    a("v_lshlrev_b32 v5, 3, v5")
    a("v_add3_u32 v6, v6, v5, s24")
    a("v_lshlrev_b32 v4, 3, v4")
    a("v_add_u32 v4, s25, v4")
    a("v_and_b32 v5, 16, v0")
    a("v_cmp_ne_u32 s[24:25], 0, v5")
    a("v_mov_b32 v7, 4096")
    a("v_mov_b32 v8, 65536")
    a("v_mov_b32 v9, 256")
    a("v_cndmask_b32 v6, v6, v4, s[24:25]")
    a("v_cndmask_b32 v7, v8, v7, s[24:25]")
    a("v_cndmask_b32 v9, v9, 16, s[24:25]")
    a("v_add_u32 v8, v6, v9")
    a("s_waitcnt vmcnt(0)")
    stamp(a, 1)
    a("s_barrier")
    a("s_cmp_lg_u32 s28, 0")
    a("s_cbranch_scc1 K2_notag")
    a("s_mov_b32 s3, 0")
    a.label("K2_tagpoll")
    a(f"buffer_load_dwordx2 v[10:11], off, {sr(SDBG,4)}, 0 sc1")
    a("s_add_u32 s3, s3, 1")
    a("s_waitcnt vmcnt(0)")
    a("v_cmp_eq_u32 vcc, 0, v10")
    a("s_cmp_gt_u32 s3, 0x400000")
    a("s_cbranch_scc1 K2_tagdone")
    a("s_cbranch_vccnz K2_tagpoll")
    a.label("K2_tagdone")
    a(f"ds_write_b64 v2, v[10:11] offset:{L_TAG}")
    a.label("K2_notag")
    for rb in range(16):
        a(f"buffer_load_dwordx2 {vr(KP+2*rb,2)}, v6, {sr(SWS,4)}, 0 offen")
        a(f"buffer_load_dwordx2 {vr(KP+32+2*rb,2)}, v8, {sr(SWS,4)}, 0 offen")
        if rb < 15:
            a("v_add_u32 v6, v6, v7")
            a("v_add_u32 v8, v8, v7")
    a("s_lshl_b32 s15, s14, 3")
    a("s_add_u32 s15, s15, s21")
    a("s_lshl_b32 s16, s13, 6")
    a("s_add_u32 s16, s16, s15")
    a("s_lshl_b32 s19, s16, 11")
    a(f"s_add_u32 s19, s19, {WS_PHIQ}")
    for k in range(4):
        a(f"buffer_load_dwordx4 {vr(PH+4*k,4)}, v1, {sr(SWS,4)}, s19 offen offset:{k*1024}")
    a("v_lshlrev_b32 v4, 5, v0")
    a(f"v_add_u32 v4, {XCH}, v4")
    a("s_lshl_b32 s3, s28, 3")
    a("v_add_u32 v5, s3, v4")
    a("s_waitcnt vmcnt(4)")
    for st in (8, 4, 2, 1):
        for i in range(st):
            for g in range(2):
                b = KP + 32 * g
                a(f"v_pk_add_f32 {vr(b+2*i,2)}, {vr(b+2*i,2)}, {vr(b+2*(i+st),2)}")
    a(f"v_cvt_pk_bf16_f32 v{KP}, v{KP}, v{KP+1}")
    a(f"v_cvt_pk_bf16_f32 v{KP+1}, v{KP+32}, v{KP+33}")
    a(f"ds_write_b64 v5, {vr(KP,2)}")
    a("s_waitcnt lgkmcnt(0)")
    lds_add(a, 2, 3, C_XCH)
    lds_poll(a, 2, 3, C_XCH, 4)
    a(f"ds_read_b128 {vr(KP,4)}, v4")
    a(f"ds_read_b128 {vr(KP+4,4)}, v4 offset:16")
    a(f"ds_read_b64 v[10:11], v2 offset:{L_TAG}")
    D = [32, 48]
    a("s_waitcnt vmcnt(0) lgkmcnt(0)")
    a(f"v_readfirstlane_b32 s{TAG}, v10")
    a(f"v_readfirstlane_b32 s{TAG+1}, v11")
    for k in range(2):
        mfma(a, D[k], KP, PH + 8 * k, "0")
        mfma(a, D[k], KP + 4, PH + 8 * k + 4, D[k])
    a("s_lshl_b32 s20, s16, 10")
    a(f"s_add_u32 s20, s20, {WS_O}")
    srd(a, SWO, 6, 512 * 512 * 2)
    a("s_nop 5")
    for k in range(2):
        a(f"v_add_f32 v{10+2*k}, {f32bits(1e-6):#x}, v{D[k]+8}")
    for k in range(2):
        a(f"v_rcp_f32 v{10+2*k}, v{10+2*k}")
    a("s_nop 0")
    for k in range(2):
        for i in range(4):
            a(f"v_pk_mul_f32 {vr(D[k]+2*i,2)}, {vr(D[k]+2*i,2)}, {vr(10+2*k,2)} op_sel_hi:[1,0]")
    for k in range(2):
        for i in range(4):
            a(f"v_cvt_pk_bf16_f32 v{64+4*k+i}, v{D[k]+2*i}, v{D[k]+2*i+1}")
        a(f"buffer_store_dwordx4 {vr(64+4*k,4)}, v1, {sr(SWS,4)}, s20 offen offset:{k*1024} sc1")
    a(f"s_mul_i32 s21, s28, 6144")
    a(f"s_add_u32 s21, s21, {RING}")
    VD, VW0, VW1, VO = 4, 5, 6, 8
    proj_addr(a, 28, 21, VD, VW0, VW1, VO)
    a("s_lshl_b32 s22, s28, 17")
    a("s_lshl_b32 s3, s37, 7")
    a("s_add_u32 s22, s22, s3")
    a("s_lshl_b32 s23, s28, 19")
    a("s_lshl_b32 s3, s36, 11")
    a("s_add_u32 s23, s23, s3")
    a(f"s_add_u32 s23, s23, {WS_O}")
    a("s_waitcnt vmcnt(0)")
    lds_add(a, 2, 3, C_OA, rtn=True)
    a("s_cmp_lg_u32 s3, 3")
    a("s_cbranch_scc1 K2_h1")
    a("s_lshl_b32 s19, s14, 8")
    a("s_lshl_b32 s3, s13, 3")
    a("s_add_u32 s19, s19, s3")
    a(f"s_add_u32 s19, s19, {WS_FL}")
    flag_write(a, 10, 19, SWS)
    a.label("K2_h1")
    stamp(a, 2)
    a("s_cmp_lg_u32 s28, 0")
    a("s_cbranch_scc1 K2_h2")
    a("s_lshl_b32 s19, s38, 8")
    a(f"s_add_u32 s19, s19, {WS_FL}")
    flag_poll(a, 10, 19, SWS)
    lds_add(a, 2, 3, F_3A)
    a.label("K2_h2")
    lds_poll(a, 2, 3, F_3A, 1, sleep=4)
    stamp(a, 3)
    ACC = 16
    OF = 80
    WF = 104

    def issueA(t):
        sl = OF + 8 * (t % 3)
        a(f"s_add_u32 m0, s21, {(t%3)*2048}")
        a(f"s_add_u32 s3, s22, {t*16384}")
        a(f"buffer_load_dwordx4 v{VD}, {sr(SWO,4)}, s3 offen lds")
        a(f"s_add_u32 m0, s21, {(t%3)*2048+1024}")
        a(f"s_add_u32 s3, s22, {t*16384+8192}")
        a(f"buffer_load_dwordx4 v{VD}, {sr(SWO,4)}, s3 offen lds")
        a(f"s_add_u32 s3, s23, {t*65536}")
        a(f"buffer_load_dwordx4 {vr(sl,4)}, v{VO}, {sr(SWS,4)}, s3 offen sc1")
        a(f"buffer_load_dwordx4 {vr(sl+4,4)}, v{VO+1}, {sr(SWS,4)}, s3 offen sc1")

    a("v_and_b32 v12, 31, v0")
    a("s_lshl_b32 s3, s36, 6")
    a("s_lshr_b32 s19, s28, 1")
    a("s_lshl_b32 s19, s19, 5")
    a("s_add_u32 s3, s3, s19")
    a("v_add_u32 v12, s3, v12")
    a("v_lshlrev_b32 v12, 2, v12")
    a(f"v_add_u32 v12, {WS_G}, v12")
    a(f"buffer_load_dword v14, v12, {sr(SWS,4)}, 0 offen sc1")
    issueA(0)
    issueA(1)
    for i in range(0, 64, 2):
        a(f"v_mov_b64 {vr(ACC+i,2)}, 0")
    for t in range(8):
        if t + 2 < 8:
            issueA(t + 2)
            a("s_waitcnt vmcnt(8)")
        else:
            a(f"s_waitcnt vmcnt({4*(7-t)})")
        o = (t % 3) * 2048
        a(f"ds_read_b64_tr_b16 {vr(WF,2)}, v{VW0} offset:{o}")
        a(f"ds_read_b64_tr_b16 {vr(WF+2,2)}, v{VW0} offset:{o+1024}")
        a(f"ds_read_b64_tr_b16 {vr(WF+4,2)}, v{VW1} offset:{o}")
        a(f"ds_read_b64_tr_b16 {vr(WF+6,2)}, v{VW1} offset:{o+1024}")
        sl = OF + 8 * (t % 3)
        a("s_waitcnt lgkmcnt(0)")
        mfma(a, ACC, WF, sl, ACC)
        mfma(a, ACC + 32, WF, sl + 4, ACC + 32)
        mfma(a, ACC + 16, WF + 4, sl, ACC + 16)
        mfma(a, ACC + 48, WF + 4, sl + 4, ACC + 48)
    stamp(a, 4)
    srd(a, 44, 30, 512 * 512 * 2)
    a("s_lshr_b32 s3, s2, 3")
    a("s_lshl_b32 s3, s3, 2")
    a("s_add_u32 s3, s3, s28")
    a("s_lshl_b32 s3, s3, 12")
    for i in range(4):
        a(f"buffer_load_dwordx4 {vr(112+4*i,4)}, v1, s[44:47], s3 offen offset:{i*1024}")
    a("s_setprio 0")
    lds_poll(a, 2, 3, C_OB, 8, sleep=8)
    a("s_setprio 3")
    a("s_lshl_b32 s19, s28, 14")
    a("s_add_u32 s19, s19, 65536")
    a("v_add_u32 v10, s19, v1")
    for j in range(1, 4):
        for q in range(4):
            a(f"ds_write_b128 v10, {vr(ACC+16*j+4*q,4)} offset:{j*4096+q*1024}")
    a("s_waitcnt lgkmcnt(0)")
    lds_add(a, 2, 3, C_AR)
    lds_poll(a, 2, 3, C_AR, 4)
    for j in range(1, 4):
        a(f"v_xor_b32 v11, {j*16384}, v10")
        for q in range(4):
            a(f"ds_read_b128 {vr(ACC+16*j+4*q,4)}, v11 offset:{j*4096+q*1024}")
    a("s_waitcnt lgkmcnt(0)")
    for i in range(8):
        a(f"v_pk_add_f32 {vr(ACC+2*i,2)}, {vr(ACC+2*i,2)}, {vr(ACC+16+2*i,2)}")
        a(f"v_pk_add_f32 {vr(ACC+32+2*i,2)}, {vr(ACC+32+2*i,2)}, {vr(ACC+48+2*i,2)}")
    for i in range(8):
        a(f"v_pk_add_f32 {vr(ACC+2*i,2)}, {vr(ACC+2*i,2)}, {vr(ACC+32+2*i,2)}")
    for i in range(8):
        a(f"v_pk_mul_f32 {vr(ACC+2*i,2)}, {vr(ACC+2*i,2)}, v[14:15] op_sel_hi:[1,0]")
    for q in range(4):
        a(f"ds_write_b128 v10, {vr(ACC+4*q,4)} offset:{q*1024}")
    a("s_waitcnt lgkmcnt(0)")
    stamp(a, 5)
    a("s_barrier")
    a("s_branch K2_flush" if STAMP else "s_branch K2_end")

    a.label("K2_compute")
    a("s_sub_u32 s12, s28, 4")
    a("s_lshl_b32 s15, s14, 3")
    a("s_add_u32 s15, s15, s12")
    a("s_lshl_b32 s16, s13, 6")
    a("s_add_u32 s16, s16, s15")
    QF = 4
    KF = [8, 12]
    VF = [16, 24]
    P = 32
    O = 40
    CN = 56
    S = [72, 88]
    NC = 104
    a("s_lshl_b32 s19, s16, 10")
    a("v_mov_b32 v108, v2")
    a("s_waitcnt lgkmcnt(0)")
    srd(a, SWS, 4, WS_SIZE)
    a(f"buffer_load_dwordx4 {vr(QF,4)}, v1, {sr(SWS,4)}, s19 offen")
    a("v_and_b32 v2, 27, v0")
    a("v_cmp_eq_u32 s[24:25], 16, v2")
    a("v_mov_b32 v3, 0x3f803f80")
    a("s_mov_b32 s20, 0x0000ffff")
    a("s_mov_b32 s21, 0x0000ffff")
    a(f"v_cndmask_b32 v{VF[0]}, 0, v3, s[24:25]")
    for i in range(1, 16):
        a(f"v_mov_b32 v{VF[0]+i}, v{VF[0]}")
    a("s_mov_b32 s22, 0")
    evmask = 0
    for t_ in [8] + [p_[0] for p_ in PRIO]:
        evmask |= 1 << (t_ // 4)
    a(f"s_mov_b32 s29, {evmask:#x}")
    stamp(a, 1)
    a("s_waitcnt vmcnt(0)")
    a("s_barrier")
    stamp(a, 2)
    if STAMP:
        a("s_waitcnt lgkmcnt(0)")
    a(f"ds_read_b128 {vr(KF[0],4)}, v1")
    a("s_waitcnt lgkmcnt(0)")
    mfma(a, S[1], KF[0], QF, "0")
    a("s_nop 7")
    a("s_nop 3")
    X = S[1]
    a(f"v_max3_f32 v2, v{X}, v{X+1}, v{X+2}")
    for i in range(3, 15, 2):
        a(f"v_max3_f32 v2, v2, v{X+i}, v{X+i+1}")
    a(f"v_max_f32 v2, v2, v{X+15}")
    cross_half(a, "v_max_f32", 2, 3)
    a.label("K2_restart")
    a("v_mov_b32 v3, v1")
    a(f"ds_read_b128 {vr(KF[0],4)}, v3")
    a(f"ds_read_b128 {vr(KF[1],4)}, v3 offset:2048")
    a("s_mov_b64 exec, s[20:21]")
    a(f"ds_read_b128 {vr(VF[0],4)}, v3 offset:1024")
    a(f"ds_read_b128 {vr(VF[0]+4,4)}, v3 offset:1280")
    a("s_mov_b64 exec, -1")
    a(f"v_sub_f32 v{CN}, 0, v2")
    a(f"v_sub_f32 v{CN+1}, 0, v2")
    for i in range(2, 16, 2):
        a(f"v_mov_b64 {vr(CN+i,2)}, {vr(CN,2)}")
    for i in range(0, 16, 2):
        a(f"v_mov_b64 {vr(O+i,2)}, 0")
    a("s_waitcnt lgkmcnt(3)")
    mfma(a, S[0], KF[0], QF, CN)
    a("s_mov_b32 s23, 0")
    a("s_nop 7")
    a("s_nop 3")
    a.raw("    .p2align 3")
    a.label("K2_loop")
    for u in range(UNR):
        X, Y = S[u & 1], S[(u + 1) & 1]
        Kn = KF[(u + 1) & 1]
        Kp = KF[u & 1]
        Vc = VF[u & 1]
        Vn = VF[(u + 1) & 1]
        a(f"ds_read_b128 {vr(Kp,4)}, v3 offset:{(u+2)*2048}")
        a("s_mov_b64 exec, s[20:21]")
        a(f"ds_read_b128 {vr(Vn,4)}, v3 offset:{(u+1)*2048+1024}")
        a(f"ds_read_b128 {vr(Vn+4,4)}, v3 offset:{(u+1)*2048+1280}")
        a("s_mov_b64 exec, -1")
        for i in range(4):
            a(f"v_exp_f32 v{X+i}, v{X+i}")
        a("s_waitcnt lgkmcnt(3)")
        mfma(a, Y, Kn, QF, CN)
        for i in range(4, 8):
            a(f"v_exp_f32 v{X+i}, v{X+i}")
        for i in range(4):
            a(f"v_cvt_pk_bf16_f32 v{P+i}, v{X+2*i}, v{X+2*i+1}")
        for i in range(8, 10):
            a(f"v_exp_f32 v{X+i}, v{X+i}")
        mfma(a, O, Vc, P, O)
        for i in range(10, 16):
            a(f"v_exp_f32 v{X+i}, v{X+i}")
        for i in range(4, 8):
            a(f"v_cvt_pk_bf16_f32 v{P+i}, v{X+2*i}, v{X+2*i+1}")
        if u == UNR - 1:
            a(f"v_add_u32 v3, {UNR*2048}, v3")
            a(f"s_add_u32 s23, s23, {UNR}")
        else:
            a("s_nop 1")
        mfma(a, O, Vc + 4, P + 4, O)
    a("s_lshr_b32 s3, s23, 2")
    a("s_bitcmp1_b32 s29, s3")
    a("s_cbranch_scc0 K2_noev")
    a("s_cmp_lg_u32 s23, 8")
    a("s_cbranch_scc1 K2_e4")
    a("s_barrier")
    a("s_branch K2_loop")
    a.label("K2_e4")
    for k, (tt, pr) in enumerate(PRIO):
        a(f"s_cmp_lg_u32 s23, {tt}")
        a(f"s_cbranch_scc1 K2_p{k}")
        a(f"s_setprio {pr}")
        a.label(f"K2_p{k}")
    a.label("K2_noev")
    a("s_cmp_lt_u32 s23, 64")
    a("s_cbranch_scc1 K2_loop")
    a("s_waitcnt lgkmcnt(0)")
    stamp(a, 3)
    lds_poll(a, 108, NC, C_XCH, 4)
    a(f"ds_read_b64 {vr(NC,2)}, v108 offset:{L_TAG}")
    a("s_waitcnt lgkmcnt(0)")
    a(f"v_readfirstlane_b32 s{TAG}, v{NC}")
    a(f"v_readfirstlane_b32 s{TAG+1}, v{NC+1}")
    a("s_nop 7")
    a("s_nop 1")
    a("s_cmp_lg_u32 s22, 0")
    a("s_cbranch_scc1 K2_fin")
    a(f"v_mov_b32 v{P}, {f32bits(2.0**64):#x}")
    a(f"v_cmp_nlt_f32 s[24:25], v{O+8}, v{P}")
    a(f"v_mov_b32 v{P+1}, 0x7f800000")
    for i in range(8):
        a(f"v_cmp_nlt_f32 s[26:27], abs(v{O+i}), v{P+1}")
        a("s_or_b64 s[24:25], s[24:25], s[26:27]")
    a("s_cmp_eq_u64 s[24:25], 0")
    a("s_cbranch_scc1 K2_fin")
    a("v_mov_b32 v3, v1")
    a("v_mov_b32 v2, 0xff800000")
    a("s_mov_b32 s23, 0")
    a.label("K2_maxloop")
    a(f"ds_read_b128 {vr(KF[0],4)}, v3")
    a("s_waitcnt lgkmcnt(0)")
    mfma(a, S[0], KF[0], QF, "0")
    a("v_add_u32 v3, 2048, v3")
    a("s_add_u32 s23, s23, 1")
    a("s_nop 7")
    a("s_nop 3")
    for i in range(0, 16, 2):
        a(f"v_max3_f32 v2, v2, v{S[0]+i}, v{S[0]+i+1}")
    a("s_cmp_lt_u32 s23, 64")
    a("s_cbranch_scc1 K2_maxloop")
    cross_half(a, "v_max_f32", 2, 3)
    a("s_mov_b32 s22, 1")
    a("s_mov_b32 s29, 0")
    a("s_branch K2_restart")
    a.label("K2_fin")
    a(f"v_rcp_f32 v2, v{O+8}")
    a("s_lshl_b32 s19, s16, 10")
    for i in range(4):
        a(f"v_pk_mul_f32 {vr(O+2*i,2)}, {vr(O+2*i,2)}, v[2:3] op_sel_hi:[1,0]")
    for i in range(4):
        a(f"v_cvt_pk_bf16_f32 v{P+i}, v{O+2*i}, v{O+2*i+1}")
    a(f"s_add_u32 s19, s19, {WS_O + 2*MB}")
    a(f"buffer_store_dwordx4 {vr(P,4)}, v1, {sr(SWS,4)}, s19 offen sc1")
    a("v_mov_b32 v2, v108")
    a("s_lshl_b32 s21, s12, 14")
    proj_addr(a, 12, 21, VD, VW0, VW1, VO)
    srd(a, SWO, 30, 512 * 512 * 2)
    srd(a, SOUT, 56, 2 * MB)
    a("s_waitcnt vmcnt(0)")
    lds_add(a, 2, 3, C_OB, rtn=True)
    a("s_cmp_lg_u32 s3, 7")
    a("s_cbranch_scc1 K2_c1")
    a("s_lshl_b32 s19, s14, 8")
    a("s_lshl_b32 s3, s13, 3")
    a("s_add_u32 s19, s19, s3")
    a(f"s_add_u32 s19, s19, {WS_FL + 2048}")
    flag_write(a, 10, 19, SWS)
    a.label("K2_c1")
    stamp(a, 4)
    stamp(a, 5)
    a("s_cmp_ge_u32 s12, 4")
    a("s_cbranch_scc1 K2_flush" if STAMP else "s_cbranch_scc1 K2_end")
    a("s_setprio 3")
    a("s_lshl_b32 s22, s12, 17")
    a("s_lshl_b32 s3, s37, 7")
    a("s_add_u32 s22, s22, s3")
    a("s_lshl_b32 s23, s12, 19")
    a("s_lshl_b32 s3, s36, 11")
    a("s_add_u32 s23, s23, s3")
    a(f"s_add_u32 s23, s23, {WS_O + 2*MB}")
    a("v_and_b32 v12, 31, v0")
    a("s_lshl_b32 s3, s36, 6")
    a("s_lshr_b32 s19, s12, 1")
    a("s_lshl_b32 s19, s19, 5")
    a("s_add_u32 s3, s3, s19")
    a("v_add_u32 v7, s3, v12")
    a("v_lshlrev_b32 v12, 2, v7")
    a(f"v_add_u32 v12, {WS_G}, v12")
    a(f"buffer_load_dword v14, v12, {sr(SWS,4)}, 0 offen sc1")
    for i in range(0, 64, 2):
        a(f"v_mov_b64 {vr(ACC+i,2)}, 0")
    lds_poll(a, 2, 3, C_OB, 8)
    for t in range(16):
        a(f"s_add_u32 m0, s21, {t*1024}")
        a(f"s_add_u32 s3, s22, {t*8192}")
        a(f"buffer_load_dwordx4 v{VD}, {sr(SWO,4)}, s3 offen lds")
    a("s_cmp_lg_u32 s12, 0")
    a("s_cbranch_scc1 K2_b2")
    a("s_lshl_b32 s19, s38, 8")
    a(f"s_add_u32 s19, s19, {WS_FL + 2048}")
    flag_poll(a, 10, 19, SWS)
    lds_add(a, 2, 3, F_3B)
    a.label("K2_b2")
    lds_poll(a, 2, 3, F_3B, 1)
    stamp(a, 5)
    OFB = 80
    WFB = 144
    for t in range(8):
        a(f"s_add_u32 s3, s23, {t*65536}")
        a(f"buffer_load_dwordx4 {vr(OFB+8*t,4)}, v{VO}, {sr(SWS,4)}, s3 offen sc1")
        a(f"buffer_load_dwordx4 {vr(OFB+8*t+4,4)}, v{VO+1}, {sr(SWS,4)}, s3 offen sc1")
    a("s_waitcnt vmcnt(16)")
    a("v_sub_f32 v14, 1.0, v14")
    a("v_cvt_pk_bf16_f32 v14, v14, v14")
    a("v_lshlrev_b32 v14, 16, v14")

    def wread(t):
        W = WFB + 8 * (t & 1)
        a(f"ds_read_b64_tr_b16 {vr(W,2)}, v{VW0} offset:{t*2048}")
        a(f"ds_read_b64_tr_b16 {vr(W+2,2)}, v{VW0} offset:{t*2048+1024}")
        a(f"ds_read_b64_tr_b16 {vr(W+4,2)}, v{VW1} offset:{t*2048}")
        a(f"ds_read_b64_tr_b16 {vr(W+6,2)}, v{VW1} offset:{t*2048+1024}")
    wread(0)
    for t in range(8):
        W = WFB + 8 * (t & 1)
        sl = OFB + 8 * t
        if t < 7:
            wread(t + 1)
            a(f"s_waitcnt vmcnt({2*(7-t)}) lgkmcnt(4)")
        else:
            a("s_waitcnt vmcnt(0) lgkmcnt(0)")
        mfma(a, ACC + 16, W + 4, sl, ACC + 16)
        mfma(a, ACC + 32, W, sl + 4, ACC + 32)
        mfma(a, ACC + 48, W + 4, sl + 4, ACC + 48)
        mfma(a, ACC, W, sl, ACC)
    a("v_add_u32 v10, s21, v1")
    a("s_nop 7")
    for j in range(1, 4):
        for q in range(4):
            a(f"ds_write_b128 v10, {vr(ACC+16*j+4*q,4)} offset:{j*4096+q*1024}")
    a("v_lshlrev_b32 v7, 10, v7")
    a("v_lshrrev_b32 v12, 5, v0")
    a("v_lshlrev_b32 v12, 4, v12")
    a("v_add_u32 v7, v7, v12")
    a("s_lshl_b32 s19, s37, 7")
    a("s_and_b32 s3, s12, 1")
    a("s_lshl_b32 s3, s3, 6")
    a("s_add_u32 s19, s19, s3")
    a("v_add_u32 v12, 65536, v10")
    a("s_waitcnt lgkmcnt(0)")
    a("s_barrier")
    for j in range(1, 4):
        a(f"v_xor_b32 v11, {j*16384}, v10")
        for q in range(4):
            a(f"ds_read_b128 {vr(ACC+16*j+4*q,4)}, v11 offset:{j*4096+q*1024}")
    AF = 80
    a("s_waitcnt lgkmcnt(8)")
    for q in range(4):
        a(f"ds_read_b128 {vr(AF+4*q,4)}, v12 offset:{q*1024}")
    a("s_waitcnt lgkmcnt(4)")
    for i in range(8):
        a(f"v_pk_add_f32 {vr(ACC+2*i,2)}, {vr(ACC+2*i,2)}, {vr(ACC+16+2*i,2)}")
        a(f"v_pk_add_f32 {vr(ACC+32+2*i,2)}, {vr(ACC+32+2*i,2)}, {vr(ACC+48+2*i,2)}")
    for i in range(8):
        a(f"v_pk_add_f32 {vr(ACC+2*i,2)}, {vr(ACC+2*i,2)}, {vr(ACC+32+2*i,2)}")
    a("s_waitcnt lgkmcnt(0)")
    for i in range(8):
        a(f"v_pk_fma_f32 {vr(ACC+2*i,2)}, {vr(ACC+2*i,2)}, v[14:15], {vr(AF+2*i,2)} op_sel_hi:[1,0,1]")
    T = 96
    for i in range(8):
        a(f"v_cvt_pk_bf16_f32 v{T+i}, v{ACC+2*i}, v{ACC+2*i+1}")
    a("s_nop 1")
    a(f"v_permlane32_swap_b32 v{T}, v{T+2}")
    a(f"v_permlane32_swap_b32 v{T+1}, v{T+3}")
    a(f"v_permlane32_swap_b32 v{T+4}, v{T+6}")
    a(f"v_permlane32_swap_b32 v{T+5}, v{T+7}")
    a(f"buffer_store_dwordx4 {vr(T,4)}, v7, {sr(SOUT,4)}, s19 offen")
    a(f"buffer_store_dwordx4 {vr(T+4,4)}, v7, {sr(SOUT,4)}, s19 offen offset:32")
    if STAMP:
        a.label("K2_flush")
        a("s_waitcnt vmcnt(0)")
        stamp(a, 6)
        stamp_flush(a, 1, 8, 28, SWS)
        if DBG:
            DW = int(os.environ.get("DW", "0"))
            a(f"s_cmp_lg_u32 s2, {DW}")
            a("s_cbranch_scc1 K2_end")
            a("s_cmp_lg_u32 s28, 4")
            a("s_cbranch_scc1 K2_end")
            srd(a, SDBG, 58, 256)
            a("s_mov_b64 exec, 0x7f")
            a("v_lshlrev_b32 v1, 2, v0")
            a(f"s_mov_b32 s3, {WS_STAMP + DW*1024 + 5*64}")
            a(f"buffer_load_dword v2, v1, {sr(SWS,4)}, s3 offen")
            a("s_waitcnt vmcnt(0)")
            a(f"buffer_store_dword v2, v1, {sr(SDBG,4)}, 0 offen offset:8")
            a("s_mov_b64 exec, 1")
            a("v_mov_b32 v1, 0")
            for i in range(7):
                a(f"v_mov_b32 v2, s{STB+2*i}")
                a(f"buffer_store_dword v2, v1, {sr(SDBG,4)}, 0 offen offset:{36+4*i}")
                a("s_nop 1")
    a.label("K2_end")
    a("s_endpgm")
    return kd(kn, 160, 64)


def main():
    a = Asm()
    head = """; gated mix of hedgehog linear attention and softmax attention (generated by dev/gen2.py)
; @launch kernel=qkv_kernel grid=(256,1,1) block=(512,1,1) lds=124928
; @launch kernel=attnproj_kernel grid=(256,1,1) block=(768,1,1) lds=163840
.amdgcn_target "amdgcn-amd-amdhsa--gfx950"
.text
"""
    kds = [gen_k1(a), gen_k23(a)]
    out = head + a.text() + '.section .rodata,"a"\n' + "".join(kds)
    path = sys.argv[1] if len(sys.argv) > 1 else f"f23.s"
    open(path, "w").write(out)
    print("wrote", path, len(out))


if __name__ == "__main__":
    main()
```

```python
import sys, os
import gen as G
G.STB = 80
from gen import *
STB = 80
import gen2 as G2
from gen2 import lds_poll, lds_add, flag_write, flag_poll, proj_addr, uid, TAG

G2.FSH = 7
WS_FL = 17 * MB
FL3A, FL3B, FL1, FL2, FLQ = [WS_FL + 32768 * i for i in range(5)]
SP = 131072
PHL = SP
XCH = SP + 2048
CNTS = SP + 4096
RING = SP + 8192
RED = 65536
(C_XCH, C_OA, F_3A, C_OB, F_3B, C_AR, L_TAG, _, C_B, C_A, C_RED1, C_RED2, F_F1, C_S0, C_S1, F_F2, C_H, C_Q, F_Q, C_S2) = [4 * i for i in range(20)]
P_X, P_WA, P_PHI, P_WOA, P_WB, P_WOB, P_GW = 64, 66, 68, 70, 74, 76, 78
P_OUT, P_DBG, P_WS = 56, 58, 60


LS = int(os.environ.get('LS', '24'))
LS2 = int(os.environ.get('LS2', '12'))


def gen_fused(a):
    kn = NAME + "_kernel"
    kernel_begin(a, kn)
    STAGE = 40960
    SWS, SX, SW0, SW1, SW2, SPHI, SGW = 8, 12, 16, 20, 24, 40, 44
    SWO, SOUT, SDBG = 40, 48, 52
    a("s_cmp_ge_u32 s2, 256")
    a("s_cbranch_scc1 K_end")
    stamp(a, 0)
    if STAMP:
        a(f"s_memrealtime s[{STB+14}:{STB+15}]")
    a("s_load_dwordx16 s[64:79], s[0:1], 0")
    a("s_load_dwordx4 s[56:59], s[0:1], 64")
    a("s_load_dwordx2 s[60:61], s[0:1], 80")
    a("v_lshrrev_b32 v1, 6, v0")
    a("v_and_b32 v0, 63, v0")
    a("v_readfirstlane_b32 s28, v1")
    a("s_and_b32 s3, s2, 1")
    a("s_lshl_b32 s33, s3, 3")
    a("s_lshr_b32 s3, s2, 3")
    a("s_and_b32 s39, s3, 7")
    a("s_add_u32 s33, s33, s39")
    a("s_lshr_b32 s36, s3, 3")
    a("s_and_b32 s4, s2, 6")
    a("s_lshl_b32 s4, s4, 1")
    a("s_add_u32 s36, s36, s4")
    a("s_and_b32 s37, s36, 7")
    a("s_lshr_b32 s38, s36, 3")
    a("s_cmp_ge_u32 s28, 4")
    a("s_cbranch_scc1 P1_compute")

    a("v_lshrrev_b32 v5, 3, v0")
    a("s_lshl_b32 s3, s28, 3")
    a("v_add_u32 v6, s3, v5")
    a("v_lshlrev_b32 v6, 10, v6")
    a("v_lshrrev_b32 v3, 4, v0")
    a("s_and_b32 s3, s28, 1")
    a("s_lshl_b32 s3, s3, 2")
    a("v_add_u32 v3, s3, v3")
    a("v_and_b32 v4, 7, v0")
    a("v_xor_b32 v3, v3, v4")
    a("v_lshlrev_b32 v3, 4, v3")
    a("v_add_u32 v6, v6, v3")
    a("s_lshl_b32 s3, s28, 4")
    a("v_add_u32 v7, s3, v5")
    a("v_mul_u32_u24 v7, 3072, v7")
    a("v_and_b32 v5, 16, v0")
    a("v_lshrrev_b32 v5, 2, v5")
    a("v_xor_b32 v4, v4, v5")
    a("v_lshlrev_b32 v4, 4, v4")
    a("v_add_u32 v7, v7, v4")
    a("v_lshlrev_b32 v1, 4, v0")
    a(f"v_mov_b32 v2, {CNTS}")
    a("v_lshlrev_b32 v3, 2, v0")
    a("v_add_u32 v3, v2, v3")
    a("v_mov_b32 v4, 0")
    a("ds_write_b32 v3, v4")
    a("s_lshl_b32 s48, s33, 17")
    a("s_lshl_b32 s3, s37, 7")
    a("s_cmp_eq_u32 s38, 0")
    a("s_cselect_b32 s49, 1024, 0")
    a("s_cselect_b32 s29, 2048, 0")
    a("s_max_u32 s30, s29, 1024")
    a("s_add_u32 s49, s49, s3")
    a("s_add_u32 s29, s29, s3")
    a("s_add_u32 s30, s30, s3")
    a("s_lshl_b32 s50, s28, 10")
    a("s_lshl_b32 s31, s28, 11")
    a("s_mov_b32 s51, 0")
    a("s_add_u32 s39, s39, s36")
    a("s_and_b32 s39, s39, 3")
    a("s_lshl_b32 s39, s39, 1")
    a("s_waitcnt lgkmcnt(0)")
    srd(a, SX, P_X, 2 * MB)
    srd(a, SW0, P_WA, 512 * 1536 * 2)
    srd(a, SW2, P_WB, 512 * 1536 * 2)
    a("s_cmp_eq_u32 s38, 0")
    a(f"s_cselect_b32 s4, s{P_WA}, s{P_WB}")
    a(f"s_cselect_b32 s5, s{P_WA+1}, s{P_WB+1}")
    srd(a, SW1, 4, 512 * 1536 * 2)
    srd(a, SDBG, P_DBG, 256)
    a("s_cmp_ge_u32 s28, 2")
    a("s_cbranch_scc1 P1_nophi")
    srd(a, SPHI, P_PHI, 32 * 16 * 16 * 2)
    a(f"s_add_u32 m0, s50, {PHL}")
    a("s_lshl_b32 s6, s37, 11")
    a("s_add_u32 s6, s6, s50")
    a(f"buffer_load_dwordx4 v1, {sr(SPHI,4)}, s6 offen lds")
    a("s_branch P1_ld_loop")
    a.label("P1_nophi")
    a("s_cmp_lg_u32 s2, 0")
    a("s_cbranch_scc1 P1_ld_loop")
    a("s_cmp_lg_u32 s28, 3")
    a("s_cbranch_scc1 P1_ld_loop")
    a("s_memrealtime s[6:7]")
    a("s_waitcnt lgkmcnt(0)")
    a("s_or_b32 s6, s6, 1")
    a("v_mov_b32 v10, s6")
    a("v_mov_b32 v11, s7")
    a("s_mov_b64 exec, 1")
    a(f"buffer_store_dwordx2 v[10:11], off, {sr(SDBG,4)}, 0 sc1")
    a("s_mov_b64 exec, -1")
    a.label("P1_ld_loop")
    a("s_lshl_b32 s6, s39, 7")
    a("s_add_u32 s6, s6, s48")
    a(f"s_mul_i32 s7, s39, {64*3072}")
    for ii in range(4):
        a(f"s_add_u32 m0, s50, {ii*4096}")
        a(f"s_add_u32 s32, s6, {ii*32768}")
        a(f"buffer_load_dwordx4 v6, {sr(SX,4)}, s32 offen lds")
    for j, (S, so) in enumerate(((SW0, 49), (SW1, 29), (SW2, 30))):
        a(f"s_add_u32 m0, s31, {16384 + j*8192}")
        a(f"s_add_u32 s32, s{so}, s7")
        a(f"buffer_load_dwordx4 v7, {sr(S,4)}, s32 offen lds")
        a(f"s_add_u32 m0, s31, {16384 + j*8192 + 1024}")
        a(f"s_add_u32 s32, s32, {8*3072}")
        a(f"buffer_load_dwordx4 v7, {sr(S,4)}, s32 offen lds")
    a("s_add_u32 s39, s39, 1")
    a("s_and_b32 s39, s39, 7")
    a(f"s_add_u32 s50, s50, {STAGE}")
    a(f"s_add_u32 s31, s31, {STAGE}")
    a(f"s_cmp_lt_u32 s50, {3*STAGE}")
    a("s_cbranch_scc1 P1_ld_nowrap")
    a(f"s_sub_u32 s50, s50, {3*STAGE}")
    a(f"s_sub_u32 s31, s31, {3*STAGE}")
    a.label("P1_ld_nowrap")
    a("s_add_u32 s51, s51, 1")
    a("s_cmp_eq_u32 s51, 1")
    a("s_cbranch_scc1 P1_ld_loop")
    a("s_waitcnt vmcnt(10)")
    a("s_barrier")
    a("s_cmp_lt_u32 s51, 8")
    a("s_cbranch_scc1 P1_ld_loop")
    srd(a, SWS, P_WS, WS_SIZE)
    a("s_waitcnt vmcnt(0)")
    stamp(a, 1)
    a("s_barrier")
    a("s_cmp_lg_u32 s28, 3")
    a("s_cbranch_scc1 P1_notag")
    a("s_mov_b32 s3, 0")
    a.label("P1_tagpoll")
    a(f"buffer_load_dwordx2 v[10:11], off, {sr(SDBG,4)}, 0 sc1")
    a("s_add_u32 s3, s3, 1")
    a("s_waitcnt vmcnt(0)")
    a("v_cmp_eq_u32 vcc, 0, v10")
    a("s_cmp_gt_u32 s3, 0x400000")
    a("s_cbranch_scc1 P1_tagdone")
    a("s_cbranch_vccnz P1_tagpoll")
    a.label("P1_tagdone")
    a(f"ds_write_b64 v2, v[10:11] offset:{L_TAG}")
    a.label("P1_notag")
    a("s_lshl_b32 s62, s37, 12")
    a("s_lshl_b32 s3, s33, 8")
    a("s_add_u32 s62, s62, s3")
    a("s_lshl_b32 s3, s38, 7")
    a("s_add_u32 s62, s62, s3")
    a(f"s_add_u32 s62, s62, {FL2}")
    a("s_waitcnt lgkmcnt(0)")
    a("s_barrier")
    a(f"ds_read_b64 v[10:11], v2 offset:{L_TAG}")
    a("s_setprio 3")
    a("s_waitcnt lgkmcnt(0)")
    a(f"v_readfirstlane_b32 s{TAG}, v10")
    a(f"v_readfirstlane_b32 s{TAG+1}, v11")
    a("s_lshl_b32 s3, s33, 7")
    a("s_lshl_b32 s4, s36, 3")
    a("s_add_u32 s33, s3, s4")
    a("s_mov_b32 s63, s38")
    a("s_and_b32 s38, s2, 7")
    a("s_lshl_b32 s13, s38, 2")
    a("s_lshr_b32 s3, s2, 3")
    a("s_and_b32 s36, s3, 3")
    a("s_lshr_b32 s37, s3, 2")
    a("s_add_u32 s13, s13, s36")
    a("s_mov_b32 s36, s13")
    a("s_lshr_b32 s14, s2, 5")
    a("s_cmp_lg_u32 s28, 2")
    a("s_cbranch_scc1 H_nf1")
    a("s_lshl_b32 s19, s38, 12")
    a(f"s_add_u32 s19, s19, {FL1}")
    lds_poll(a, 2, 3, C_B, 4, sleep=2)
    flag_poll(a, 10, 19, SWS, sleep=2)
    lds_add(a, 2, 3, F_F1)
    a.label("H_nf1")
    a("s_cmp_lg_u32 s28, 3")
    a("s_cbranch_scc1 H_nfq")
    a("s_lshl_b32 s19, s38, 11")
    a("s_lshl_b32 s3, s14, 8")
    a("s_add_u32 s19, s19, s3")
    a(f"s_add_u32 s19, s19, {FLQ}")
    lds_poll(a, 2, 3, C_B, 4, sleep=2)
    flag_poll(a, 10, 19, SWS, mask=1, sleep=4)
    lds_add(a, 2, 3, F_Q)
    a.label("H_nfq")
    lds_poll(a, 2, 3, F_F1, 1, sleep=2)
    stamp(a, 2)
    a("s_lshl_b32 s18, s28, 10")
    a("s_lshl_b32 s17, s13, 17")
    a(f"s_add_u32 s17, s17, {WS_KVB}")
    a("s_add_u32 s17, s17, s18")
    a("v_add_u32 v4, s18, v1")
    R = [16, 48]

    def kv_issue(Rb):
        for i in range(8):
            a(f"s_add_u32 s19, s17, {i*4096}")
            a(f"buffer_load_dwordx4 {vr(Rb+4*i,4)}, v1, {sr(SWS,4)}, s19 offen sc1")
        a("s_add_u32 s17, s17, 32768")

    def kv_write(Rb, later, first=False):
        for i in range(8):
            a(f"s_waitcnt vmcnt({later + 7 - i})")
            a(f"ds_write_b128 v4, {vr(Rb+4*i,4)} offset:{i*4096}")
            if first and i == 4:
                a("s_waitcnt lgkmcnt(0)")
                lds_add(a, 2, 3, C_S0)
        a("v_add_u32 v4, 32768, v4")
        a("s_waitcnt lgkmcnt(0)")
    kv_issue(R[0])
    kv_write(R[0], 0, first=True)
    kv_issue(R[1])
    kv_issue(R[0])
    kv_write(R[1], 8)
    lds_add(a, 2, 3, C_S1)
    kv_issue(R[1])
    a("s_cmp_lg_u32 s63, 0")
    a("s_cbranch_scc1 H_nored")
    lds_poll(a, 2, 3, C_RED2, 8)
    a.label("H_nored")
    kv_write(R[0], 8)
    kv_write(R[1], 0)
    lds_add(a, 2, 3, C_S2)
    stamp(a, 3)
    a("s_cmp_lg_u32 s28, 0")
    a("s_cbranch_scc1 H_nogate")
    srd(a, SGW, P_GW, 1024)
    srd(a, 24, P_X, 2 * MB)
    a("v_lshrrev_b32 v8, 3, v0")
    a("v_add_u32 v8, s33, v8")
    a("v_and_b32 v3, 7, v0")
    a("v_lshlrev_b32 v3, 4, v3")
    a("v_lshlrev_b32 v4, 10, v8")
    a("v_add_u32 v4, v4, v3")
    for j in range(8):
        a(f"buffer_load_dwordx4 {vr(16+4*j,4)}, v4, s[24:27], 0 offen offset:{j*128}")
        a(f"buffer_load_dwordx4 {vr(48+4*j,4)}, v3, {sr(SGW,4)}, 0 offen offset:{j*128}")
    a("v_mov_b32 v5, 0")
    a("v_mov_b32 v6, 0")
    a("s_waitcnt vmcnt(0)")
    for j in range(16):
        a(f"v_dot2_f32_bf16 v5, v{16+2*j}, v{48+2*j}, v5")
        a(f"v_dot2_f32_bf16 v6, v{17+2*j}, v{49+2*j}, v6")
    a("s_nop 3")
    a("v_add_f32 v5, v5, v6")
    for off in (0x041F, 0x081F, 0x101F):
        a(f"ds_swizzle_b32 v6, v5 offset:{off}")
        a("s_waitcnt lgkmcnt(0)")
        a("v_add_f32 v5, v5, v6")
    a("v_cvt_pk_bf16_f32 v5, v5, v5")
    a("v_lshlrev_b32 v5, 16, v5")
    a(f"v_mul_f32 v5, {f32bits(-LOG2E):#x}, v5")
    a("v_exp_f32 v5, v5")
    a("s_nop 0")
    a("v_add_f32 v5, 1.0, v5")
    a("v_rcp_f32 v5, v5")
    a("s_nop 0")
    a("v_cvt_pk_bf16_f32 v5, v5, v5")
    a("v_lshlrev_b32 v5, 16, v5")
    a("v_lshlrev_b32 v8, 2, v8")
    a(f"v_add_u32 v8, {WS_G}, v8")
    a(f"buffer_store_dword v5, v8, {sr(SWS,4)}, 0 offen sc1")
    a("s_waitcnt vmcnt(0)")
    lds_add(a, 2, 3, C_A, rtn=True)
    a("s_cmp_lg_u32 s3, 8")
    a("s_cbranch_scc1 H_nogate")
    flag_write(a, 10, 62, SWS)
    a.label("H_nogate")
    KP = 16
    PH = 80
    a("s_lshl_b32 s19, s13, 3")
    a("s_lshl_b32 s21, s28, 1")
    a("s_add_u32 s19, s19, s21")
    a("s_lshl_b32 s24, s19, 8")
    a(f"s_add_u32 s24, s24, {WS_KVP}")
    a("s_lshl_b32 s25, s19, 4")
    a(f"s_add_u32 s25, s25, {WS_ZP}")
    a("v_lshrrev_b32 v4, 5, v0")
    a("v_and_b32 v5, 15, v0")
    a("v_lshlrev_b32 v6, 7, v4")
    a("v_lshlrev_b32 v5, 3, v5")
    a("v_add3_u32 v6, v6, v5, s24")
    a("v_lshlrev_b32 v4, 3, v4")
    a("v_add_u32 v4, s25, v4")
    a("v_and_b32 v5, 16, v0")
    a("v_cmp_ne_u32 s[24:25], 0, v5")
    a("v_mov_b32 v7, 4096")
    a("v_mov_b32 v8, 65536")
    a("v_mov_b32 v9, 256")
    a("v_cndmask_b32 v6, v6, v4, s[24:25]")
    a("v_cndmask_b32 v7, v8, v7, s[24:25]")
    a("v_cndmask_b32 v9, v9, 16, s[24:25]")
    a("v_add_u32 v8, v6, v9")
    a("s_cmp_lg_u32 s28, 0")
    a("s_cbranch_scc1 H_nf2")
    a("s_lshl_b32 s19, s38, 12")
    a(f"s_add_u32 s19, s19, {FL2}")
    lds_poll(a, 2, 3, C_A, 9, sleep=LS)
    flag_poll(a, 10, 19, SWS, sleep=LS)
    lds_add(a, 2, 3, F_F2)
    a.label("H_nf2")
    lds_poll(a, 2, 3, F_F2, 1, sleep=LS)
    for rb in range(16):
        a(f"buffer_load_dwordx2 {vr(KP+2*rb,2)}, v6, {sr(SWS,4)}, 0 offen sc1")
        a(f"buffer_load_dwordx2 {vr(KP+32+2*rb,2)}, v8, {sr(SWS,4)}, 0 offen sc1")
        if rb < 15:
            a("v_add_u32 v6, v6, v7")
            a("v_add_u32 v8, v8, v7")
    a("s_lshl_b32 s15, s14, 3")
    a("s_add_u32 s15, s15, s21")
    a("s_lshl_b32 s16, s13, 6")
    a("s_add_u32 s16, s16, s15")
    a("s_lshl_b32 s19, s16, 11")
    a(f"s_add_u32 s19, s19, {WS_PHIQ}")
    for k in range(4):
        a(f"buffer_load_dwordx4 {vr(PH+4*k,4)}, v1, {sr(SWS,4)}, s19 offen offset:{k*1024} sc1")
    a("v_lshlrev_b32 v4, 5, v0")
    a(f"v_add_u32 v4, {XCH}, v4")
    a("s_lshl_b32 s3, s28, 3")
    a("v_add_u32 v5, s3, v4")
    a("s_waitcnt vmcnt(4)")
    for st in (8, 4, 2, 1):
        for i in range(st):
            for g in range(2):
                b = KP + 32 * g
                a(f"v_pk_add_f32 {vr(b+2*i,2)}, {vr(b+2*i,2)}, {vr(b+2*(i+st),2)}")
    a(f"v_cvt_pk_bf16_f32 v{KP}, v{KP}, v{KP+1}")
    a(f"v_cvt_pk_bf16_f32 v{KP+1}, v{KP+32}, v{KP+33}")
    a(f"ds_write_b64 v5, {vr(KP,2)}")
    a("s_waitcnt lgkmcnt(0)")
    lds_add(a, 2, 3, C_XCH)
    lds_poll(a, 2, 3, C_XCH, 4)
    a(f"ds_read_b128 {vr(KP,4)}, v4")
    a(f"ds_read_b128 {vr(KP+4,4)}, v4 offset:16")
    D = [32, 48]
    a("s_waitcnt vmcnt(0) lgkmcnt(0)")
    for k in range(2):
        mfma(a, D[k], KP, PH + 8 * k, "0")
        mfma(a, D[k], KP + 4, PH + 8 * k + 4, D[k])
    a("s_lshl_b32 s20, s16, 10")
    a(f"s_add_u32 s20, s20, {WS_O}")
    srd(a, SWO, P_WOA, 512 * 512 * 2)
    a("s_nop 5")
    for k in range(2):
        a(f"v_add_f32 v{10+2*k}, {f32bits(1e-6):#x}, v{D[k]+8}")
    for k in range(2):
        a(f"v_rcp_f32 v{10+2*k}, v{10+2*k}")
    a("s_nop 0")
    for k in range(2):
        for i in range(4):
            a(f"v_pk_mul_f32 {vr(D[k]+2*i,2)}, {vr(D[k]+2*i,2)}, {vr(10+2*k,2)} op_sel_hi:[1,0]")
    for k in range(2):
        for i in range(4):
            a(f"v_cvt_pk_bf16_f32 v{64+4*k+i}, v{D[k]+2*i}, v{D[k]+2*i+1}")
        a(f"buffer_store_dwordx4 {vr(64+4*k,4)}, v1, {sr(SWS,4)}, s20 offen offset:{k*1024} sc1")
    a(f"s_mul_i32 s21, s28, 6144")
    a(f"s_add_u32 s21, s21, {RING}")
    VD, VW0, VW1, VO = 4, 5, 6, 8
    proj_addr(a, 28, 21, VD, VW0, VW1, VO)
    a("s_lshl_b32 s22, s28, 17")
    a("s_lshl_b32 s3, s37, 7")
    a("s_add_u32 s22, s22, s3")
    a("s_lshl_b32 s23, s28, 19")
    a("s_lshl_b32 s3, s36, 11")
    a("s_add_u32 s23, s23, s3")
    a(f"s_add_u32 s23, s23, {WS_O}")
    a("s_waitcnt vmcnt(0)")
    lds_add(a, 2, 3, C_OA, rtn=True)
    a("s_cmp_lg_u32 s3, 3")
    a("s_cbranch_scc1 H_h1")
    a("s_lshl_b32 s19, s14, 12")
    a("s_lshl_b32 s3, s13, 7")
    a("s_add_u32 s19, s19, s3")
    a(f"s_add_u32 s19, s19, {FL3A}")
    flag_write(a, 10, 19, SWS)
    a.label("H_h1")
    a("s_cmp_lg_u32 s28, 0")
    a("s_cbranch_scc1 H_h2")
    a("s_lshl_b32 s19, s38, 12")
    a(f"s_add_u32 s19, s19, {FL3A}")
    flag_poll(a, 10, 19, SWS, sleep=LS)
    lds_add(a, 2, 3, F_3A)
    a.label("H_h2")
    lds_poll(a, 2, 3, F_3A, 1, sleep=LS)
    ACC = 16
    OF = 80
    WF = 104

    def issueA(t):
        sl = OF + 8 * (t % 3)
        a(f"s_add_u32 m0, s21, {(t%3)*2048}")
        a(f"s_add_u32 s3, s22, {t*16384}")
        a(f"buffer_load_dwordx4 v{VD}, {sr(SWO,4)}, s3 offen lds")
        a(f"s_add_u32 m0, s21, {(t%3)*2048+1024}")
        a(f"s_add_u32 s3, s22, {t*16384+8192}")
        a(f"buffer_load_dwordx4 v{VD}, {sr(SWO,4)}, s3 offen lds")
        a(f"s_add_u32 s3, s23, {t*65536}")
        a(f"buffer_load_dwordx4 {vr(sl,4)}, v{VO}, {sr(SWS,4)}, s3 offen sc1")
        a(f"buffer_load_dwordx4 {vr(sl+4,4)}, v{VO+1}, {sr(SWS,4)}, s3 offen sc1")

    a("v_and_b32 v12, 31, v0")
    a("s_lshl_b32 s3, s36, 6")
    a("s_lshr_b32 s19, s28, 1")
    a("s_lshl_b32 s19, s19, 5")
    a("s_add_u32 s3, s3, s19")
    a("v_add_u32 v12, s3, v12")
    a("v_lshlrev_b32 v12, 2, v12")
    a(f"v_add_u32 v12, {WS_G}, v12")
    a(f"buffer_load_dword v14, v12, {sr(SWS,4)}, 0 offen sc1")
    issueA(0)
    issueA(1)
    for i in range(0, 64, 2):
        a(f"v_mov_b64 {vr(ACC+i,2)}, 0")
    for t in range(8):
        if t + 2 < 8:
            issueA(t + 2)
            a("s_waitcnt vmcnt(8)")
        else:
            a(f"s_waitcnt vmcnt({4*(7-t)})")
        o = (t % 3) * 2048
        a(f"ds_read_b64_tr_b16 {vr(WF,2)}, v{VW0} offset:{o}")
        a(f"ds_read_b64_tr_b16 {vr(WF+2,2)}, v{VW0} offset:{o+1024}")
        a(f"ds_read_b64_tr_b16 {vr(WF+4,2)}, v{VW1} offset:{o}")
        a(f"ds_read_b64_tr_b16 {vr(WF+6,2)}, v{VW1} offset:{o+1024}")
        sl = OF + 8 * (t % 3)
        a("s_waitcnt lgkmcnt(0)")
        mfma(a, ACC, WF, sl, ACC)
        mfma(a, ACC + 32, WF, sl + 4, ACC + 32)
        mfma(a, ACC + 16, WF + 4, sl, ACC + 16)
        mfma(a, ACC + 48, WF + 4, sl + 4, ACC + 48)
    stamp(a, 4)
    srd(a, 44, P_WOB, 512 * 512 * 2)
    a("s_lshr_b32 s3, s2, 3")
    a("s_lshl_b32 s3, s3, 2")
    a("s_add_u32 s3, s3, s28")
    a("s_lshl_b32 s3, s3, 12")
    for i in range(4):
        a(f"buffer_load_dwordx4 {vr(112+4*i,4)}, v1, s[44:47], s3 offen offset:{i*1024}")
    a("s_setprio 0")
    lds_poll(a, 2, 3, C_OB, 8, sleep=LS2)
    a("s_setprio 3")
    a("s_lshl_b32 s19, s28, 14")
    a("s_add_u32 s19, s19, 65536")
    a("v_add_u32 v10, s19, v1")
    for j in range(1, 4):
        for q in range(4):
            a(f"ds_write_b128 v10, {vr(ACC+16*j+4*q,4)} offset:{j*4096+q*1024}")
    a("s_waitcnt lgkmcnt(0)")
    lds_add(a, 2, 3, C_AR)
    lds_poll(a, 2, 3, C_AR, 4)
    for j in range(1, 4):
        a(f"v_xor_b32 v11, {j*16384}, v10")
        for q in range(4):
            a(f"ds_read_b128 {vr(ACC+16*j+4*q,4)}, v11 offset:{j*4096+q*1024}")
    a("s_waitcnt lgkmcnt(0)")
    for i in range(8):
        a(f"v_pk_add_f32 {vr(ACC+2*i,2)}, {vr(ACC+2*i,2)}, {vr(ACC+16+2*i,2)}")
        a(f"v_pk_add_f32 {vr(ACC+32+2*i,2)}, {vr(ACC+32+2*i,2)}, {vr(ACC+48+2*i,2)}")
    for i in range(8):
        a(f"v_pk_add_f32 {vr(ACC+2*i,2)}, {vr(ACC+2*i,2)}, {vr(ACC+32+2*i,2)}")
    for i in range(8):
        a(f"v_pk_mul_f32 {vr(ACC+2*i,2)}, {vr(ACC+2*i,2)}, v[14:15] op_sel_hi:[1,0]")
    for q in range(4):
        a(f"ds_write_b128 v10, {vr(ACC+4*q,4)} offset:{q*1024}")
    a("s_waitcnt lgkmcnt(0)")
    stamp(a, 5)
    a("s_barrier")
    a("s_branch K_flush" if STAMP else "s_branch K_end")

    a.label("P1_compute")
    ACC1 = lambda rt, j: 16 + 48 * rt + 16 * j
    FS = [112, 132]
    F0 = 64
    VF = 72
    WPH = 96
    PD = [104, 120]
    T0 = [136, 152]
    AX, AWD = 4, 8
    IP, IM = 88, 92
    BV = [96, 64]
    TT = [16, 32]
    KV = [136, 152]
    a("s_sub_u32 s12, s28, 4")
    if "nodry" not in EXP:
        a("s_mov_b32 s46, 1")
        a("s_cmp_eq_u32 s12, 4")
        a("s_cbranch_scc1 P1_feat")
        a("v_lshlrev_b32 v1, 4, v0")
        a("s_mov_b32 s20, 0x0000ffff")
        a("s_mov_b32 s21, 0x0000ffff")
        a("s_mov_b32 s29, 2")
        a("s_cmp_eq_u32 s12, 5")
        a("s_cbranch_scc1 P2_restart")
    a.label("P1_setup")
    a("s_mov_b32 s46, 0")
    a("s_and_b32 s30, s12, 1")
    a("s_lshr_b32 s48, s12, 1")
    a("s_and_b32 s48, s48, 1")
    a("s_lshr_b32 s31, s12, 2")
    a("s_lshl_b32 s32, s30, 1")
    a("s_add_u32 s32, s32, s31")
    a("v_and_b32 v1, 31, v0")
    a("v_lshrrev_b32 v2, 5, v0")
    a("v_lshrrev_b32 v3, 1, v1")
    a("v_and_b32 v3, 7, v3")
    a("v_xor_b32 v3, v3, v2")
    a("v_lshlrev_b32 v3, 4, v3")
    a("s_lshl_b32 s3, s30, 6")
    a("v_add_u32 v4, s3, v1")
    a("v_lshlrev_b32 v4, 7, v4")
    a("v_add_u32 v4, v4, v3")
    for t in range(1, 4):
        a(f"v_xor_b32 v{AX+t}, {32*t}, v4")
    a("v_and_b32 v3, 15, v0")
    a("v_lshrrev_b32 v8, 2, v3")
    a("v_lshlrev_b32 v9, 3, v2")
    a("v_add_u32 v8, v8, v9")
    a("v_lshlrev_b32 v8, 7, v8")
    a("v_and_b32 v9, 8, v0")
    a("v_lshlrev_b32 v9, 3, v9")
    a("s_lshl_b32 s3, s48, 6")
    a("v_xor_b32 v9, s3, v9")
    a("v_add_u32 v8, v8, v9")
    a("v_and_b32 v9, 16, v0")
    a("v_cmp_ne_u32 s[6:7], 0, v9")
    a("v_lshlrev_b32 v9, 1, v9")
    a("v_add_u32 v8, v8, v9")
    a("v_and_b32 v9, 3, v0")
    a("v_lshlrev_b32 v9, 3, v9")
    a("v_add_u32 v8, v8, v9")
    a("v_add_u32 v8, 16384, v8")
    a("s_lshl_b32 s51, s37, 2")
    a("s_lshl_b32 s3, s48, 1")
    a("s_add_u32 s51, s51, s3")
    a("v_lshrrev_b32 v10, 2, v3")
    a("v_lshlrev_b32 v11, 2, v2")
    a("v_add_u32 v10, v10, v11")
    a("v_lshlrev_b32 v10, 5, v10")
    a("s_lshl_b32 s3, s48, 10")
    a(f"s_add_u32 s3, s3, {PHL}")
    a("v_add3_u32 v10, v10, v9, s3")
    a("v_lshlrev_b32 v9, 4, v0")
    a(f"v_mov_b32 v3, {CNTS}")
    a("s_and_b32 s3, s12, 3")
    a("s_lshl_b32 s3, s3, 12")
    a(f"s_add_u32 s3, s3, {RING}")
    a("v_add_u32 v11, s3, v9")
    a("s_lshl_b32 s62, s37, 12")
    a("s_lshl_b32 s3, s33, 8")
    a("s_add_u32 s62, s62, s3")
    a("s_lshl_b32 s3, s38, 7")
    a("s_add_u32 s62, s62, s3")
    a(f"s_add_u32 s63, s62, {FL1}")
    a(f"s_add_u32 s62, s62, {FL2}")
    a("s_lshl_b32 s39, s37, 11")
    a("s_lshl_b32 s3, s33, 7")
    a("s_add_u32 s39, s39, s3")
    a(f"s_add_u32 s39, s39, {FLQ}")
    a("s_lshl_b32 s50, s33, 2")
    a("s_add_u32 s50, s50, s32")
    a("s_lshl_b32 s29, s51, 6")
    a("s_add_u32 s29, s29, s50")
    a("v_lshlrev_b32 v12, 2, v2")
    a("v_sub_u32 v12, v1, v12")
    a("v_mov_b32 v13, 0x3f80")
    a("v_mov_b32 v14, 0x3f800000")
    for k, add in ((0, 0), (4, 16)):
        for p in range(4):
            f0 = (2 * p if p < 2 else 8 + 2 * (p - 2)) + add
            a(f"v_cmp_eq_u32 s[4:5], {f0}, v12")
            a(f"v_cmp_eq_u32 s[30:31], {f0+1}, v12")
            a("s_nop 1")
            a(f"v_cndmask_b32 v15, 0, v13, s[4:5]")
            a(f"v_cndmask_b32 v{152+k+p}, v15, v14, s[30:31]")
    a("s_lshl_b32 s3, s48, 2")
    a("s_add_u32 s3, s3, s32")
    a("s_lshl_b32 s3, s3, 13")
    a(f"s_add_u32 s3, s3, {RED}")
    a("v_add_u32 v160, s3, v9")
    a("s_lshl_b32 s3, s32, 11")
    a("s_lshl_b32 s4, s48, 15")
    a("s_add_u32 s3, s3, s4")
    a(f"s_add_u32 s3, s3, {RED}")
    a("v_add_u32 v161, s3, v9")
    a("s_lshr_b32 s3, s32, 1")
    a("s_lshl_b32 s4, s3, 4")
    a("v_xor_b32 v12, s4, v1")
    a("s_lshl_b32 s4, s33, 5")
    a("s_add_u32 s4, s4, s51")
    a("s_add_u32 s4, s4, s3")
    a("s_lshl_b32 s4, s4, 3")
    a("s_and_b32 s5, s32, 1")
    a("s_lshl_b32 s5, s5, 2")
    a("s_add_u32 s4, s4, s5")
    a("s_lshl_b32 s5, s4, 8")
    a(f"s_add_u32 s5, s5, {WS_KVP}")
    a("s_lshl_b32 s4, s4, 4")
    a(f"s_add_u32 s4, s4, {WS_ZP}")
    a("v_lshlrev_b32 v13, 7, v2")
    a("v_lshlrev_b32 v14, 3, v12")
    a("v_add3_u32 v13, v13, v14, s5")
    a("v_lshlrev_b32 v14, 3, v2")
    a("v_add_u32 v14, s4, v14")
    a("v_cmp_gt_u32 s[4:5], 16, v12")
    a("v_cmp_eq_u32 s[30:31], 16, v12")
    a("v_mov_b32 v15, 0x7ffff000")
    a("v_mov_b32 v163, 256")
    a("v_cndmask_b32 v14, v15, v14, s[30:31]")
    a("v_cndmask_b32 v162, v14, v13, s[4:5]")
    a("v_cndmask_b32 v163, 16, v163, s[4:5]")
    a("v_and_b32 v164, 16, v0")
    a("v_lshlrev_b32 v164, 13, v164")
    a("v_and_b32 v15, 0x2f, v0")
    a("v_lshlrev_b32 v15, 4, v15")
    a("v_add_u32 v164, v164, v15")
    a("s_waitcnt lgkmcnt(0)")
    srd(a, SWS, P_WS, WS_SIZE)
    a("s_cmp_lt_u32 s12, 4")
    a("s_cbranch_scc1 P1_gemm")
    if "nocpf" not in EXP:
        a("s_getpc_b64 s[4:5]")
        a.label("P1_pc")
        a(f"s_sub_u32 s4, s4, P1_pc-{kn}")
        a("s_subb_u32 s5, s5, 0")
        a("s_sub_u32 s3, s12, 4")
        a("s_lshl_b32 s3, s3, 13")
        a("v_lshlrev_b32 v12, 7, v0")
        a("v_add_u32 v12, s3, v12")
        a(f"v_min_u32 v12, K_last-{kn}, v12")
        a("global_load_dword v13, v12, s[4:5]")
    a("s_mov_b32 s49, 0")
    a.label("P1_idle")
    a("s_barrier")
    a("s_add_u32 s49, s49, 1")
    a("s_cmp_lt_u32 s49, 9")
    a("s_cbranch_scc1 P1_idle")
    a("s_waitcnt vmcnt(0)")
    for h in range(2):
        a(f"ds_read_b64_tr_b16 {vr(WPH+4*h,2)}, v10 offset:{h*512}")
        a(f"ds_read_b64_tr_b16 {vr(WPH+4*h+2,2)}, v10 offset:{h*512+256}")
    a(f"ds_read_b64 v[12:13], v3 offset:{L_TAG}")
    for i_ in (1, 2, 3, 4):
        stamp(a, i_)
    a("s_waitcnt lgkmcnt(0)")
    a(f"v_readfirstlane_b32 s{TAG}, v12")
    a(f"v_readfirstlane_b32 s{TAG+1}, v13")
    lds_poll(a, 3, 12, C_H, 4)
    for q in range(4):
        a(f"ds_read_b128 {vr(F0+4*q,4)}, v11 offset:{q*1024}")
    a("s_waitcnt lgkmcnt(0)")
    a("s_branch P1_feat")

    a.label("P1_gemm")
    for i in range(0, 96, 2):
        a(f"v_mov_b64 {vr(16+i,2)}, 0")

    def reads(F, t):
        w = lambda j, hf: f"ds_read_b64_tr_b16 {vr(F+8+4*j+2*hf,2)}, v{AWD} offset:{j*8192 + t*2048 + 512*hf}"
        return [f"ds_read_b128 {vr(F,4)}, v{AX+t}", w(2, 0), w(2, 1),
                f"ds_read_b128 {vr(F+4,4)}, v{AX+t} offset:4096", w(1, 0), w(1, 1), w(0, 0), w(0, 1)]

    def main_loop(tag, typeK):
        def m(F, k):
            rt, j = k & 1, 2 - (k >> 1)
            X, W = F + 4 * rt, F + 8 + 4 * j
            if typeK and j > 0:
                mfma(a, ACC1(rt, j), X, W, ACC1(rt, j))
            else:
                mfma(a, ACC1(rt, j), W, X, ACC1(rt, j))

        def step(F, R):
            a("s_waitcnt lgkmcnt(5)")
            m(F, 0)
            a(R[0]); a(R[1])
            a("s_waitcnt lgkmcnt(6)")
            m(F, 1)
            a(R[2]); a(R[3])
            a("s_waitcnt lgkmcnt(6)")
            m(F, 2)
            a(R[4]); a(R[5])
            m(F, 3)
            a(R[6]); a(R[7])
            a("s_waitcnt lgkmcnt(8)")
            m(F, 4)
            m(F, 5)
        a.label(f"P1_loop{tag}")
        step(FS[0], reads(FS[1], 1))
        step(FS[1], reads(FS[0], 2))
        step(FS[0], reads(FS[1], 3))
        F = FS[1]
        a("s_waitcnt lgkmcnt(0)")
        m(F, 0)
        m(F, 1)
        a("s_barrier")
        a("s_cmp_eq_u32 s49, 7")
        a(f"s_cbranch_scc1 P1_last{tag}")
        a("s_add_u32 s50, s50, 1")
        a(f"s_mov_b32 s3, {STAGE}")
        a("s_cmp_eq_u32 s50, 3")
        a(f"s_cselect_b32 s3, {(-2*STAGE) & 0xffffffff}, s3")
        a("s_cselect_b32 s50, 0, s50")
        a(f"v_add_u32 v{AX}, s3, v{AX}")
        a(f"v_add_u32 v{AWD}, s3, v{AWD}")
        R = reads(FS[0], 0)
        a(R[0]); a(R[1]); a(R[2])
        m(F, 2)
        a(R[3]); a(R[4]); a(R[5])
        m(F, 3)
        a(R[6]); a(R[7])
        for r in range(AX + 1, AX + 4):
            a(f"v_add_u32 v{r}, s3, v{r}")
        m(F, 4)
        a("s_add_u32 s49, s49, 1")
        m(F, 5)
        a(f"s_branch P1_loop{tag}")
        a.label(f"P1_last{tag}")
        for k in range(2, 6):
            m(F, k)
        a(f"ds_read_b64 v[12:13], v3 offset:{L_TAG}")
        stamp(a, 3)
        a("s_lshl_b32 s4, s29, 11")
        a(f"s_add_u32 s4, s4, {WS_KVB}")
        a(f"s_add_u32 s5, s4, {64*2048}")
        a("s_nop 3")
        for rt in range(2):
            for i in range(8):
                a(f"v_cvt_pk_bf16_f32 v{112+8*rt+i}, v{ACC1(rt,2)+2*i}, v{ACC1(rt,2)+2*i+1}")

    a("s_mov_b32 s49, 0")
    a("s_mov_b32 s50, 0")
    stamp(a, 1)
    a("s_barrier")
    stamp(a, 2)
    if STAMP:
        a("s_waitcnt lgkmcnt(0)")
    for r in reads(FS[0], 0):
        a(r)
    a("s_cmp_eq_u32 s38, 0")
    a("s_cbranch_scc1 P1_loopK")
    main_loop("Q", False)
    for rt in range(2):
        a(f"buffer_store_dwordx4 {vr(112+8*rt,4)}, v9, {sr(SWS,4)}, s4 offen offset:{rt*2048} sc1")
        a(f"buffer_store_dwordx4 {vr(116+8*rt,4)}, v9, {sr(SWS,4)}, s5 offen offset:{rt*2048} sc1")
    a("s_branch P1_hand")
    main_loop("K", True)
    for rt in range(2):
        a(f"buffer_store_dwordx4 {vr(112+8*rt,4)}, v164, {sr(SWS,4)}, s4 offen offset:{rt*2048+1024} sc1")
        a(f"buffer_store_dwordx4 {vr(116+8*rt,4)}, v164, {sr(SWS,4)}, s4 offen offset:{rt*2048+1280} sc1")
    a.label("P1_hand")
    for i in range(8):
        a(f"v_cvt_pk_bf16_f32 v{136+i}, v{ACC1(1,0)+2*i}, v{ACC1(1,0)+2*i+1}")
    for i in range(8):
        a(f"v_cvt_pk_bf16_f32 v{144+i}, v{ACC1(1,1)+2*i}, v{ACC1(1,1)+2*i+1}")
    for q in range(4):
        a(f"ds_write_b128 v11, {vr(136+4*q,4)} offset:{q*1024}")
    for h in range(2):
        a(f"ds_read_b64_tr_b16 {vr(WPH+4*h,2)}, v10 offset:{h*512}")
        a(f"ds_read_b64_tr_b16 {vr(WPH+4*h+2,2)}, v10 offset:{h*512+256}")
    for i in range(8):
        a(f"v_cvt_pk_bf16_f32 v{F0+i}, v{ACC1(0,0)+2*i}, v{ACC1(0,0)+2*i+1}")
    for i in range(8):
        a(f"v_cvt_pk_bf16_f32 v{VF+i}, v{ACC1(0,1)+2*i}, v{ACC1(0,1)+2*i+1}")
    a("s_waitcnt lgkmcnt(0)")
    a(f"v_readfirstlane_b32 s{TAG}, v12")
    a(f"v_readfirstlane_b32 s{TAG+1}, v13")
    lds_add(a, 3, 12, C_H)
    a("s_waitcnt vmcnt(0)")
    lds_add(a, 3, 6, C_B, rtn=True)
    a("s_cmp_lg_u32 s3, 3")
    a("s_cbranch_scc1 P1_nofl1")
    flag_write(a, 6, 63, SWS)
    a.label("P1_nofl1")
    stamp(a, 4)
    a("s_cmp_eq_u32 s38, 0")
    a("s_cbranch_scc1 P1_feat")
    a(f"s_mov_b32 s30, {f32bits(0.25*LOG2E):#x}")
    a("s_mov_b32 s31, s30")
    a("s_lshl_b32 s4, s29, 10")
    a(f"s_add_u32 s5, s4, {64*1024}")
    for rt in range(2):
        for i in range(8):
            a(f"v_pk_mul_f32 {vr(ACC1(rt,1)+2*i,2)}, {vr(ACC1(rt,1)+2*i,2)}, s[30:31]")
        for i in range(8):
            a(f"v_cvt_pk_bf16_f32 v{16+8*rt+i}, v{ACC1(rt,1)+2*i}, v{ACC1(rt,1)+2*i+1}")
        a(f"buffer_store_dwordx4 {vr(16+8*rt,4)}, v9, {sr(SWS,4)}, s4 offen offset:{rt*1024} sc1")
        a(f"buffer_store_dwordx4 {vr(20+8*rt,4)}, v9, {sr(SWS,4)}, s5 offen offset:{rt*1024} sc1")
    a.label("P1_feat")
    for i in range(0, 8, 2):
        a(f"v_mov_b64 {vr(IP+i,2)}, {vr(152+i,2)}")
    a("v_mov_b64 v[56:57], v[160:161]")
    a("v_mov_b64 v[58:59], v[162:163]")
    a(f"s_mov_b32 s30, {f32bits(LOG2E):#x}")
    a("s_mov_b32 s31, s30")
    mfma(a, PD[0], WPH, F0, "0")
    mfma(a, PD[1], WPH + 4, F0 + 4, "0")
    a("s_nop 7")
    a("s_nop 2")
    H = (0, 1)
    M = [(10, 12, 11, 13), (14, 4, 15, 5)]
    for h in H:
        P = PD[h]
        a(f"v_max3_f32 v{M[h][0]}, v{P}, v{P+1}, v{P+2}")
        a(f"v_min3_f32 v{M[h][1]}, v{P}, v{P+1}, v{P+2}")
    for o in (3, 5):
        for h in H:
            P = PD[h]
            a(f"v_max3_f32 v{M[h][0]}, v{M[h][0]}, v{P+o}, v{P+o+1}")
            a(f"v_min3_f32 v{M[h][1]}, v{M[h][1]}, v{P+o}, v{P+o+1}")
    for h in H:
        P = PD[h]
        a(f"v_max_f32 v{M[h][0]}, v{M[h][0]}, v{P+7}")
        a(f"v_min_f32 v{M[h][1]}, v{M[h][1]}, v{P+7}")
    for h in H:
        a(f"v_mov_b32 v{M[h][2]}, v{M[h][0]}")
        a(f"v_mov_b32 v{M[h][3]}, v{M[h][1]}")
    a("s_nop 1")
    for h in H:
        a(f"v_permlane32_swap_b32 v{M[h][0]}, v{M[h][2]}")
        a(f"v_permlane32_swap_b32 v{M[h][1]}, v{M[h][3]}")
    a("s_nop 1")
    for h in H:
        a(f"v_max_f32 v{M[h][0]}, v{M[h][0]}, v{M[h][2]}")
        a(f"v_min_f32 v{M[h][1]}, v{M[h][1]}, v{M[h][3]}")
    for h in H:
        a(f"v_mul_f32 v{M[h][0]}, s30, v{M[h][0]}")
        a(f"v_mul_f32 v{M[h][1]}, s30, v{M[h][1]}")
    for i in range(4):
        for h in H:
            a(f"v_pk_fma_f32 {vr(T0[h]+2*i,2)}, {vr(PD[h]+2*i,2)}, s[30:31], {vr(M[h][0],2)} op_sel_hi:[1,1,0] neg_lo:[0,0,1] neg_hi:[0,0,1]")
            a(f"v_pk_fma_f32 {vr(T0[h]+8+2*i,2)}, {vr(PD[h]+2*i,2)}, s[30:31], {vr(M[h][1],2)} op_sel_hi:[1,1,0] neg_lo:[1,0,0] neg_hi:[1,0,0]")
    for i in range(16):
        for h in H:
            a(f"v_exp_f32 v{T0[h]+i}, v{T0[h]+i}")
    for h in H:
        for g in range(2):
            a(f"v_pk_add_f32 {vr(PD[h]+4*g,2)}, {vr(T0[h]+8*g,2)}, {vr(T0[h]+8*g+2,2)}")
            a(f"v_pk_add_f32 {vr(PD[h]+4*g+2,2)}, {vr(T0[h]+8*g+4,2)}, {vr(T0[h]+8*g+6,2)}")
    for h in H:
        for g in range(2):
            a(f"v_pk_add_f32 {vr(PD[h]+4*g,2)}, {vr(PD[h]+4*g,2)}, {vr(PD[h]+4*g+2,2)}")
    for h in H:
        a(f"v_add_f32 v{M[h][0]}, v{PD[h]}, v{PD[h]+1}")
        a(f"v_add_f32 v{M[h][1]}, v{PD[h]+4}, v{PD[h]+5}")
    for h in H:
        a(f"v_mov_b32 v{M[h][2]}, v{M[h][0]}")
        a(f"v_mov_b32 v{M[h][3]}, v{M[h][1]}")
    a("s_nop 1")
    for h in H:
        a(f"v_permlane32_swap_b32 v{M[h][0]}, v{M[h][2]}")
        a(f"v_permlane32_swap_b32 v{M[h][1]}, v{M[h][3]}")
    a("s_nop 1")
    for h in H:
        a(f"v_add_f32 v{M[h][0]}, v{M[h][0]}, v{M[h][2]}")
        a(f"v_add_f32 v{M[h][1]}, v{M[h][1]}, v{M[h][3]}")
    for h in H:
        a(f"v_rcp_f32 v{M[h][0]}, v{M[h][0]}")
        a(f"v_rcp_f32 v{M[h][1]}, v{M[h][1]}")
    a("s_nop 0")
    for i in range(4):
        for h in H:
            a(f"v_pk_mul_f32 {vr(T0[h]+2*i,2)}, {vr(T0[h]+2*i,2)}, {vr(M[h][0],2)} op_sel_hi:[1,0]")
            a(f"v_pk_mul_f32 {vr(T0[h]+8+2*i,2)}, {vr(T0[h]+8+2*i,2)}, {vr(M[h][1],2)} op_sel_hi:[1,0]")
    for i in range(8):
        for h in H:
            a(f"v_cvt_pk_bf16_f32 v{PD[h]+8+i}, v{T0[h]+2*i}, v{T0[h]+2*i+1}")
    a("s_cmp_eq_u32 s38, 0")
    a("s_cbranch_scc1 P1_featK")
    a("s_cmp_eq_u32 s46, 1")
    a("s_cbranch_scc1 P1_setup")
    a("s_lshl_b32 s4, s29, 11")
    a(f"s_add_u32 s4, s4, {WS_PHIQ}")
    a(f"s_add_u32 s5, s4, {64*2048}")
    a("s_cmp_ge_u32 s12, 4")
    a("s_cbranch_scc1 P1_done")
    a("s_waitcnt vmcnt(0)")
    lds_add(a, 3, 6, C_Q, rtn=True)
    a("s_cmp_lg_u32 s3, 3")
    a("s_cbranch_scc1 P1_done")
    flag_write(a, 6, 39, SWS)
    a("s_branch P1_done")
    a.label("P1_featK")
    a("v_mov_b32 v15, 0x3f803f80")
    for h in range(2):
        mfma(a, TT[h], PD[h] + 8, IP, "0")
        mfma(a, TT[h], PD[h] + 12, IM, TT[h])
    for i in range(8):
        a(f"v_cndmask_b32 v{BV[0]+i}, v{VF+i}, v15, s[6:7]")
        a(f"v_cndmask_b32 v{BV[1]+i}, v15, v{VF+i}, s[6:7]")
    for h in range(2):
        for i in range(8):
            a(f"v_cvt_pk_bf16_f32 v{PD[h]+i}, v{TT[h]+2*i}, v{TT[h]+2*i+1}")
    a("s_nop 1")
    for h in range(2):
        mfma(a, KV[h], PD[h], BV[h], "0")
        mfma(a, KV[h], PD[h] + 4, BV[h] + 4, KV[h])
    a("s_nop 7")
    a("s_cmp_eq_u32 s46, 1")
    a("s_cbranch_scc1 P1_setup")
    for h in range(2):
        for q in range(4):
            a(f"ds_write_b128 v56, {vr(KV[h]+4*q,4)} offset:{h*4096 + q*1024}")
    a("s_waitcnt lgkmcnt(0)")
    lds_add(a, 3, 10, C_RED1)
    lds_poll(a, 3, 10, C_RED1, 8)
    for w in range(4):
        a(f"ds_read_b128 {vr(16+8*w,4)}, v57 offset:{w*8192}")
        a(f"ds_read_b128 {vr(20+8*w,4)}, v57 offset:{w*8192+1024}")
    a("s_waitcnt lgkmcnt(0)")
    lds_add(a, 3, 10, C_RED2)
    for i in range(4):
        a(f"v_pk_add_f32 {vr(16+2*i,2)}, {vr(16+2*i,2)}, {vr(24+2*i,2)}")
        a(f"v_pk_add_f32 {vr(32+2*i,2)}, {vr(32+2*i,2)}, {vr(40+2*i,2)}")
    for i in range(4):
        a(f"v_pk_add_f32 {vr(136+2*i,2)}, {vr(16+2*i,2)}, {vr(32+2*i,2)}")
    a.label("P1_done")
    a("v_mov_b64 v[144:145], v[58:59]")
    a("s_mov_b32 s63, s38")
    if STAMP:
        a("s_cmp_lt_u32 s12, 4")
        a("s_cbranch_scc1 ST_a")
        stamp(a, 2)
        a.label("ST_a")

    UNR = 8
    PRIO = [(40, 1), (56, 0)]
    QF = 4
    KF = [8, 12]
    VFa = [16, 24]
    P = 32
    O = 40
    CN = 56
    S = [72, 88]
    NC = 104
    a("v_mov_b32 v108, v3")
    a("v_mov_b32 v1, v9")
    a("s_and_b32 s38, s2, 7")
    a("s_lshl_b32 s13, s38, 2")
    a("s_lshr_b32 s3, s2, 3")
    a("s_and_b32 s36, s3, 3")
    a("s_lshr_b32 s37, s3, 2")
    a("s_add_u32 s13, s13, s36")
    a("s_mov_b32 s36, s13")
    a("s_lshr_b32 s14, s2, 5")
    a("s_lshl_b32 s15, s14, 3")
    a("s_add_u32 s15, s15, s12")
    a("s_lshl_b32 s16, s13, 6")
    a("s_add_u32 s16, s16, s15")
    a("v_and_b32 v2, 27, v0")
    a("v_cmp_eq_u32 s[24:25], 16, v2")
    a("v_mov_b32 v3, 0x3f803f80")
    a("s_mov_b32 s20, 0x0000ffff")
    a("s_mov_b32 s21, 0x0000ffff")
    a(f"v_cndmask_b32 v{VFa[0]}, 0, v3, s[24:25]")
    for i in range(1, 16):
        a(f"v_mov_b32 v{VFa[0]+i}, v{VFa[0]}")
    a("s_mov_b32 s22, 0")
    evmask = 0
    for t_ in [8, 16, 24, 64] + [p_[0] for p_ in PRIO]:
        evmask |= 1 << (t_ // 8)
    a(f"s_mov_b32 s29, {evmask:#x}")
    lds_poll(a, 108, NC, F_Q, 1, sleep=1)
    if STAMP:
        a("s_cmp_lt_u32 s12, 4")
        a("s_cbranch_scc1 ST_b")
        stamp(a, 3)
        a.label("ST_b")
    a("s_lshl_b32 s19, s16, 10")
    a(f"buffer_load_dwordx4 {vr(QF,4)}, v1, {sr(SWS,4)}, s19 offen sc1")
    lds_poll(a, 108, NC, C_S0, 4)
    if STAMP:
        a("s_cmp_lt_u32 s12, 4")
        a("s_cbranch_scc1 ST_c")
        stamp(a, 4)
        a.label("ST_c")
    a("s_setprio 3")
    a(f"ds_read_b128 {vr(KF[0],4)}, v1")
    a("s_waitcnt vmcnt(0) lgkmcnt(0)")
    stamp(a, 5)
    mfma(a, S[1], KF[0], QF, "0")
    a("s_nop 7")
    a("s_nop 3")
    X = S[1]
    a(f"v_max3_f32 v2, v{X}, v{X+1}, v{X+2}")
    for i in range(3, 15, 2):
        a(f"v_max3_f32 v2, v2, v{X+i}, v{X+i+1}")
    a(f"v_max_f32 v2, v2, v{X+15}")
    cross_half(a, "v_max_f32", 2, 3)
    if STAMP:
        a("s_waitcnt lgkmcnt(0)")
    a.label("P2_restart")
    a("v_mov_b32 v3, v1")
    a(f"ds_read_b128 {vr(KF[0],4)}, v3")
    a(f"ds_read_b128 {vr(KF[1],4)}, v3 offset:2048")
    a("s_mov_b64 exec, s[20:21]")
    a(f"ds_read_b128 {vr(VFa[0],4)}, v3 offset:1024")
    a(f"ds_read_b128 {vr(VFa[0]+4,4)}, v3 offset:1280")
    a("s_mov_b64 exec, -1")
    a(f"v_sub_f32 v{CN}, 0, v2")
    a(f"v_sub_f32 v{CN+1}, 0, v2")
    for i in range(2, 16, 2):
        a(f"v_mov_b64 {vr(CN+i,2)}, {vr(CN,2)}")
    for i in range(0, 16, 2):
        a(f"v_mov_b64 {vr(O+i,2)}, 0")
    a("s_waitcnt lgkmcnt(3)")
    mfma(a, S[0], KF[0], QF, CN)
    a("s_mov_b32 s23, 0")
    a("s_nop 7")
    a("s_nop 3")
    a.raw("    .p2align 3")
    a.label("P2_loop")
    for u in range(UNR):
        X, Y = S[u & 1], S[(u + 1) & 1]
        Kn = KF[(u + 1) & 1]
        Kp = KF[u & 1]
        Vc = VFa[u & 1]
        Vn = VFa[(u + 1) & 1]
        for i in range(4):
            a(f"v_exp_f32 v{X+i}, v{X+i}")
        a("s_waitcnt lgkmcnt(0)")
        mfma(a, Y, Kn, QF, CN)
        a(f"ds_read_b128 {vr(Kp,4)}, v3 offset:{(u+2)*2048}")
        for i in range(4, 8):
            a(f"v_exp_f32 v{X+i}, v{X+i}")
        for i in range(4):
            a(f"v_cvt_pk_bf16_f32 v{P+i}, v{X+2*i}, v{X+2*i+1}")
        for i in range(8, 10):
            a(f"v_exp_f32 v{X+i}, v{X+i}")
        mfma(a, O, Vc, P, O)
        a("s_mov_b64 exec, s[20:21]")
        a(f"ds_read_b128 {vr(Vn,4)}, v3 offset:{(u+1)*2048+1024}")
        a(f"ds_read_b128 {vr(Vn+4,4)}, v3 offset:{(u+1)*2048+1280}")
        a("s_mov_b64 exec, -1")
        for i in range(10, 16):
            a(f"v_exp_f32 v{X+i}, v{X+i}")
        for i in range(4, 8):
            a(f"v_cvt_pk_bf16_f32 v{P+i}, v{X+2*i}, v{X+2*i+1}")
        if u == UNR - 1:
            a(f"v_add_u32 v3, {UNR*2048}, v3")
            a("s_add_u32 s23, s23, 1")
            a("s_bitcmp1_b32 s29, s23")
        else:
            a("s_nop 1")
        mfma(a, O, Vc + 4, P + 4, O)
    a("s_cbranch_scc0 P2_loop")
    a("s_cmp_eq_u32 s23, 8")
    a("s_cbranch_scc1 P2_exit")
    a("s_cmp_lg_u32 s23, 1")
    a("s_cbranch_scc1 P2_e5")
    a("s_cmp_eq_u32 s46, 0")
    a("s_cbranch_scc1 P2_nodry")
    a("s_waitcnt lgkmcnt(0)")
    a("s_nop 7")
    a("s_nop 7")
    a("s_branch P1_setup")
    a.label("P2_nodry")
    lds_poll(a, 108, 109, C_S1, 4)
    for i in range(4):
        a(f"v_mov_b32 v{NC+i}, -1")
    a("s_lshl_b32 s19, s16, 10")
    a(f"s_add_u32 s19, s19, {WS_O + 2*MB}")
    a(f"buffer_store_dwordx4 {vr(NC,4)}, v1, {sr(SWS,4)}, s19 offen sc1")
    a("s_cmp_eq_u32 s63, 0")
    a("s_cbranch_scc1 P2_stK")
    for h in range(2):
        a(f"buffer_store_dwordx4 {vr(PD[h]+8,4)}, v1, {sr(SWS,4)}, s{4+h} offen sc1")
        a(f"buffer_store_dwordx4 {vr(PD[h]+12,4)}, v1, {sr(SWS,4)}, s{4+h} offen offset:1024 sc1")
    a("s_branch P2_loop")
    a.label("P2_stK")
    for p in range(4):
        a(f"buffer_store_dwordx2 {vr(136+2*p,2)}, v144, {sr(SWS,4)}, 0 offen sc1")
        if p < 3:
            a("v_add_u32 v144, v144, v145")
    a("s_branch P2_loop")
    a.label("P2_e5")
    a("s_cmp_lg_u32 s23, 2")
    a("s_cbranch_scc1 P2_e6")
    a("s_setprio 2")
    a("s_waitcnt vmcnt(0)")
    lds_add(a, 108, NC, C_A, rtn=True)
    a("s_cmp_lg_u32 s3, 8")
    a("s_cbranch_scc1 P2_loop")
    flag_write(a, NC, 62, SWS)
    a("s_branch P2_loop")
    a.label("P2_e6")
    a("s_cmp_lg_u32 s23, 3")
    a("s_cbranch_scc1 P2_e7")
    lds_poll(a, 108, 109, C_S2, 4)
    if STAMP and "att" in EXP:
        stamp(a, 2)
    a("s_branch P2_loop")
    a.label("P2_e7")
    for k, (tt, pr) in enumerate(PRIO):
        a(f"s_cmp_lg_u32 s23, {tt//8}")
        a(f"s_cbranch_scc1 P2_p{k}")
        a(f"s_setprio {pr}")
        if STAMP and "att" in EXP and k < 2:
            stamp(a, 3 + k)
        a.label(f"P2_p{k}")
    a("s_branch P2_loop")
    a.label("P2_exit")
    a("s_waitcnt lgkmcnt(0)")
    stamp(a, 1)
    a("s_nop 7")
    a("s_nop 1")
    a("s_cmp_lg_u32 s22, 0")
    a("s_cbranch_scc1 P2_fin")
    a(f"v_mov_b32 v{P}, {f32bits(2.0**64):#x}")
    a(f"v_cmp_nlt_f32 s[24:25], v{O+8}, v{P}")
    a(f"v_mov_b32 v{P+1}, 0x7f800000")
    for i in range(8):
        a(f"v_cmp_nlt_f32 s[26:27], abs(v{O+i}), v{P+1}")
        a("s_or_b64 s[24:25], s[24:25], s[26:27]")
    a("s_cmp_eq_u64 s[24:25], 0")
    a("s_cbranch_scc1 P2_fin")
    a("v_mov_b32 v3, v1")
    a("v_mov_b32 v2, 0xff800000")
    a("s_mov_b32 s23, 0")
    a.label("P2_maxloop")
    a(f"ds_read_b128 {vr(KF[0],4)}, v3")
    a("s_waitcnt lgkmcnt(0)")
    mfma(a, S[0], KF[0], QF, "0")
    a("v_add_u32 v3, 2048, v3")
    a("s_add_u32 s23, s23, 1")
    a("s_nop 7")
    a("s_nop 3")
    for i in range(0, 16, 2):
        a(f"v_max3_f32 v2, v2, v{S[0]+i}, v{S[0]+i+1}")
    a("s_cmp_lt_u32 s23, 64")
    a("s_cbranch_scc1 P2_maxloop")
    cross_half(a, "v_max_f32", 2, 3)
    a("s_mov_b32 s22, 1")
    a("s_mov_b32 s29, 0x100")
    a("s_branch P2_restart")
    a.label("P2_fin")
    a(f"v_rcp_f32 v2, v{O+8}")
    a("s_lshl_b32 s19, s16, 10")
    for i in range(4):
        a(f"v_pk_mul_f32 {vr(O+2*i,2)}, {vr(O+2*i,2)}, v[2:3] op_sel_hi:[1,0]")
    for i in range(4):
        a(f"v_cvt_pk_bf16_f32 v{P+i}, v{O+2*i}, v{O+2*i+1}")
    a(f"s_add_u32 s19, s19, {WS_O + 2*MB}")
    a(f"v_min_u32 v{P}, 0xfffffffe, v{P}")
    a(f"buffer_store_dwordx4 {vr(P,4)}, v1, {sr(SWS,4)}, s19 offen sc1")
    a("v_mov_b32 v2, v108")
    lds_add(a, 2, 3, C_OB)
    a("s_cmp_ge_u32 s12, 4")
    a("s_cbranch_scc1 K_flush" if STAMP else "s_cbranch_scc1 K_end")
    a("s_lshl_b32 s21, s12, 14")
    proj_addr(a, 12, 21, VD, VW0, VW1, VO)
    srd(a, SWO, P_WOB, 512 * 512 * 2)
    srd(a, SOUT, P_OUT, 2 * MB)
    a("s_lshl_b32 s22, s12, 17")
    a("s_lshl_b32 s3, s37, 7")
    a("s_add_u32 s22, s22, s3")
    a("s_lshl_b32 s23, s12, 19")
    a("s_lshl_b32 s3, s36, 11")
    a("s_add_u32 s23, s23, s3")
    a(f"s_add_u32 s23, s23, {WS_O + 2*MB}")
    a("v_and_b32 v12, 31, v0")
    a("s_lshl_b32 s3, s36, 6")
    a("s_lshr_b32 s19, s12, 1")
    a("s_lshl_b32 s19, s19, 5")
    a("s_add_u32 s3, s3, s19")
    a("v_add_u32 v7, s3, v12")
    a("v_lshlrev_b32 v13, 2, v7")
    a(f"v_add_u32 v13, {WS_G}, v13")
    a("s_waitcnt vmcnt(0)")
    for i in range(0, 64, 2):
        a(f"v_mov_b64 {vr(ACC+i,2)}, 0")
    lds_poll(a, 2, 3, F_3A, 1)
    lds_poll(a, 2, 3, C_OB, 8)
    a("s_setprio 3")
    for t in range(16):
        a(f"s_add_u32 m0, s21, {t*1024}")
        a(f"s_add_u32 s3, s22, {t*8192}")
        a(f"buffer_load_dwordx4 v{VD}, {sr(SWO,4)}, s3 offen lds")
    OFB = 80
    WFB = 144
    a(f"buffer_load_dword v14, v13, {sr(SWS,4)}, 0 offen sc1")

    def oload(t):
        a(f"s_add_u32 s3, s23, {t*65536}")
        a(f"buffer_load_dwordx4 {vr(OFB+8*t,4)}, v{VO}, {sr(SWS,4)}, s3 offen sc1")
        a(f"buffer_load_dwordx4 {vr(OFB+8*t+4,4)}, v{VO+1}, {sr(SWS,4)}, s3 offen sc1")
    for t in range(8):
        oload(t)
    a("s_mov_b32 s30, 0xff")
    a("s_mov_b32 s31, 0")
    a.label("P3_round")
    a("s_waitcnt vmcnt(0)")
    for t in range(8):
        W = WFB + 8 * (t & 1)
        sl = OFB + 8 * t
        a(f"s_bitcmp1_b32 s30, {t}")
        a(f"s_cbranch_scc0 P3_n{t}")
        a(f"v_cmp_eq_u32 vcc, -1, v{sl}")
        a(f"v_cmp_eq_u32 s[24:25], -1, v{sl+4}")
        a(f"ds_read_b64_tr_b16 {vr(W,2)}, v{VW0} offset:{t*2048}")
        a(f"ds_read_b64_tr_b16 {vr(W+2,2)}, v{VW0} offset:{t*2048+1024}")
        a(f"ds_read_b64_tr_b16 {vr(W+4,2)}, v{VW1} offset:{t*2048}")
        a(f"ds_read_b64_tr_b16 {vr(W+6,2)}, v{VW1} offset:{t*2048+1024}")
        a("s_or_b64 s[24:25], s[24:25], vcc")
        a(f"s_cbranch_scc0 P3_g{t}")
        oload(t)
        a(f"s_branch P3_n{t}")
        a.label(f"P3_g{t}")
        a(f"s_bitset0_b32 s30, {t}")
        a("s_waitcnt lgkmcnt(0)")
        mfma(a, ACC + 16, W + 4, sl, ACC + 16)
        mfma(a, ACC + 32, W, sl + 4, ACC + 32)
        mfma(a, ACC + 48, W + 4, sl + 4, ACC + 48)
        mfma(a, ACC, W, sl, ACC)
        a.label(f"P3_n{t}")
    a("s_add_u32 s31, s31, 1")
    a("s_cmp_gt_u32 s31, 0x200000")
    a("s_cbranch_scc1 P3_out")
    a("s_cmp_lg_u32 s30, 0")
    a("s_cbranch_scc1 P3_round")
    a.label("P3_out")
    a("s_waitcnt vmcnt(0) lgkmcnt(0)")
    if "att" not in EXP:
        stamp(a, 2)
    a("v_add_u32 v10, s21, v1")
    a("v_sub_f32 v14, 1.0, v14")
    a("v_cvt_pk_bf16_f32 v14, v14, v14")
    a("v_lshlrev_b32 v14, 16, v14")
    a("s_nop 4")
    for j in range(1, 4):
        for q in range(4):
            a(f"ds_write_b128 v10, {vr(ACC+16*j+4*q,4)} offset:{j*4096+q*1024}")
    a("v_lshlrev_b32 v7, 10, v7")
    a("v_lshrrev_b32 v12, 5, v0")
    a("v_lshlrev_b32 v12, 4, v12")
    a("v_add_u32 v7, v7, v12")
    a("s_lshl_b32 s19, s37, 7")
    a("s_and_b32 s3, s12, 1")
    a("s_lshl_b32 s3, s3, 6")
    a("s_add_u32 s19, s19, s3")
    a("v_add_u32 v12, 65536, v10")
    a("s_waitcnt lgkmcnt(0)")
    a("s_barrier")
    for j in range(1, 4):
        a(f"v_xor_b32 v11, {j*16384}, v10")
        for q in range(4):
            a(f"ds_read_b128 {vr(ACC+16*j+4*q,4)}, v11 offset:{j*4096+q*1024}")
    AF = 80
    a("s_waitcnt lgkmcnt(8)")
    for q in range(4):
        a(f"ds_read_b128 {vr(AF+4*q,4)}, v12 offset:{q*1024}")
    a("s_waitcnt lgkmcnt(4)")
    for i in range(8):
        a(f"v_pk_add_f32 {vr(ACC+2*i,2)}, {vr(ACC+2*i,2)}, {vr(ACC+16+2*i,2)}")
        a(f"v_pk_add_f32 {vr(ACC+32+2*i,2)}, {vr(ACC+32+2*i,2)}, {vr(ACC+48+2*i,2)}")
    for i in range(8):
        a(f"v_pk_add_f32 {vr(ACC+2*i,2)}, {vr(ACC+2*i,2)}, {vr(ACC+32+2*i,2)}")
    a("s_waitcnt lgkmcnt(0)")
    for i in range(8):
        a(f"v_pk_fma_f32 {vr(ACC+2*i,2)}, {vr(ACC+2*i,2)}, v[14:15], {vr(AF+2*i,2)} op_sel_hi:[1,0,1]")
    T = 96
    for i in range(8):
        a(f"v_cvt_pk_bf16_f32 v{T+i}, v{ACC+2*i}, v{ACC+2*i+1}")
    a("s_nop 1")
    a(f"v_permlane32_swap_b32 v{T}, v{T+2}")
    a(f"v_permlane32_swap_b32 v{T+1}, v{T+3}")
    a(f"v_permlane32_swap_b32 v{T+4}, v{T+6}")
    a(f"v_permlane32_swap_b32 v{T+5}, v{T+7}")
    a(f"buffer_store_dwordx4 {vr(T,4)}, v7, {sr(SOUT,4)}, s19 offen")
    a(f"buffer_store_dwordx4 {vr(T+4,4)}, v7, {sr(SOUT,4)}, s19 offen offset:32")
    if STAMP:
        a.label("K_flush")
        a("s_waitcnt vmcnt(0)")
        stamp(a, 6)
        stamp_flush(a, 0, 8, 28, SWS)
    a.label("K_end")
    a.label("K_last")
    a("s_endpgm")
    return kd(kn, 168, 80)


def main():
    a = Asm()
    head = f"""; gated mix of hedgehog linear attention and softmax attention (generated by dev/gen6.py)
; @launch kernel={NAME}_kernel grid=(256,1,1) block=(768,1,1) lds=163840
.amdgcn_target "amdgcn-amd-amdhsa--gfx950"
.text
"""
    kds = [gen_fused(a)]
    out = head + a.text() + '.section .rodata,"a"\n' + "".join(kds)
    path = sys.argv[1] if len(sys.argv) > 1 else f"f6.s"
    open(path, "w").write(out)
    print("wrote", path, len(out))


if __name__ == "__main__":
    main()
```

```python
import sys, os
import gen as G
G.STB = 80
from gen import *
STB = 80
import gen2 as G2
from gen2 import lds_poll, lds_add, flag_write, flag_poll, proj_addr, uid, TAG

G2.FSH = 7
WS_FL = 17 * MB
FL3A, FL3B, FL1, FL2, FLQ = [WS_FL + 32768 * i for i in range(5)]
SP = 131072
PHL = SP
XCH = SP + 2048
CNTS = SP + 4096
RING = SP + 8192
RED = 65536
(C_XCH, C_OA, F_3A, C_OB, F_3B, C_AR, L_TAG, _, C_B, C_A, C_RED1, C_RED2, F_F1, C_S0, C_S1, F_F2, C_H, C_Q, F_Q, C_S2) = [4 * i for i in range(20)]
P_X, P_WA, P_PHI, P_WOA, P_WB, P_WOB, P_GW = 64, 66, 68, 70, 74, 76, 78
P_OUT, P_DBG, P_WS = 56, 58, 60


LS = int(os.environ.get('LS', '24'))
LS2 = int(os.environ.get('LS2', '12'))


def gen_fused(a):
    kn = NAME + "_kernel"
    kernel_begin(a, kn)
    STAGE = 40960
    SWS, SX, SW0, SW1, SW2, SPHI, SGW = 8, 12, 16, 20, 24, 40, 44
    SWO, SOUT, SDBG = 40, 48, 52
    a("s_cmp_ge_u32 s2, 256")
    a("s_cbranch_scc1 K_end")
    stamp(a, 0)
    if STAMP:
        a(f"s_memrealtime s[{STB+14}:{STB+15}]")
    a("s_load_dwordx16 s[64:79], s[0:1], 0")
    a("s_load_dwordx4 s[56:59], s[0:1], 64")
    a("s_load_dwordx2 s[60:61], s[0:1], 80")
    a("v_lshrrev_b32 v1, 6, v0")
    a("v_and_b32 v0, 63, v0")
    a("v_readfirstlane_b32 s28, v1")
    a("s_and_b32 s3, s2, 1")
    a("s_lshl_b32 s33, s3, 3")
    a("s_lshr_b32 s3, s2, 3")
    a("s_and_b32 s39, s3, 7")
    a("s_add_u32 s33, s33, s39")
    a("s_lshr_b32 s36, s3, 3")
    a("s_and_b32 s4, s2, 6")
    a("s_lshl_b32 s4, s4, 1")
    a("s_add_u32 s36, s36, s4")
    a("s_and_b32 s37, s36, 7")
    a("s_lshr_b32 s38, s36, 3")
    a("s_cmp_ge_u32 s28, 4")
    a("s_cbranch_scc1 P1_compute")

    a("v_lshrrev_b32 v5, 3, v0")
    a("s_lshl_b32 s3, s28, 3")
    a("v_add_u32 v6, s3, v5")
    a("v_lshlrev_b32 v6, 10, v6")
    a("v_lshrrev_b32 v3, 4, v0")
    a("s_and_b32 s3, s28, 1")
    a("s_lshl_b32 s3, s3, 2")
    a("v_add_u32 v3, s3, v3")
    a("v_and_b32 v4, 7, v0")
    a("v_xor_b32 v3, v3, v4")
    a("v_lshlrev_b32 v3, 4, v3")
    a("v_add_u32 v6, v6, v3")
    a("s_lshl_b32 s3, s28, 4")
    a("v_add_u32 v7, s3, v5")
    a("v_mul_u32_u24 v7, 3072, v7")
    a("v_and_b32 v5, 16, v0")
    a("v_lshrrev_b32 v5, 2, v5")
    a("v_xor_b32 v4, v4, v5")
    a("v_lshlrev_b32 v4, 4, v4")
    a("v_add_u32 v7, v7, v4")
    a("v_lshlrev_b32 v1, 4, v0")
    a(f"v_mov_b32 v2, {CNTS}")
    a("v_lshlrev_b32 v3, 2, v0")
    a("v_add_u32 v3, v2, v3")
    a("v_mov_b32 v4, 0")
    a("ds_write_b32 v3, v4")
    a("s_lshl_b32 s48, s33, 17")
    a("s_lshl_b32 s3, s37, 7")
    a("s_cmp_eq_u32 s38, 0")
    a("s_cselect_b32 s49, 1024, 0")
    a("s_cselect_b32 s29, 2048, 0")
    a("s_max_u32 s30, s29, 1024")
    a("s_add_u32 s49, s49, s3")
    a("s_add_u32 s29, s29, s3")
    a("s_add_u32 s30, s30, s3")
    a("s_lshl_b32 s50, s28, 10")
    a("s_lshl_b32 s31, s28, 11")
    a("s_mov_b32 s51, 0")
    a("s_add_u32 s39, s39, s36")
    a("s_and_b32 s39, s39, 3")
    a("s_lshl_b32 s39, s39, 1")
    a("s_waitcnt lgkmcnt(0)")
    srd(a, SX, P_X, 2 * MB)
    srd(a, SW0, P_WA, 512 * 1536 * 2)
    srd(a, SW2, P_WB, 512 * 1536 * 2)
    a("s_cmp_eq_u32 s38, 0")
    a(f"s_cselect_b32 s4, s{P_WA}, s{P_WB}")
    a(f"s_cselect_b32 s5, s{P_WA+1}, s{P_WB+1}")
    srd(a, SW1, 4, 512 * 1536 * 2)
    srd(a, SDBG, P_DBG, 256)
    a("s_cmp_ge_u32 s28, 2")
    a("s_cbranch_scc1 P1_nophi")
    srd(a, SPHI, P_PHI, 32 * 16 * 16 * 2)
    a(f"s_add_u32 m0, s50, {PHL}")
    a("s_lshl_b32 s6, s37, 11")
    a("s_add_u32 s6, s6, s50")
    a(f"buffer_load_dwordx4 v1, {sr(SPHI,4)}, s6 offen lds")
    a("s_branch P1_ld_loop")
    a.label("P1_nophi")
    a("s_cmp_lg_u32 s2, 0")
    a("s_cbranch_scc1 P1_ld_loop")
    a("s_cmp_lg_u32 s28, 3")
    a("s_cbranch_scc1 P1_ld_loop")
    a("s_memrealtime s[6:7]")
    a("s_waitcnt lgkmcnt(0)")
    a("s_or_b32 s6, s6, 1")
    a("v_mov_b32 v10, s6")
    a("v_mov_b32 v11, s7")
    a("s_mov_b64 exec, 1")
    a(f"buffer_store_dwordx2 v[10:11], off, {sr(SDBG,4)}, 0 sc1")
    a("s_mov_b64 exec, -1")
    a.label("P1_ld_loop")
    a("s_lshl_b32 s6, s39, 7")
    a("s_add_u32 s6, s6, s48")
    a(f"s_mul_i32 s7, s39, {64*3072}")
    for ii in range(4):
        a(f"s_add_u32 m0, s50, {ii*4096}")
        a(f"s_add_u32 s32, s6, {ii*32768}")
        a(f"buffer_load_dwordx4 v6, {sr(SX,4)}, s32 offen lds")
    for j, (S, so) in enumerate(((SW0, 49), (SW1, 29), (SW2, 30))):
        a(f"s_add_u32 m0, s31, {16384 + j*8192}")
        a(f"s_add_u32 s32, s{so}, s7")
        a(f"buffer_load_dwordx4 v7, {sr(S,4)}, s32 offen lds")
        a(f"s_add_u32 m0, s31, {16384 + j*8192 + 1024}")
        a(f"s_add_u32 s32, s32, {8*3072}")
        a(f"buffer_load_dwordx4 v7, {sr(S,4)}, s32 offen lds")
    a("s_add_u32 s39, s39, 1")
    a("s_and_b32 s39, s39, 7")
    a(f"s_add_u32 s50, s50, {STAGE}")
    a(f"s_add_u32 s31, s31, {STAGE}")
    a(f"s_cmp_lt_u32 s50, {3*STAGE}")
    a("s_cbranch_scc1 P1_ld_nowrap")
    a(f"s_sub_u32 s50, s50, {3*STAGE}")
    a(f"s_sub_u32 s31, s31, {3*STAGE}")
    a.label("P1_ld_nowrap")
    a("s_add_u32 s51, s51, 1")
    a("s_cmp_eq_u32 s51, 1")
    a("s_cbranch_scc1 P1_ld_loop")
    a("s_waitcnt vmcnt(10)")
    a("s_barrier")
    a("s_cmp_lt_u32 s51, 8")
    a("s_cbranch_scc1 P1_ld_loop")
    srd(a, SWS, P_WS, WS_SIZE)
    a("s_waitcnt vmcnt(0)")
    stamp(a, 1)
    a("s_barrier")
    a("s_cmp_lg_u32 s28, 3")
    a("s_cbranch_scc1 P1_notag")
    a("s_mov_b32 s3, 0")
    a.label("P1_tagpoll")
    a(f"buffer_load_dwordx2 v[10:11], off, {sr(SDBG,4)}, 0 sc1")
    a("s_add_u32 s3, s3, 1")
    a("s_waitcnt vmcnt(0)")
    a("v_cmp_eq_u32 vcc, 0, v10")
    a("s_cmp_gt_u32 s3, 0x400000")
    a("s_cbranch_scc1 P1_tagdone")
    a("s_cbranch_vccnz P1_tagpoll")
    a.label("P1_tagdone")
    a(f"ds_write_b64 v2, v[10:11] offset:{L_TAG}")
    a.label("P1_notag")
    a("s_lshl_b32 s62, s37, 12")
    a("s_lshl_b32 s3, s33, 8")
    a("s_add_u32 s62, s62, s3")
    a("s_lshl_b32 s3, s38, 7")
    a("s_add_u32 s62, s62, s3")
    a(f"s_add_u32 s62, s62, {FL2}")
    a("s_waitcnt lgkmcnt(0)")
    a("s_barrier")
    a(f"ds_read_b64 v[10:11], v2 offset:{L_TAG}")
    a("s_setprio 3")
    a("s_waitcnt lgkmcnt(0)")
    a(f"v_readfirstlane_b32 s{TAG}, v10")
    a(f"v_readfirstlane_b32 s{TAG+1}, v11")
    a("s_lshl_b32 s3, s33, 7")
    a("s_lshl_b32 s4, s36, 3")
    a("s_add_u32 s33, s3, s4")
    a("s_mov_b32 s63, s38")
    a("s_and_b32 s38, s2, 7")
    a("s_lshl_b32 s13, s38, 2")
    a("s_lshr_b32 s3, s2, 3")
    a("s_and_b32 s36, s3, 3")
    a("s_lshr_b32 s37, s3, 2")
    a("s_add_u32 s13, s13, s36")
    a("s_mov_b32 s36, s13")
    a("s_lshr_b32 s14, s2, 5")
    a("s_cmp_lg_u32 s28, 2")
    a("s_cbranch_scc1 H_nf1")
    a("s_lshl_b32 s19, s38, 12")
    a(f"s_add_u32 s19, s19, {FL1}")
    lds_poll(a, 2, 3, C_B, 4, sleep=2)
    flag_poll(a, 10, 19, SWS, sleep=2)
    lds_add(a, 2, 3, F_F1)
    a.label("H_nf1")
    a("s_cmp_lg_u32 s28, 3")
    a("s_cbranch_scc1 H_nfq")
    a("s_lshl_b32 s19, s38, 11")
    a("s_lshl_b32 s3, s14, 8")
    a("s_add_u32 s19, s19, s3")
    a(f"s_add_u32 s19, s19, {FLQ}")
    lds_poll(a, 2, 3, C_B, 4, sleep=2)
    flag_poll(a, 10, 19, SWS, mask=1, sleep=4)
    lds_add(a, 2, 3, F_Q)
    a.label("H_nfq")
    lds_poll(a, 2, 3, F_F1, 1, sleep=2)
    stamp(a, 2)
    a("s_lshl_b32 s18, s28, 10")
    a("s_lshl_b32 s17, s13, 17")
    a(f"s_add_u32 s17, s17, {WS_KVB}")
    a("s_add_u32 s17, s17, s18")
    a("v_add_u32 v4, s18, v1")
    R = [16, 48]

    def kv_issue(Rb):
        for i in range(8):
            a(f"s_add_u32 s19, s17, {i*4096}")
            a(f"buffer_load_dwordx4 {vr(Rb+4*i,4)}, v1, {sr(SWS,4)}, s19 offen sc1")
        a("s_add_u32 s17, s17, 32768")

    def kv_write(Rb, later, first=False):
        for i in range(8):
            a(f"s_waitcnt vmcnt({later + 7 - i})")
            a(f"ds_write_b128 v4, {vr(Rb+4*i,4)} offset:{i*4096}")
            if first and i == 4:
                a("s_waitcnt lgkmcnt(0)")
                lds_add(a, 2, 3, C_S0)
        a("v_add_u32 v4, 32768, v4")
        a("s_waitcnt lgkmcnt(0)")
    kv_issue(R[0])
    kv_write(R[0], 0, first=True)
    kv_issue(R[1])
    kv_issue(R[0])
    kv_write(R[1], 8)
    lds_add(a, 2, 3, C_S1)
    kv_issue(R[1])
    a("s_cmp_lg_u32 s63, 0")
    a("s_cbranch_scc1 H_nored")
    lds_poll(a, 2, 3, C_RED2, 8)
    a.label("H_nored")
    kv_write(R[0], 8)
    kv_write(R[1], 0)
    lds_add(a, 2, 3, C_S2)
    stamp(a, 3)
    a("s_cmp_lg_u32 s28, 0")
    a("s_cbranch_scc1 H_nogate")
    srd(a, SGW, P_GW, 1024)
    srd(a, 24, P_X, 2 * MB)
    a("v_lshrrev_b32 v8, 3, v0")
    a("v_add_u32 v8, s33, v8")
    a("v_and_b32 v3, 7, v0")
    a("v_lshlrev_b32 v3, 4, v3")
    a("v_lshlrev_b32 v4, 10, v8")
    a("v_add_u32 v4, v4, v3")
    for j in range(8):
        a(f"buffer_load_dwordx4 {vr(16+4*j,4)}, v4, s[24:27], 0 offen offset:{j*128}")
        a(f"buffer_load_dwordx4 {vr(48+4*j,4)}, v3, {sr(SGW,4)}, 0 offen offset:{j*128}")
    a("v_mov_b32 v5, 0")
    a("v_mov_b32 v6, 0")
    a("s_waitcnt vmcnt(0)")
    for j in range(16):
        a(f"v_dot2_f32_bf16 v5, v{16+2*j}, v{48+2*j}, v5")
        a(f"v_dot2_f32_bf16 v6, v{17+2*j}, v{49+2*j}, v6")
    a("s_nop 3")
    a("v_add_f32 v5, v5, v6")
    for off in (0x041F, 0x081F, 0x101F):
        a(f"ds_swizzle_b32 v6, v5 offset:{off}")
        a("s_waitcnt lgkmcnt(0)")
        a("v_add_f32 v5, v5, v6")
    a("v_cvt_pk_bf16_f32 v5, v5, v5")
    a("v_lshlrev_b32 v5, 16, v5")
    a(f"v_mul_f32 v5, {f32bits(-LOG2E):#x}, v5")
    a("v_exp_f32 v5, v5")
    a("s_nop 0")
    a("v_add_f32 v5, 1.0, v5")
    a("v_rcp_f32 v5, v5")
    a("s_nop 0")
    a("v_cvt_pk_bf16_f32 v5, v5, v5")
    a("v_lshlrev_b32 v5, 16, v5")
    a("v_lshlrev_b32 v8, 2, v8")
    a(f"v_add_u32 v8, {WS_G}, v8")
    a(f"buffer_store_dword v5, v8, {sr(SWS,4)}, 0 offen sc1")
    a("s_waitcnt vmcnt(0)")
    lds_add(a, 2, 3, C_A, rtn=True)
    a("s_cmp_lg_u32 s3, 8")
    a("s_cbranch_scc1 H_nogate")
    flag_write(a, 10, 62, SWS)
    a.label("H_nogate")
    KP = 16
    PH = 80
    a("s_lshl_b32 s19, s13, 3")
    a("s_lshl_b32 s21, s28, 1")
    a("s_add_u32 s19, s19, s21")
    a("s_lshl_b32 s24, s19, 8")
    a(f"s_add_u32 s24, s24, {WS_KVP}")
    a("s_lshl_b32 s25, s19, 4")
    a(f"s_add_u32 s25, s25, {WS_ZP}")
    a("v_lshrrev_b32 v4, 5, v0")
    a("v_and_b32 v5, 15, v0")
    a("v_lshlrev_b32 v6, 7, v4")
    a("v_lshlrev_b32 v5, 3, v5")
    a("v_add3_u32 v6, v6, v5, s24")
    a("v_lshlrev_b32 v4, 3, v4")
    a("v_add_u32 v4, s25, v4")
    a("v_and_b32 v5, 16, v0")
    a("v_cmp_ne_u32 s[24:25], 0, v5")
    a("v_mov_b32 v7, 4096")
    a("v_mov_b32 v8, 65536")
    a("v_mov_b32 v9, 256")
    a("v_cndmask_b32 v6, v6, v4, s[24:25]")
    a("v_cndmask_b32 v7, v8, v7, s[24:25]")
    a("v_cndmask_b32 v9, v9, 16, s[24:25]")
    a("v_add_u32 v8, v6, v9")
    a("s_cmp_lg_u32 s28, 0")
    a("s_cbranch_scc1 H_nf2")
    a("s_lshl_b32 s19, s38, 12")
    a(f"s_add_u32 s19, s19, {FL2}")
    lds_poll(a, 2, 3, C_A, 9, sleep=LS)
    flag_poll(a, 10, 19, SWS, sleep=LS)
    lds_add(a, 2, 3, F_F2)
    a.label("H_nf2")
    lds_poll(a, 2, 3, F_F2, 1, sleep=LS)
    a.label("HM_f2")
    for rb in range(16):
        a(f"buffer_load_dwordx2 {vr(KP+2*rb,2)}, v6, {sr(SWS,4)}, 0 offen sc1")
        a(f"buffer_load_dwordx2 {vr(KP+32+2*rb,2)}, v8, {sr(SWS,4)}, 0 offen sc1")
        if rb < 15:
            a("v_add_u32 v6, v6, v7")
            a("v_add_u32 v8, v8, v7")
    a("s_lshl_b32 s15, s14, 3")
    a("s_add_u32 s15, s15, s21")
    a("s_lshl_b32 s16, s13, 6")
    a("s_add_u32 s16, s16, s15")
    a("s_lshl_b32 s19, s16, 11")
    a(f"s_add_u32 s19, s19, {WS_PHIQ}")
    for k in range(4):
        a(f"buffer_load_dwordx4 {vr(PH+4*k,4)}, v1, {sr(SWS,4)}, s19 offen offset:{k*1024} sc1")
    a("v_lshlrev_b32 v4, 5, v0")
    a(f"v_add_u32 v4, {XCH}, v4")
    a("s_lshl_b32 s3, s28, 3")
    a("v_add_u32 v5, s3, v4")
    a("s_waitcnt vmcnt(4)")
    for st in (8, 4, 2, 1):
        for i in range(st):
            for g in range(2):
                b = KP + 32 * g
                a(f"v_pk_add_f32 {vr(b+2*i,2)}, {vr(b+2*i,2)}, {vr(b+2*(i+st),2)}")
    a(f"v_cvt_pk_bf16_f32 v{KP}, v{KP}, v{KP+1}")
    a(f"v_cvt_pk_bf16_f32 v{KP+1}, v{KP+32}, v{KP+33}")
    a(f"ds_write_b64 v5, {vr(KP,2)}")
    a("s_waitcnt lgkmcnt(0)")
    lds_add(a, 2, 3, C_XCH)
    lds_poll(a, 2, 3, C_XCH, 4)
    a(f"ds_read_b128 {vr(KP,4)}, v4")
    a(f"ds_read_b128 {vr(KP+4,4)}, v4 offset:16")
    D = [32, 48]
    a("s_waitcnt vmcnt(0) lgkmcnt(0)")
    for k in range(2):
        mfma(a, D[k], KP, PH + 8 * k, "0")
        mfma(a, D[k], KP + 4, PH + 8 * k + 4, D[k])
    a("s_lshl_b32 s20, s16, 10")
    a(f"s_add_u32 s20, s20, {WS_O}")
    srd(a, SWO, P_WOA, 512 * 512 * 2)
    a("s_nop 5")
    for k in range(2):
        a(f"v_add_f32 v{10+2*k}, {f32bits(1e-6):#x}, v{D[k]+8}")
    for k in range(2):
        a(f"v_rcp_f32 v{10+2*k}, v{10+2*k}")
    a("s_nop 0")
    for k in range(2):
        for i in range(4):
            a(f"v_pk_mul_f32 {vr(D[k]+2*i,2)}, {vr(D[k]+2*i,2)}, {vr(10+2*k,2)} op_sel_hi:[1,0]")
    for k in range(2):
        for i in range(4):
            a(f"v_cvt_pk_bf16_f32 v{64+4*k+i}, v{D[k]+2*i}, v{D[k]+2*i+1}")
        a(f"buffer_store_dwordx4 {vr(64+4*k,4)}, v1, {sr(SWS,4)}, s20 offen offset:{k*1024} sc1")
    a(f"s_mul_i32 s21, s28, 6144")
    a(f"s_add_u32 s21, s21, {RING}")
    VD, VW0, VW1, VO = 4, 5, 6, 8
    proj_addr(a, 28, 21, VD, VW0, VW1, VO)
    a("s_lshl_b32 s22, s28, 17")
    a("s_lshl_b32 s3, s37, 7")
    a("s_add_u32 s22, s22, s3")
    a("s_lshl_b32 s23, s28, 19")
    a("s_lshl_b32 s3, s36, 11")
    a("s_add_u32 s23, s23, s3")
    a(f"s_add_u32 s23, s23, {WS_O}")
    a("s_waitcnt vmcnt(0)")
    lds_add(a, 2, 3, C_OA, rtn=True)
    a("s_cmp_lg_u32 s3, 3")
    a("s_cbranch_scc1 H_h1")
    a("s_lshl_b32 s19, s14, 12")
    a("s_lshl_b32 s3, s13, 7")
    a("s_add_u32 s19, s19, s3")
    a(f"s_add_u32 s19, s19, {FL3A}")
    flag_write(a, 10, 19, SWS)
    a.label("H_h1")
    a("s_cmp_lg_u32 s28, 0")
    a("s_cbranch_scc1 H_h2")
    a("s_lshl_b32 s19, s38, 12")
    a(f"s_add_u32 s19, s19, {FL3A}")
    flag_poll(a, 10, 19, SWS, sleep=LS)
    lds_add(a, 2, 3, F_3A)
    a.label("H_h2")
    lds_poll(a, 2, 3, F_3A, 1, sleep=LS)
    a.label("HM_3a")
    ACC = 16
    OF = 80
    WF = 104

    def issueA(t):
        sl = OF + 8 * (t % 3)
        a(f"s_add_u32 m0, s21, {(t%3)*2048}")
        a(f"s_add_u32 s3, s22, {t*16384}")
        a(f"buffer_load_dwordx4 v{VD}, {sr(SWO,4)}, s3 offen lds")
        a(f"s_add_u32 m0, s21, {(t%3)*2048+1024}")
        a(f"s_add_u32 s3, s22, {t*16384+8192}")
        a(f"buffer_load_dwordx4 v{VD}, {sr(SWO,4)}, s3 offen lds")
        a(f"s_add_u32 s3, s23, {t*65536}")
        a(f"buffer_load_dwordx4 {vr(sl,4)}, v{VO}, {sr(SWS,4)}, s3 offen sc1")
        a(f"buffer_load_dwordx4 {vr(sl+4,4)}, v{VO+1}, {sr(SWS,4)}, s3 offen sc1")

    a("v_and_b32 v12, 31, v0")
    a("s_lshl_b32 s3, s36, 6")
    a("s_lshr_b32 s19, s28, 1")
    a("s_lshl_b32 s19, s19, 5")
    a("s_add_u32 s3, s3, s19")
    a("v_add_u32 v12, s3, v12")
    a("v_lshlrev_b32 v12, 2, v12")
    a(f"v_add_u32 v12, {WS_G}, v12")
    a(f"buffer_load_dword v14, v12, {sr(SWS,4)}, 0 offen sc1")
    issueA(0)
    issueA(1)
    for i in range(0, 64, 2):
        a(f"v_mov_b64 {vr(ACC+i,2)}, 0")
    for t in range(8):
        if t + 2 < 8:
            issueA(t + 2)
            a("s_waitcnt vmcnt(8)")
        else:
            a(f"s_waitcnt vmcnt({4*(7-t)})")
        o = (t % 3) * 2048
        a(f"ds_read_b64_tr_b16 {vr(WF,2)}, v{VW0} offset:{o}")
        a(f"ds_read_b64_tr_b16 {vr(WF+2,2)}, v{VW0} offset:{o+1024}")
        a(f"ds_read_b64_tr_b16 {vr(WF+4,2)}, v{VW1} offset:{o}")
        a(f"ds_read_b64_tr_b16 {vr(WF+6,2)}, v{VW1} offset:{o+1024}")
        sl = OF + 8 * (t % 3)
        a("s_waitcnt lgkmcnt(0)")
        mfma(a, ACC, WF, sl, ACC)
        mfma(a, ACC + 32, WF, sl + 4, ACC + 32)
        mfma(a, ACC + 16, WF + 4, sl, ACC + 16)
        mfma(a, ACC + 48, WF + 4, sl + 4, ACC + 48)
    stamp(a, 4)
    a.label("HM_ap")
    srd(a, 44, P_WOB, 512 * 512 * 2)
    a("s_lshr_b32 s3, s2, 3")
    a("s_lshl_b32 s3, s3, 2")
    a("s_add_u32 s3, s3, s28")
    a("s_lshl_b32 s3, s3, 12")
    for i in range(4):
        a(f"buffer_load_dwordx4 {vr(112+4*i,4)}, v1, s[44:47], s3 offen offset:{i*1024}")
    a("s_setprio 0")
    lds_poll(a, 2, 3, C_OB, 8, sleep=LS2)
    a("s_setprio 3")
    a("s_lshl_b32 s19, s28, 14")
    a("s_add_u32 s19, s19, 65536")
    a("v_add_u32 v10, s19, v1")
    for j in range(1, 4):
        for q in range(4):
            a(f"ds_write_b128 v10, {vr(ACC+16*j+4*q,4)} offset:{j*4096+q*1024}")
    a("s_waitcnt lgkmcnt(0)")
    lds_add(a, 2, 3, C_AR)
    lds_poll(a, 2, 3, C_AR, 4)
    for j in range(1, 4):
        a(f"v_xor_b32 v11, {j*16384}, v10")
        for q in range(4):
            a(f"ds_read_b128 {vr(ACC+16*j+4*q,4)}, v11 offset:{j*4096+q*1024}")
    a("s_waitcnt lgkmcnt(0)")
    for i in range(8):
        a(f"v_pk_add_f32 {vr(ACC+2*i,2)}, {vr(ACC+2*i,2)}, {vr(ACC+16+2*i,2)}")
        a(f"v_pk_add_f32 {vr(ACC+32+2*i,2)}, {vr(ACC+32+2*i,2)}, {vr(ACC+48+2*i,2)}")
    for i in range(8):
        a(f"v_pk_add_f32 {vr(ACC+2*i,2)}, {vr(ACC+2*i,2)}, {vr(ACC+32+2*i,2)}")
    for i in range(8):
        a(f"v_pk_mul_f32 {vr(ACC+2*i,2)}, {vr(ACC+2*i,2)}, v[14:15] op_sel_hi:[1,0]")
    for q in range(4):
        a(f"ds_write_b128 v10, {vr(ACC+4*q,4)} offset:{q*1024}")
    a("s_waitcnt lgkmcnt(0)")
    stamp(a, 5)
    a.label("HM_fin")
    a("s_barrier")
    a.label("HM_end")
    a("s_branch K_flush" if STAMP else "s_branch K_end")

    a.label("P1_compute")
    ACC1 = lambda rt, j: 16 + 48 * rt + 16 * j
    FS = [112, 132]
    F0 = 64
    VF = 72
    WPH = 96
    PD = [104, 120]
    T0 = [136, 152]
    AX, AWD = 4, 8
    IP, IM = 88, 92
    BV = [96, 64]
    TT = [16, 32]
    KV = [136, 152]
    a("s_sub_u32 s12, s28, 4")
    if "nodry" not in EXP:
        a("s_mov_b32 s46, 1")
        a("s_cmp_eq_u32 s12, 4")
        a("s_cbranch_scc1 P1_feat")
        a("v_lshlrev_b32 v1, 4, v0")
        a("s_mov_b32 s20, 0x0000ffff")
        a("s_mov_b32 s21, 0x0000ffff")
        a("s_mov_b32 s29, 2")
        a("s_cmp_eq_u32 s12, 5")
        a("s_cbranch_scc1 P2_restart")
    a.label("P1_setup")
    a("s_mov_b32 s46, 0")
    a("s_and_b32 s30, s12, 1")
    a("s_lshr_b32 s48, s12, 1")
    a("s_and_b32 s48, s48, 1")
    a("s_lshr_b32 s31, s12, 2")
    a("s_lshl_b32 s32, s30, 1")
    a("s_add_u32 s32, s32, s31")
    a("v_and_b32 v1, 31, v0")
    a("v_lshrrev_b32 v2, 5, v0")
    a("v_lshrrev_b32 v3, 1, v1")
    a("v_and_b32 v3, 7, v3")
    a("v_xor_b32 v3, v3, v2")
    a("v_lshlrev_b32 v3, 4, v3")
    a("s_lshl_b32 s3, s30, 6")
    a("v_add_u32 v4, s3, v1")
    a("v_lshlrev_b32 v4, 7, v4")
    a("v_add_u32 v4, v4, v3")
    for t in range(1, 4):
        a(f"v_xor_b32 v{AX+t}, {32*t}, v4")
    a("v_and_b32 v3, 15, v0")
    a("v_lshrrev_b32 v8, 2, v3")
    a("v_lshlrev_b32 v9, 3, v2")
    a("v_add_u32 v8, v8, v9")
    a("v_lshlrev_b32 v8, 7, v8")
    a("v_and_b32 v9, 8, v0")
    a("v_lshlrev_b32 v9, 3, v9")
    a("s_lshl_b32 s3, s48, 6")
    a("v_xor_b32 v9, s3, v9")
    a("v_add_u32 v8, v8, v9")
    a("v_and_b32 v9, 16, v0")
    a("v_cmp_ne_u32 s[6:7], 0, v9")
    a("v_lshlrev_b32 v9, 1, v9")
    a("v_add_u32 v8, v8, v9")
    a("v_and_b32 v9, 3, v0")
    a("v_lshlrev_b32 v9, 3, v9")
    a("v_add_u32 v8, v8, v9")
    a("v_add_u32 v8, 16384, v8")
    a("s_lshl_b32 s51, s37, 2")
    a("s_lshl_b32 s3, s48, 1")
    a("s_add_u32 s51, s51, s3")
    a("v_lshrrev_b32 v10, 2, v3")
    a("v_lshlrev_b32 v11, 2, v2")
    a("v_add_u32 v10, v10, v11")
    a("v_lshlrev_b32 v10, 5, v10")
    a("s_lshl_b32 s3, s48, 10")
    a(f"s_add_u32 s3, s3, {PHL}")
    a("v_add3_u32 v10, v10, v9, s3")
    a("v_lshlrev_b32 v9, 4, v0")
    a(f"v_mov_b32 v3, {CNTS}")
    a("s_and_b32 s3, s12, 3")
    a("s_lshl_b32 s3, s3, 12")
    a(f"s_add_u32 s3, s3, {RING}")
    a("v_add_u32 v11, s3, v9")
    a("s_lshl_b32 s62, s37, 12")
    a("s_lshl_b32 s3, s33, 8")
    a("s_add_u32 s62, s62, s3")
    a("s_lshl_b32 s3, s38, 7")
    a("s_add_u32 s62, s62, s3")
    a(f"s_add_u32 s63, s62, {FL1}")
    a(f"s_add_u32 s62, s62, {FL2}")
    a("s_lshl_b32 s39, s37, 11")
    a("s_lshl_b32 s3, s33, 7")
    a("s_add_u32 s39, s39, s3")
    a(f"s_add_u32 s39, s39, {FLQ}")
    a("s_lshl_b32 s50, s33, 2")
    a("s_add_u32 s50, s50, s32")
    a("s_lshl_b32 s29, s51, 6")
    a("s_add_u32 s29, s29, s50")
    a("v_lshlrev_b32 v12, 2, v2")
    a("v_sub_u32 v12, v1, v12")
    a("v_mov_b32 v13, 0x3f80")
    a("v_mov_b32 v14, 0x3f800000")
    for k, add in ((0, 0), (4, 16)):
        for p in range(4):
            f0 = (2 * p if p < 2 else 8 + 2 * (p - 2)) + add
            a(f"v_cmp_eq_u32 s[4:5], {f0}, v12")
            a(f"v_cmp_eq_u32 s[30:31], {f0+1}, v12")
            a("s_nop 1")
            a(f"v_cndmask_b32 v15, 0, v13, s[4:5]")
            a(f"v_cndmask_b32 v{152+k+p}, v15, v14, s[30:31]")
    a("s_lshl_b32 s3, s48, 2")
    a("s_add_u32 s3, s3, s32")
    a("s_lshl_b32 s3, s3, 13")
    a(f"s_add_u32 s3, s3, {RED}")
    a("v_add_u32 v160, s3, v9")
    a("s_lshl_b32 s3, s32, 11")
    a("s_lshl_b32 s4, s48, 15")
    a("s_add_u32 s3, s3, s4")
    a(f"s_add_u32 s3, s3, {RED}")
    a("v_add_u32 v161, s3, v9")
    a("s_lshr_b32 s3, s32, 1")
    a("s_lshl_b32 s4, s3, 4")
    a("v_xor_b32 v12, s4, v1")
    a("s_lshl_b32 s4, s33, 5")
    a("s_add_u32 s4, s4, s51")
    a("s_add_u32 s4, s4, s3")
    a("s_lshl_b32 s4, s4, 3")
    a("s_and_b32 s5, s32, 1")
    a("s_lshl_b32 s5, s5, 2")
    a("s_add_u32 s4, s4, s5")
    a("s_lshl_b32 s5, s4, 8")
    a(f"s_add_u32 s5, s5, {WS_KVP}")
    a("s_lshl_b32 s4, s4, 4")
    a(f"s_add_u32 s4, s4, {WS_ZP}")
    a("v_lshlrev_b32 v13, 7, v2")
    a("v_lshlrev_b32 v14, 3, v12")
    a("v_add3_u32 v13, v13, v14, s5")
    a("v_lshlrev_b32 v14, 3, v2")
    a("v_add_u32 v14, s4, v14")
    a("v_cmp_gt_u32 s[4:5], 16, v12")
    a("v_cmp_eq_u32 s[30:31], 16, v12")
    a("v_mov_b32 v15, 0x7ffff000")
    a("v_mov_b32 v163, 256")
    a("v_cndmask_b32 v14, v15, v14, s[30:31]")
    a("v_cndmask_b32 v162, v14, v13, s[4:5]")
    a("v_cndmask_b32 v163, 16, v163, s[4:5]")
    a("v_and_b32 v164, 16, v0")
    a("v_lshlrev_b32 v164, 13, v164")
    a("v_and_b32 v15, 0x2f, v0")
    a("v_lshlrev_b32 v15, 4, v15")
    a("v_add_u32 v164, v164, v15")
    a("s_waitcnt lgkmcnt(0)")
    srd(a, SWS, P_WS, WS_SIZE)
    a("s_cmp_lt_u32 s12, 4")
    a("s_cbranch_scc1 P1_gemm")
    if "nocpf" not in EXP:
        a("s_getpc_b64 s[4:5]")
        a.label("P1_pc")
        a(f"s_sub_u32 s4, s4, P1_pc-{kn}")
        a("s_subb_u32 s5, s5, 0")
        a("s_sub_u32 s3, s12, 4")
        a("s_lshl_b32 s3, s3, 13")
        a("v_lshlrev_b32 v12, 7, v0")
        a("v_add_u32 v12, s3, v12")
        a(f"v_min_u32 v12, K_last-{kn}, v12")
        a("global_load_dword v13, v12, s[4:5]")
    a("s_mov_b32 s49, 0")
    a.label("P1_idle")
    a("s_barrier")
    a("s_add_u32 s49, s49, 1")
    a("s_cmp_lt_u32 s49, 9")
    a("s_cbranch_scc1 P1_idle")
    a("s_waitcnt vmcnt(0)")
    for h in range(2):
        a(f"ds_read_b64_tr_b16 {vr(WPH+4*h,2)}, v10 offset:{h*512}")
        a(f"ds_read_b64_tr_b16 {vr(WPH+4*h+2,2)}, v10 offset:{h*512+256}")
    a(f"ds_read_b64 v[12:13], v3 offset:{L_TAG}")
    for i_ in (1, 2, 3, 4):
        stamp(a, i_)
    a("s_waitcnt lgkmcnt(0)")
    a(f"v_readfirstlane_b32 s{TAG}, v12")
    a(f"v_readfirstlane_b32 s{TAG+1}, v13")
    lds_poll(a, 3, 12, C_H, 4)
    for q in range(4):
        a(f"ds_read_b128 {vr(F0+4*q,4)}, v11 offset:{q*1024}")
    a("s_waitcnt lgkmcnt(0)")
    a("s_branch P1_feat")

    a.label("P1_gemm")
    for i in range(0, 96, 2):
        a(f"v_mov_b64 {vr(16+i,2)}, 0")

    def reads(F, t):
        w = lambda j, hf: f"ds_read_b64_tr_b16 {vr(F+8+4*j+2*hf,2)}, v{AWD} offset:{j*8192 + t*2048 + 512*hf}"
        return [f"ds_read_b128 {vr(F,4)}, v{AX+t}", w(2, 0), w(2, 1),
                f"ds_read_b128 {vr(F+4,4)}, v{AX+t} offset:4096", w(1, 0), w(1, 1), w(0, 0), w(0, 1)]

    def main_loop(tag, typeK):
        def m(F, k):
            rt, j = k & 1, 2 - (k >> 1)
            X, W = F + 4 * rt, F + 8 + 4 * j
            if typeK and j > 0:
                mfma(a, ACC1(rt, j), X, W, ACC1(rt, j))
            else:
                mfma(a, ACC1(rt, j), W, X, ACC1(rt, j))

        def step(F, R):
            a("s_waitcnt lgkmcnt(5)")
            m(F, 0)
            a(R[0]); a(R[1])
            a("s_waitcnt lgkmcnt(6)")
            m(F, 1)
            a(R[2]); a(R[3])
            a("s_waitcnt lgkmcnt(6)")
            m(F, 2)
            a(R[4]); a(R[5])
            m(F, 3)
            a(R[6]); a(R[7])
            a("s_waitcnt lgkmcnt(8)")
            m(F, 4)
            m(F, 5)
        a.label(f"P1_loop{tag}")
        step(FS[0], reads(FS[1], 1))
        step(FS[1], reads(FS[0], 2))
        step(FS[0], reads(FS[1], 3))
        F = FS[1]
        a("s_waitcnt lgkmcnt(0)")
        m(F, 0)
        m(F, 1)
        a("s_barrier")
        a("s_cmp_eq_u32 s49, 7")
        a(f"s_cbranch_scc1 P1_last{tag}")
        a("s_add_u32 s50, s50, 1")
        a(f"s_mov_b32 s3, {STAGE}")
        a("s_cmp_eq_u32 s50, 3")
        a(f"s_cselect_b32 s3, {(-2*STAGE) & 0xffffffff}, s3")
        a("s_cselect_b32 s50, 0, s50")
        a(f"v_add_u32 v{AX}, s3, v{AX}")
        a(f"v_add_u32 v{AWD}, s3, v{AWD}")
        R = reads(FS[0], 0)
        a(R[0]); a(R[1]); a(R[2])
        m(F, 2)
        a(R[3]); a(R[4]); a(R[5])
        m(F, 3)
        a(R[6]); a(R[7])
        for r in range(AX + 1, AX + 4):
            a(f"v_add_u32 v{r}, s3, v{r}")
        m(F, 4)
        a("s_add_u32 s49, s49, 1")
        m(F, 5)
        a(f"s_branch P1_loop{tag}")
        a.label(f"P1_last{tag}")
        for k in range(2, 6):
            m(F, k)
        a(f"ds_read_b64 v[12:13], v3 offset:{L_TAG}")
        stamp(a, 3)
        a("s_lshl_b32 s4, s29, 11")
        a(f"s_add_u32 s4, s4, {WS_KVB}")
        a(f"s_add_u32 s5, s4, {64*2048}")
        a("s_nop 3")
        for rt in range(2):
            for i in range(8):
                a(f"v_cvt_pk_bf16_f32 v{112+8*rt+i}, v{ACC1(rt,2)+2*i}, v{ACC1(rt,2)+2*i+1}")

    a("s_mov_b32 s49, 0")
    a("s_mov_b32 s50, 0")
    stamp(a, 1)
    a("s_barrier")
    stamp(a, 2)
    if STAMP:
        a("s_waitcnt lgkmcnt(0)")
    for r in reads(FS[0], 0):
        a(r)
    a("s_cmp_eq_u32 s38, 0")
    a("s_cbranch_scc1 P1_loopK")
    main_loop("Q", False)
    for rt in range(2):
        a(f"buffer_store_dwordx4 {vr(112+8*rt,4)}, v9, {sr(SWS,4)}, s4 offen offset:{rt*2048} sc1")
        a(f"buffer_store_dwordx4 {vr(116+8*rt,4)}, v9, {sr(SWS,4)}, s5 offen offset:{rt*2048} sc1")
    a("s_branch P1_hand")
    main_loop("K", True)
    for rt in range(2):
        a(f"buffer_store_dwordx4 {vr(112+8*rt,4)}, v164, {sr(SWS,4)}, s4 offen offset:{rt*2048+1024} sc1")
        a(f"buffer_store_dwordx4 {vr(116+8*rt,4)}, v164, {sr(SWS,4)}, s4 offen offset:{rt*2048+1280} sc1")
    a.label("P1_hand")
    for i in range(8):
        a(f"v_cvt_pk_bf16_f32 v{136+i}, v{ACC1(1,0)+2*i}, v{ACC1(1,0)+2*i+1}")
    for i in range(8):
        a(f"v_cvt_pk_bf16_f32 v{144+i}, v{ACC1(1,1)+2*i}, v{ACC1(1,1)+2*i+1}")
    for q in range(4):
        a(f"ds_write_b128 v11, {vr(136+4*q,4)} offset:{q*1024}")
    for h in range(2):
        a(f"ds_read_b64_tr_b16 {vr(WPH+4*h,2)}, v10 offset:{h*512}")
        a(f"ds_read_b64_tr_b16 {vr(WPH+4*h+2,2)}, v10 offset:{h*512+256}")
    for i in range(8):
        a(f"v_cvt_pk_bf16_f32 v{F0+i}, v{ACC1(0,0)+2*i}, v{ACC1(0,0)+2*i+1}")
    for i in range(8):
        a(f"v_cvt_pk_bf16_f32 v{VF+i}, v{ACC1(0,1)+2*i}, v{ACC1(0,1)+2*i+1}")
    a("s_waitcnt lgkmcnt(0)")
    a(f"v_readfirstlane_b32 s{TAG}, v12")
    a(f"v_readfirstlane_b32 s{TAG+1}, v13")
    lds_add(a, 3, 12, C_H)
    a("s_waitcnt vmcnt(0)")
    lds_add(a, 3, 6, C_B, rtn=True)
    a("s_cmp_lg_u32 s3, 3")
    a("s_cbranch_scc1 P1_nofl1")
    flag_write(a, 6, 63, SWS)
    a.label("P1_nofl1")
    stamp(a, 4)
    a("s_cmp_eq_u32 s38, 0")
    a("s_cbranch_scc1 P1_feat")
    a(f"s_mov_b32 s30, {f32bits(0.25*LOG2E):#x}")
    a("s_mov_b32 s31, s30")
    a("s_lshl_b32 s4, s29, 10")
    a(f"s_add_u32 s5, s4, {64*1024}")
    for rt in range(2):
        for i in range(8):
            a(f"v_pk_mul_f32 {vr(ACC1(rt,1)+2*i,2)}, {vr(ACC1(rt,1)+2*i,2)}, s[30:31]")
        for i in range(8):
            a(f"v_cvt_pk_bf16_f32 v{16+8*rt+i}, v{ACC1(rt,1)+2*i}, v{ACC1(rt,1)+2*i+1}")
        a(f"buffer_store_dwordx4 {vr(16+8*rt,4)}, v9, {sr(SWS,4)}, s4 offen offset:{rt*1024} sc1")
        a(f"buffer_store_dwordx4 {vr(20+8*rt,4)}, v9, {sr(SWS,4)}, s5 offen offset:{rt*1024} sc1")
    a.label("P1_feat")
    for i in range(0, 8, 2):
        a(f"v_mov_b64 {vr(IP+i,2)}, {vr(152+i,2)}")
    a("v_mov_b64 v[56:57], v[160:161]")
    a("v_mov_b64 v[58:59], v[162:163]")
    a(f"s_mov_b32 s30, {f32bits(LOG2E):#x}")
    a("s_mov_b32 s31, s30")
    mfma(a, PD[0], WPH, F0, "0")
    mfma(a, PD[1], WPH + 4, F0 + 4, "0")
    a("s_nop 7")
    a("s_nop 2")
    H = (0, 1)
    M = [(10, 12, 11, 13), (14, 4, 15, 5)]
    for h in H:
        P = PD[h]
        a(f"v_max3_f32 v{M[h][0]}, v{P}, v{P+1}, v{P+2}")
        a(f"v_min3_f32 v{M[h][1]}, v{P}, v{P+1}, v{P+2}")
    for o in (3, 5):
        for h in H:
            P = PD[h]
            a(f"v_max3_f32 v{M[h][0]}, v{M[h][0]}, v{P+o}, v{P+o+1}")
            a(f"v_min3_f32 v{M[h][1]}, v{M[h][1]}, v{P+o}, v{P+o+1}")
    for h in H:
        P = PD[h]
        a(f"v_max_f32 v{M[h][0]}, v{M[h][0]}, v{P+7}")
        a(f"v_min_f32 v{M[h][1]}, v{M[h][1]}, v{P+7}")
    for h in H:
        a(f"v_mov_b32 v{M[h][2]}, v{M[h][0]}")
        a(f"v_mov_b32 v{M[h][3]}, v{M[h][1]}")
    a("s_nop 1")
    for h in H:
        a(f"v_permlane32_swap_b32 v{M[h][0]}, v{M[h][2]}")
        a(f"v_permlane32_swap_b32 v{M[h][1]}, v{M[h][3]}")
    a("s_nop 1")
    for h in H:
        a(f"v_max_f32 v{M[h][0]}, v{M[h][0]}, v{M[h][2]}")
        a(f"v_min_f32 v{M[h][1]}, v{M[h][1]}, v{M[h][3]}")
    for h in H:
        a(f"v_mul_f32 v{M[h][0]}, s30, v{M[h][0]}")
        a(f"v_mul_f32 v{M[h][1]}, s30, v{M[h][1]}")
    for i in range(4):
        for h in H:
            a(f"v_pk_fma_f32 {vr(T0[h]+2*i,2)}, {vr(PD[h]+2*i,2)}, s[30:31], {vr(M[h][0],2)} op_sel_hi:[1,1,0] neg_lo:[0,0,1] neg_hi:[0,0,1]")
            a(f"v_pk_fma_f32 {vr(T0[h]+8+2*i,2)}, {vr(PD[h]+2*i,2)}, s[30:31], {vr(M[h][1],2)} op_sel_hi:[1,1,0] neg_lo:[1,0,0] neg_hi:[1,0,0]")
    for i in range(16):
        for h in H:
            a(f"v_exp_f32 v{T0[h]+i}, v{T0[h]+i}")
    for h in H:
        for g in range(2):
            a(f"v_pk_add_f32 {vr(PD[h]+4*g,2)}, {vr(T0[h]+8*g,2)}, {vr(T0[h]+8*g+2,2)}")
            a(f"v_pk_add_f32 {vr(PD[h]+4*g+2,2)}, {vr(T0[h]+8*g+4,2)}, {vr(T0[h]+8*g+6,2)}")
    for h in H:
        for g in range(2):
            a(f"v_pk_add_f32 {vr(PD[h]+4*g,2)}, {vr(PD[h]+4*g,2)}, {vr(PD[h]+4*g+2,2)}")
    for h in H:
        a(f"v_add_f32 v{M[h][0]}, v{PD[h]}, v{PD[h]+1}")
        a(f"v_add_f32 v{M[h][1]}, v{PD[h]+4}, v{PD[h]+5}")
    for h in H:
        a(f"v_mov_b32 v{M[h][2]}, v{M[h][0]}")
        a(f"v_mov_b32 v{M[h][3]}, v{M[h][1]}")
    a("s_nop 1")
    for h in H:
        a(f"v_permlane32_swap_b32 v{M[h][0]}, v{M[h][2]}")
        a(f"v_permlane32_swap_b32 v{M[h][1]}, v{M[h][3]}")
    a("s_nop 1")
    for h in H:
        a(f"v_add_f32 v{M[h][0]}, v{M[h][0]}, v{M[h][2]}")
        a(f"v_add_f32 v{M[h][1]}, v{M[h][1]}, v{M[h][3]}")
    for h in H:
        a(f"v_rcp_f32 v{M[h][0]}, v{M[h][0]}")
        a(f"v_rcp_f32 v{M[h][1]}, v{M[h][1]}")
    a("s_nop 0")
    for i in range(4):
        for h in H:
            a(f"v_pk_mul_f32 {vr(T0[h]+2*i,2)}, {vr(T0[h]+2*i,2)}, {vr(M[h][0],2)} op_sel_hi:[1,0]")
            a(f"v_pk_mul_f32 {vr(T0[h]+8+2*i,2)}, {vr(T0[h]+8+2*i,2)}, {vr(M[h][1],2)} op_sel_hi:[1,0]")
    for i in range(8):
        for h in H:
            a(f"v_cvt_pk_bf16_f32 v{PD[h]+8+i}, v{T0[h]+2*i}, v{T0[h]+2*i+1}")
    a("s_cmp_eq_u32 s38, 0")
    a("s_cbranch_scc1 P1_featK")
    a("s_cmp_eq_u32 s46, 1")
    a("s_cbranch_scc1 P1_setup")
    a("s_lshl_b32 s4, s29, 11")
    a(f"s_add_u32 s4, s4, {WS_PHIQ}")
    a(f"s_add_u32 s5, s4, {64*2048}")
    a("s_cmp_ge_u32 s12, 4")
    a("s_cbranch_scc1 P1_done")
    a("s_waitcnt vmcnt(0)")
    lds_add(a, 3, 6, C_Q, rtn=True)
    a("s_cmp_lg_u32 s3, 3")
    a("s_cbranch_scc1 P1_done")
    flag_write(a, 6, 39, SWS)
    a("s_branch P1_done")
    a.label("P1_featK")
    a("v_mov_b32 v15, 0x3f803f80")
    for h in range(2):
        mfma(a, TT[h], PD[h] + 8, IP, "0")
        mfma(a, TT[h], PD[h] + 12, IM, TT[h])
    for i in range(8):
        a(f"v_cndmask_b32 v{BV[0]+i}, v{VF+i}, v15, s[6:7]")
        a(f"v_cndmask_b32 v{BV[1]+i}, v15, v{VF+i}, s[6:7]")
    for h in range(2):
        for i in range(8):
            a(f"v_cvt_pk_bf16_f32 v{PD[h]+i}, v{TT[h]+2*i}, v{TT[h]+2*i+1}")
    a("s_nop 1")
    for h in range(2):
        mfma(a, KV[h], PD[h], BV[h], "0")
        mfma(a, KV[h], PD[h] + 4, BV[h] + 4, KV[h])
    a("s_nop 7")
    a("s_cmp_eq_u32 s46, 1")
    a("s_cbranch_scc1 P1_setup")
    for h in range(2):
        for q in range(4):
            a(f"ds_write_b128 v56, {vr(KV[h]+4*q,4)} offset:{h*4096 + q*1024}")
    a("s_waitcnt lgkmcnt(0)")
    lds_add(a, 3, 10, C_RED1)
    lds_poll(a, 3, 10, C_RED1, 8)
    for w in range(4):
        a(f"ds_read_b128 {vr(16+8*w,4)}, v57 offset:{w*8192}")
        a(f"ds_read_b128 {vr(20+8*w,4)}, v57 offset:{w*8192+1024}")
    a("s_waitcnt lgkmcnt(0)")
    lds_add(a, 3, 10, C_RED2)
    for i in range(4):
        a(f"v_pk_add_f32 {vr(16+2*i,2)}, {vr(16+2*i,2)}, {vr(24+2*i,2)}")
        a(f"v_pk_add_f32 {vr(32+2*i,2)}, {vr(32+2*i,2)}, {vr(40+2*i,2)}")
    for i in range(4):
        a(f"v_pk_add_f32 {vr(136+2*i,2)}, {vr(16+2*i,2)}, {vr(32+2*i,2)}")
    a.label("P1_done")
    a("v_mov_b64 v[144:145], v[58:59]")
    a("s_mov_b32 s63, s38")
    if STAMP:
        a("s_cmp_lt_u32 s12, 4")
        a("s_cbranch_scc1 ST_a")
        stamp(a, 2)
        a.label("ST_a")

    UNR = 8
    PRIO = [(40, 1), (56, 0)]
    QF = 4
    KF = [8, 12]
    VFa = [16, 24]
    P = 32
    O = 40
    CN = 56
    S = [72, 88]
    NC = 104
    a("v_mov_b32 v108, v3")
    a("v_mov_b32 v1, v9")
    a("s_and_b32 s38, s2, 7")
    a("s_lshl_b32 s13, s38, 2")
    a("s_lshr_b32 s3, s2, 3")
    a("s_and_b32 s36, s3, 3")
    a("s_lshr_b32 s37, s3, 2")
    a("s_add_u32 s13, s13, s36")
    a("s_mov_b32 s36, s13")
    a("s_lshr_b32 s14, s2, 5")
    a("s_lshl_b32 s15, s14, 3")
    a("s_add_u32 s15, s15, s12")
    a("s_lshl_b32 s16, s13, 6")
    a("s_add_u32 s16, s16, s15")
    a("v_and_b32 v2, 27, v0")
    a("v_cmp_eq_u32 s[24:25], 16, v2")
    a("v_mov_b32 v3, 0x3f803f80")
    a("s_mov_b32 s20, 0x0000ffff")
    a("s_mov_b32 s21, 0x0000ffff")
    a(f"v_cndmask_b32 v{VFa[0]}, 0, v3, s[24:25]")
    for i in range(1, 16):
        a(f"v_mov_b32 v{VFa[0]+i}, v{VFa[0]}")
    a("s_mov_b32 s22, 0")
    evmask = 0
    for t_ in [8, 16, 24, 64] + [p_[0] for p_ in PRIO]:
        evmask |= 1 << (t_ // 8)
    a(f"s_mov_b32 s29, {evmask:#x}")
    lds_poll(a, 108, NC, F_Q, 1, sleep=1)
    if STAMP:
        a("s_cmp_lt_u32 s12, 4")
        a("s_cbranch_scc1 ST_b")
        stamp(a, 3)
        a.label("ST_b")
    a("s_lshl_b32 s19, s16, 10")
    a(f"buffer_load_dwordx4 {vr(QF,4)}, v1, {sr(SWS,4)}, s19 offen sc1")
    lds_poll(a, 108, NC, C_S0, 4)
    if STAMP:
        a("s_cmp_lt_u32 s12, 4")
        a("s_cbranch_scc1 ST_c")
        stamp(a, 4)
        a.label("ST_c")
    a("s_setprio 3")
    a(f"ds_read_b128 {vr(KF[0],4)}, v1")
    a("s_waitcnt vmcnt(0) lgkmcnt(0)")
    stamp(a, 5)
    mfma(a, S[1], KF[0], QF, "0")
    a("s_nop 7")
    a("s_nop 3")
    X = S[1]
    a(f"v_max3_f32 v2, v{X}, v{X+1}, v{X+2}")
    for i in range(3, 15, 2):
        a(f"v_max3_f32 v2, v2, v{X+i}, v{X+i+1}")
    a(f"v_max_f32 v2, v2, v{X+15}")
    cross_half(a, "v_max_f32", 2, 3)
    if STAMP:
        a("s_waitcnt lgkmcnt(0)")
    a.label("P2_restart")
    a("v_mov_b32 v3, v1")
    a(f"ds_read_b128 {vr(KF[0],4)}, v3")
    a(f"ds_read_b128 {vr(KF[1],4)}, v3 offset:2048")
    a("s_mov_b64 exec, s[20:21]")
    a(f"ds_read_b128 {vr(VFa[0],4)}, v3 offset:1024")
    a(f"ds_read_b128 {vr(VFa[0]+4,4)}, v3 offset:1280")
    a("s_mov_b64 exec, -1")
    a(f"v_sub_f32 v{CN}, 0, v2")
    a(f"v_sub_f32 v{CN+1}, 0, v2")
    for i in range(2, 16, 2):
        a(f"v_mov_b64 {vr(CN+i,2)}, {vr(CN,2)}")
    for i in range(0, 16, 2):
        a(f"v_mov_b64 {vr(O+i,2)}, 0")
    a("s_waitcnt lgkmcnt(3)")
    mfma(a, S[0], KF[0], QF, CN)
    a("s_mov_b32 s23, 0")
    a("s_nop 7")
    a("s_nop 3")
    a.raw("    .p2align 3")
    a.label("P2_loop")
    for u in range(UNR):
        X, Y = S[u & 1], S[(u + 1) & 1]
        Kn = KF[(u + 1) & 1]
        Kp = KF[u & 1]
        Vc = VFa[u & 1]
        Vn = VFa[(u + 1) & 1]
        for i in range(4):
            a(f"v_exp_f32 v{X+i}, v{X+i}")
        a("s_waitcnt lgkmcnt(0)")
        mfma(a, Y, Kn, QF, CN)
        a(f"ds_read_b128 {vr(Kp,4)}, v3 offset:{(u+2)*2048}")
        for i in range(4, 8):
            a(f"v_exp_f32 v{X+i}, v{X+i}")
        for i in range(4):
            a(f"v_cvt_pk_bf16_f32 v{P+i}, v{X+2*i}, v{X+2*i+1}")
        for i in range(8, 10):
            a(f"v_exp_f32 v{X+i}, v{X+i}")
        mfma(a, O, Vc, P, O)
        a("s_mov_b64 exec, s[20:21]")
        a(f"ds_read_b128 {vr(Vn,4)}, v3 offset:{(u+1)*2048+1024}")
        a(f"ds_read_b128 {vr(Vn+4,4)}, v3 offset:{(u+1)*2048+1280}")
        a("s_mov_b64 exec, -1")
        for i in range(10, 16):
            a(f"v_exp_f32 v{X+i}, v{X+i}")
        for i in range(4, 8):
            a(f"v_cvt_pk_bf16_f32 v{P+i}, v{X+2*i}, v{X+2*i+1}")
        if u == UNR - 1:
            a(f"v_add_u32 v3, {UNR*2048}, v3")
            a("s_add_u32 s23, s23, 1")
            a("s_bitcmp1_b32 s29, s23")
        else:
            a("s_nop 1")
        mfma(a, O, Vc + 4, P + 4, O)
    a("s_cbranch_scc0 P2_loop")
    a("s_cmp_eq_u32 s23, 8")
    a("s_cbranch_scc1 P2_exit")
    a("s_cmp_lg_u32 s23, 1")
    a("s_cbranch_scc1 P2_e5")
    a("s_cmp_eq_u32 s46, 0")
    a("s_cbranch_scc1 P2_nodry")
    a("s_waitcnt lgkmcnt(0)")
    a("s_nop 7")
    a("s_nop 7")
    a("s_branch P1_setup")
    a.label("P2_nodry")
    lds_poll(a, 108, 109, C_S1, 4)
    for i in range(4):
        a(f"v_mov_b32 v{NC+i}, -1")
    a("s_lshl_b32 s19, s16, 10")
    a(f"s_add_u32 s19, s19, {WS_O + 2*MB}")
    a(f"buffer_store_dwordx4 {vr(NC,4)}, v1, {sr(SWS,4)}, s19 offen sc1")
    a("s_cmp_eq_u32 s63, 0")
    a("s_cbranch_scc1 P2_stK")
    for h in range(2):
        a(f"buffer_store_dwordx4 {vr(PD[h]+8,4)}, v1, {sr(SWS,4)}, s{4+h} offen sc1")
        a(f"buffer_store_dwordx4 {vr(PD[h]+12,4)}, v1, {sr(SWS,4)}, s{4+h} offen offset:1024 sc1")
    a("s_branch P2_loop")
    a.label("P2_stK")
    for p in range(4):
        a(f"buffer_store_dwordx2 {vr(136+2*p,2)}, v144, {sr(SWS,4)}, 0 offen sc1")
        if p < 3:
            a("v_add_u32 v144, v144, v145")
    a("s_branch P2_loop")
    a.label("P2_e5")
    a("s_cmp_lg_u32 s23, 2")
    a("s_cbranch_scc1 P2_e6")
    a("s_setprio 2")
    a("s_waitcnt vmcnt(0)")
    lds_add(a, 108, NC, C_A, rtn=True)
    a("s_cmp_lg_u32 s3, 8")
    a("s_cbranch_scc1 P2_loop")
    flag_write(a, NC, 62, SWS)
    a("s_branch P2_loop")
    a.label("P2_e6")
    a("s_cmp_lg_u32 s23, 3")
    a("s_cbranch_scc1 P2_e7")
    lds_poll(a, 108, 109, C_S2, 4)
    if STAMP and "att" in EXP:
        stamp(a, 2)
    a("s_branch P2_loop")
    a.label("P2_e7")
    for k, (tt, pr) in enumerate(PRIO):
        a(f"s_cmp_lg_u32 s23, {tt//8}")
        a(f"s_cbranch_scc1 P2_p{k}")
        a(f"s_setprio {pr}")
        if STAMP and "att" in EXP and k < 2:
            stamp(a, 3 + k)
        a.label(f"P2_p{k}")
    a("s_branch P2_loop")
    a.label("P2_exit")
    a("s_waitcnt lgkmcnt(0)")
    stamp(a, 1)
    a("s_nop 7")
    a("s_nop 1")
    a("s_cmp_lg_u32 s22, 0")
    a("s_cbranch_scc1 P2_fin")
    a(f"v_mov_b32 v{P}, {f32bits(2.0**64):#x}")
    a(f"v_cmp_nlt_f32 s[24:25], v{O+8}, v{P}")
    a(f"v_mov_b32 v{P+1}, 0x7f800000")
    for i in range(8):
        a(f"v_cmp_nlt_f32 s[26:27], abs(v{O+i}), v{P+1}")
        a("s_or_b64 s[24:25], s[24:25], s[26:27]")
    a("s_cmp_eq_u64 s[24:25], 0")
    a("s_cbranch_scc1 P2_fin")
    a("v_mov_b32 v3, v1")
    a("v_mov_b32 v2, 0xff800000")
    a("s_mov_b32 s23, 0")
    a.label("P2_maxloop")
    a(f"ds_read_b128 {vr(KF[0],4)}, v3")
    a("s_waitcnt lgkmcnt(0)")
    mfma(a, S[0], KF[0], QF, "0")
    a("v_add_u32 v3, 2048, v3")
    a("s_add_u32 s23, s23, 1")
    a("s_nop 7")
    a("s_nop 3")
    for i in range(0, 16, 2):
        a(f"v_max3_f32 v2, v2, v{S[0]+i}, v{S[0]+i+1}")
    a("s_cmp_lt_u32 s23, 64")
    a("s_cbranch_scc1 P2_maxloop")
    cross_half(a, "v_max_f32", 2, 3)
    a("s_mov_b32 s22, 1")
    a("s_mov_b32 s29, 0x100")
    a("s_branch P2_restart")
    a.label("P2_fin")
    a(f"v_rcp_f32 v2, v{O+8}")
    a("s_lshl_b32 s19, s16, 10")
    for i in range(4):
        a(f"v_pk_mul_f32 {vr(O+2*i,2)}, {vr(O+2*i,2)}, v[2:3] op_sel_hi:[1,0]")
    for i in range(4):
        a(f"v_cvt_pk_bf16_f32 v{P+i}, v{O+2*i}, v{O+2*i+1}")
    a(f"s_add_u32 s19, s19, {WS_O + 2*MB}")
    a(f"v_min_u32 v{P}, 0xfffffffe, v{P}")
    a(f"buffer_store_dwordx4 {vr(P,4)}, v1, {sr(SWS,4)}, s19 offen sc1")
    a("v_mov_b32 v2, v108")
    lds_add(a, 2, 3, C_OB)
    a("s_cmp_ge_u32 s12, 4")
    a("s_cbranch_scc1 K_flush" if STAMP else "s_cbranch_scc1 K_end")
    a("s_lshl_b32 s21, s12, 14")
    proj_addr(a, 12, 21, VD, VW0, VW1, VO)
    srd(a, SWO, P_WOB, 512 * 512 * 2)
    srd(a, SOUT, P_OUT, 2 * MB)
    a("s_lshl_b32 s22, s12, 17")
    a("s_lshl_b32 s3, s37, 7")
    a("s_add_u32 s22, s22, s3")
    a("s_lshl_b32 s23, s12, 19")
    a("s_lshl_b32 s3, s36, 11")
    a("s_add_u32 s23, s23, s3")
    a(f"s_add_u32 s23, s23, {WS_O + 2*MB}")
    a("v_and_b32 v12, 31, v0")
    a("s_lshl_b32 s3, s36, 6")
    a("s_lshr_b32 s19, s12, 1")
    a("s_lshl_b32 s19, s19, 5")
    a("s_add_u32 s3, s3, s19")
    a("v_add_u32 v7, s3, v12")
    a("v_lshlrev_b32 v13, 2, v7")
    a(f"v_add_u32 v13, {WS_G}, v13")
    a("s_waitcnt vmcnt(0)")
    for i in range(0, 64, 2):
        a(f"v_mov_b64 {vr(ACC+i,2)}, 0")
    lds_poll(a, 2, 3, F_3A, 1)
    lds_poll(a, 2, 3, C_OB, 8)
    a("s_setprio 3")
    for t in range(16):
        a(f"s_add_u32 m0, s21, {t*1024}")
        a(f"s_add_u32 s3, s22, {t*8192}")
        a(f"buffer_load_dwordx4 v{VD}, {sr(SWO,4)}, s3 offen lds")
    OFB = 80
    WFB = 144
    a(f"buffer_load_dword v14, v13, {sr(SWS,4)}, 0 offen sc1")

    def oload(t):
        a(f"s_add_u32 s3, s23, {t*65536}")
        a(f"buffer_load_dwordx4 {vr(OFB+8*t,4)}, v{VO}, {sr(SWS,4)}, s3 offen sc1")
        a(f"buffer_load_dwordx4 {vr(OFB+8*t+4,4)}, v{VO+1}, {sr(SWS,4)}, s3 offen sc1")
    for t in range(8):
        oload(t)
    a("s_mov_b32 s30, 0xff")
    a("s_mov_b32 s31, 0")
    a.label("P3_round")
    a("s_waitcnt vmcnt(0)")
    for t in range(8):
        W = WFB + 8 * (t & 1)
        sl = OFB + 8 * t
        a(f"s_bitcmp1_b32 s30, {t}")
        a(f"s_cbranch_scc0 P3_n{t}")
        a(f"v_cmp_eq_u32 vcc, -1, v{sl}")
        a(f"v_cmp_eq_u32 s[24:25], -1, v{sl+4}")
        a(f"ds_read_b64_tr_b16 {vr(W,2)}, v{VW0} offset:{t*2048}")
        a(f"ds_read_b64_tr_b16 {vr(W+2,2)}, v{VW0} offset:{t*2048+1024}")
        a(f"ds_read_b64_tr_b16 {vr(W+4,2)}, v{VW1} offset:{t*2048}")
        a(f"ds_read_b64_tr_b16 {vr(W+6,2)}, v{VW1} offset:{t*2048+1024}")
        a("s_or_b64 s[24:25], s[24:25], vcc")
        a(f"s_cbranch_scc0 P3_g{t}")
        oload(t)
        a(f"s_branch P3_n{t}")
        a.label(f"P3_g{t}")
        a(f"s_bitset0_b32 s30, {t}")
        a("s_waitcnt lgkmcnt(0)")
        mfma(a, ACC + 16, W + 4, sl, ACC + 16)
        mfma(a, ACC + 32, W, sl + 4, ACC + 32)
        mfma(a, ACC + 48, W + 4, sl + 4, ACC + 48)
        mfma(a, ACC, W, sl, ACC)
        a.label(f"P3_n{t}")
    a("s_add_u32 s31, s31, 1")
    a("s_cmp_gt_u32 s31, 0x200000")
    a("s_cbranch_scc1 P3_out")
    a("s_cmp_lg_u32 s30, 0")
    a("s_cbranch_scc1 P3_round")
    a.label("P3_out")
    a("s_waitcnt vmcnt(0) lgkmcnt(0)")
    if "att" not in EXP:
        stamp(a, 2)
    a("v_add_u32 v10, s21, v1")
    a("v_sub_f32 v14, 1.0, v14")
    a("v_cvt_pk_bf16_f32 v14, v14, v14")
    a("v_lshlrev_b32 v14, 16, v14")
    a("s_nop 4")
    for j in range(1, 4):
        for q in range(4):
            a(f"ds_write_b128 v10, {vr(ACC+16*j+4*q,4)} offset:{j*4096+q*1024}")
    a("v_lshlrev_b32 v7, 10, v7")
    a("v_lshrrev_b32 v12, 5, v0")
    a("v_lshlrev_b32 v12, 4, v12")
    a("v_add_u32 v7, v7, v12")
    a("s_lshl_b32 s19, s37, 7")
    a("s_and_b32 s3, s12, 1")
    a("s_lshl_b32 s3, s3, 6")
    a("s_add_u32 s19, s19, s3")
    a("v_add_u32 v12, 65536, v10")
    a("s_waitcnt lgkmcnt(0)")
    a("s_barrier")
    for j in range(1, 4):
        a(f"v_xor_b32 v11, {j*16384}, v10")
        for q in range(4):
            a(f"ds_read_b128 {vr(ACC+16*j+4*q,4)}, v11 offset:{j*4096+q*1024}")
    AF = 80
    a("s_waitcnt lgkmcnt(8)")
    for q in range(4):
        a(f"ds_read_b128 {vr(AF+4*q,4)}, v12 offset:{q*1024}")
    a("s_waitcnt lgkmcnt(4)")
    for i in range(8):
        a(f"v_pk_add_f32 {vr(ACC+2*i,2)}, {vr(ACC+2*i,2)}, {vr(ACC+16+2*i,2)}")
        a(f"v_pk_add_f32 {vr(ACC+32+2*i,2)}, {vr(ACC+32+2*i,2)}, {vr(ACC+48+2*i,2)}")
    for i in range(8):
        a(f"v_pk_add_f32 {vr(ACC+2*i,2)}, {vr(ACC+2*i,2)}, {vr(ACC+32+2*i,2)}")
    a("s_waitcnt lgkmcnt(0)")
    for i in range(8):
        a(f"v_pk_fma_f32 {vr(ACC+2*i,2)}, {vr(ACC+2*i,2)}, v[14:15], {vr(AF+2*i,2)} op_sel_hi:[1,0,1]")
    T = 96
    for i in range(8):
        a(f"v_cvt_pk_bf16_f32 v{T+i}, v{ACC+2*i}, v{ACC+2*i+1}")
    a("s_nop 1")
    a(f"v_permlane32_swap_b32 v{T}, v{T+2}")
    a(f"v_permlane32_swap_b32 v{T+1}, v{T+3}")
    a(f"v_permlane32_swap_b32 v{T+4}, v{T+6}")
    a(f"v_permlane32_swap_b32 v{T+5}, v{T+7}")
    a(f"buffer_store_dwordx4 {vr(T,4)}, v7, {sr(SOUT,4)}, s19 offen")
    a(f"buffer_store_dwordx4 {vr(T+4,4)}, v7, {sr(SOUT,4)}, s19 offen offset:32")
    if STAMP:
        a.label("K_flush")
        a("s_waitcnt vmcnt(0)")
        stamp(a, 6)
        stamp_flush(a, 0, 8, 28, SWS)
    a.label("K_end")
    a.label("K_last")
    a("s_endpgm")
    return kd(kn, 168, 80)


def main():
    a = Asm()
    head = f"""; gated mix of hedgehog linear attention and softmax attention (generated by dev/gen6.py)
; @launch kernel={NAME}_kernel grid=(256,1,1) block=(768,1,1) lds=163840
.amdgcn_target "amdgcn-amd-amdhsa--gfx950"
.text
"""
    kds = [gen_fused(a)]
    out = head + a.text() + '.section .rodata,"a"\n' + "".join(kds)
    path = sys.argv[1] if len(sys.argv) > 1 else f"f6.s"
    open(path, "w").write(out)
    print("wrote", path, len(out))


if __name__ == "__main__":
    main()
```

```python
import sys, os
import gen as G
G.STB = 80
from gen import *
STB = 80
import gen2 as G2
from gen2 import lds_poll, lds_add, flag_write, flag_poll, proj_addr, uid, TAG

G2.FSH = 7
WS_FL = 17 * MB
FL3A, FL3B, FL1, FL2, FLQ = [WS_FL + 32768 * i for i in range(5)]
SP = 131072
PHL = SP
XCH = SP + 2048
CNTS = SP + 4096
RING = SP + 8192
RED = 65536
(C_XCH, C_OA, F_3A, C_OB, F_3B, C_AR, L_TAG, _, C_B, C_A, C_RED1, C_RED2, F_F1, C_S0, C_S1, F_F2, C_H, C_Q, F_Q, C_S2, C_T40, C_WB, M_RDY) = [4 * i for i in range(23)]
P_X, P_WA, P_PHI, P_WOA, P_WB, P_WOB, P_GW = 64, 66, 68, 70, 74, 76, 78
P_OUT, P_DBG, P_WS = 56, 58, 60


LS = int(os.environ.get('LS', '8'))
LS2 = int(os.environ.get('LS2', '12'))


def gen_fused(a):
    kn = NAME + "_kernel"
    kernel_begin(a, kn)
    STAGE = 40960
    SWS, SX, SW0, SW1, SW2, SPHI, SGW = 8, 12, 16, 20, 24, 40, 44
    SWO, SOUT, SDBG = 40, 48, 52
    a("s_cmp_ge_u32 s2, 256")
    a("s_cbranch_scc1 K_end")
    stamp(a, 0)
    if STAMP:
        a(f"s_memrealtime s[{STB+14}:{STB+15}]")
    a("s_load_dwordx16 s[64:79], s[0:1], 0")
    a("s_load_dwordx4 s[56:59], s[0:1], 64")
    a("s_load_dwordx2 s[60:61], s[0:1], 80")
    a("v_lshrrev_b32 v1, 6, v0")
    a("v_and_b32 v0, 63, v0")
    a("v_readfirstlane_b32 s28, v1")
    a("s_and_b32 s3, s2, 1")
    a("s_lshl_b32 s33, s3, 3")
    a("s_lshr_b32 s3, s2, 3")
    a("s_and_b32 s39, s3, 7")
    a("s_add_u32 s33, s33, s39")
    a("s_lshr_b32 s36, s3, 3")
    a("s_and_b32 s4, s2, 6")
    a("s_lshl_b32 s4, s4, 1")
    a("s_add_u32 s36, s36, s4")
    a("s_and_b32 s37, s36, 7")
    a("s_lshr_b32 s38, s36, 3")
    a("s_cmp_ge_u32 s28, 4")
    a("s_cbranch_scc1 P1_compute")

    a("v_lshrrev_b32 v5, 3, v0")
    a("s_lshl_b32 s3, s28, 3")
    a("v_add_u32 v6, s3, v5")
    a("v_lshlrev_b32 v6, 10, v6")
    a("v_lshrrev_b32 v3, 4, v0")
    a("s_and_b32 s3, s28, 1")
    a("s_lshl_b32 s3, s3, 2")
    a("v_add_u32 v3, s3, v3")
    a("v_and_b32 v4, 7, v0")
    a("v_xor_b32 v3, v3, v4")
    a("v_lshlrev_b32 v3, 4, v3")
    a("v_add_u32 v6, v6, v3")
    a("s_lshl_b32 s3, s28, 4")
    a("v_add_u32 v7, s3, v5")
    a("v_mul_u32_u24 v7, 3072, v7")
    a("v_and_b32 v5, 16, v0")
    a("v_lshrrev_b32 v5, 2, v5")
    a("v_xor_b32 v4, v4, v5")
    a("v_lshlrev_b32 v4, 4, v4")
    a("v_add_u32 v7, v7, v4")
    a("v_lshlrev_b32 v1, 4, v0")
    a(f"v_mov_b32 v2, {CNTS}")
    a("v_lshlrev_b32 v3, 2, v0")
    a("v_add_u32 v3, v2, v3")
    a("v_mov_b32 v4, 0")
    a("ds_write_b32 v3, v4")
    a("s_lshl_b32 s48, s33, 17")
    a("s_lshl_b32 s3, s37, 7")
    a("s_cmp_eq_u32 s38, 0")
    a("s_cselect_b32 s49, 1024, 0")
    a("s_cselect_b32 s29, 2048, 0")
    a("s_max_u32 s30, s29, 1024")
    a("s_add_u32 s49, s49, s3")
    a("s_add_u32 s29, s29, s3")
    a("s_add_u32 s30, s30, s3")
    a("s_lshl_b32 s50, s28, 10")
    a("s_lshl_b32 s31, s28, 11")
    a("s_mov_b32 s51, 0")
    a("s_add_u32 s39, s39, s36")
    a("s_and_b32 s39, s39, 3")
    a("s_lshl_b32 s39, s39, 1")
    a("s_waitcnt lgkmcnt(0)")
    srd(a, SX, P_X, 2 * MB)
    srd(a, SW0, P_WA, 512 * 1536 * 2)
    srd(a, SW2, P_WB, 512 * 1536 * 2)
    a("s_cmp_eq_u32 s38, 0")
    a(f"s_cselect_b32 s4, s{P_WA}, s{P_WB}")
    a(f"s_cselect_b32 s5, s{P_WA+1}, s{P_WB+1}")
    srd(a, SW1, 4, 512 * 1536 * 2)
    srd(a, SDBG, P_DBG, 256)
    a("s_cmp_ge_u32 s28, 2")
    a("s_cbranch_scc1 P1_nophi")
    srd(a, SPHI, P_PHI, 32 * 16 * 16 * 2)
    a(f"s_add_u32 m0, s50, {PHL}")
    a("s_lshl_b32 s6, s37, 11")
    a("s_add_u32 s6, s6, s50")
    a(f"buffer_load_dwordx4 v1, {sr(SPHI,4)}, s6 offen lds")
    a("s_branch P1_ld_loop")
    a.label("P1_nophi")
    a("s_cmp_lg_u32 s2, 0")
    a("s_cbranch_scc1 P1_ld_loop")
    a("s_cmp_lg_u32 s28, 3")
    a("s_cbranch_scc1 P1_ld_loop")
    a("s_memrealtime s[6:7]")
    a("s_waitcnt lgkmcnt(0)")
    a("s_or_b32 s6, s6, 1")
    a("v_mov_b32 v10, s6")
    a("v_mov_b32 v11, s7")
    a("s_mov_b64 exec, 1")
    a(f"buffer_store_dwordx2 v[10:11], off, {sr(SDBG,4)}, 0 sc1")
    a("s_mov_b64 exec, -1")
    a.label("P1_ld_loop")
    a("s_lshl_b32 s6, s39, 7")
    a("s_add_u32 s6, s6, s48")
    a(f"s_mul_i32 s7, s39, {64*3072}")
    for ii in range(4):
        a(f"s_add_u32 m0, s50, {ii*4096}")
        a(f"s_add_u32 s32, s6, {ii*32768}")
        a(f"buffer_load_dwordx4 v6, {sr(SX,4)}, s32 offen lds")
    for j, (S, so) in enumerate(((SW0, 49), (SW1, 29), (SW2, 30))):
        a(f"s_add_u32 m0, s31, {16384 + j*8192}")
        a(f"s_add_u32 s32, s{so}, s7")
        a(f"buffer_load_dwordx4 v7, {sr(S,4)}, s32 offen lds")
        a(f"s_add_u32 m0, s31, {16384 + j*8192 + 1024}")
        a(f"s_add_u32 s32, s32, {8*3072}")
        a(f"buffer_load_dwordx4 v7, {sr(S,4)}, s32 offen lds")
    a("s_add_u32 s39, s39, 1")
    a("s_and_b32 s39, s39, 7")
    a(f"s_add_u32 s50, s50, {STAGE}")
    a(f"s_add_u32 s31, s31, {STAGE}")
    a(f"s_cmp_lt_u32 s50, {3*STAGE}")
    a("s_cbranch_scc1 P1_ld_nowrap")
    a(f"s_sub_u32 s50, s50, {3*STAGE}")
    a(f"s_sub_u32 s31, s31, {3*STAGE}")
    a.label("P1_ld_nowrap")
    a("s_add_u32 s51, s51, 1")
    a("s_cmp_eq_u32 s51, 1")
    a("s_cbranch_scc1 P1_ld_loop")
    a("s_waitcnt vmcnt(10)")
    a("s_barrier")
    a("s_cmp_lt_u32 s51, 8")
    a("s_cbranch_scc1 P1_ld_loop")
    srd(a, SWS, P_WS, WS_SIZE)
    a("s_waitcnt vmcnt(0)")
    stamp(a, 1)
    a("s_barrier")
    a("s_cmp_lg_u32 s28, 3")
    a("s_cbranch_scc1 P1_notag")
    a("s_mov_b32 s3, 0")
    a.label("P1_tagpoll")
    a(f"buffer_load_dwordx2 v[10:11], off, {sr(SDBG,4)}, 0 sc1")
    a("s_add_u32 s3, s3, 1")
    a("s_waitcnt vmcnt(0)")
    a("v_cmp_eq_u32 vcc, 0, v10")
    a("s_cmp_gt_u32 s3, 0x400000")
    a("s_cbranch_scc1 P1_tagdone")
    a("s_cbranch_vccnz P1_tagpoll")
    a.label("P1_tagdone")
    a(f"ds_write_b64 v2, v[10:11] offset:{L_TAG}")
    a.label("P1_notag")
    a("s_lshl_b32 s62, s37, 12")
    a("s_lshl_b32 s3, s33, 8")
    a("s_add_u32 s62, s62, s3")
    a("s_lshl_b32 s3, s38, 7")
    a("s_add_u32 s62, s62, s3")
    a(f"s_add_u32 s62, s62, {FL2}")
    a("s_waitcnt lgkmcnt(0)")
    a("s_barrier")
    a(f"ds_read_b64 v[10:11], v2 offset:{L_TAG}")
    a("s_setprio 3")
    a("s_waitcnt lgkmcnt(0)")
    a(f"v_readfirstlane_b32 s{TAG}, v10")
    a(f"v_readfirstlane_b32 s{TAG+1}, v11")
    a("s_lshl_b32 s3, s33, 7")
    a("s_lshl_b32 s4, s36, 3")
    a("s_add_u32 s33, s3, s4")
    a("s_mov_b32 s63, s38")
    a("s_and_b32 s38, s2, 7")
    a("s_lshl_b32 s13, s38, 2")
    a("s_lshr_b32 s3, s2, 3")
    a("s_and_b32 s36, s3, 3")
    a("s_lshr_b32 s37, s3, 2")
    a("s_add_u32 s13, s13, s36")
    a("s_mov_b32 s36, s13")
    a("s_lshr_b32 s14, s2, 5")
    a("s_cmp_lg_u32 s28, 2")
    a("s_cbranch_scc1 H_nf1")
    a("s_lshl_b32 s19, s38, 12")
    a(f"s_add_u32 s19, s19, {FL1}")
    lds_poll(a, 2, 3, C_B, 4, sleep=2)
    flag_poll(a, 10, 19, SWS, sleep=2)
    lds_add(a, 2, 3, F_F1)
    a.label("H_nf1")
    a("s_cmp_lg_u32 s28, 3")
    a("s_cbranch_scc1 H_nfq")
    a("s_lshl_b32 s19, s38, 11")
    a("s_lshl_b32 s3, s14, 8")
    a("s_add_u32 s19, s19, s3")
    a(f"s_add_u32 s19, s19, {FLQ}")
    lds_poll(a, 2, 3, C_B, 4, sleep=2)
    flag_poll(a, 10, 19, SWS, mask=1, sleep=4)
    lds_add(a, 2, 3, F_Q)
    a.label("H_nfq")
    lds_poll(a, 2, 3, F_F1, 1, sleep=2)
    stamp(a, 2)
    a("s_lshl_b32 s18, s28, 10")
    a("s_lshl_b32 s17, s13, 17")
    a(f"s_add_u32 s17, s17, {WS_KVB}")
    a("s_add_u32 s17, s17, s18")
    a("v_add_u32 v4, s18, v1")
    R = [16, 48]

    def kv_issue(Rb):
        for i in range(8):
            a(f"s_add_u32 s19, s17, {i*4096}")
            a(f"buffer_load_dwordx4 {vr(Rb+4*i,4)}, v1, {sr(SWS,4)}, s19 offen sc1")
        a("s_add_u32 s17, s17, 32768")

    def kv_write(Rb, later, first=False):
        for i in range(8):
            a(f"s_waitcnt vmcnt({later + 7 - i})")
            a(f"ds_write_b128 v4, {vr(Rb+4*i,4)} offset:{i*4096}")
            if first and i == 4:
                a("s_waitcnt lgkmcnt(0)")
                lds_add(a, 2, 3, C_S0)
        a("v_add_u32 v4, 32768, v4")
        a("s_waitcnt lgkmcnt(0)")
    kv_issue(R[0])
    kv_write(R[0], 0, first=True)
    kv_issue(R[1])
    kv_issue(R[0])
    kv_write(R[1], 8)
    lds_add(a, 2, 3, C_S1)
    kv_issue(R[1])
    a("s_cmp_lg_u32 s63, 0")
    a("s_cbranch_scc1 H_nored")
    lds_poll(a, 2, 3, C_RED2, 8)
    a.label("H_nored")
    kv_write(R[0], 8)
    kv_write(R[1], 0)
    lds_add(a, 2, 3, C_S2)
    stamp(a, 3)
    srd(a, 40, P_WOA, 512 * 512 * 2)
    srd(a, 44, P_WOB, 512 * 512 * 2)
    a("s_lshr_b32 s3, s2, 3")
    a("s_lshl_b32 s3, s3, 2")
    a("s_add_u32 s3, s3, s28")
    a("s_lshl_b32 s3, s3, 12")
    for i in range(4):
        a(f"buffer_load_dwordx4 {vr(112+8*i,4)}, v1, s[40:43], s3 offen offset:{i*1024}")
        a(f"buffer_load_dwordx4 {vr(116+8*i,4)}, v1, s[44:47], s3 offen offset:{i*1024}")
    a("s_cmp_lg_u32 s28, 0")
    a("s_cbranch_scc1 H_nogate")
    srd(a, SGW, P_GW, 1024)
    srd(a, 24, P_X, 2 * MB)
    a("v_lshrrev_b32 v8, 3, v0")
    a("v_add_u32 v8, s33, v8")
    a("v_and_b32 v3, 7, v0")
    a("v_lshlrev_b32 v3, 4, v3")
    a("v_lshlrev_b32 v4, 10, v8")
    a("v_add_u32 v4, v4, v3")
    for j in range(8):
        a(f"buffer_load_dwordx4 {vr(16+4*j,4)}, v4, s[24:27], 0 offen offset:{j*128}")
        a(f"buffer_load_dwordx4 {vr(48+4*j,4)}, v3, {sr(SGW,4)}, 0 offen offset:{j*128}")
    a("v_mov_b32 v5, 0")
    a("v_mov_b32 v6, 0")
    a("s_waitcnt vmcnt(0)")
    for j in range(16):
        a(f"v_dot2_f32_bf16 v5, v{16+2*j}, v{48+2*j}, v5")
        a(f"v_dot2_f32_bf16 v6, v{17+2*j}, v{49+2*j}, v6")
    a("s_nop 3")
    a("v_add_f32 v5, v5, v6")
    for off in (0x041F, 0x081F, 0x101F):
        a(f"ds_swizzle_b32 v6, v5 offset:{off}")
        a("s_waitcnt lgkmcnt(0)")
        a("v_add_f32 v5, v5, v6")
    a("v_cvt_pk_bf16_f32 v5, v5, v5")
    a("v_lshlrev_b32 v5, 16, v5")
    a(f"v_mul_f32 v5, {f32bits(-LOG2E):#x}, v5")
    a("v_exp_f32 v5, v5")
    a("s_nop 0")
    a("v_add_f32 v5, 1.0, v5")
    a("v_rcp_f32 v5, v5")
    a("s_nop 0")
    a("v_cvt_pk_bf16_f32 v5, v5, v5")
    a("v_lshlrev_b32 v5, 16, v5")
    a("v_lshlrev_b32 v8, 2, v8")
    a(f"v_add_u32 v8, {WS_G}, v8")
    a(f"buffer_store_dword v5, v8, {sr(SWS,4)}, 0 offen sc1")
    a("s_waitcnt vmcnt(0)")
    lds_add(a, 2, 3, C_A, rtn=True)
    a("s_cmp_lg_u32 s3, 8")
    a("s_cbranch_scc1 H_nogate")
    flag_write(a, 10, 62, SWS)
    a.label("H_nogate")
    KP = 16
    PH = 80
    a("s_lshl_b32 s19, s13, 3")
    a("s_lshl_b32 s21, s28, 1")
    a("s_add_u32 s19, s19, s21")
    a("s_lshl_b32 s24, s19, 8")
    a(f"s_add_u32 s24, s24, {WS_KVP}")
    a("s_lshl_b32 s25, s19, 4")
    a(f"s_add_u32 s25, s25, {WS_ZP}")
    a("v_lshrrev_b32 v4, 5, v0")
    a("v_and_b32 v5, 15, v0")
    a("v_lshlrev_b32 v6, 7, v4")
    a("v_lshlrev_b32 v5, 3, v5")
    a("v_add3_u32 v6, v6, v5, s24")
    a("v_lshlrev_b32 v4, 3, v4")
    a("v_add_u32 v4, s25, v4")
    a("v_and_b32 v5, 16, v0")
    a("v_cmp_ne_u32 s[24:25], 0, v5")
    a("v_mov_b32 v7, 4096")
    a("v_mov_b32 v8, 65536")
    a("v_mov_b32 v9, 256")
    a("v_cndmask_b32 v6, v6, v4, s[24:25]")
    a("v_cndmask_b32 v7, v8, v7, s[24:25]")
    a("v_cndmask_b32 v9, v9, 16, s[24:25]")
    a("v_add_u32 v8, v6, v9")
    a("s_cmp_lg_u32 s28, 0")
    a("s_cbranch_scc1 H_nf2")
    a("s_lshl_b32 s19, s38, 12")
    a(f"s_add_u32 s19, s19, {FL2}")
    lds_poll(a, 2, 3, C_A, 9, sleep=LS)
    flag_poll(a, 10, 19, SWS, sleep=LS)
    lds_add(a, 2, 3, F_F2)
    a.label("H_nf2")
    lds_poll(a, 2, 3, F_F2, 1, sleep=LS)
    a.label("HM_f2")
    if "tail" in EXP:
        stamp(a, 1)
    for rb in range(16):
        a(f"buffer_load_dwordx2 {vr(KP+2*rb,2)}, v6, {sr(SWS,4)}, 0 offen sc1")
        a(f"buffer_load_dwordx2 {vr(KP+32+2*rb,2)}, v8, {sr(SWS,4)}, 0 offen sc1")
        if rb < 15:
            a("v_add_u32 v6, v6, v7")
            a("v_add_u32 v8, v8, v7")
    a("s_lshl_b32 s15, s14, 3")
    a("s_add_u32 s15, s15, s21")
    a("s_lshl_b32 s16, s13, 6")
    a("s_add_u32 s16, s16, s15")
    a("s_lshl_b32 s19, s16, 11")
    a(f"s_add_u32 s19, s19, {WS_PHIQ}")
    for k in range(4):
        a(f"buffer_load_dwordx4 {vr(PH+4*k,4)}, v1, {sr(SWS,4)}, s19 offen offset:{k*1024} sc1")
    a("v_lshlrev_b32 v4, 5, v0")
    a(f"v_add_u32 v4, {XCH}, v4")
    a("s_lshl_b32 s3, s28, 3")
    a("v_add_u32 v5, s3, v4")
    a("s_waitcnt vmcnt(4)")
    for st in (8, 4, 2, 1):
        for i in range(st):
            for g in range(2):
                b = KP + 32 * g
                a(f"v_pk_add_f32 {vr(b+2*i,2)}, {vr(b+2*i,2)}, {vr(b+2*(i+st),2)}")
    a(f"v_cvt_pk_bf16_f32 v{KP}, v{KP}, v{KP+1}")
    a(f"v_cvt_pk_bf16_f32 v{KP+1}, v{KP+32}, v{KP+33}")
    a(f"ds_write_b64 v5, {vr(KP,2)}")
    a("s_waitcnt lgkmcnt(0)")
    lds_add(a, 2, 3, C_XCH)
    lds_poll(a, 2, 3, C_XCH, 4)
    a(f"ds_read_b128 {vr(KP,4)}, v4")
    a(f"ds_read_b128 {vr(KP+4,4)}, v4 offset:16")
    D = [32, 48]
    a("s_waitcnt vmcnt(0) lgkmcnt(0)")
    for k in range(2):
        mfma(a, D[k], KP, PH + 8 * k, "0")
        mfma(a, D[k], KP + 4, PH + 8 * k + 4, D[k])
    a("s_lshl_b32 s20, s16, 10")
    a(f"s_add_u32 s20, s20, {WS_O}")
    srd(a, SWO, P_WOA, 512 * 512 * 2)
    a("s_nop 5")
    for k in range(2):
        a(f"v_add_f32 v{10+2*k}, {f32bits(1e-6):#x}, v{D[k]+8}")
    for k in range(2):
        a(f"v_rcp_f32 v{10+2*k}, v{10+2*k}")
    a("s_nop 0")
    for k in range(2):
        for i in range(4):
            a(f"v_pk_mul_f32 {vr(D[k]+2*i,2)}, {vr(D[k]+2*i,2)}, {vr(10+2*k,2)} op_sel_hi:[1,0]")
    for k in range(2):
        for i in range(4):
            a(f"v_cvt_pk_bf16_f32 v{64+4*k+i}, v{D[k]+2*i}, v{D[k]+2*i+1}")
        a(f"buffer_store_dwordx4 {vr(64+4*k,4)}, v1, {sr(SWS,4)}, s20 offen offset:{k*1024} sc1")
    a(f"s_mul_i32 s21, s28, 6144")
    a(f"s_add_u32 s21, s21, {RING}")
    VD, VW0, VW1, VO = 4, 5, 6, 8
    proj_addr(a, 28, 21, VD, VW0, VW1, VO)
    a("s_lshl_b32 s22, s28, 17")
    a("s_lshl_b32 s3, s37, 7")
    a("s_add_u32 s22, s22, s3")
    a("s_lshl_b32 s23, s28, 19")
    a("s_lshl_b32 s3, s36, 11")
    a("s_add_u32 s23, s23, s3")
    a(f"s_add_u32 s23, s23, {WS_O}")
    a("s_waitcnt vmcnt(0)")
    lds_add(a, 2, 3, C_OA, rtn=True)
    a("s_cmp_lg_u32 s3, 3")
    a("s_cbranch_scc1 H_h1")
    a("s_lshl_b32 s19, s14, 12")
    a("s_lshl_b32 s3, s13, 7")
    a("s_add_u32 s19, s19, s3")
    a(f"s_add_u32 s19, s19, {FL3A}")
    flag_write(a, 10, 19, SWS)
    a.label("H_h1")
    a("s_cmp_lg_u32 s28, 0")
    a("s_cbranch_scc1 H_h2")
    a("s_lshl_b32 s19, s38, 12")
    a(f"s_add_u32 s19, s19, {FL3A}")
    flag_poll(a, 10, 19, SWS, sleep=LS)
    lds_add(a, 2, 3, F_3A)
    a.label("H_h2")
    lds_poll(a, 2, 3, F_3A, 1, sleep=LS)
    a.label("HM_3a")
    if "tail" in EXP:
        stamp(a, 2)
    ACC = 16
    OF = 80
    WF = 104

    def issueA(t):
        sl = OF + 8 * (t % 3)
        a(f"s_add_u32 m0, s21, {(t%3)*2048}")
        a(f"s_add_u32 s3, s22, {t*16384}")
        a(f"buffer_load_dwordx4 v{VD}, {sr(SWO,4)}, s3 offen lds")
        a(f"s_add_u32 m0, s21, {(t%3)*2048+1024}")
        a(f"s_add_u32 s3, s22, {t*16384+8192}")
        a(f"buffer_load_dwordx4 v{VD}, {sr(SWO,4)}, s3 offen lds")
        a(f"s_add_u32 s3, s23, {t*65536}")
        a(f"buffer_load_dwordx4 {vr(sl,4)}, v{VO}, {sr(SWS,4)}, s3 offen sc1")
        a(f"buffer_load_dwordx4 {vr(sl+4,4)}, v{VO+1}, {sr(SWS,4)}, s3 offen sc1")

    a("v_and_b32 v12, 31, v0")
    a("s_lshl_b32 s3, s36, 6")
    a("s_lshr_b32 s19, s28, 1")
    a("s_lshl_b32 s19, s19, 5")
    a("s_add_u32 s3, s3, s19")
    a("v_add_u32 v12, s3, v12")
    a("v_lshlrev_b32 v12, 2, v12")
    a(f"v_add_u32 v12, {WS_G}, v12")
    a(f"buffer_load_dword v14, v12, {sr(SWS,4)}, 0 offen sc1")
    issueA(0)
    issueA(1)
    for i in range(0, 64, 2):
        a(f"v_mov_b64 {vr(ACC+i,2)}, 0")
    for t in range(8):
        if t + 2 < 8:
            issueA(t + 2)
            a("s_waitcnt vmcnt(8)")
        else:
            a(f"s_waitcnt vmcnt({4*(7-t)})")
        o = (t % 3) * 2048
        a(f"ds_read_b64_tr_b16 {vr(WF,2)}, v{VW0} offset:{o}")
        a(f"ds_read_b64_tr_b16 {vr(WF+2,2)}, v{VW0} offset:{o+1024}")
        a(f"ds_read_b64_tr_b16 {vr(WF+4,2)}, v{VW1} offset:{o}")
        a(f"ds_read_b64_tr_b16 {vr(WF+6,2)}, v{VW1} offset:{o+1024}")
        sl = OF + 8 * (t % 3)
        a("s_waitcnt lgkmcnt(0)")
        mfma(a, ACC, WF, sl, ACC)
        mfma(a, ACC + 32, WF, sl + 4, ACC + 32)
        mfma(a, ACC + 16, WF + 4, sl, ACC + 16)
        mfma(a, ACC + 48, WF + 4, sl + 4, ACC + 48)
    stamp(a, 4)
    a.label("HM_ap")
    lds_poll(a, 2, 3, C_T40, 8, sleep=LS2)
    a("s_lshl_b32 s19, s28, 14")
    a("v_add_u32 v10, s19, v1")
    for j in range(1, 4):
        for q in range(4):
            a(f"ds_write_b128 v10, {vr(ACC+16*j+4*q,4)} offset:{j*4096+q*1024}")
    a("s_waitcnt lgkmcnt(0)")
    lds_add(a, 2, 3, C_AR)
    lds_poll(a, 2, 3, C_AR, 4, sleep=2)
    for j in range(1, 4):
        a(f"v_xor_b32 v11, {j*16384}, v10")
        for q in range(4):
            a(f"ds_read_b128 {vr(ACC+16*j+4*q,4)}, v11 offset:{j*4096+q*1024}")
    a("s_waitcnt lgkmcnt(0)")
    lds_add(a, 2, 3, C_AR)
    for i in range(8):
        a(f"v_pk_add_f32 {vr(ACC+2*i,2)}, {vr(ACC+2*i,2)}, {vr(ACC+16+2*i,2)}")
        a(f"v_pk_add_f32 {vr(ACC+32+2*i,2)}, {vr(ACC+32+2*i,2)}, {vr(ACC+48+2*i,2)}")
    for i in range(8):
        a(f"v_pk_add_f32 {vr(ACC+2*i,2)}, {vr(ACC+2*i,2)}, {vr(ACC+32+2*i,2)}")
    for i in range(8):
        a(f"v_pk_mul_f32 {vr(ACC+2*i,2)}, {vr(ACC+2*i,2)}, v[14:15] op_sel_hi:[1,0]")
    srd(a, SWO, P_WOB, 512 * 512 * 2)
    srd(a, SOUT, P_OUT, 2 * MB)
    lds_poll(a, 2, 3, C_AR, 8, sleep=2)
    for t in range(16):
        a(f"s_add_u32 m0, s19, {t*1024}")
        a(f"s_add_u32 s3, s22, {t*8192}")
        a(f"buffer_load_dwordx4 v{VD}, {sr(SWO,4)}, s3 offen lds")
    BA = 32
    FB = [48, 80]
    a(f"v_subrev_u32 v{VW0}, s21, v{VW0}")
    a("s_lshr_b32 s3, s28, 1")
    a("s_lshl_b32 s3, s3, 10")
    a("s_add_u32 s3, s3, 65536")
    a(f"v_add_u32 v{VW1}, s3, v1")
    for i in range(0, 16, 2):
        a(f"v_mov_b64 {vr(BA+i,2)}, 0")
    a("v_sub_f32 v12, 1.0, v14")
    a("v_cvt_pk_bf16_f32 v12, v12, v12")
    a("v_lshlrev_b32 v12, 16, v12")
    a("v_and_b32 v7, 31, v0")
    a("s_lshl_b32 s3, s36, 6")
    a("s_lshr_b32 s4, s28, 1")
    a("s_lshl_b32 s4, s4, 5")
    a("s_add_u32 s3, s3, s4")
    a("v_add_u32 v7, s3, v7")
    a("v_lshlrev_b32 v7, 10, v7")
    a("v_lshrrev_b32 v8, 5, v0")
    a("v_lshlrev_b32 v8, 4, v8")
    a("v_add_u32 v7, v7, v8")
    a("s_lshl_b32 s23, s37, 7")
    a("s_and_b32 s3, s28, 1")
    a("s_lshl_b32 s3, s3, 6")
    a("s_add_u32 s23, s23, s3")
    a("s_waitcnt vmcnt(0)")
    lds_add(a, 2, 3, C_WB)
    lds_poll(a, 2, 3, C_WB, 4, sleep=2)
    stamp(a, 5)
    a.label("HM_wb")
    a("s_setprio 0")
    lds_poll(a, 2, 3, C_OB, 4, sleep=8)
    a("s_setprio 3")
    a.label("HM_ob4")
    a("s_mov_b32 s30, 0xff")
    def take_reads(F):
        a("s_ff1_i32_b32 s3, s31")
        a("s_bitset0_b32 s31, s3")
        a("s_bitset0_b32 s30, s3")
        a("s_lshl_b32 s3, s3, 13")
        a(f"v_add_u32 v8, s3, v{VW0}")
        a(f"v_add_u32 v9, s3, v{VW1}")
        for k in range(4):
            a(f"ds_read_b128 {vr(F+8*k,4)}, v9 offset:{k*2048}")
            a(f"ds_read_b64_tr_b16 {vr(F+8*k+4,2)}, v8 offset:{k*2048}")
            a(f"ds_read_b64_tr_b16 {vr(F+8*k+6,2)}, v8 offset:{k*2048+1024}")

    def mm4(F):
        for k in range(4):
            mfma(a, BA, F + 8 * k + 4, F + 8 * k, BA)
    a.label("H3_poll")
    a(f"ds_read_b32 v3, v2 offset:{M_RDY}")
    a("s_waitcnt lgkmcnt(0)")
    a("v_readfirstlane_b32 s31, v3")
    a("s_nop 0")
    a("s_and_b32 s31, s31, s30")
    a("s_cbranch_scc1 H3_go")
    a("s_sleep 1")
    a("s_branch H3_poll")
    a.label("H3_go")
    take_reads(FB[0])
    a.label("H3_a")
    a("s_waitcnt lgkmcnt(0)")
    a("s_cmp_eq_u32 s31, 0")
    a("s_cbranch_scc1 H3_a1")
    take_reads(FB[1])
    mm4(FB[0])
    a("s_waitcnt lgkmcnt(0)")
    a("s_cmp_eq_u32 s31, 0")
    a("s_cbranch_scc1 H3_b1")
    take_reads(FB[0])
    mm4(FB[1])
    a("s_branch H3_a")
    a.label("H3_a1")
    mm4(FB[0])
    a("s_branch H3_c")
    a.label("H3_b1")
    mm4(FB[1])
    a.label("H3_c")
    a("s_cmp_lg_u32 s30, 0")
    a("s_cbranch_scc1 H3_poll")
    a.label("HM_mm")
    a("s_nop 1")
    a("s_nop 7")
    for i in range(8):
        a(f"v_pk_fma_f32 {vr(BA+2*i,2)}, {vr(BA+2*i,2)}, v[12:13], {vr(ACC+2*i,2)} op_sel_hi:[1,0,1]")
    T = 112
    for i in range(8):
        a(f"v_cvt_pk_bf16_f32 v{T+i}, v{BA+2*i}, v{BA+2*i+1}")
    a("s_nop 1")
    a(f"v_permlane32_swap_b32 v{T}, v{T+2}")
    a(f"v_permlane32_swap_b32 v{T+1}, v{T+3}")
    a(f"v_permlane32_swap_b32 v{T+4}, v{T+6}")
    a(f"v_permlane32_swap_b32 v{T+5}, v{T+7}")
    a(f"buffer_store_dwordx4 {vr(T,4)}, v7, {sr(SOUT,4)}, s23 offen")
    a(f"buffer_store_dwordx4 {vr(T+4,4)}, v7, {sr(SOUT,4)}, s23 offen offset:32")
    a.label("HM_fin")
    a.label("HM_end")
    a("s_branch K_flush" if STAMP else "s_branch K_end")

    a.label("P1_compute")
    ACC1 = lambda rt, j: 16 + 48 * rt + 16 * j
    FS = [112, 132]
    F0 = 64
    VF = 72
    WPH = 96
    PD = [104, 120]
    T0 = [136, 152]
    AX, AWD = 4, 8
    IP, IM = 88, 92
    BV = [96, 64]
    TT = [16, 32]
    KV = [136, 152]
    a("s_sub_u32 s12, s28, 4")
    if "nodry" not in EXP:
        a("s_mov_b32 s46, 1")
        a("s_cmp_eq_u32 s12, 4")
        a("s_cbranch_scc1 P1_feat")
        a("v_lshlrev_b32 v1, 4, v0")
        a("s_mov_b32 s20, 0x0000ffff")
        a("s_mov_b32 s21, 0x0000ffff")
        a("s_mov_b32 s29, 2")
        a("s_cmp_eq_u32 s12, 5")
        a("s_cbranch_scc1 P2_restart")
    a.label("P1_setup")
    a("s_mov_b32 s46, 0")
    a("s_and_b32 s30, s12, 1")
    a("s_lshr_b32 s48, s12, 1")
    a("s_and_b32 s48, s48, 1")
    a("s_lshr_b32 s31, s12, 2")
    a("s_lshl_b32 s32, s30, 1")
    a("s_add_u32 s32, s32, s31")
    a("v_and_b32 v1, 31, v0")
    a("v_lshrrev_b32 v2, 5, v0")
    a("v_lshrrev_b32 v3, 1, v1")
    a("v_and_b32 v3, 7, v3")
    a("v_xor_b32 v3, v3, v2")
    a("v_lshlrev_b32 v3, 4, v3")
    a("s_lshl_b32 s3, s30, 6")
    a("v_add_u32 v4, s3, v1")
    a("v_lshlrev_b32 v4, 7, v4")
    a("v_add_u32 v4, v4, v3")
    for t in range(1, 4):
        a(f"v_xor_b32 v{AX+t}, {32*t}, v4")
    a("v_and_b32 v3, 15, v0")
    a("v_lshrrev_b32 v8, 2, v3")
    a("v_lshlrev_b32 v9, 3, v2")
    a("v_add_u32 v8, v8, v9")
    a("v_lshlrev_b32 v8, 7, v8")
    a("v_and_b32 v9, 8, v0")
    a("v_lshlrev_b32 v9, 3, v9")
    a("s_lshl_b32 s3, s48, 6")
    a("v_xor_b32 v9, s3, v9")
    a("v_add_u32 v8, v8, v9")
    a("v_and_b32 v9, 16, v0")
    a("v_cmp_ne_u32 s[6:7], 0, v9")
    a("v_lshlrev_b32 v9, 1, v9")
    a("v_add_u32 v8, v8, v9")
    a("v_and_b32 v9, 3, v0")
    a("v_lshlrev_b32 v9, 3, v9")
    a("v_add_u32 v8, v8, v9")
    a("v_add_u32 v8, 16384, v8")
    a("s_lshl_b32 s51, s37, 2")
    a("s_lshl_b32 s3, s48, 1")
    a("s_add_u32 s51, s51, s3")
    a("v_lshrrev_b32 v10, 2, v3")
    a("v_lshlrev_b32 v11, 2, v2")
    a("v_add_u32 v10, v10, v11")
    a("v_lshlrev_b32 v10, 5, v10")
    a("s_lshl_b32 s3, s48, 10")
    a(f"s_add_u32 s3, s3, {PHL}")
    a("v_add3_u32 v10, v10, v9, s3")
    a("v_lshlrev_b32 v9, 4, v0")
    a(f"v_mov_b32 v3, {CNTS}")
    a("s_and_b32 s3, s12, 3")
    a("s_lshl_b32 s3, s3, 12")
    a(f"s_add_u32 s3, s3, {RING}")
    a("v_add_u32 v11, s3, v9")
    a("s_lshl_b32 s62, s37, 12")
    a("s_lshl_b32 s3, s33, 8")
    a("s_add_u32 s62, s62, s3")
    a("s_lshl_b32 s3, s38, 7")
    a("s_add_u32 s62, s62, s3")
    a(f"s_add_u32 s63, s62, {FL1}")
    a(f"s_add_u32 s62, s62, {FL2}")
    a("s_lshl_b32 s39, s37, 11")
    a("s_lshl_b32 s3, s33, 7")
    a("s_add_u32 s39, s39, s3")
    a(f"s_add_u32 s39, s39, {FLQ}")
    a("s_lshl_b32 s50, s33, 2")
    a("s_add_u32 s50, s50, s32")
    a("s_lshl_b32 s29, s51, 6")
    a("s_add_u32 s29, s29, s50")
    a("v_lshlrev_b32 v12, 2, v2")
    a("v_sub_u32 v12, v1, v12")
    a("v_mov_b32 v13, 0x3f80")
    a("v_mov_b32 v14, 0x3f800000")
    for k, add in ((0, 0), (4, 16)):
        for p in range(4):
            f0 = (2 * p if p < 2 else 8 + 2 * (p - 2)) + add
            a(f"v_cmp_eq_u32 s[4:5], {f0}, v12")
            a(f"v_cmp_eq_u32 s[30:31], {f0+1}, v12")
            a("s_nop 1")
            a(f"v_cndmask_b32 v15, 0, v13, s[4:5]")
            a(f"v_cndmask_b32 v{152+k+p}, v15, v14, s[30:31]")
    a("s_lshl_b32 s3, s48, 2")
    a("s_add_u32 s3, s3, s32")
    a("s_lshl_b32 s3, s3, 13")
    a(f"s_add_u32 s3, s3, {RED}")
    a("v_add_u32 v160, s3, v9")
    a("s_lshl_b32 s3, s32, 11")
    a("s_lshl_b32 s4, s48, 15")
    a("s_add_u32 s3, s3, s4")
    a(f"s_add_u32 s3, s3, {RED}")
    a("v_add_u32 v161, s3, v9")
    a("s_lshr_b32 s3, s32, 1")
    a("s_lshl_b32 s4, s3, 4")
    a("v_xor_b32 v12, s4, v1")
    a("s_lshl_b32 s4, s33, 5")
    a("s_add_u32 s4, s4, s51")
    a("s_add_u32 s4, s4, s3")
    a("s_lshl_b32 s4, s4, 3")
    a("s_and_b32 s5, s32, 1")
    a("s_lshl_b32 s5, s5, 2")
    a("s_add_u32 s4, s4, s5")
    a("s_lshl_b32 s5, s4, 8")
    a(f"s_add_u32 s5, s5, {WS_KVP}")
    a("s_lshl_b32 s4, s4, 4")
    a(f"s_add_u32 s4, s4, {WS_ZP}")
    a("v_lshlrev_b32 v13, 7, v2")
    a("v_lshlrev_b32 v14, 3, v12")
    a("v_add3_u32 v13, v13, v14, s5")
    a("v_lshlrev_b32 v14, 3, v2")
    a("v_add_u32 v14, s4, v14")
    a("v_cmp_gt_u32 s[4:5], 16, v12")
    a("v_cmp_eq_u32 s[30:31], 16, v12")
    a("v_mov_b32 v15, 0x7ffff000")
    a("v_mov_b32 v163, 256")
    a("v_cndmask_b32 v14, v15, v14, s[30:31]")
    a("v_cndmask_b32 v162, v14, v13, s[4:5]")
    a("v_cndmask_b32 v163, 16, v163, s[4:5]")
    a("v_and_b32 v164, 16, v0")
    a("v_lshlrev_b32 v164, 13, v164")
    a("v_and_b32 v15, 0x2f, v0")
    a("v_lshlrev_b32 v15, 4, v15")
    a("v_add_u32 v164, v164, v15")
    a("s_waitcnt lgkmcnt(0)")
    srd(a, SWS, P_WS, WS_SIZE)
    a("s_cmp_lt_u32 s12, 4")
    a("s_cbranch_scc1 P1_gemm")
    if "nocpf" not in EXP:
        a("s_getpc_b64 s[4:5]")
        a.label("P1_pc")
        a(f"s_sub_u32 s4, s4, P1_pc-{kn}")
        a("s_subb_u32 s5, s5, 0")
        a("s_sub_u32 s3, s12, 4")
        a("s_lshl_b32 s3, s3, 13")
        a("v_lshlrev_b32 v12, 7, v0")
        a("v_add_u32 v12, s3, v12")
        a(f"v_min_u32 v12, K_last-{kn}, v12")
        a("global_load_dword v13, v12, s[4:5]")
    a("s_mov_b32 s49, 0")
    a.label("P1_idle")
    a("s_barrier")
    a("s_add_u32 s49, s49, 1")
    a("s_cmp_lt_u32 s49, 9")
    a("s_cbranch_scc1 P1_idle")
    a("s_waitcnt vmcnt(0)")
    for h in range(2):
        a(f"ds_read_b64_tr_b16 {vr(WPH+4*h,2)}, v10 offset:{h*512}")
        a(f"ds_read_b64_tr_b16 {vr(WPH+4*h+2,2)}, v10 offset:{h*512+256}")
    a(f"ds_read_b64 v[12:13], v3 offset:{L_TAG}")
    for i_ in (1, 2, 3, 4):
        stamp(a, i_)
    a("s_waitcnt lgkmcnt(0)")
    a(f"v_readfirstlane_b32 s{TAG}, v12")
    a(f"v_readfirstlane_b32 s{TAG+1}, v13")
    lds_poll(a, 3, 12, C_H, 4)
    for q in range(4):
        a(f"ds_read_b128 {vr(F0+4*q,4)}, v11 offset:{q*1024}")
    a("s_waitcnt lgkmcnt(0)")
    a("s_branch P1_feat")

    a.label("P1_gemm")
    for i in range(0, 96, 2):
        a(f"v_mov_b64 {vr(16+i,2)}, 0")

    def reads(F, t):
        w = lambda j, hf: f"ds_read_b64_tr_b16 {vr(F+8+4*j+2*hf,2)}, v{AWD} offset:{j*8192 + t*2048 + 512*hf}"
        return [f"ds_read_b128 {vr(F,4)}, v{AX+t}", w(2, 0), w(2, 1),
                f"ds_read_b128 {vr(F+4,4)}, v{AX+t} offset:4096", w(1, 0), w(1, 1), w(0, 0), w(0, 1)]

    def main_loop(tag, typeK):
        def m(F, k):
            rt, j = k & 1, 2 - (k >> 1)
            X, W = F + 4 * rt, F + 8 + 4 * j
            if typeK and j > 0:
                mfma(a, ACC1(rt, j), X, W, ACC1(rt, j))
            else:
                mfma(a, ACC1(rt, j), W, X, ACC1(rt, j))

        def step(F, R):
            a("s_waitcnt lgkmcnt(5)")
            m(F, 0)
            a(R[0]); a(R[1])
            a("s_waitcnt lgkmcnt(6)")
            m(F, 1)
            a(R[2]); a(R[3])
            a("s_waitcnt lgkmcnt(6)")
            m(F, 2)
            a(R[4]); a(R[5])
            m(F, 3)
            a(R[6]); a(R[7])
            a("s_waitcnt lgkmcnt(8)")
            m(F, 4)
            m(F, 5)
        a.label(f"P1_loop{tag}")
        step(FS[0], reads(FS[1], 1))
        step(FS[1], reads(FS[0], 2))
        step(FS[0], reads(FS[1], 3))
        F = FS[1]
        a("s_waitcnt lgkmcnt(0)")
        m(F, 0)
        m(F, 1)
        a("s_barrier")
        a("s_cmp_eq_u32 s49, 7")
        a(f"s_cbranch_scc1 P1_last{tag}")
        a("s_add_u32 s50, s50, 1")
        a(f"s_mov_b32 s3, {STAGE}")
        a("s_cmp_eq_u32 s50, 3")
        a(f"s_cselect_b32 s3, {(-2*STAGE) & 0xffffffff}, s3")
        a("s_cselect_b32 s50, 0, s50")
        a(f"v_add_u32 v{AX}, s3, v{AX}")
        a(f"v_add_u32 v{AWD}, s3, v{AWD}")
        R = reads(FS[0], 0)
        a(R[0]); a(R[1]); a(R[2])
        m(F, 2)
        a(R[3]); a(R[4]); a(R[5])
        m(F, 3)
        a(R[6]); a(R[7])
        for r in range(AX + 1, AX + 4):
            a(f"v_add_u32 v{r}, s3, v{r}")
        m(F, 4)
        a("s_add_u32 s49, s49, 1")
        m(F, 5)
        a(f"s_branch P1_loop{tag}")
        a.label(f"P1_last{tag}")
        for k in range(2, 6):
            m(F, k)
        a(f"ds_read_b64 v[12:13], v3 offset:{L_TAG}")
        stamp(a, 3)
        a("s_lshl_b32 s4, s29, 11")
        a(f"s_add_u32 s4, s4, {WS_KVB}")
        a(f"s_add_u32 s5, s4, {64*2048}")
        a("s_nop 3")
        for rt in range(2):
            for i in range(8):
                a(f"v_cvt_pk_bf16_f32 v{112+8*rt+i}, v{ACC1(rt,2)+2*i}, v{ACC1(rt,2)+2*i+1}")

    a("s_mov_b32 s49, 0")
    a("s_mov_b32 s50, 0")
    stamp(a, 1)
    a("s_barrier")
    stamp(a, 2)
    if STAMP:
        a("s_waitcnt lgkmcnt(0)")
    for r in reads(FS[0], 0):
        a(r)
    a("s_cmp_eq_u32 s38, 0")
    a("s_cbranch_scc1 P1_loopK")
    main_loop("Q", False)
    for rt in range(2):
        a(f"buffer_store_dwordx4 {vr(112+8*rt,4)}, v9, {sr(SWS,4)}, s4 offen offset:{rt*2048} sc1")
        a(f"buffer_store_dwordx4 {vr(116+8*rt,4)}, v9, {sr(SWS,4)}, s5 offen offset:{rt*2048} sc1")
    a("s_branch P1_hand")
    main_loop("K", True)
    for rt in range(2):
        a(f"buffer_store_dwordx4 {vr(112+8*rt,4)}, v164, {sr(SWS,4)}, s4 offen offset:{rt*2048+1024} sc1")
        a(f"buffer_store_dwordx4 {vr(116+8*rt,4)}, v164, {sr(SWS,4)}, s4 offen offset:{rt*2048+1280} sc1")
    a.label("P1_hand")
    for i in range(8):
        a(f"v_cvt_pk_bf16_f32 v{136+i}, v{ACC1(1,0)+2*i}, v{ACC1(1,0)+2*i+1}")
    for i in range(8):
        a(f"v_cvt_pk_bf16_f32 v{144+i}, v{ACC1(1,1)+2*i}, v{ACC1(1,1)+2*i+1}")
    for q in range(4):
        a(f"ds_write_b128 v11, {vr(136+4*q,4)} offset:{q*1024}")
    for h in range(2):
        a(f"ds_read_b64_tr_b16 {vr(WPH+4*h,2)}, v10 offset:{h*512}")
        a(f"ds_read_b64_tr_b16 {vr(WPH+4*h+2,2)}, v10 offset:{h*512+256}")
    for i in range(8):
        a(f"v_cvt_pk_bf16_f32 v{F0+i}, v{ACC1(0,0)+2*i}, v{ACC1(0,0)+2*i+1}")
    for i in range(8):
        a(f"v_cvt_pk_bf16_f32 v{VF+i}, v{ACC1(0,1)+2*i}, v{ACC1(0,1)+2*i+1}")
    a("s_waitcnt lgkmcnt(0)")
    a(f"v_readfirstlane_b32 s{TAG}, v12")
    a(f"v_readfirstlane_b32 s{TAG+1}, v13")
    lds_add(a, 3, 12, C_H)
    a("s_waitcnt vmcnt(0)")
    lds_add(a, 3, 6, C_B, rtn=True)
    a("s_cmp_lg_u32 s3, 3")
    a("s_cbranch_scc1 P1_nofl1")
    flag_write(a, 6, 63, SWS)
    a.label("P1_nofl1")
    stamp(a, 4)
    a("s_cmp_eq_u32 s38, 0")
    a("s_cbranch_scc1 P1_feat")
    a(f"s_mov_b32 s30, {f32bits(0.25*LOG2E):#x}")
    a("s_mov_b32 s31, s30")
    a("s_lshl_b32 s4, s29, 10")
    a(f"s_add_u32 s5, s4, {64*1024}")
    for rt in range(2):
        for i in range(8):
            a(f"v_pk_mul_f32 {vr(ACC1(rt,1)+2*i,2)}, {vr(ACC1(rt,1)+2*i,2)}, s[30:31]")
        for i in range(8):
            a(f"v_cvt_pk_bf16_f32 v{16+8*rt+i}, v{ACC1(rt,1)+2*i}, v{ACC1(rt,1)+2*i+1}")
        a(f"buffer_store_dwordx4 {vr(16+8*rt,4)}, v9, {sr(SWS,4)}, s4 offen offset:{rt*1024} sc1")
        a(f"buffer_store_dwordx4 {vr(20+8*rt,4)}, v9, {sr(SWS,4)}, s5 offen offset:{rt*1024} sc1")
    a.label("P1_feat")
    for i in range(0, 8, 2):
        a(f"v_mov_b64 {vr(IP+i,2)}, {vr(152+i,2)}")
    a("v_mov_b64 v[56:57], v[160:161]")
    a("v_mov_b64 v[58:59], v[162:163]")
    a(f"s_mov_b32 s30, {f32bits(LOG2E):#x}")
    a("s_mov_b32 s31, s30")
    mfma(a, PD[0], WPH, F0, "0")
    mfma(a, PD[1], WPH + 4, F0 + 4, "0")
    a("s_nop 7")
    a("s_nop 2")
    H = (0, 1)
    M = [(10, 12, 11, 13), (14, 4, 15, 5)]
    for h in H:
        P = PD[h]
        a(f"v_max3_f32 v{M[h][0]}, v{P}, v{P+1}, v{P+2}")
        a(f"v_min3_f32 v{M[h][1]}, v{P}, v{P+1}, v{P+2}")
    for o in (3, 5):
        for h in H:
            P = PD[h]
            a(f"v_max3_f32 v{M[h][0]}, v{M[h][0]}, v{P+o}, v{P+o+1}")
            a(f"v_min3_f32 v{M[h][1]}, v{M[h][1]}, v{P+o}, v{P+o+1}")
    for h in H:
        P = PD[h]
        a(f"v_max_f32 v{M[h][0]}, v{M[h][0]}, v{P+7}")
        a(f"v_min_f32 v{M[h][1]}, v{M[h][1]}, v{P+7}")
    for h in H:
        a(f"v_mov_b32 v{M[h][2]}, v{M[h][0]}")
        a(f"v_mov_b32 v{M[h][3]}, v{M[h][1]}")
    a("s_nop 1")
    for h in H:
        a(f"v_permlane32_swap_b32 v{M[h][0]}, v{M[h][2]}")
        a(f"v_permlane32_swap_b32 v{M[h][1]}, v{M[h][3]}")
    a("s_nop 1")
    for h in H:
        a(f"v_max_f32 v{M[h][0]}, v{M[h][0]}, v{M[h][2]}")
        a(f"v_min_f32 v{M[h][1]}, v{M[h][1]}, v{M[h][3]}")
    for h in H:
        a(f"v_mul_f32 v{M[h][0]}, s30, v{M[h][0]}")
        a(f"v_mul_f32 v{M[h][1]}, s30, v{M[h][1]}")
    for i in range(4):
        for h in H:
            a(f"v_pk_fma_f32 {vr(T0[h]+2*i,2)}, {vr(PD[h]+2*i,2)}, s[30:31], {vr(M[h][0],2)} op_sel_hi:[1,1,0] neg_lo:[0,0,1] neg_hi:[0,0,1]")
            a(f"v_pk_fma_f32 {vr(T0[h]+8+2*i,2)}, {vr(PD[h]+2*i,2)}, s[30:31], {vr(M[h][1],2)} op_sel_hi:[1,1,0] neg_lo:[1,0,0] neg_hi:[1,0,0]")
    for i in range(16):
        for h in H:
            a(f"v_exp_f32 v{T0[h]+i}, v{T0[h]+i}")
    for h in H:
        for g in range(2):
            a(f"v_pk_add_f32 {vr(PD[h]+4*g,2)}, {vr(T0[h]+8*g,2)}, {vr(T0[h]+8*g+2,2)}")
            a(f"v_pk_add_f32 {vr(PD[h]+4*g+2,2)}, {vr(T0[h]+8*g+4,2)}, {vr(T0[h]+8*g+6,2)}")
    for h in H:
        for g in range(2):
            a(f"v_pk_add_f32 {vr(PD[h]+4*g,2)}, {vr(PD[h]+4*g,2)}, {vr(PD[h]+4*g+2,2)}")
    for h in H:
        a(f"v_add_f32 v{M[h][0]}, v{PD[h]}, v{PD[h]+1}")
        a(f"v_add_f32 v{M[h][1]}, v{PD[h]+4}, v{PD[h]+5}")
    for h in H:
        a(f"v_mov_b32 v{M[h][2]}, v{M[h][0]}")
        a(f"v_mov_b32 v{M[h][3]}, v{M[h][1]}")
    a("s_nop 1")
    for h in H:
        a(f"v_permlane32_swap_b32 v{M[h][0]}, v{M[h][2]}")
        a(f"v_permlane32_swap_b32 v{M[h][1]}, v{M[h][3]}")
    a("s_nop 1")
    for h in H:
        a(f"v_add_f32 v{M[h][0]}, v{M[h][0]}, v{M[h][2]}")
        a(f"v_add_f32 v{M[h][1]}, v{M[h][1]}, v{M[h][3]}")
    for h in H:
        a(f"v_rcp_f32 v{M[h][0]}, v{M[h][0]}")
        a(f"v_rcp_f32 v{M[h][1]}, v{M[h][1]}")
    a("s_nop 0")
    for i in range(4):
        for h in H:
            a(f"v_pk_mul_f32 {vr(T0[h]+2*i,2)}, {vr(T0[h]+2*i,2)}, {vr(M[h][0],2)} op_sel_hi:[1,0]")
            a(f"v_pk_mul_f32 {vr(T0[h]+8+2*i,2)}, {vr(T0[h]+8+2*i,2)}, {vr(M[h][1],2)} op_sel_hi:[1,0]")
    for i in range(8):
        for h in H:
            a(f"v_cvt_pk_bf16_f32 v{PD[h]+8+i}, v{T0[h]+2*i}, v{T0[h]+2*i+1}")
    a("s_cmp_eq_u32 s38, 0")
    a("s_cbranch_scc1 P1_featK")
    a("s_cmp_eq_u32 s46, 1")
    a("s_cbranch_scc1 P1_setup")
    a("s_lshl_b32 s4, s29, 11")
    a(f"s_add_u32 s4, s4, {WS_PHIQ}")
    a(f"s_add_u32 s5, s4, {64*2048}")
    a("s_cmp_ge_u32 s12, 4")
    a("s_cbranch_scc1 P1_done")
    a("s_waitcnt vmcnt(0)")
    lds_add(a, 3, 6, C_Q, rtn=True)
    a("s_cmp_lg_u32 s3, 3")
    a("s_cbranch_scc1 P1_done")
    flag_write(a, 6, 39, SWS)
    a("s_branch P1_done")
    a.label("P1_featK")
    a("v_mov_b32 v15, 0x3f803f80")
    for h in range(2):
        mfma(a, TT[h], PD[h] + 8, IP, "0")
        mfma(a, TT[h], PD[h] + 12, IM, TT[h])
    for i in range(8):
        a(f"v_cndmask_b32 v{BV[0]+i}, v{VF+i}, v15, s[6:7]")
        a(f"v_cndmask_b32 v{BV[1]+i}, v15, v{VF+i}, s[6:7]")
    for h in range(2):
        for i in range(8):
            a(f"v_cvt_pk_bf16_f32 v{PD[h]+i}, v{TT[h]+2*i}, v{TT[h]+2*i+1}")
    a("s_nop 1")
    for h in range(2):
        mfma(a, KV[h], PD[h], BV[h], "0")
        mfma(a, KV[h], PD[h] + 4, BV[h] + 4, KV[h])
    a("s_nop 7")
    a("s_cmp_eq_u32 s46, 1")
    a("s_cbranch_scc1 P1_setup")
    for h in range(2):
        for q in range(4):
            a(f"ds_write_b128 v56, {vr(KV[h]+4*q,4)} offset:{h*4096 + q*1024}")
    a("s_waitcnt lgkmcnt(0)")
    lds_add(a, 3, 10, C_RED1)
    lds_poll(a, 3, 10, C_RED1, 8)
    for w in range(4):
        a(f"ds_read_b128 {vr(16+8*w,4)}, v57 offset:{w*8192}")
        a(f"ds_read_b128 {vr(20+8*w,4)}, v57 offset:{w*8192+1024}")
    a("s_waitcnt lgkmcnt(0)")
    lds_add(a, 3, 10, C_RED2)
    for i in range(4):
        a(f"v_pk_add_f32 {vr(16+2*i,2)}, {vr(16+2*i,2)}, {vr(24+2*i,2)}")
        a(f"v_pk_add_f32 {vr(32+2*i,2)}, {vr(32+2*i,2)}, {vr(40+2*i,2)}")
    for i in range(4):
        a(f"v_pk_add_f32 {vr(136+2*i,2)}, {vr(16+2*i,2)}, {vr(32+2*i,2)}")
    a.label("P1_done")
    a("v_mov_b64 v[144:145], v[58:59]")
    a("s_mov_b32 s63, s38")
    if STAMP:
        a("s_cmp_lt_u32 s12, 4")
        a("s_cbranch_scc1 ST_a")
        stamp(a, 2)
        a.label("ST_a")

    UNR = 8
    PRIO = [(40, 1), (56, 0)]
    QF = 4
    KF = [8, 12]
    VFa = [16, 24]
    P = 32
    O = 40
    CN = 56
    S = [72, 88]
    NC = 104
    a("v_mov_b32 v108, v3")
    a("v_mov_b32 v1, v9")
    a("s_and_b32 s38, s2, 7")
    a("s_lshl_b32 s13, s38, 2")
    a("s_lshr_b32 s3, s2, 3")
    a("s_and_b32 s36, s3, 3")
    a("s_lshr_b32 s37, s3, 2")
    a("s_add_u32 s13, s13, s36")
    a("s_mov_b32 s36, s13")
    a("s_lshr_b32 s14, s2, 5")
    a("s_lshl_b32 s15, s14, 3")
    a("s_add_u32 s15, s15, s12")
    a("s_lshl_b32 s16, s13, 6")
    a("s_add_u32 s16, s16, s15")
    a("v_and_b32 v2, 27, v0")
    a("v_cmp_eq_u32 s[24:25], 16, v2")
    a("v_mov_b32 v3, 0x3f803f80")
    a("s_mov_b32 s20, 0x0000ffff")
    a("s_mov_b32 s21, 0x0000ffff")
    a(f"v_cndmask_b32 v{VFa[0]}, 0, v3, s[24:25]")
    for i in range(1, 16):
        a(f"v_mov_b32 v{VFa[0]+i}, v{VFa[0]}")
    a("s_mov_b32 s22, 0")
    evmask = 0
    for t_ in [8, 16, 24, 64] + [p_[0] for p_ in PRIO]:
        evmask |= 1 << (t_ // 8)
    a(f"s_mov_b32 s29, {evmask:#x}")
    a("s_lshl_b32 s47, s12, 18")
    a("s_lshl_b32 s3, s36, 11")
    a("s_add_u32 s47, s47, s3")
    a(f"s_add_u32 s47, s47, {WS_O + 2*MB}")
    lds_poll(a, 108, NC, F_Q, 1, sleep=1)
    if STAMP:
        a("s_cmp_lt_u32 s12, 4")
        a("s_cbranch_scc1 ST_b")
        stamp(a, 3)
        a.label("ST_b")
    a("s_lshl_b32 s19, s16, 10")
    a(f"buffer_load_dwordx4 {vr(QF,4)}, v1, {sr(SWS,4)}, s19 offen sc1")
    lds_poll(a, 108, NC, C_S0, 4)
    if STAMP:
        a("s_cmp_lt_u32 s12, 4")
        a("s_cbranch_scc1 ST_c")
        stamp(a, 4)
        a.label("ST_c")
    a("s_setprio 3")
    a(f"ds_read_b128 {vr(KF[0],4)}, v1")
    a("s_waitcnt vmcnt(0) lgkmcnt(0)")
    stamp(a, 5)
    mfma(a, S[1], KF[0], QF, "0")
    a("s_nop 7")
    a("s_nop 3")
    X = S[1]
    a(f"v_max3_f32 v2, v{X}, v{X+1}, v{X+2}")
    for i in range(3, 15, 2):
        a(f"v_max3_f32 v2, v2, v{X+i}, v{X+i+1}")
    a(f"v_max_f32 v2, v2, v{X+15}")
    cross_half(a, "v_max_f32", 2, 3)
    if STAMP:
        a("s_waitcnt lgkmcnt(0)")
    a.label("P2_restart")
    a("v_mov_b32 v3, v1")
    a(f"ds_read_b128 {vr(KF[0],4)}, v3")
    a(f"ds_read_b128 {vr(KF[1],4)}, v3 offset:2048")
    a("s_mov_b64 exec, s[20:21]")
    a(f"ds_read_b128 {vr(VFa[0],4)}, v3 offset:1024")
    a(f"ds_read_b128 {vr(VFa[0]+4,4)}, v3 offset:1280")
    a("s_mov_b64 exec, -1")
    a(f"v_sub_f32 v{CN}, 0, v2")
    a(f"v_sub_f32 v{CN+1}, 0, v2")
    for i in range(2, 16, 2):
        a(f"v_mov_b64 {vr(CN+i,2)}, {vr(CN,2)}")
    for i in range(0, 16, 2):
        a(f"v_mov_b64 {vr(O+i,2)}, 0")
    a("s_waitcnt lgkmcnt(3)")
    mfma(a, S[0], KF[0], QF, CN)
    a("s_mov_b32 s23, 0")
    a("s_nop 7")
    a("s_nop 3")
    a.raw("    .p2align 3")
    a.label("P2_loop")
    for u in range(UNR):
        X, Y = S[u & 1], S[(u + 1) & 1]
        Kn = KF[(u + 1) & 1]
        Kp = KF[u & 1]
        Vc = VFa[u & 1]
        Vn = VFa[(u + 1) & 1]
        for i in range(4):
            a(f"v_exp_f32 v{X+i}, v{X+i}")
        a("s_waitcnt lgkmcnt(0)")
        mfma(a, Y, Kn, QF, CN)
        a(f"ds_read_b128 {vr(Kp,4)}, v3 offset:{(u+2)*2048}")
        for i in range(4, 8):
            a(f"v_exp_f32 v{X+i}, v{X+i}")
        for i in range(4):
            a(f"v_cvt_pk_bf16_f32 v{P+i}, v{X+2*i}, v{X+2*i+1}")
        for i in range(8, 10):
            a(f"v_exp_f32 v{X+i}, v{X+i}")
        mfma(a, O, Vc, P, O)
        a("s_mov_b64 exec, s[20:21]")
        a(f"ds_read_b128 {vr(Vn,4)}, v3 offset:{(u+1)*2048+1024}")
        a(f"ds_read_b128 {vr(Vn+4,4)}, v3 offset:{(u+1)*2048+1280}")
        a("s_mov_b64 exec, -1")
        for i in range(10, 16):
            a(f"v_exp_f32 v{X+i}, v{X+i}")
        for i in range(4, 8):
            a(f"v_cvt_pk_bf16_f32 v{P+i}, v{X+2*i}, v{X+2*i+1}")
        if u == UNR - 1:
            a(f"v_add_u32 v3, {UNR*2048}, v3")
            a("s_add_u32 s23, s23, 1")
            a("s_bitcmp1_b32 s29, s23")
        else:
            a("s_nop 1")
        mfma(a, O, Vc + 4, P + 4, O)
    a("s_cbranch_scc0 P2_loop")
    a("s_cmp_eq_u32 s23, 8")
    a("s_cbranch_scc1 P2_exit")
    a("s_cmp_lg_u32 s23, 1")
    a("s_cbranch_scc1 P2_e5")
    a("s_cmp_eq_u32 s46, 0")
    a("s_cbranch_scc1 P2_nodry")
    a("s_waitcnt lgkmcnt(0)")
    a("s_nop 7")
    a("s_nop 7")
    a("s_branch P1_setup")
    a.label("P2_nodry")
    lds_poll(a, 108, 109, C_S1, 4)
    for i in range(4):
        a(f"v_mov_b32 v{NC+i}, -1")
    a("s_lshl_b32 s19, s16, 10")
    a(f"s_add_u32 s19, s19, {WS_O + 2*MB}")
    a(f"buffer_store_dwordx4 {vr(NC,4)}, v1, {sr(SWS,4)}, s19 offen sc1")
    a("s_cmp_eq_u32 s63, 0")
    a("s_cbranch_scc1 P2_stK")
    for h in range(2):
        a(f"buffer_store_dwordx4 {vr(PD[h]+8,4)}, v1, {sr(SWS,4)}, s{4+h} offen sc1")
        a(f"buffer_store_dwordx4 {vr(PD[h]+12,4)}, v1, {sr(SWS,4)}, s{4+h} offen offset:1024 sc1")
    a("s_branch P2_loop")
    a.label("P2_stK")
    for p in range(4):
        a(f"buffer_store_dwordx2 {vr(136+2*p,2)}, v144, {sr(SWS,4)}, 0 offen sc1")
        if p < 3:
            a("v_add_u32 v144, v144, v145")
    a("s_branch P2_loop")
    a.label("P2_e5")
    a("s_cmp_lg_u32 s23, 2")
    a("s_cbranch_scc1 P2_e6")
    a("s_setprio 2")
    a("s_waitcnt vmcnt(0)")
    lds_add(a, 108, NC, C_A, rtn=True)
    a("s_cmp_lg_u32 s3, 8")
    a("s_cbranch_scc1 P2_loop")
    flag_write(a, NC, 62, SWS)
    a("s_branch P2_loop")
    a.label("P2_e6")
    a("s_cmp_lg_u32 s23, 3")
    a("s_cbranch_scc1 P2_e7")
    lds_poll(a, 108, 109, C_S2, 4)
    if STAMP and "att" in EXP:
        stamp(a, 2)
    a("s_branch P2_loop")
    a.label("P2_e7")
    a("s_cmp_lg_u32 s23, 5")
    a("s_cbranch_scc1 P2_e8")
    a("s_setprio 1")
    lds_add(a, 108, 109, C_T40)
    a("s_branch P2_loop")
    a.label("P2_e8")
    a("s_cmp_ge_u32 s12, 4")
    a("s_cbranch_scc1 P2_loop")
    a("s_setprio 0")
    a("s_branch P2_loop")
    a.label("P2_exit")
    a("s_waitcnt lgkmcnt(0)")
    stamp(a, 1)
    a("s_nop 7")
    a("s_nop 1")
    a(f"v_mov_b32 v{P}, {f32bits(2.0**64):#x}")
    a(f"v_cmp_nlt_f32 s[24:25], v{O+8}, v{P}")
    a(f"v_mov_b32 v{P+1}, 0x7f800000")
    for i in range(8):
        a(f"v_cmp_nlt_f32 s[26:27], abs(v{O+i}), v{P+1}")
        a("s_or_b64 s[24:25], s[24:25], s[26:27]")
    a("s_cmp_eq_u64 s[24:25], 0")
    a("s_cbranch_scc1 P2_fin")
    a("s_lshl_b32 s17, s13, 17")
    a(f"s_add_u32 s17, s17, {WS_KVB}")
    a("s_mov_b32 s18, s17")
    a("v_mov_b32 v2, 0xff800000")
    a("s_mov_b32 s23, 0")
    a.label("FB_max")
    a(f"buffer_load_dwordx4 {vr(KF[0],4)}, v1, {sr(SWS,4)}, s18 offen sc1")
    a("s_add_u32 s18, s18, 2048")
    a("s_add_u32 s23, s23, 1")
    a("s_waitcnt vmcnt(0)")
    mfma(a, S[0], KF[0], QF, "0")
    a("s_nop 7")
    a("s_nop 3")
    for i in range(0, 16, 2):
        a(f"v_max3_f32 v2, v2, v{S[0]+i}, v{S[0]+i+1}")
    a("s_cmp_lt_u32 s23, 64")
    a("s_cbranch_scc1 FB_max")
    cross_half(a, "v_max_f32", 2, 3)
    a(f"v_sub_f32 v{CN}, 0, v2")
    a(f"v_sub_f32 v{CN+1}, 0, v2")
    for i in range(2, 16, 2):
        a(f"v_mov_b64 {vr(CN+i,2)}, {vr(CN,2)}")
    for i in range(0, 16, 2):
        a(f"v_mov_b64 {vr(O+i,2)}, 0")
    a("s_mov_b32 s23, 0")
    a.label("FB_main")
    a(f"buffer_load_dwordx4 {vr(KF[0],4)}, v1, {sr(SWS,4)}, s17 offen sc1")
    a("s_mov_b64 exec, s[20:21]")
    a(f"buffer_load_dwordx4 {vr(VFa[0],4)}, v1, {sr(SWS,4)}, s17 offen offset:1024 sc1")
    a(f"buffer_load_dwordx4 {vr(VFa[0]+4,4)}, v1, {sr(SWS,4)}, s17 offen offset:1280 sc1")
    a("s_mov_b64 exec, -1")
    a("s_add_u32 s17, s17, 2048")
    a("s_add_u32 s23, s23, 1")
    a("s_waitcnt vmcnt(0)")
    mfma(a, S[0], KF[0], QF, CN)
    a("s_nop 7")
    a("s_nop 3")
    for i in range(16):
        a(f"v_exp_f32 v{S[0]+i}, v{S[0]+i}")
    a("s_nop 0")
    for i in range(8):
        a(f"v_cvt_pk_bf16_f32 v{P+i}, v{S[0]+2*i}, v{S[0]+2*i+1}")
    a("s_nop 1")
    mfma(a, O, VFa[0], P, O)
    mfma(a, O, VFa[0] + 4, P + 4, O)
    a("s_cmp_lt_u32 s23, 64")
    a("s_cbranch_scc1 FB_main")
    a("s_nop 7")
    a("s_nop 3")
    a.label("P2_fin")
    OFB = 80
    WFB = 144
    a(f"v_rcp_f32 v2, v{O+8}")
    a("s_lshl_b32 s19, s16, 10")
    for i in range(4):
        a(f"v_pk_mul_f32 {vr(O+2*i,2)}, {vr(O+2*i,2)}, v[2:3] op_sel_hi:[1,0]")
    for i in range(4):
        a(f"v_cvt_pk_bf16_f32 v{160+i}, v{O+2*i}, v{O+2*i+1}")
    a(f"s_add_u32 s19, s19, {WS_O + 2*MB}")
    a("v_min_u32 v160, 0xfffffffe, v160")
    a(f"buffer_store_dwordx4 v[160:163], v1, {sr(SWS,4)}, s19 offen sc1")
    a("s_setprio 3")
    a("v_mov_b32 v2, v108")
    lds_add(a, 2, 3, C_OB)
    lds_poll(a, 2, 3, F_3A, 1)
    a("s_lshl_b32 s3, s12, 13")
    a("s_add_u32 s3, s3, 65536")
    a("v_add_u32 v4, s3, v1")
    lds_poll(a, 2, 3, C_OB, 8)
    if int(os.environ.get("OWN", "1")):
        a("s_waitcnt vmcnt(0)")
    a("s_mov_b32 s31, 0")
    a("s_mov_b32 s30, 0xf")
    a.label("P3_round")
    for k in range(4):
        a(f"s_bitcmp1_b32 s30, {k}")
        a(f"s_cbranch_scc0 P3_s{k}")
        a(f"s_add_u32 s3, s47, {k*65536}")
        a(f"buffer_load_dwordx4 {vr(OFB+8*k,4)}, v1, {sr(SWS,4)}, s3 offen sc1")
        a(f"buffer_load_dwordx4 {vr(OFB+8*k+4,4)}, v1, {sr(SWS,4)}, s3 offen offset:1024 sc1")
        a.label(f"P3_s{k}")
    a("s_add_u32 s31, s31, 1")
    a("s_mov_b32 s30, 0")
    a("s_waitcnt vmcnt(0)")
    for k in range(4):
        a(f"v_max_u32 v5, v{OFB+8*k}, v{OFB+8*k+4}")
        a("v_cmp_eq_u32 s[24:25], -1, v5")
        a("s_nop 0")
        a("s_cmp_lg_u64 s[24:25], 0")
        a(f"s_cselect_b32 s3, {1<<k}, 0")
        a("s_or_b32 s30, s30, s3")
    a("s_cmp_gt_u32 s31, 0x200000")
    a("s_cbranch_scc1 P3_out")
    a("s_cmp_eq_u32 s30, 0")
    a("s_cbranch_scc1 P3_out")
    a(f"s_sleep {int(os.environ.get('RS', '4'))}")
    a("s_branch P3_round")
    a.label("P3_out")
    if STAMP:
        stamp(a, 2)
        a(f"s_add_u32 s{STB+8}, s{STB}, s31")
    for k in range(8):
        a(f"ds_write_b128 v4, {vr(OFB+4*k,4)} offset:{k*1024}")
    a("s_lshl_b32 s3, 1, s12")
    a("v_mov_b32 v3, s3")
    a("s_waitcnt lgkmcnt(0)")
    a("s_mov_b64 exec, 1")
    a(f"ds_or_b32 v2, v3 offset:{M_RDY}")
    a("s_mov_b64 exec, -1")
    if STAMP:
        a.label("K_flush")
        a("s_waitcnt vmcnt(0)")
        stamp(a, 6)
        stamp_flush(a, 0, 8, 28, SWS)
    a.label("K_end")
    a.label("K_last")
    a("s_endpgm")
    return kd(kn, 168, 80)


def main():
    a = Asm()
    head = f"""; gated mix of hedgehog linear attention and softmax attention (generated by dev/gen8.py)
; @launch kernel={NAME}_kernel grid=(256,1,1) block=(768,1,1) lds=163840
.amdgcn_target "amdgcn-amd-amdhsa--gfx950"
.text
"""
    kds = [gen_fused(a)]
    out = head + a.text() + '.section .rodata,"a"\n' + "".join(kds)
    path = sys.argv[1] if len(sys.argv) > 1 else f"f8.s"
    open(path, "w").write(out)
    print("wrote", path, len(out))


if __name__ == "__main__":
    main()
```

```python
import sys, os
import gen as G
G.STB = 80
from gen import *
STB = 80
import gen2 as G2
from gen2 import lds_poll, lds_add, flag_write, flag_poll, proj_addr, uid, TAG

G2.FSH = 7
WS_FL = 17 * MB
FL3A, FL3B, FL1, FL2, FLQ = [WS_FL + 32768 * i for i in range(5)]
SP = 131072
PHL = SP
XCH = SP + 2048
CNTS = SP + 4096
RING = SP + 8192
RED = 65536
(C_XCH, C_OA, F_3A, C_OB, F_3B, C_AR, L_TAG, _, C_B, C_A, C_RED1, C_RED2, F_F1, C_S0, C_S1, F_F2, C_H, C_Q, F_Q, C_S2, C_T40, C_WB, M_RDY) = [4 * i for i in range(23)]
P_X, P_WA, P_PHI, P_WOA, P_WB, P_WOB, P_GW = 64, 66, 68, 70, 74, 76, 78
P_OUT, P_DBG, P_WS = 56, 58, 60


LS = int(os.environ.get('LS', '8'))
LS2 = int(os.environ.get('LS2', '12'))


def gen_fused(a):
    kn = NAME + "_kernel"
    kernel_begin(a, kn)
    STAGE = 40960
    SWS, SX, SW0, SW1, SW2, SPHI, SGW = 8, 12, 16, 20, 24, 40, 44
    SWO, SOUT, SDBG = 40, 48, 52
    a("s_cmp_ge_u32 s2, 256")
    a("s_cbranch_scc1 K_end")
    stamp(a, 0)
    if STAMP:
        a(f"s_memrealtime s[{STB+14}:{STB+15}]")
    a("s_load_dwordx16 s[64:79], s[0:1], 0")
    a("s_load_dwordx4 s[56:59], s[0:1], 64")
    a("s_load_dwordx2 s[60:61], s[0:1], 80")
    a("v_lshrrev_b32 v1, 6, v0")
    a("v_and_b32 v0, 63, v0")
    a("v_readfirstlane_b32 s28, v1")
    a("s_and_b32 s3, s2, 1")
    a("s_lshl_b32 s33, s3, 3")
    a("s_lshr_b32 s3, s2, 3")
    a("s_and_b32 s39, s3, 7")
    a("s_add_u32 s33, s33, s39")
    a("s_lshr_b32 s36, s3, 3")
    a("s_and_b32 s4, s2, 6")
    a("s_lshl_b32 s4, s4, 1")
    a("s_add_u32 s36, s36, s4")
    a("s_and_b32 s37, s36, 7")
    a("s_lshr_b32 s38, s36, 3")
    a("s_cmp_ge_u32 s28, 4")
    a("s_cbranch_scc1 P1_compute")

    a("v_lshrrev_b32 v5, 3, v0")
    a("s_lshl_b32 s3, s28, 3")
    a("v_add_u32 v6, s3, v5")
    a("v_lshlrev_b32 v6, 10, v6")
    a("v_lshrrev_b32 v3, 4, v0")
    a("s_and_b32 s3, s28, 1")
    a("s_lshl_b32 s3, s3, 2")
    a("v_add_u32 v3, s3, v3")
    a("v_and_b32 v4, 7, v0")
    a("v_xor_b32 v3, v3, v4")
    a("v_lshlrev_b32 v3, 4, v3")
    a("v_add_u32 v6, v6, v3")
    a("s_lshl_b32 s3, s28, 4")
    a("v_add_u32 v7, s3, v5")
    a("v_mul_u32_u24 v7, 3072, v7")
    a("v_and_b32 v5, 16, v0")
    a("v_lshrrev_b32 v5, 2, v5")
    a("v_xor_b32 v4, v4, v5")
    a("v_lshlrev_b32 v4, 4, v4")
    a("v_add_u32 v7, v7, v4")
    a("v_lshlrev_b32 v1, 4, v0")
    a(f"v_mov_b32 v2, {CNTS}")
    a("v_lshlrev_b32 v3, 2, v0")
    a("v_add_u32 v3, v2, v3")
    a("v_mov_b32 v4, 0")
    a("ds_write_b32 v3, v4")
    for i in range(144, 162, 2):
        a(f"v_mov_b64 {vr(i,2)}, 0")
    a("s_lshl_b32 s48, s33, 17")
    a("s_lshl_b32 s3, s37, 7")
    a("s_cmp_eq_u32 s38, 0")
    a("s_cselect_b32 s49, 1024, 0")
    a("s_cselect_b32 s29, 2048, 0")
    a("s_max_u32 s30, s29, 1024")
    a("s_add_u32 s49, s49, s3")
    a("s_add_u32 s29, s29, s3")
    a("s_add_u32 s30, s30, s3")
    a("s_lshl_b32 s50, s28, 10")
    a("s_lshl_b32 s31, s28, 11")
    a("s_mov_b32 s51, 0")
    a("s_add_u32 s39, s39, s36")
    a("s_and_b32 s39, s39, 3")
    a("s_lshl_b32 s39, s39, 1")
    a("s_waitcnt lgkmcnt(0)")
    srd(a, SX, P_X, 2 * MB)
    srd(a, SW0, P_WA, 512 * 1536 * 2)
    srd(a, SW2, P_WB, 512 * 1536 * 2)
    a("s_cmp_eq_u32 s38, 0")
    a(f"s_cselect_b32 s4, s{P_WA}, s{P_WB}")
    a(f"s_cselect_b32 s5, s{P_WA+1}, s{P_WB+1}")
    srd(a, SW1, 4, 512 * 1536 * 2)
    srd(a, SDBG, P_DBG, 256)
    a("s_cmp_ge_u32 s28, 2")
    a("s_cbranch_scc1 P1_nophi")
    srd(a, SPHI, P_PHI, 32 * 16 * 16 * 2)
    a(f"s_add_u32 m0, s50, {PHL}")
    a("s_lshl_b32 s6, s37, 11")
    a("s_add_u32 s6, s6, s50")
    a(f"buffer_load_dwordx4 v1, {sr(SPHI,4)}, s6 offen lds")
    a("s_branch P1_ld_loop")
    a.label("P1_nophi")
    a("s_cmp_lg_u32 s2, 0")
    a("s_cbranch_scc1 P1_ld_loop")
    a("s_cmp_lg_u32 s28, 3")
    a("s_cbranch_scc1 P1_ld_loop")
    a("s_memrealtime s[6:7]")
    a("s_waitcnt lgkmcnt(0)")
    a("s_or_b32 s6, s6, 1")
    a("v_mov_b32 v10, s6")
    a("v_mov_b32 v11, s7")
    a("s_mov_b64 exec, 1")
    a(f"buffer_store_dwordx2 v[10:11], off, {sr(SDBG,4)}, 0 sc1")
    a("s_mov_b64 exec, -1")
    a.label("P1_ld_loop")
    if STAMP and "first" in EXP:
        a("s_cmp_lg_u32 s51, 0")
        a("s_cbranch_scc1 ST_f")
        stamp(a, 4)
        a.label("ST_f")
        a("s_cmp_lg_u32 s51, 2")
        a("s_cbranch_scc1 ST_g")
        stamp(a, 5)
        a.label("ST_g")
    a("s_lshl_b32 s6, s39, 7")
    a("s_add_u32 s6, s6, s48")
    a(f"s_mul_i32 s7, s39, {64*3072}")
    for ii in range(4):
        a(f"s_add_u32 m0, s50, {ii*4096}")
        a(f"s_add_u32 s32, s6, {ii*32768}")
        a(f"buffer_load_dwordx4 v6, {sr(SX,4)}, s32 offen lds")
    for j, (S, so) in enumerate(((SW0, 49), (SW1, 29), (SW2, 30))):
        a(f"s_add_u32 m0, s31, {16384 + j*8192}")
        a(f"s_add_u32 s32, s{so}, s7")
        a(f"buffer_load_dwordx4 v7, {sr(S,4)}, s32 offen lds")
        a(f"s_add_u32 m0, s31, {16384 + j*8192 + 1024}")
        a(f"s_add_u32 s32, s32, {8*3072}")
        a(f"buffer_load_dwordx4 v7, {sr(S,4)}, s32 offen lds")
    a("s_add_u32 s39, s39, 1")
    a("s_and_b32 s39, s39, 7")
    a(f"s_add_u32 s50, s50, {STAGE}")
    a(f"s_add_u32 s31, s31, {STAGE}")
    a(f"s_cmp_lt_u32 s50, {3*STAGE}")
    a("s_cbranch_scc1 P1_ld_nowrap")
    a(f"s_sub_u32 s50, s50, {3*STAGE}")
    a(f"s_sub_u32 s31, s31, {3*STAGE}")
    a.label("P1_ld_nowrap")
    a("s_add_u32 s51, s51, 1")
    a("s_cmp_eq_u32 s51, 1")
    a("s_cbranch_scc1 P1_ld_loop")
    a("s_cmp_lg_u32 s51, 2")
    a("s_cbranch_scc1 P1_ld_nopre")
    a("s_and_b32 s44, s2, 7")
    a("s_lshl_b32 s44, s44, 2")
    a("s_lshr_b32 s45, s2, 3")
    a("s_and_b32 s3, s45, 3")
    a("s_add_u32 s44, s44, s3")
    a("s_lshl_b32 s46, s44, 3")
    a("s_lshl_b32 s3, s28, 1")
    a("s_add_u32 s46, s46, s3")
    a("s_lshl_b32 s4, s46, 8")
    a(f"s_add_u32 s4, s4, {WS_KVP}")
    a("s_lshl_b32 s5, s46, 4")
    a(f"s_add_u32 s5, s5, {WS_ZP}")
    a("v_lshrrev_b32 v10, 5, v0")
    a("v_and_b32 v11, 15, v0")
    a("v_lshlrev_b32 v12, 7, v10")
    a("v_lshlrev_b32 v11, 3, v11")
    a("v_add3_u32 v12, v12, v11, s4")
    a("v_lshlrev_b32 v10, 3, v10")
    a("v_add_u32 v10, s5, v10")
    a("v_and_b32 v11, 16, v0")
    a("v_cmp_ne_u32 s[4:5], 0, v11")
    a("v_mov_b32 v13, 256")
    a("v_lshlrev_b32 v146, 5, v0")
    a("v_cndmask_b32 v144, v12, v10, s[4:5]")
    a("v_cndmask_b32 v13, v13, 16, s[4:5]")
    a("v_add_u32 v145, v144, v13")
    a(f"v_add_u32 v146, {XCH}, v146")
    a("s_lshl_b32 s3, s28, 3")
    a("v_add_u32 v147, s3, v146")
    a(f"s_mul_i32 s46, s28, 6144")
    a(f"s_add_u32 s46, s46, {RING}")
    proj_addr(a, 28, 46, 148, 149, 150, 152)
    a("v_subrev_u32 v156, s46, v149")
    a("v_and_b32 v10, 31, v0")
    a("s_lshl_b32 s3, s44, 6")
    a("s_lshr_b32 s4, s28, 1")
    a("s_lshl_b32 s5, s4, 5")
    a("s_add_u32 s3, s3, s5")
    a("v_add_u32 v10, s3, v10")
    a("v_lshlrev_b32 v154, 2, v10")
    a(f"v_add_u32 v154, {WS_G}, v154")
    a("v_lshlrev_b32 v155, 10, v10")
    a("v_lshrrev_b32 v10, 5, v0")
    a("v_lshlrev_b32 v10, 4, v10")
    a("v_add_u32 v155, v155, v10")
    a("s_lshl_b32 s4, s4, 10")
    a("s_add_u32 s4, s4, 65536")
    a("v_add_u32 v157, s4, v1")
    a("s_lshl_b32 s3, s28, 14")
    a("v_add_u32 v158, s3, v1")
    for j in range(1, 4):
        a(f"v_xor_b32 v{158+j}, {j*16384}, v158")
    a.label("P1_ld_nopre")
    a("s_waitcnt vmcnt(10)")
    a("s_barrier")
    a("s_cmp_lt_u32 s51, 8")
    a("s_cbranch_scc1 P1_ld_loop")
    srd(a, SWS, P_WS, WS_SIZE)
    a("s_waitcnt vmcnt(0)")
    stamp(a, 1)
    a("s_barrier")
    a("s_cmp_lg_u32 s28, 3")
    a("s_cbranch_scc1 P1_notag")
    a("s_mov_b32 s3, 0")
    a.label("P1_tagpoll")
    a(f"buffer_load_dwordx2 v[10:11], off, {sr(SDBG,4)}, 0 sc1")
    a("s_add_u32 s3, s3, 1")
    a("s_waitcnt vmcnt(0)")
    a("v_cmp_eq_u32 vcc, 0, v10")
    a("s_cmp_gt_u32 s3, 0x400000")
    a("s_cbranch_scc1 P1_tagdone")
    a("s_cbranch_vccnz P1_tagpoll")
    a.label("P1_tagdone")
    a(f"ds_write_b64 v2, v[10:11] offset:{L_TAG}")
    a.label("P1_notag")
    a("s_lshl_b32 s62, s37, 12")
    a("s_lshl_b32 s3, s33, 8")
    a("s_add_u32 s62, s62, s3")
    a("s_lshl_b32 s3, s38, 7")
    a("s_add_u32 s62, s62, s3")
    a(f"s_add_u32 s62, s62, {FL2}")
    a("s_waitcnt lgkmcnt(0)")
    a("s_barrier")
    a(f"ds_read_b64 v[10:11], v2 offset:{L_TAG}")
    a("s_setprio 3")
    a("s_waitcnt lgkmcnt(0)")
    a(f"v_readfirstlane_b32 s{TAG}, v10")
    a(f"v_readfirstlane_b32 s{TAG+1}, v11")
    a("s_lshl_b32 s3, s33, 7")
    a("s_lshl_b32 s4, s36, 3")
    a("s_add_u32 s33, s3, s4")
    a("s_mov_b32 s63, s38")
    a("s_and_b32 s38, s2, 7")
    a("s_lshl_b32 s13, s38, 2")
    a("s_lshr_b32 s3, s2, 3")
    a("s_and_b32 s36, s3, 3")
    a("s_lshr_b32 s37, s3, 2")
    a("s_add_u32 s13, s13, s36")
    a("s_mov_b32 s36, s13")
    a("s_lshr_b32 s14, s2, 5")
    a("s_cmp_lg_u32 s28, 2")
    a("s_cbranch_scc1 H_nf1")
    a("s_lshl_b32 s19, s38, 12")
    a(f"s_add_u32 s19, s19, {FL1}")
    lds_poll(a, 2, 3, C_B, 4, sleep=2)
    flag_poll(a, 10, 19, SWS, sleep=2)
    lds_add(a, 2, 3, F_F1)
    a.label("H_nf1")
    a("s_cmp_lg_u32 s28, 3")
    a("s_cbranch_scc1 H_nfq")
    a("s_lshl_b32 s19, s38, 11")
    a("s_lshl_b32 s3, s14, 8")
    a("s_add_u32 s19, s19, s3")
    a(f"s_add_u32 s19, s19, {FLQ}")
    lds_poll(a, 2, 3, C_B, 4, sleep=2)
    flag_poll(a, 10, 19, SWS, mask=1, sleep=4)
    lds_add(a, 2, 3, F_Q)
    a.label("H_nfq")
    lds_poll(a, 2, 3, F_F1, 1, sleep=2)
    stamp(a, 2)
    a("s_lshl_b32 s18, s28, 10")
    a("s_lshl_b32 s17, s13, 17")
    a(f"s_add_u32 s17, s17, {WS_KVB}")
    a("s_add_u32 s17, s17, s18")
    a("v_add_u32 v4, s18, v1")
    R = [16, 48]

    def kv_issue(Rb):
        for i in range(8):
            a(f"s_add_u32 s19, s17, {i*4096}")
            a(f"buffer_load_dwordx4 {vr(Rb+4*i,4)}, v1, {sr(SWS,4)}, s19 offen sc1")
        a("s_add_u32 s17, s17, 32768")

    def kv_write(Rb, later, first=False):
        for i in range(8):
            a(f"s_waitcnt vmcnt({later + 7 - i})")
            a(f"ds_write_b128 v4, {vr(Rb+4*i,4)} offset:{i*4096}")
            if first and i == 4:
                a("s_waitcnt lgkmcnt(0)")
                lds_add(a, 2, 3, C_S0)
        a("v_add_u32 v4, 32768, v4")
        a("s_waitcnt lgkmcnt(0)")
    kv_issue(R[0])
    kv_write(R[0], 0, first=True)
    kv_issue(R[1])
    kv_issue(R[0])
    kv_write(R[1], 8)
    lds_add(a, 2, 3, C_S1)
    kv_issue(R[1])
    a("s_cmp_lg_u32 s63, 0")
    a("s_cbranch_scc1 H_nored")
    lds_poll(a, 2, 3, C_RED2, 8)
    a.label("H_nored")
    kv_write(R[0], 8)
    kv_write(R[1], 0)
    lds_add(a, 2, 3, C_S2)
    stamp(a, 3)
    if "noh" in EXP:
        a("s_branch K_flush" if STAMP else "s_branch K_end")
    a(f"s_setprio {int(os.environ.get('HP', '3'))}")
    srd(a, 40, P_WOA, 512 * 512 * 2)
    srd(a, 44, P_WOB, 512 * 512 * 2)
    a("s_lshr_b32 s3, s2, 3")
    a("s_lshl_b32 s3, s3, 2")
    a("s_add_u32 s3, s3, s28")
    a("s_lshl_b32 s3, s3, 12")
    for i in range(4):
        a(f"buffer_load_dwordx4 {vr(112+8*i,4)}, v1, s[40:43], s3 offen offset:{i*1024}")
        a(f"buffer_load_dwordx4 {vr(116+8*i,4)}, v1, s[44:47], s3 offen offset:{i*1024}")
    a("s_cmp_lg_u32 s28, 0")
    a("s_cbranch_scc1 H_nogate")
    srd(a, SGW, P_GW, 1024)
    srd(a, 24, P_X, 2 * MB)
    a("v_lshrrev_b32 v8, 3, v0")
    a("v_add_u32 v8, s33, v8")
    a("v_and_b32 v3, 7, v0")
    a("v_lshlrev_b32 v3, 4, v3")
    a("v_lshlrev_b32 v4, 10, v8")
    a("v_add_u32 v4, v4, v3")
    for j in range(8):
        a(f"buffer_load_dwordx4 {vr(16+4*j,4)}, v4, s[24:27], 0 offen offset:{j*128}")
        a(f"buffer_load_dwordx4 {vr(48+4*j,4)}, v3, {sr(SGW,4)}, 0 offen offset:{j*128}")
    a("v_mov_b32 v5, 0")
    a("v_mov_b32 v6, 0")
    a("s_waitcnt vmcnt(0)")
    for j in range(16):
        a(f"v_dot2_f32_bf16 v5, v{16+2*j}, v{48+2*j}, v5")
        a(f"v_dot2_f32_bf16 v6, v{17+2*j}, v{49+2*j}, v6")
    a("s_nop 3")
    a("v_add_f32 v5, v5, v6")
    for off in (0x041F, 0x081F, 0x101F):
        a(f"ds_swizzle_b32 v6, v5 offset:{off}")
        a("s_waitcnt lgkmcnt(0)")
        a("v_add_f32 v5, v5, v6")
    a("v_cvt_pk_bf16_f32 v5, v5, v5")
    a("v_lshlrev_b32 v5, 16, v5")
    a(f"v_mul_f32 v5, {f32bits(-LOG2E):#x}, v5")
    a("v_exp_f32 v5, v5")
    a("s_nop 0")
    a("v_add_f32 v5, 1.0, v5")
    a("v_rcp_f32 v5, v5")
    a("s_nop 0")
    a("v_cvt_pk_bf16_f32 v5, v5, v5")
    a("v_lshlrev_b32 v5, 16, v5")
    a("v_lshlrev_b32 v8, 2, v8")
    a(f"v_add_u32 v8, {WS_G}, v8")
    a(f"buffer_store_dword v5, v8, {sr(SWS,4)}, 0 offen sc1")
    a("s_waitcnt vmcnt(0)")
    lds_add(a, 2, 3, C_A, rtn=True)
    a("s_cmp_lg_u32 s3, 8")
    a("s_cbranch_scc1 H_nogate")
    flag_write(a, 10, 62, SWS)
    a.label("H_nogate")
    KP = 16
    PH = 80
    a("s_lshl_b32 s21, s28, 1")
    a("s_cmp_lg_u32 s28, 0")
    a("s_cbranch_scc1 H_nf2")
    a("s_lshl_b32 s19, s38, 12")
    a(f"s_add_u32 s19, s19, {FL2}")
    lds_poll(a, 2, 3, C_A, 9, sleep=LS)
    flag_poll(a, 10, 19, SWS, sleep=LS)
    lds_add(a, 2, 3, F_F2)
    a.label("H_nf2")
    lds_poll(a, 2, 3, F_F2, 1, sleep=LS)
    a.label("HM_f2")
    if "tail" in EXP:
        stamp(a, 1)
    for rb in range(16):
        a(f"s_mov_b32 s3, {rb*65536}")
        a(f"buffer_load_dwordx2 {vr(KP+2*rb,2)}, v144, {sr(SWS,4)}, s3 offen sc1")
        a(f"buffer_load_dwordx2 {vr(KP+32+2*rb,2)}, v145, {sr(SWS,4)}, s3 offen sc1")
    a("s_lshl_b32 s15, s14, 3")
    a("s_add_u32 s15, s15, s21")
    a("s_lshl_b32 s16, s13, 6")
    a("s_add_u32 s16, s16, s15")
    a("s_lshl_b32 s19, s16, 11")
    a(f"s_add_u32 s19, s19, {WS_PHIQ}")
    for k in range(4):
        a(f"buffer_load_dwordx4 {vr(PH+4*k,4)}, v1, {sr(SWS,4)}, s19 offen offset:{k*1024} sc1")
    a("s_waitcnt vmcnt(4)")
    for st in (8, 4, 2, 1):
        for i in range(st):
            for g in range(2):
                b = KP + 32 * g
                a(f"v_pk_add_f32 {vr(b+2*i,2)}, {vr(b+2*i,2)}, {vr(b+2*(i+st),2)}")
    a(f"v_cvt_pk_bf16_f32 v{KP}, v{KP}, v{KP+1}")
    a(f"v_cvt_pk_bf16_f32 v{KP+1}, v{KP+32}, v{KP+33}")
    a(f"ds_write_b64 v147, {vr(KP,2)}")
    a("s_waitcnt lgkmcnt(0)")
    lds_add(a, 2, 3, C_XCH)
    lds_poll(a, 2, 3, C_XCH, 4)
    a(f"ds_read_b128 {vr(KP,4)}, v146")
    a(f"ds_read_b128 {vr(KP+4,4)}, v146 offset:16")
    D = [32, 48]
    a("s_waitcnt vmcnt(0) lgkmcnt(0)")
    for k in range(2):
        mfma(a, D[k], KP, PH + 8 * k, "0")
        mfma(a, D[k], KP + 4, PH + 8 * k + 4, D[k])
    a("s_lshl_b32 s20, s16, 10")
    a(f"s_add_u32 s20, s20, {WS_O}")
    srd(a, SWO, P_WOA, 512 * 512 * 2)
    a("s_nop 5")
    for k in range(2):
        a(f"v_add_f32 v{10+2*k}, {f32bits(1e-6):#x}, v{D[k]+8}")
    for k in range(2):
        a(f"v_rcp_f32 v{10+2*k}, v{10+2*k}")
    a("s_nop 0")
    for k in range(2):
        for i in range(4):
            a(f"v_pk_mul_f32 {vr(D[k]+2*i,2)}, {vr(D[k]+2*i,2)}, {vr(10+2*k,2)} op_sel_hi:[1,0]")
    for k in range(2):
        for i in range(4):
            a(f"v_cvt_pk_bf16_f32 v{64+4*k+i}, v{D[k]+2*i}, v{D[k]+2*i+1}")
        a(f"buffer_store_dwordx4 {vr(64+4*k,4)}, v1, {sr(SWS,4)}, s20 offen offset:{k*1024} sc1")
    a(f"s_mul_i32 s21, s28, 6144")
    a(f"s_add_u32 s21, s21, {RING}")
    VD, VW0, VW1, VO = 148, 149, 150, 152
    a("s_lshl_b32 s22, s28, 17")
    a("s_lshl_b32 s3, s37, 7")
    a("s_add_u32 s22, s22, s3")
    a("s_lshl_b32 s23, s28, 19")
    a("s_lshl_b32 s3, s36, 11")
    a("s_add_u32 s23, s23, s3")
    a(f"s_add_u32 s23, s23, {WS_O}")
    a("s_waitcnt vmcnt(0)")
    lds_add(a, 2, 3, C_OA, rtn=True)
    a("s_cmp_lg_u32 s3, 3")
    a("s_cbranch_scc1 H_h1")
    a("s_lshl_b32 s19, s14, 12")
    a("s_lshl_b32 s3, s13, 7")
    a("s_add_u32 s19, s19, s3")
    a(f"s_add_u32 s19, s19, {FL3A}")
    flag_write(a, 10, 19, SWS)
    a.label("H_h1")
    a("s_cmp_lg_u32 s28, 0")
    a("s_cbranch_scc1 H_h2")
    a("s_lshl_b32 s19, s38, 12")
    a(f"s_add_u32 s19, s19, {FL3A}")
    flag_poll(a, 10, 19, SWS, sleep=LS)
    lds_add(a, 2, 3, F_3A)
    a.label("H_h2")
    lds_poll(a, 2, 3, F_3A, 1, sleep=LS)
    a.label("HM_3a")
    if "tail" in EXP:
        stamp(a, 2)
    ACC = 16
    OF = 80
    WF = 104

    def issueA(t):
        sl = OF + 8 * (t % 3)
        a(f"s_add_u32 m0, s21, {(t%3)*2048}")
        a(f"s_add_u32 s3, s22, {t*16384}")
        a(f"buffer_load_dwordx4 v{VD}, {sr(SWO,4)}, s3 offen lds")
        a(f"s_add_u32 m0, s21, {(t%3)*2048+1024}")
        a(f"s_add_u32 s3, s22, {t*16384+8192}")
        a(f"buffer_load_dwordx4 v{VD}, {sr(SWO,4)}, s3 offen lds")
        a(f"s_add_u32 s3, s23, {t*65536}")
        a(f"buffer_load_dwordx4 {vr(sl,4)}, v{VO}, {sr(SWS,4)}, s3 offen sc1")
        a(f"buffer_load_dwordx4 {vr(sl+4,4)}, v{VO+1}, {sr(SWS,4)}, s3 offen sc1")

    a(f"buffer_load_dword v14, v154, {sr(SWS,4)}, 0 offen sc1")
    issueA(0)
    issueA(1)
    for t in range(8):
        if t + 2 < 8:
            issueA(t + 2)
            a("s_waitcnt vmcnt(8)")
        else:
            a(f"s_waitcnt vmcnt({4*(7-t)})")
        o = (t % 3) * 2048
        a(f"ds_read_b64_tr_b16 {vr(WF,2)}, v{VW0} offset:{o}")
        a(f"ds_read_b64_tr_b16 {vr(WF+2,2)}, v{VW0} offset:{o+1024}")
        a(f"ds_read_b64_tr_b16 {vr(WF+4,2)}, v{VW1} offset:{o}")
        a(f"ds_read_b64_tr_b16 {vr(WF+6,2)}, v{VW1} offset:{o+1024}")
        sl = OF + 8 * (t % 3)
        a("s_waitcnt lgkmcnt(0)")
        z = (lambda r: "0") if t == 0 else (lambda r: r)
        mfma(a, ACC, WF, sl, z(ACC))
        mfma(a, ACC + 32, WF, sl + 4, z(ACC + 32))
        mfma(a, ACC + 16, WF + 4, sl, z(ACC + 16))
        mfma(a, ACC + 48, WF + 4, sl + 4, z(ACC + 48))
    if "first" not in EXP:
        stamp(a, 4)
    a.label("HM_ap")
    lds_poll(a, 2, 3, C_T40, 8, sleep=LS2)
    a("s_lshl_b32 s19, s28, 14")
    for j in range(1, 4):
        for q in range(4):
            a(f"ds_write_b128 v158, {vr(ACC+16*j+4*q,4)} offset:{j*4096+q*1024}")
    a("s_waitcnt lgkmcnt(0)")
    lds_add(a, 2, 3, C_AR)
    lds_poll(a, 2, 3, C_AR, 4, sleep=2)
    for j in range(1, 4):
        for q in range(4):
            a(f"ds_read_b128 {vr(ACC+16*j+4*q,4)}, v{158+j} offset:{j*4096+q*1024}")
    a("s_waitcnt lgkmcnt(0)")
    lds_add(a, 2, 3, C_AR)
    srd(a, SWO, P_WOB, 512 * 512 * 2)
    srd(a, SOUT, P_OUT, 2 * MB)
    lds_poll(a, 2, 3, C_AR, 8, sleep=2)
    for t in range(16):
        a(f"s_add_u32 m0, s19, {t*1024}")
        a(f"s_add_u32 s3, s22, {t*8192}")
        a(f"buffer_load_dwordx4 v{VD}, {sr(SWO,4)}, s3 offen lds")
    BA = 32
    FB = [48, 80]
    VW0, VW1 = 156, 157
    a("s_lshl_b32 s23, s37, 7")
    a("s_and_b32 s3, s28, 1")
    a("s_lshl_b32 s3, s3, 6")
    a("s_add_u32 s23, s23, s3")
    a("s_waitcnt vmcnt(0)")
    lds_add(a, 2, 3, C_WB)
    lds_poll(a, 2, 3, C_WB, 4, sleep=2)
    if "first" not in EXP:
        stamp(a, 5)
    a.label("HM_wb")
    a("s_setprio 0")
    lds_poll(a, 2, 3, C_OB, 4, sleep=8)
    a("s_setprio 3")
    a.label("HM_ob4")
    lds_poll(a, 2, 3, C_OB, 8, sleep=2)
    for i in range(8):
        a(f"v_pk_add_f32 {vr(ACC+2*i,2)}, {vr(ACC+2*i,2)}, {vr(ACC+16+2*i,2)}")
        a(f"v_pk_add_f32 {vr(ACC+32+2*i,2)}, {vr(ACC+32+2*i,2)}, {vr(ACC+48+2*i,2)}")
    for i in range(8):
        a(f"v_pk_add_f32 {vr(ACC+2*i,2)}, {vr(ACC+2*i,2)}, {vr(ACC+32+2*i,2)}")
    for i in range(8):
        a(f"v_pk_mul_f32 {vr(ACC+2*i,2)}, {vr(ACC+2*i,2)}, v[14:15] op_sel_hi:[1,0]")
    for i in range(0, 16, 2):
        a(f"v_mov_b64 {vr(BA+i,2)}, 0")
    a("v_sub_f32 v12, 1.0, v14")
    a("v_cvt_pk_bf16_f32 v12, v12, v12")
    a("v_lshlrev_b32 v12, 16, v12")
    a("s_mov_b32 s30, 0xff")
    def take_reads(F):
        a("s_ff1_i32_b32 s3, s31")
        a("s_bitset0_b32 s31, s3")
        a("s_bitset0_b32 s30, s3")
        a("s_lshl_b32 s3, s3, 13")
        a(f"v_add_u32 v8, s3, v{VW0}")
        a(f"v_add_u32 v9, s3, v{VW1}")
        for k in range(4):
            a(f"ds_read_b128 {vr(F+8*k,4)}, v9 offset:{k*2048}")
            a(f"ds_read_b64_tr_b16 {vr(F+8*k+4,2)}, v8 offset:{k*2048}")
            a(f"ds_read_b64_tr_b16 {vr(F+8*k+6,2)}, v8 offset:{k*2048+1024}")

    def mm4(F):
        for k in range(4):
            mfma(a, BA, F + 8 * k + 4, F + 8 * k, BA)
    a.label("H3_poll")
    a(f"ds_read_b32 v3, v2 offset:{M_RDY}")
    a("s_waitcnt lgkmcnt(0)")
    a("v_readfirstlane_b32 s31, v3")
    a("s_nop 0")
    a("s_and_b32 s31, s31, s30")
    a("s_cbranch_scc1 H3_go")
    a("s_sleep 1")
    a("s_branch H3_poll")
    a.label("H3_go")
    take_reads(FB[0])
    a.label("H3_a")
    a("s_waitcnt lgkmcnt(0)")
    a("s_cmp_eq_u32 s31, 0")
    a("s_cbranch_scc1 H3_a1")
    take_reads(FB[1])
    mm4(FB[0])
    a("s_waitcnt lgkmcnt(0)")
    a("s_cmp_eq_u32 s31, 0")
    a("s_cbranch_scc1 H3_b1")
    take_reads(FB[0])
    mm4(FB[1])
    a("s_branch H3_a")
    a.label("H3_a1")
    mm4(FB[0])
    a("s_branch H3_c")
    a.label("H3_b1")
    mm4(FB[1])
    a.label("H3_c")
    a("s_cmp_lg_u32 s30, 0")
    a("s_cbranch_scc1 H3_poll")
    a.label("HM_mm")
    a("s_nop 1")
    a("s_nop 7")
    for i in range(8):
        a(f"v_pk_fma_f32 {vr(BA+2*i,2)}, {vr(BA+2*i,2)}, v[12:13], {vr(ACC+2*i,2)} op_sel_hi:[1,0,1]")
    T = 112
    for i in range(8):
        a(f"v_cvt_pk_bf16_f32 v{T+i}, v{BA+2*i}, v{BA+2*i+1}")
    a("s_nop 1")
    a(f"v_permlane32_swap_b32 v{T}, v{T+2}")
    a(f"v_permlane32_swap_b32 v{T+1}, v{T+3}")
    a(f"v_permlane32_swap_b32 v{T+4}, v{T+6}")
    a(f"v_permlane32_swap_b32 v{T+5}, v{T+7}")
    a(f"buffer_store_dwordx4 {vr(T,4)}, v155, {sr(SOUT,4)}, s23 offen")
    a(f"buffer_store_dwordx4 {vr(T+4,4)}, v155, {sr(SOUT,4)}, s23 offen offset:32")
    a.label("HM_fin")
    a.label("HM_end")
    a("s_branch K_flush" if STAMP else "s_branch K_end")

    a.label("P1_compute")
    ACC1 = lambda rt, j: 16 + 48 * rt + 16 * j
    FS = [112, 132]
    F0 = 64
    VF = 72
    WPH = 96
    PD = [104, 120]
    T0 = [136, 152]
    AX, AWD = 4, 8
    IP, IM = 88, 92
    BV = [96, 64]
    TT = [16, 32]
    KV = [136, 152]
    a("s_sub_u32 s12, s28, 4")
    if "nodry" not in EXP:
        a("s_mov_b32 s46, 1")
        a("s_cmp_eq_u32 s12, 4")
        a("s_cbranch_scc1 P1_feat")
        a("v_lshlrev_b32 v1, 4, v0")
        a("s_mov_b32 s20, 0x0000ffff")
        a("s_mov_b32 s21, 0x0000ffff")
        a("s_mov_b32 s29, 2")
        a("s_cmp_eq_u32 s12, 5")
        a("s_cbranch_scc1 P2_restart")
    a.label("P1_setup")
    a("s_mov_b32 s46, 0")
    a("s_and_b32 s30, s12, 1")
    a("s_lshr_b32 s48, s12, 1")
    a("s_and_b32 s48, s48, 1")
    a("s_lshr_b32 s31, s12, 2")
    a("s_lshl_b32 s32, s30, 1")
    a("s_add_u32 s32, s32, s31")
    a("v_and_b32 v1, 31, v0")
    a("v_lshrrev_b32 v2, 5, v0")
    a("v_lshrrev_b32 v3, 1, v1")
    a("v_and_b32 v3, 7, v3")
    a("v_xor_b32 v3, v3, v2")
    a("v_lshlrev_b32 v3, 4, v3")
    a("s_lshl_b32 s3, s30, 6")
    a("v_add_u32 v4, s3, v1")
    a("v_lshlrev_b32 v4, 7, v4")
    a("v_add_u32 v4, v4, v3")
    for t in range(1, 4):
        a(f"v_xor_b32 v{AX+t}, {32*t}, v4")
    a("v_and_b32 v3, 15, v0")
    a("v_lshrrev_b32 v8, 2, v3")
    a("v_lshlrev_b32 v9, 3, v2")
    a("v_add_u32 v8, v8, v9")
    a("v_lshlrev_b32 v8, 7, v8")
    a("v_and_b32 v9, 8, v0")
    a("v_lshlrev_b32 v9, 3, v9")
    a("s_lshl_b32 s3, s48, 6")
    a("v_xor_b32 v9, s3, v9")
    a("v_add_u32 v8, v8, v9")
    a("v_and_b32 v9, 16, v0")
    a("v_cmp_ne_u32 s[6:7], 0, v9")
    a("v_lshlrev_b32 v9, 1, v9")
    a("v_add_u32 v8, v8, v9")
    a("v_and_b32 v9, 3, v0")
    a("v_lshlrev_b32 v9, 3, v9")
    a("v_add_u32 v8, v8, v9")
    a("v_add_u32 v8, 16384, v8")
    a("s_lshl_b32 s51, s37, 2")
    a("s_lshl_b32 s3, s48, 1")
    a("s_add_u32 s51, s51, s3")
    a("v_lshrrev_b32 v10, 2, v3")
    a("v_lshlrev_b32 v11, 2, v2")
    a("v_add_u32 v10, v10, v11")
    a("v_lshlrev_b32 v10, 5, v10")
    a("s_lshl_b32 s3, s48, 10")
    a(f"s_add_u32 s3, s3, {PHL}")
    a("v_add3_u32 v10, v10, v9, s3")
    a("v_lshlrev_b32 v9, 4, v0")
    a(f"v_mov_b32 v3, {CNTS}")
    a("s_and_b32 s3, s12, 3")
    a("s_lshl_b32 s3, s3, 12")
    a(f"s_add_u32 s3, s3, {RING}")
    a("v_add_u32 v11, s3, v9")
    a("s_lshl_b32 s62, s37, 12")
    a("s_lshl_b32 s3, s33, 8")
    a("s_add_u32 s62, s62, s3")
    a("s_lshl_b32 s3, s38, 7")
    a("s_add_u32 s62, s62, s3")
    a(f"s_add_u32 s63, s62, {FL1}")
    a(f"s_add_u32 s62, s62, {FL2}")
    a("s_lshl_b32 s39, s37, 11")
    a("s_lshl_b32 s3, s33, 7")
    a("s_add_u32 s39, s39, s3")
    a(f"s_add_u32 s39, s39, {FLQ}")
    a("s_lshl_b32 s50, s33, 2")
    a("s_add_u32 s50, s50, s32")
    a("s_lshl_b32 s29, s51, 6")
    a("s_add_u32 s29, s29, s50")
    a("v_lshlrev_b32 v12, 2, v2")
    a("v_sub_u32 v12, v1, v12")
    a("v_mov_b32 v13, 0x3f80")
    a("v_mov_b32 v14, 0x3f800000")
    for k, add in ((0, 0), (4, 16)):
        for p in range(4):
            f0 = (2 * p if p < 2 else 8 + 2 * (p - 2)) + add
            a(f"v_cmp_eq_u32 s[4:5], {f0}, v12")
            a(f"v_cmp_eq_u32 s[30:31], {f0+1}, v12")
            a("s_nop 1")
            a(f"v_cndmask_b32 v15, 0, v13, s[4:5]")
            a(f"v_cndmask_b32 v{152+k+p}, v15, v14, s[30:31]")
    a("s_lshl_b32 s3, s48, 2")
    a("s_add_u32 s3, s3, s32")
    a("s_lshl_b32 s3, s3, 13")
    a(f"s_add_u32 s3, s3, {RED}")
    a("v_add_u32 v160, s3, v9")
    a("s_lshl_b32 s3, s32, 11")
    a("s_lshl_b32 s4, s48, 15")
    a("s_add_u32 s3, s3, s4")
    a(f"s_add_u32 s3, s3, {RED}")
    a("v_add_u32 v161, s3, v9")
    a("s_lshr_b32 s3, s32, 1")
    a("s_lshl_b32 s4, s3, 4")
    a("v_xor_b32 v12, s4, v1")
    a("s_lshl_b32 s4, s33, 5")
    a("s_add_u32 s4, s4, s51")
    a("s_add_u32 s4, s4, s3")
    a("s_lshl_b32 s4, s4, 3")
    a("s_and_b32 s5, s32, 1")
    a("s_lshl_b32 s5, s5, 2")
    a("s_add_u32 s4, s4, s5")
    a("s_lshl_b32 s5, s4, 8")
    a(f"s_add_u32 s5, s5, {WS_KVP}")
    a("s_and_b32 s4, s4, 255")
    a("s_lshl_b32 s4, s4, 4")
    a("s_lshl_b32 s3, s33, 16")
    a("s_add_u32 s4, s4, s3")
    a(f"s_add_u32 s4, s4, {WS_ZP}")
    a("v_lshlrev_b32 v13, 7, v2")
    a("v_lshlrev_b32 v14, 3, v12")
    a("v_add3_u32 v13, v13, v14, s5")
    a("v_lshlrev_b32 v14, 3, v2")
    a("v_add_u32 v14, s4, v14")
    a("v_cmp_gt_u32 s[4:5], 16, v12")
    a("v_cmp_eq_u32 s[30:31], 16, v12")
    a("v_mov_b32 v15, 0x7ffff000")
    a("v_mov_b32 v163, 256")
    a("v_cndmask_b32 v14, v15, v14, s[30:31]")
    a("v_cndmask_b32 v162, v14, v13, s[4:5]")
    a("v_cndmask_b32 v163, 16, v163, s[4:5]")
    a("v_and_b32 v164, 16, v0")
    a("v_lshlrev_b32 v164, 13, v164")
    a("v_and_b32 v15, 0x2f, v0")
    a("v_lshlrev_b32 v15, 4, v15")
    a("v_add_u32 v164, v164, v15")
    a("s_waitcnt lgkmcnt(0)")
    srd(a, SWS, P_WS, WS_SIZE)
    a("s_cmp_lt_u32 s12, 4")
    a("s_cbranch_scc1 P1_gemm")
    if "nocpf" not in EXP:
        a("s_getpc_b64 s[4:5]")
        a.label("P1_pc")
        a(f"s_sub_u32 s4, s4, P1_pc-{kn}")
        a("s_subb_u32 s5, s5, 0")
        a("s_sub_u32 s3, s12, 4")
        a("s_lshl_b32 s3, s3, 13")
        a("v_lshlrev_b32 v12, 7, v0")
        a("v_add_u32 v12, s3, v12")
        a(f"v_min_u32 v12, K_last-{kn}, v12")
        a("global_load_dword v13, v12, s[4:5]")
    a("s_mov_b32 s49, 0")
    a.label("P1_idle")
    a("s_barrier")
    a("s_add_u32 s49, s49, 1")
    a("s_cmp_lt_u32 s49, 9")
    a("s_cbranch_scc1 P1_idle")
    a("s_waitcnt vmcnt(0)")
    for h in range(2):
        a(f"ds_read_b64_tr_b16 {vr(WPH+4*h,2)}, v10 offset:{h*512}")
        a(f"ds_read_b64_tr_b16 {vr(WPH+4*h+2,2)}, v10 offset:{h*512+256}")
    a(f"ds_read_b64 v[12:13], v3 offset:{L_TAG}")
    for i_ in (1, 2, 3, 4):
        stamp(a, i_)
    a("s_waitcnt lgkmcnt(0)")
    a(f"v_readfirstlane_b32 s{TAG}, v12")
    a(f"v_readfirstlane_b32 s{TAG+1}, v13")
    lds_poll(a, 3, 12, C_H, 4)
    for q in range(4):
        a(f"ds_read_b128 {vr(F0+4*q,4)}, v11 offset:{q*1024}")
    a("s_waitcnt lgkmcnt(0)")
    a("s_branch P1_feat")

    a.label("P1_gemm")
    for i in range(0, 96, 2):
        a(f"v_mov_b64 {vr(16+i,2)}, 0")

    def reads(F, t):
        w = lambda j, hf: f"ds_read_b64_tr_b16 {vr(F+8+4*j+2*hf,2)}, v{AWD} offset:{j*8192 + t*2048 + 512*hf}"
        return [f"ds_read_b128 {vr(F,4)}, v{AX+t}", w(2, 0), w(2, 1),
                f"ds_read_b128 {vr(F+4,4)}, v{AX+t} offset:4096", w(1, 0), w(1, 1), w(0, 0), w(0, 1)]

    def main_loop(tag, typeK):
        def m(F, k):
            rt, j = k & 1, 2 - (k >> 1)
            X, W = F + 4 * rt, F + 8 + 4 * j
            if typeK and j > 0:
                mfma(a, ACC1(rt, j), X, W, ACC1(rt, j))
            else:
                mfma(a, ACC1(rt, j), W, X, ACC1(rt, j))

        def step(F, R):
            a("s_waitcnt lgkmcnt(5)")
            m(F, 0)
            a(R[0]); a(R[1])
            a("s_waitcnt lgkmcnt(6)")
            m(F, 1)
            a(R[2]); a(R[3])
            a("s_waitcnt lgkmcnt(6)")
            m(F, 2)
            a(R[4]); a(R[5])
            m(F, 3)
            a(R[6]); a(R[7])
            a("s_waitcnt lgkmcnt(8)")
            m(F, 4)
            m(F, 5)
        a.label(f"P1_loop{tag}")
        step(FS[0], reads(FS[1], 1))
        step(FS[1], reads(FS[0], 2))
        step(FS[0], reads(FS[1], 3))
        F = FS[1]
        a("s_waitcnt lgkmcnt(0)")
        m(F, 0)
        m(F, 1)
        a("s_barrier")
        a("s_cmp_eq_u32 s49, 7")
        a(f"s_cbranch_scc1 P1_last{tag}")
        a("s_add_u32 s50, s50, 1")
        a(f"s_mov_b32 s3, {STAGE}")
        a("s_cmp_eq_u32 s50, 3")
        a(f"s_cselect_b32 s3, {(-2*STAGE) & 0xffffffff}, s3")
        a("s_cselect_b32 s50, 0, s50")
        a(f"v_add_u32 v{AX}, s3, v{AX}")
        a(f"v_add_u32 v{AWD}, s3, v{AWD}")
        R = reads(FS[0], 0)
        a(R[0]); a(R[1]); a(R[2])
        m(F, 2)
        a(R[3]); a(R[4]); a(R[5])
        m(F, 3)
        a(R[6]); a(R[7])
        for r in range(AX + 1, AX + 4):
            a(f"v_add_u32 v{r}, s3, v{r}")
        m(F, 4)
        a("s_add_u32 s49, s49, 1")
        m(F, 5)
        a(f"s_branch P1_loop{tag}")
        a.label(f"P1_last{tag}")
        for k in range(2, 6):
            m(F, k)
        a(f"ds_read_b64 v[12:13], v3 offset:{L_TAG}")
        stamp(a, 3)
        a("s_lshl_b32 s4, s29, 11")
        a(f"s_add_u32 s4, s4, {WS_KVB}")
        a(f"s_add_u32 s5, s4, {64*2048}")
        a("s_nop 3")
        for rt in range(2):
            for i in range(8):
                a(f"v_cvt_pk_bf16_f32 v{112+8*rt+i}, v{ACC1(rt,2)+2*i}, v{ACC1(rt,2)+2*i+1}")

    a("s_mov_b32 s49, 0")
    a("s_mov_b32 s50, 0")
    stamp(a, 1)
    a("s_barrier")
    stamp(a, 2)
    if STAMP:
        a("s_waitcnt lgkmcnt(0)")
    for r in reads(FS[0], 0):
        a(r)
    a("s_cmp_eq_u32 s38, 0")
    a("s_cbranch_scc1 P1_loopK")
    main_loop("Q", False)
    for rt in range(2):
        a(f"buffer_store_dwordx4 {vr(112+8*rt,4)}, v9, {sr(SWS,4)}, s4 offen offset:{rt*2048} sc1")
        a(f"buffer_store_dwordx4 {vr(116+8*rt,4)}, v9, {sr(SWS,4)}, s5 offen offset:{rt*2048} sc1")
    a("s_branch P1_hand")
    main_loop("K", True)
    for rt in range(2):
        a(f"buffer_store_dwordx4 {vr(112+8*rt,4)}, v164, {sr(SWS,4)}, s4 offen offset:{rt*2048+1024} sc1")
        a(f"buffer_store_dwordx4 {vr(116+8*rt,4)}, v164, {sr(SWS,4)}, s4 offen offset:{rt*2048+1280} sc1")
    a.label("P1_hand")
    for i in range(8):
        a(f"v_cvt_pk_bf16_f32 v{136+i}, v{ACC1(1,0)+2*i}, v{ACC1(1,0)+2*i+1}")
    for i in range(8):
        a(f"v_cvt_pk_bf16_f32 v{144+i}, v{ACC1(1,1)+2*i}, v{ACC1(1,1)+2*i+1}")
    for q in range(4):
        a(f"ds_write_b128 v11, {vr(136+4*q,4)} offset:{q*1024}")
    for h in range(2):
        a(f"ds_read_b64_tr_b16 {vr(WPH+4*h,2)}, v10 offset:{h*512}")
        a(f"ds_read_b64_tr_b16 {vr(WPH+4*h+2,2)}, v10 offset:{h*512+256}")
    for i in range(8):
        a(f"v_cvt_pk_bf16_f32 v{F0+i}, v{ACC1(0,0)+2*i}, v{ACC1(0,0)+2*i+1}")
    for i in range(8):
        a(f"v_cvt_pk_bf16_f32 v{VF+i}, v{ACC1(0,1)+2*i}, v{ACC1(0,1)+2*i+1}")
    a("s_waitcnt lgkmcnt(0)")
    a(f"v_readfirstlane_b32 s{TAG}, v12")
    a(f"v_readfirstlane_b32 s{TAG+1}, v13")
    lds_add(a, 3, 12, C_H)
    a("s_waitcnt vmcnt(0)")
    lds_add(a, 3, 6, C_B, rtn=True)
    a("s_cmp_lg_u32 s3, 3")
    a("s_cbranch_scc1 P1_nofl1")
    flag_write(a, 6, 63, SWS)
    a.label("P1_nofl1")
    stamp(a, 4)
    a("s_cmp_eq_u32 s38, 0")
    a("s_cbranch_scc1 P1_feat")
    a(f"s_mov_b32 s30, {f32bits(0.25*LOG2E):#x}")
    a("s_mov_b32 s31, s30")
    a("s_lshl_b32 s4, s29, 10")
    a(f"s_add_u32 s5, s4, {64*1024}")
    for rt in range(2):
        for i in range(8):
            a(f"v_pk_mul_f32 {vr(ACC1(rt,1)+2*i,2)}, {vr(ACC1(rt,1)+2*i,2)}, s[30:31]")
        for i in range(8):
            a(f"v_cvt_pk_bf16_f32 v{16+8*rt+i}, v{ACC1(rt,1)+2*i}, v{ACC1(rt,1)+2*i+1}")
        a(f"buffer_store_dwordx4 {vr(16+8*rt,4)}, v9, {sr(SWS,4)}, s4 offen offset:{rt*1024} sc1")
        a(f"buffer_store_dwordx4 {vr(20+8*rt,4)}, v9, {sr(SWS,4)}, s5 offen offset:{rt*1024} sc1")
    a.label("P1_feat")
    for i in range(0, 8, 2):
        a(f"v_mov_b64 {vr(IP+i,2)}, {vr(152+i,2)}")
    a("v_mov_b64 v[56:57], v[160:161]")
    a("v_mov_b64 v[58:59], v[162:163]")
    a(f"s_mov_b32 s30, {f32bits(LOG2E):#x}")
    a("s_mov_b32 s31, s30")
    mfma(a, PD[0], WPH, F0, "0")
    mfma(a, PD[1], WPH + 4, F0 + 4, "0")
    a("s_nop 7")
    a("s_nop 2")
    H = (0, 1)
    M = [(10, 12, 11, 13), (14, 4, 15, 5)]
    for h in H:
        P = PD[h]
        a(f"v_max3_f32 v{M[h][0]}, v{P}, v{P+1}, v{P+2}")
        a(f"v_min3_f32 v{M[h][1]}, v{P}, v{P+1}, v{P+2}")
    for o in (3, 5):
        for h in H:
            P = PD[h]
            a(f"v_max3_f32 v{M[h][0]}, v{M[h][0]}, v{P+o}, v{P+o+1}")
            a(f"v_min3_f32 v{M[h][1]}, v{M[h][1]}, v{P+o}, v{P+o+1}")
    for h in H:
        P = PD[h]
        a(f"v_max_f32 v{M[h][0]}, v{M[h][0]}, v{P+7}")
        a(f"v_min_f32 v{M[h][1]}, v{M[h][1]}, v{P+7}")
    for h in H:
        a(f"v_mov_b32 v{M[h][2]}, v{M[h][0]}")
        a(f"v_mov_b32 v{M[h][3]}, v{M[h][1]}")
    a("s_nop 1")
    for h in H:
        a(f"v_permlane32_swap_b32 v{M[h][0]}, v{M[h][2]}")
        a(f"v_permlane32_swap_b32 v{M[h][1]}, v{M[h][3]}")
    a("s_nop 1")
    for h in H:
        a(f"v_max_f32 v{M[h][0]}, v{M[h][0]}, v{M[h][2]}")
        a(f"v_min_f32 v{M[h][1]}, v{M[h][1]}, v{M[h][3]}")
    for h in H:
        a(f"v_mul_f32 v{M[h][0]}, s30, v{M[h][0]}")
        a(f"v_mul_f32 v{M[h][1]}, s30, v{M[h][1]}")
    for i in range(4):
        for h in H:
            a(f"v_pk_fma_f32 {vr(T0[h]+2*i,2)}, {vr(PD[h]+2*i,2)}, s[30:31], {vr(M[h][0],2)} op_sel_hi:[1,1,0] neg_lo:[0,0,1] neg_hi:[0,0,1]")
            a(f"v_pk_fma_f32 {vr(T0[h]+8+2*i,2)}, {vr(PD[h]+2*i,2)}, s[30:31], {vr(M[h][1],2)} op_sel_hi:[1,1,0] neg_lo:[1,0,0] neg_hi:[1,0,0]")
    for i in range(16):
        for h in H:
            a(f"v_exp_f32 v{T0[h]+i}, v{T0[h]+i}")
    for h in H:
        for g in range(2):
            a(f"v_pk_add_f32 {vr(PD[h]+4*g,2)}, {vr(T0[h]+8*g,2)}, {vr(T0[h]+8*g+2,2)}")
            a(f"v_pk_add_f32 {vr(PD[h]+4*g+2,2)}, {vr(T0[h]+8*g+4,2)}, {vr(T0[h]+8*g+6,2)}")
    for h in H:
        for g in range(2):
            a(f"v_pk_add_f32 {vr(PD[h]+4*g,2)}, {vr(PD[h]+4*g,2)}, {vr(PD[h]+4*g+2,2)}")
    for h in H:
        a(f"v_add_f32 v{M[h][0]}, v{PD[h]}, v{PD[h]+1}")
        a(f"v_add_f32 v{M[h][1]}, v{PD[h]+4}, v{PD[h]+5}")
    for h in H:
        a(f"v_mov_b32 v{M[h][2]}, v{M[h][0]}")
        a(f"v_mov_b32 v{M[h][3]}, v{M[h][1]}")
    a("s_nop 1")
    for h in H:
        a(f"v_permlane32_swap_b32 v{M[h][0]}, v{M[h][2]}")
        a(f"v_permlane32_swap_b32 v{M[h][1]}, v{M[h][3]}")
    a("s_nop 1")
    for h in H:
        a(f"v_add_f32 v{M[h][0]}, v{M[h][0]}, v{M[h][2]}")
        a(f"v_add_f32 v{M[h][1]}, v{M[h][1]}, v{M[h][3]}")
    for h in H:
        a(f"v_rcp_f32 v{M[h][0]}, v{M[h][0]}")
        a(f"v_rcp_f32 v{M[h][1]}, v{M[h][1]}")
    a("s_nop 0")
    for i in range(4):
        for h in H:
            a(f"v_pk_mul_f32 {vr(T0[h]+2*i,2)}, {vr(T0[h]+2*i,2)}, {vr(M[h][0],2)} op_sel_hi:[1,0]")
            a(f"v_pk_mul_f32 {vr(T0[h]+8+2*i,2)}, {vr(T0[h]+8+2*i,2)}, {vr(M[h][1],2)} op_sel_hi:[1,0]")
    for i in range(8):
        for h in H:
            a(f"v_cvt_pk_bf16_f32 v{PD[h]+8+i}, v{T0[h]+2*i}, v{T0[h]+2*i+1}")
    a("s_cmp_eq_u32 s38, 0")
    a("s_cbranch_scc1 P1_featK")
    a("s_cmp_eq_u32 s46, 1")
    a("s_cbranch_scc1 P1_setup")
    a("s_lshl_b32 s4, s29, 11")
    a(f"s_add_u32 s4, s4, {WS_PHIQ}")
    a(f"s_add_u32 s5, s4, {64*2048}")
    a("s_cmp_ge_u32 s12, 4")
    a("s_cbranch_scc1 P1_done")
    a("s_waitcnt vmcnt(0)")
    lds_add(a, 3, 6, C_Q, rtn=True)
    a("s_cmp_lg_u32 s3, 3")
    a("s_cbranch_scc1 P1_done")
    flag_write(a, 6, 39, SWS)
    a("s_branch P1_done")
    a.label("P1_featK")
    a("v_mov_b32 v15, 0x3f803f80")
    for h in range(2):
        mfma(a, TT[h], PD[h] + 8, IP, "0")
        mfma(a, TT[h], PD[h] + 12, IM, TT[h])
    for i in range(8):
        a(f"v_cndmask_b32 v{BV[0]+i}, v{VF+i}, v15, s[6:7]")
        a(f"v_cndmask_b32 v{BV[1]+i}, v15, v{VF+i}, s[6:7]")
    for h in range(2):
        for i in range(8):
            a(f"v_cvt_pk_bf16_f32 v{PD[h]+i}, v{TT[h]+2*i}, v{TT[h]+2*i+1}")
    a("s_nop 1")
    for h in range(2):
        mfma(a, KV[h], PD[h], BV[h], "0")
        mfma(a, KV[h], PD[h] + 4, BV[h] + 4, KV[h])
    a("s_nop 7")
    a("s_cmp_eq_u32 s46, 1")
    a("s_cbranch_scc1 P1_setup")
    for h in range(2):
        for q in range(4):
            a(f"ds_write_b128 v56, {vr(KV[h]+4*q,4)} offset:{h*4096 + q*1024}")
    a("s_waitcnt lgkmcnt(0)")
    lds_add(a, 3, 10, C_RED1)
    lds_poll(a, 3, 10, C_RED1, 8)
    for w in range(4):
        a(f"ds_read_b128 {vr(16+8*w,4)}, v57 offset:{w*8192}")
        a(f"ds_read_b128 {vr(20+8*w,4)}, v57 offset:{w*8192+1024}")
    a("s_waitcnt lgkmcnt(0)")
    lds_add(a, 3, 10, C_RED2)
    for i in range(4):
        a(f"v_pk_add_f32 {vr(16+2*i,2)}, {vr(16+2*i,2)}, {vr(24+2*i,2)}")
        a(f"v_pk_add_f32 {vr(32+2*i,2)}, {vr(32+2*i,2)}, {vr(40+2*i,2)}")
    for i in range(4):
        a(f"v_pk_add_f32 {vr(136+2*i,2)}, {vr(16+2*i,2)}, {vr(32+2*i,2)}")
    a.label("P1_done")
    a("v_mov_b64 v[144:145], v[58:59]")
    a("s_mov_b32 s63, s38")
    if STAMP:
        a("s_cmp_lt_u32 s12, 4")
        a("s_cbranch_scc1 ST_a")
        stamp(a, 2)
        a.label("ST_a")

    UNR = 8
    PRIO = [(40, 1), (56, 0)]
    QF = 4
    KF = [8, 12]
    VFa = [16, 24]
    P = 32
    O = 40
    CN = 56
    S = [72, 88]
    NC = 104
    a("v_mov_b32 v108, v3")
    a("v_mov_b32 v1, v9")
    a("s_and_b32 s38, s2, 7")
    a("s_lshl_b32 s13, s38, 2")
    a("s_lshr_b32 s3, s2, 3")
    a("s_and_b32 s36, s3, 3")
    a("s_lshr_b32 s37, s3, 2")
    a("s_add_u32 s13, s13, s36")
    a("s_mov_b32 s36, s13")
    a("s_lshr_b32 s14, s2, 5")
    a("s_lshl_b32 s15, s14, 3")
    a("s_add_u32 s15, s15, s12")
    a("s_lshl_b32 s16, s13, 6")
    a("s_add_u32 s16, s16, s15")
    a("v_and_b32 v2, 27, v0")
    a("v_cmp_eq_u32 s[24:25], 16, v2")
    a("v_mov_b32 v3, 0x3f803f80")
    a("s_mov_b32 s20, 0x0000ffff")
    a("s_mov_b32 s21, 0x0000ffff")
    a(f"v_cndmask_b32 v{VFa[0]}, 0, v3, s[24:25]")
    for i in range(1, 16):
        a(f"v_mov_b32 v{VFa[0]+i}, v{VFa[0]}")
    a("s_mov_b32 s22, 0")
    evmask = 0
    for t_ in ([64, 40, 56] if "noev" in EXP else [8, 16, 24, 64] + [p_[0] for p_ in PRIO]):
        evmask |= 1 << (t_ // 8)
    a(f"s_mov_b32 s29, {evmask:#x}")
    a("s_lshl_b32 s47, s12, 18")
    a("s_lshl_b32 s3, s36, 11")
    a("s_add_u32 s47, s47, s3")
    a(f"s_add_u32 s47, s47, {WS_O + 2*MB}")
    lds_poll(a, 108, NC, F_Q, 1, sleep=1)
    if STAMP:
        a("s_cmp_lt_u32 s12, 4")
        a("s_cbranch_scc1 ST_b")
        stamp(a, 3)
        a.label("ST_b")
    a("s_lshl_b32 s19, s16, 10")
    a(f"buffer_load_dwordx4 {vr(QF,4)}, v1, {sr(SWS,4)}, s19 offen sc1")
    lds_poll(a, 108, NC, C_S0, 4)
    if STAMP:
        a("s_cmp_lt_u32 s12, 4")
        a("s_cbranch_scc1 ST_c")
        stamp(a, 4)
        a.label("ST_c")
    a("s_setprio 3")
    a(f"ds_read_b128 {vr(KF[0],4)}, v1")
    a("s_waitcnt vmcnt(0) lgkmcnt(0)")
    stamp(a, 5)
    mfma(a, S[1], KF[0], QF, "0")
    a("s_nop 7")
    a("s_nop 3")
    X = S[1]
    a(f"v_max3_f32 v2, v{X}, v{X+1}, v{X+2}")
    for i in range(3, 15, 2):
        a(f"v_max3_f32 v2, v2, v{X+i}, v{X+i+1}")
    a(f"v_max_f32 v2, v2, v{X+15}")
    cross_half(a, "v_max_f32", 2, 3)
    if STAMP:
        a("s_waitcnt lgkmcnt(0)")
    a.label("P2_restart")
    a("v_mov_b32 v3, v1")
    a(f"ds_read_b128 {vr(KF[0],4)}, v3")
    a(f"ds_read_b128 {vr(KF[1],4)}, v3 offset:2048")
    a("s_mov_b64 exec, s[20:21]")
    a(f"ds_read_b128 {vr(VFa[0],4)}, v3 offset:1024")
    a(f"ds_read_b128 {vr(VFa[0]+4,4)}, v3 offset:1280")
    a("s_mov_b64 exec, -1")
    a(f"v_sub_f32 v{CN}, 0, v2")
    a(f"v_sub_f32 v{CN+1}, 0, v2")
    for i in range(2, 16, 2):
        a(f"v_mov_b64 {vr(CN+i,2)}, {vr(CN,2)}")
    for i in range(0, 16, 2):
        a(f"v_mov_b64 {vr(O+i,2)}, 0")
    a("s_waitcnt lgkmcnt(3)")
    mfma(a, S[0], KF[0], QF, CN)
    a("s_mov_b32 s23, 0")
    a("s_nop 7")
    a("s_nop 3")
    a.raw("    .p2align 3")
    a.label("P2_loop")
    for u in range(UNR):
        X, Y = S[u & 1], S[(u + 1) & 1]
        Kn = KF[(u + 1) & 1]
        Kp = KF[u & 1]
        Vc = VFa[u & 1]
        Vn = VFa[(u + 1) & 1]
        for i in range(4):
            a(f"v_exp_f32 v{X+i}, v{X+i}")
        a("s_waitcnt lgkmcnt(0)")
        mfma(a, Y, Kn, QF, CN)
        a(f"ds_read_b128 {vr(Kp,4)}, v3 offset:{(u+2)*2048}")
        for i in range(4, 8):
            a(f"v_exp_f32 v{X+i}, v{X+i}")
        for i in range(4):
            a(f"v_cvt_pk_bf16_f32 v{P+i}, v{X+2*i}, v{X+2*i+1}")
        for i in range(8, 10):
            a(f"v_exp_f32 v{X+i}, v{X+i}")
        mfma(a, O, Vc, P, O)
        a("s_mov_b64 exec, s[20:21]")
        a(f"ds_read_b128 {vr(Vn,4)}, v3 offset:{(u+1)*2048+1024}")
        a(f"ds_read_b128 {vr(Vn+4,4)}, v3 offset:{(u+1)*2048+1280}")
        a("s_mov_b64 exec, -1")
        for i in range(10, 16):
            a(f"v_exp_f32 v{X+i}, v{X+i}")
        for i in range(4, 8):
            a(f"v_cvt_pk_bf16_f32 v{P+i}, v{X+2*i}, v{X+2*i+1}")
        if u == UNR - 1:
            a(f"v_add_u32 v3, {UNR*2048}, v3")
            a("s_add_u32 s23, s23, 1")
            a("s_bitcmp1_b32 s29, s23")
        else:
            a("s_nop 1")
        mfma(a, O, Vc + 4, P + 4, O)
    a("s_cbranch_scc0 P2_loop")
    a("s_cmp_eq_u32 s23, 8")
    a("s_cbranch_scc1 P2_exit")
    a("s_cmp_lg_u32 s23, 1")
    a("s_cbranch_scc1 P2_e5")
    a("s_cmp_eq_u32 s46, 0")
    a("s_cbranch_scc1 P2_nodry")
    a("s_waitcnt lgkmcnt(0)")
    a("s_nop 7")
    a("s_nop 7")
    a("s_branch P1_setup")
    a.label("P2_nodry")
    lds_poll(a, 108, 109, C_S1, 4)
    for i in range(4):
        a(f"v_mov_b32 v{NC+i}, -1")
    a("s_lshl_b32 s19, s16, 10")
    a(f"s_add_u32 s19, s19, {WS_O + 2*MB}")
    a(f"buffer_store_dwordx4 {vr(NC,4)}, v1, {sr(SWS,4)}, s19 offen sc1")
    a("s_cmp_eq_u32 s63, 0")
    a("s_cbranch_scc1 P2_stK")
    for h in range(2):
        a(f"buffer_store_dwordx4 {vr(PD[h]+8,4)}, v1, {sr(SWS,4)}, s{4+h} offen sc1")
        a(f"buffer_store_dwordx4 {vr(PD[h]+12,4)}, v1, {sr(SWS,4)}, s{4+h} offen offset:1024 sc1")
    a("s_branch P2_loop")
    a.label("P2_stK")
    for p in range(4):
        a(f"buffer_store_dwordx2 {vr(136+2*p,2)}, v144, {sr(SWS,4)}, 0 offen sc1")
        if p < 3:
            a("v_add_u32 v144, v144, v145")
    a("s_branch P2_loop")
    a.label("P2_e5")
    a("s_cmp_lg_u32 s23, 2")
    a("s_cbranch_scc1 P2_e6")
    a("s_setprio 2")
    a("s_waitcnt vmcnt(0)")
    lds_add(a, 108, NC, C_A, rtn=True)
    a("s_cmp_lg_u32 s3, 8")
    a("s_cbranch_scc1 P2_loop")
    flag_write(a, NC, 62, SWS)
    a("s_branch P2_loop")
    a.label("P2_e6")
    a("s_cmp_lg_u32 s23, 3")
    a("s_cbranch_scc1 P2_e7")
    lds_poll(a, 108, 109, C_S2, 4)
    if STAMP and "att" in EXP:
        stamp(a, 2)
    a("s_branch P2_loop")
    a.label("P2_e7")
    a("s_cmp_lg_u32 s23, 5")
    a("s_cbranch_scc1 P2_e8")
    a("s_setprio 1")
    lds_add(a, 108, 109, C_T40)
    a("s_branch P2_loop")
    a.label("P2_e8")
    a("s_cmp_ge_u32 s12, 4")
    a("s_cbranch_scc1 P2_loop")
    a("s_setprio 0")
    a("s_branch P2_loop")
    a.label("P2_exit")
    a("s_waitcnt lgkmcnt(0)")
    stamp(a, 1)
    a("s_nop 7")
    a("s_nop 1")
    a(f"v_mov_b32 v{P}, {f32bits(2.0**64):#x}")
    a(f"v_cmp_nlt_f32 s[24:25], v{O+8}, v{P}")
    a(f"v_mov_b32 v{P+1}, 0x7f800000")
    for i in range(8):
        a(f"v_cmp_nlt_f32 s[26:27], abs(v{O+i}), v{P+1}")
        a("s_or_b64 s[24:25], s[24:25], s[26:27]")
    a("s_cmp_eq_u64 s[24:25], 0")
    a("s_cbranch_scc1 P2_fin")
    a("s_lshl_b32 s17, s13, 17")
    a(f"s_add_u32 s17, s17, {WS_KVB}")
    a("s_mov_b32 s18, s17")
    a("v_mov_b32 v2, 0xff800000")
    a("s_mov_b32 s23, 0")
    a.label("FB_max")
    a(f"buffer_load_dwordx4 {vr(KF[0],4)}, v1, {sr(SWS,4)}, s18 offen sc1")
    a("s_add_u32 s18, s18, 2048")
    a("s_add_u32 s23, s23, 1")
    a("s_waitcnt vmcnt(0)")
    mfma(a, S[0], KF[0], QF, "0")
    a("s_nop 7")
    a("s_nop 3")
    for i in range(0, 16, 2):
        a(f"v_max3_f32 v2, v2, v{S[0]+i}, v{S[0]+i+1}")
    a("s_cmp_lt_u32 s23, 64")
    a("s_cbranch_scc1 FB_max")
    cross_half(a, "v_max_f32", 2, 3)
    a(f"v_sub_f32 v{CN}, 0, v2")
    a(f"v_sub_f32 v{CN+1}, 0, v2")
    for i in range(2, 16, 2):
        a(f"v_mov_b64 {vr(CN+i,2)}, {vr(CN,2)}")
    for i in range(0, 16, 2):
        a(f"v_mov_b64 {vr(O+i,2)}, 0")
    a("s_mov_b32 s23, 0")
    a.label("FB_main")
    a(f"buffer_load_dwordx4 {vr(KF[0],4)}, v1, {sr(SWS,4)}, s17 offen sc1")
    a("s_mov_b64 exec, s[20:21]")
    a(f"buffer_load_dwordx4 {vr(VFa[0],4)}, v1, {sr(SWS,4)}, s17 offen offset:1024 sc1")
    a(f"buffer_load_dwordx4 {vr(VFa[0]+4,4)}, v1, {sr(SWS,4)}, s17 offen offset:1280 sc1")
    a("s_mov_b64 exec, -1")
    a("s_add_u32 s17, s17, 2048")
    a("s_add_u32 s23, s23, 1")
    a("s_waitcnt vmcnt(0)")
    mfma(a, S[0], KF[0], QF, CN)
    a("s_nop 7")
    a("s_nop 3")
    for i in range(16):
        a(f"v_exp_f32 v{S[0]+i}, v{S[0]+i}")
    a("s_nop 0")
    for i in range(8):
        a(f"v_cvt_pk_bf16_f32 v{P+i}, v{S[0]+2*i}, v{S[0]+2*i+1}")
    a("s_nop 1")
    mfma(a, O, VFa[0], P, O)
    mfma(a, O, VFa[0] + 4, P + 4, O)
    a("s_cmp_lt_u32 s23, 64")
    a("s_cbranch_scc1 FB_main")
    a("s_nop 7")
    a("s_nop 3")
    a.label("P2_fin")
    OFB = 80
    WFB = 144
    a(f"v_rcp_f32 v2, v{O+8}")
    a("s_lshl_b32 s19, s16, 10")
    for i in range(4):
        a(f"v_pk_mul_f32 {vr(O+2*i,2)}, {vr(O+2*i,2)}, v[2:3] op_sel_hi:[1,0]")
    for i in range(4):
        a(f"v_cvt_pk_bf16_f32 v{160+i}, v{O+2*i}, v{O+2*i+1}")
    a(f"s_add_u32 s19, s19, {WS_O + 2*MB}")
    for i in range(4):
        a(f"v_min_u32 v{160+i}, 0xfffffffe, v{160+i}")
    a(f"buffer_store_dwordx4 v[160:163], v1, {sr(SWS,4)}, s19 offen sc1")
    if "noh" in EXP:
        a("s_branch K_flush" if STAMP else "s_branch K_end")
    a("s_setprio 3")
    a("v_mov_b32 v2, v108")
    lds_add(a, 2, 3, C_OB)
    lds_poll(a, 2, 3, F_3A, 1)
    a("s_lshl_b32 s3, s12, 13")
    a("s_add_u32 s3, s3, 65536")
    a("v_add_u32 v4, s3, v1")
    lds_poll(a, 2, 3, C_OB, 8)
    if int(os.environ.get("OWN", "1")):
        a("s_waitcnt vmcnt(0)")
    a("s_mov_b32 s31, 0")
    a("s_mov_b32 s30, 0xf")
    a.label("P3_round")
    for k in range(4):
        a(f"s_bitcmp1_b32 s30, {k}")
        a(f"s_cbranch_scc0 P3_s{k}")
        a(f"s_add_u32 s3, s47, {k*65536}")
        a(f"buffer_load_dwordx4 {vr(OFB+8*k,4)}, v1, {sr(SWS,4)}, s3 offen sc1")
        a(f"buffer_load_dwordx4 {vr(OFB+8*k+4,4)}, v1, {sr(SWS,4)}, s3 offen offset:1024 sc1")
        a.label(f"P3_s{k}")
    a("s_add_u32 s31, s31, 1")
    a("s_mov_b32 s30, 0")
    a("s_waitcnt vmcnt(0)")
    for k in range(4):
        b = OFB + 8 * k
        a(f"v_max3_u32 v5, v{b}, v{b+1}, v{b+2}")
        a(f"v_max3_u32 v6, v{b+3}, v{b+4}, v{b+5}")
        a(f"v_max3_u32 v5, v5, v{b+6}, v{b+7}")
        a("v_max_u32 v5, v5, v6")
        a("v_cmp_eq_u32 s[24:25], -1, v5")
        a("s_nop 0")
        a("s_cmp_lg_u64 s[24:25], 0")
        a(f"s_cselect_b32 s3, {1<<k}, 0")
        a("s_or_b32 s30, s30, s3")
    a("s_cmp_gt_u32 s31, 0x200000")
    a("s_cbranch_scc1 P3_out")
    a("s_cmp_eq_u32 s30, 0")
    a("s_cbranch_scc1 P3_out")
    a(f"s_sleep {int(os.environ.get('RS', '4'))}")
    a("s_branch P3_round")
    a.label("P3_out")
    if STAMP:
        stamp(a, 2)
        a(f"s_add_u32 s{STB+8}, s{STB}, s31")
    for k in range(8):
        a(f"ds_write_b128 v4, {vr(OFB+4*k,4)} offset:{k*1024}")
    a("s_lshl_b32 s3, 1, s12")
    a("v_mov_b32 v3, s3")
    a("s_waitcnt lgkmcnt(0)")
    a("s_mov_b64 exec, 1")
    a(f"ds_or_b32 v2, v3 offset:{M_RDY}")
    a("s_mov_b64 exec, -1")
    if STAMP:
        a.label("K_flush")
        a("s_waitcnt vmcnt(0)")
        stamp(a, 6)
        stamp_flush(a, 0, 8, 28, SWS)
    a.label("K_end")
    a.label("K_last")
    a("s_endpgm")
    return kd(kn, 168, 80)


def main():
    a = Asm()
    head = f"""; gated mix of hedgehog linear attention and softmax attention (generated by dev/gen9.py)
; @launch kernel={NAME}_kernel grid=(256,1,1) block=(768,1,1) lds=163840
.amdgcn_target "amdgcn-amd-amdhsa--gfx950"
.text
"""
    kds = [gen_fused(a)]
    out = head + a.text() + '.section .rodata,"a"\n' + "".join(kds)
    path = sys.argv[1] if len(sys.argv) > 1 else f"f9.s"
    open(path, "w").write(out)
    print("wrote", path, len(out))


if __name__ == "__main__":
    main()
```

```python
import sys, os
import gen as G
G.STB = 80
from gen import *
STB = 80
import gen2 as G2
from gen2 import lds_poll, lds_add, flag_write, flag_poll, proj_addr, uid, TAG

G2.FSH = 7
WS_FL = 17 * MB
FL3A, FL3B, FL1, FL2, FLQ = [WS_FL + 32768 * i for i in range(5)]
SP = 131072
PHL = SP
XCH = SP + 2048
CNTS = SP + 4096
RING = SP + 8192
RED = 65536
(C_XCH, C_OA, F_3A, C_OB, F_3B, C_AR, L_TAG, _, C_B, C_A, C_RED1, C_RED2, F_F1, C_S0, C_S1, F_F2, C_H, C_Q, F_Q, C_S2, C_T40, C_WB, M_RDY) = [4 * i for i in range(23)]
P_X, P_WA, P_PHI, P_WOA, P_WB, P_WOB, P_GW = 64, 66, 68, 70, 74, 76, 78
P_OUT, P_DBG, P_WS = 56, 58, 60


LS = int(os.environ.get('LS', '8'))
LS2 = int(os.environ.get('LS2', '12'))


SU = os.environ.get("SU", "pre")


def gen_fused(a):
    kn = NAME + "_kernel"
    kernel_begin(a, kn)
    STAGE = 40960
    SWS, SX, SW0, SW1, SW2, SPHI, SGW = 8, 12, 16, 20, 24, 40, 44
    SWO, SOUT, SDBG = 40, 48, 52
    a("s_cmp_ge_u32 s2, 256")
    a("s_cbranch_scc1 K_end")
    stamp(a, 0)
    if STAMP:
        a(f"s_memrealtime s[{STB+14}:{STB+15}]")
    a("s_load_dwordx16 s[64:79], s[0:1], 0")
    a("s_load_dwordx4 s[56:59], s[0:1], 64")
    a("s_load_dwordx2 s[60:61], s[0:1], 80")
    a("v_lshrrev_b32 v1, 6, v0")
    a("v_and_b32 v0, 63, v0")
    a("v_readfirstlane_b32 s28, v1")
    a("s_and_b32 s3, s2, 1")
    a("s_lshl_b32 s33, s3, 3")
    a("s_lshr_b32 s3, s2, 3")
    a("s_and_b32 s39, s3, 7")
    a("s_add_u32 s33, s33, s39")
    a("s_lshr_b32 s36, s3, 3")
    a("s_and_b32 s4, s2, 6")
    a("s_lshl_b32 s4, s4, 1")
    a("s_add_u32 s36, s36, s4")
    a("s_and_b32 s37, s36, 7")
    a("s_lshr_b32 s38, s36, 3")
    a("s_cmp_ge_u32 s28, 4")
    a("s_cbranch_scc1 P1_compute")

    a("s_getpc_b64 s[4:5]")
    a.label("P1_pc")
    a(f"s_sub_u32 s4, s4, P1_pc-{kn}")
    a("s_subb_u32 s5, s5, 0")
    a("s_lshl_b32 s3, s28, 13")
    a("v_lshlrev_b32 v12, 7, v0")
    a("v_add_u32 v12, s3, v12")
    a(f"v_min_u32 v12, K_last-{kn}, v12")
    a("global_load_dword v13, v12, s[4:5]")
    a("v_lshrrev_b32 v5, 3, v0")
    a("s_lshl_b32 s3, s28, 3")
    a("v_add_u32 v6, s3, v5")
    a("v_lshlrev_b32 v6, 10, v6")
    a("v_lshrrev_b32 v3, 4, v0")
    a("s_and_b32 s3, s28, 1")
    a("s_lshl_b32 s3, s3, 2")
    a("v_add_u32 v3, s3, v3")
    a("v_and_b32 v4, 7, v0")
    a("v_xor_b32 v3, v3, v4")
    a("v_lshlrev_b32 v3, 4, v3")
    a("v_add_u32 v6, v6, v3")
    a("s_lshl_b32 s3, s28, 4")
    a("v_add_u32 v7, s3, v5")
    a("v_mul_u32_u24 v7, 3072, v7")
    a("v_and_b32 v5, 16, v0")
    a("v_lshrrev_b32 v5, 2, v5")
    a("v_xor_b32 v4, v4, v5")
    a("v_lshlrev_b32 v4, 4, v4")
    a("v_add_u32 v7, v7, v4")
    a("v_lshlrev_b32 v1, 4, v0")
    a(f"v_mov_b32 v2, {CNTS}")
    a("v_lshlrev_b32 v3, 2, v0")
    a("v_add_u32 v3, v2, v3")
    a("v_mov_b32 v4, 0")
    a("ds_write_b32 v3, v4")
    a("s_lshl_b32 s48, s33, 17")
    a("s_lshl_b32 s3, s37, 7")
    a("s_cmp_eq_u32 s38, 0")
    a("s_cselect_b32 s49, 1024, 0")
    a("s_cselect_b32 s29, 2048, 0")
    a("s_max_u32 s30, s29, 1024")
    a("s_add_u32 s49, s49, s3")
    a("s_add_u32 s29, s29, s3")
    a("s_add_u32 s30, s30, s3")
    a("s_lshl_b32 s50, s28, 10")
    a("s_lshl_b32 s31, s28, 11")
    a("s_mov_b32 s51, 0")
    a("s_add_u32 s39, s39, s36")
    a("s_and_b32 s39, s39, 3")
    a("s_lshl_b32 s39, s39, 1")
    a("s_waitcnt lgkmcnt(0)")
    srd(a, SX, P_X, 2 * MB)
    srd(a, SW0, P_WA, 512 * 1536 * 2)
    srd(a, SW2, P_WB, 512 * 1536 * 2)
    a("s_cmp_eq_u32 s38, 0")
    a(f"s_cselect_b32 s4, s{P_WA}, s{P_WB}")
    a(f"s_cselect_b32 s5, s{P_WA+1}, s{P_WB+1}")
    srd(a, SW1, 4, 512 * 1536 * 2)
    srd(a, SDBG, P_DBG, 256)
    a("s_cmp_ge_u32 s28, 2")
    a("s_cbranch_scc1 P1_nophi")
    srd(a, SPHI, P_PHI, 32 * 16 * 16 * 2)
    a(f"s_add_u32 m0, s50, {PHL}")
    a("s_lshl_b32 s6, s37, 11")
    a("s_add_u32 s6, s6, s50")
    a(f"buffer_load_dwordx4 v1, {sr(SPHI,4)}, s6 offen lds")
    a("s_branch P1_ld_loop")
    a.label("P1_nophi")
    a("s_cmp_lg_u32 s2, 0")
    a("s_cbranch_scc1 P1_ld_loop")
    a("s_cmp_lg_u32 s28, 3")
    a("s_cbranch_scc1 P1_ld_loop")
    a("s_memrealtime s[6:7]")
    a("s_waitcnt lgkmcnt(0)")
    a("s_or_b32 s6, s6, 1")
    a("v_mov_b32 v10, s6")
    a("v_mov_b32 v11, s7")
    a("s_mov_b64 exec, 1")
    a(f"buffer_store_dwordx2 v[10:11], off, {sr(SDBG,4)}, 0 sc1")
    a("s_mov_b64 exec, -1")
    a.label("P1_ld_loop")
    if STAMP and "first" in EXP:
        a("s_cmp_lg_u32 s51, 0")
        a("s_cbranch_scc1 ST_f")
        stamp(a, 4)
        a.label("ST_f")
        a("s_cmp_lg_u32 s51, 2")
        a("s_cbranch_scc1 ST_g")
        stamp(a, 5)
        a.label("ST_g")
    a("s_lshl_b32 s6, s39, 7")
    a("s_add_u32 s6, s6, s48")
    a(f"s_mul_i32 s7, s39, {64*3072}")
    for ii in range(4):
        a(f"s_add_u32 m0, s50, {ii*4096}")
        a(f"s_add_u32 s32, s6, {ii*32768}")
        a(f"buffer_load_dwordx4 v6, {sr(SX,4)}, s32 offen lds")
    for j, (S, so) in enumerate(((SW0, 49), (SW1, 29), (SW2, 30))):
        a(f"s_add_u32 m0, s31, {16384 + j*8192}")
        a(f"s_add_u32 s32, s{so}, s7")
        a(f"buffer_load_dwordx4 v7, {sr(S,4)}, s32 offen lds")
        a(f"s_add_u32 m0, s31, {16384 + j*8192 + 1024}")
        a(f"s_add_u32 s32, s32, {8*3072}")
        a(f"buffer_load_dwordx4 v7, {sr(S,4)}, s32 offen lds")
    a("s_add_u32 s39, s39, 1")
    a("s_and_b32 s39, s39, 7")
    a(f"s_add_u32 s50, s50, {STAGE}")
    a(f"s_add_u32 s31, s31, {STAGE}")
    a(f"s_cmp_lt_u32 s50, {3*STAGE}")
    a("s_cbranch_scc1 P1_ld_nowrap")
    a(f"s_sub_u32 s50, s50, {3*STAGE}")
    a(f"s_sub_u32 s31, s31, {3*STAGE}")
    a.label("P1_ld_nowrap")
    a("s_add_u32 s51, s51, 1")
    a("s_cmp_eq_u32 s51, 1")
    a("s_cbranch_scc1 P1_ld_loop")
    a("s_waitcnt vmcnt(10)")
    a("s_barrier")
    a("s_cmp_lt_u32 s51, 8")
    a("s_cbranch_scc1 P1_ld_loop")
    srd(a, SWS, P_WS, WS_SIZE)
    a("s_waitcnt vmcnt(0)")
    stamp(a, 1)
    a("s_barrier")
    a("s_cmp_lg_u32 s28, 3")
    a("s_cbranch_scc1 P1_notag")
    a("s_mov_b32 s3, 0")
    a.label("P1_tagpoll")
    a(f"buffer_load_dwordx2 v[10:11], off, {sr(SDBG,4)}, 0 sc1")
    a("s_add_u32 s3, s3, 1")
    a("s_waitcnt vmcnt(0)")
    a("v_cmp_eq_u32 vcc, 0, v10")
    a("s_cmp_gt_u32 s3, 0x400000")
    a("s_cbranch_scc1 P1_tagdone")
    a("s_cbranch_vccnz P1_tagpoll")
    a.label("P1_tagdone")
    a(f"ds_write_b64 v2, v[10:11] offset:{L_TAG}")
    a.label("P1_notag")
    a("s_lshl_b32 s62, s37, 12")
    a("s_lshl_b32 s3, s33, 8")
    a("s_add_u32 s62, s62, s3")
    a("s_lshl_b32 s3, s38, 7")
    a("s_add_u32 s62, s62, s3")
    a(f"s_add_u32 s62, s62, {FL2}")
    a("s_waitcnt lgkmcnt(0)")
    a("s_barrier")
    a(f"ds_read_b64 v[10:11], v2 offset:{L_TAG}")
    a("s_setprio 3")
    a("s_waitcnt lgkmcnt(0)")
    a(f"v_readfirstlane_b32 s{TAG}, v10")
    a(f"v_readfirstlane_b32 s{TAG+1}, v11")
    a("s_lshl_b32 s3, s33, 7")
    a("s_lshl_b32 s4, s36, 3")
    a("s_add_u32 s33, s3, s4")
    a("s_and_b32 s44, s2, 7")
    a("s_lshl_b32 s44, s44, 2")
    a("s_lshr_b32 s45, s2, 3")
    a("s_and_b32 s3, s45, 3")
    a("s_add_u32 s44, s44, s3")
    a("s_lshl_b32 s46, s44, 3")
    a("s_lshl_b32 s3, s28, 1")
    a("s_add_u32 s46, s46, s3")
    a("s_lshl_b32 s4, s46, 8")
    a(f"s_add_u32 s4, s4, {WS_KVP}")
    a("s_lshl_b32 s5, s46, 4")
    a(f"s_add_u32 s5, s5, {WS_ZP}")
    a("v_lshrrev_b32 v10, 5, v0")
    a("v_and_b32 v11, 15, v0")
    a("v_lshlrev_b32 v12, 7, v10")
    a("v_lshlrev_b32 v11, 3, v11")
    a("v_add3_u32 v12, v12, v11, s4")
    a("v_lshlrev_b32 v10, 3, v10")
    a("v_add_u32 v10, s5, v10")
    a("v_and_b32 v11, 16, v0")
    a("v_cmp_ne_u32 s[4:5], 0, v11")
    a("v_mov_b32 v13, 256")
    a("v_lshlrev_b32 v146, 5, v0")
    a("v_cndmask_b32 v144, v12, v10, s[4:5]")
    a("v_cndmask_b32 v13, v13, 16, s[4:5]")
    a("v_add_u32 v145, v144, v13")
    a(f"v_add_u32 v146, {XCH}, v146")
    a("s_lshl_b32 s3, s28, 3")
    a("v_add_u32 v147, s3, v146")
    a(f"s_mul_i32 s46, s28, 6144")
    a(f"s_add_u32 s46, s46, {RING}")
    proj_addr(a, 28, 46, 148, 149, 150, 152)
    a("v_subrev_u32 v156, s46, v149")
    a("v_and_b32 v10, 31, v0")
    a("s_lshl_b32 s3, s44, 6")
    a("s_lshr_b32 s4, s28, 1")
    a("s_lshl_b32 s5, s4, 5")
    a("s_add_u32 s3, s3, s5")
    a("v_add_u32 v10, s3, v10")
    a("v_lshlrev_b32 v154, 2, v10")
    a(f"v_add_u32 v154, {WS_G}, v154")
    a("v_lshlrev_b32 v155, 10, v10")
    a("v_lshrrev_b32 v10, 5, v0")
    a("v_lshlrev_b32 v10, 4, v10")
    a("v_add_u32 v155, v155, v10")
    a("s_lshl_b32 s4, s4, 10")
    a("s_add_u32 s4, s4, 65536")
    a("v_add_u32 v157, s4, v1")
    a("s_lshl_b32 s3, s28, 14")
    a("v_add_u32 v158, s3, v1")
    for j in range(1, 4):
        a(f"v_xor_b32 v{158+j}, {j*16384}, v158")
    a("s_mov_b32 s63, s38")
    a("s_and_b32 s38, s2, 7")
    a("s_lshl_b32 s13, s38, 2")
    a("s_lshr_b32 s3, s2, 3")
    a("s_and_b32 s36, s3, 3")
    a("s_lshr_b32 s37, s3, 2")
    a("s_add_u32 s13, s13, s36")
    a("s_mov_b32 s36, s13")
    a("s_lshr_b32 s14, s2, 5")
    a("s_cmp_lg_u32 s28, 2")
    a("s_cbranch_scc1 H_nf1")
    a("s_lshl_b32 s19, s38, 12")
    a(f"s_add_u32 s19, s19, {FL1}")
    lds_poll(a, 2, 3, C_B, 4, sleep=2)
    flag_poll(a, 10, 19, SWS, sleep=2)
    lds_add(a, 2, 3, F_F1)
    a.label("H_nf1")
    a("s_cmp_lg_u32 s28, 3")
    a("s_cbranch_scc1 H_nfq")
    a("s_lshl_b32 s19, s38, 11")
    a("s_lshl_b32 s3, s14, 8")
    a("s_add_u32 s19, s19, s3")
    a(f"s_add_u32 s19, s19, {FLQ}")
    lds_poll(a, 2, 3, C_B, 4, sleep=2)
    flag_poll(a, 10, 19, SWS, mask=1, sleep=4)
    lds_add(a, 2, 3, F_Q)
    a.label("H_nfq")
    lds_poll(a, 2, 3, F_F1, 1, sleep=2)
    stamp(a, 2)
    a("s_lshl_b32 s18, s28, 10")
    a("s_lshl_b32 s17, s13, 17")
    a(f"s_add_u32 s17, s17, {WS_KVB}")
    a("s_add_u32 s17, s17, s18")
    a("v_add_u32 v4, s18, v1")
    R = [16, 48]

    def kv_issue(Rb):
        for i in range(8):
            a(f"s_add_u32 s19, s17, {i*4096}")
            a(f"buffer_load_dwordx4 {vr(Rb+4*i,4)}, v1, {sr(SWS,4)}, s19 offen sc1")
        a("s_add_u32 s17, s17, 32768")

    def kv_write(Rb, later, first=False):
        for i in range(8):
            a(f"s_waitcnt vmcnt({later + 7 - i})")
            a(f"ds_write_b128 v4, {vr(Rb+4*i,4)} offset:{i*4096}")
            if first and i == 4:
                a("s_waitcnt lgkmcnt(0)")
                lds_add(a, 2, 3, C_S0)
        a("v_add_u32 v4, 32768, v4")
        a("s_waitcnt lgkmcnt(0)")
    kv_issue(R[0])
    kv_write(R[0], 0, first=True)
    kv_issue(R[1])
    kv_issue(R[0])
    kv_write(R[1], 8)
    lds_add(a, 2, 3, C_S1)
    kv_issue(R[1])
    a("s_cmp_lg_u32 s63, 0")
    a("s_cbranch_scc1 H_nored")
    lds_poll(a, 2, 3, C_RED2, 8)
    a.label("H_nored")
    kv_write(R[0], 8)
    kv_write(R[1], 0)
    lds_add(a, 2, 3, C_S2)
    if "first" not in EXP:
        stamp(a, 3)
    if "noh" in EXP:
        a("s_branch K_flush" if STAMP else "s_branch K_end")
    a(f"s_setprio {int(os.environ.get('HP', '3'))}")
    srd(a, 40, P_WOA, 512 * 512 * 2)
    srd(a, 44, P_WOB, 512 * 512 * 2)
    a("s_lshr_b32 s3, s2, 3")
    a("s_lshl_b32 s3, s3, 2")
    a("s_add_u32 s3, s3, s28")
    a("s_lshl_b32 s3, s3, 12")
    for i in range(4):
        a(f"buffer_load_dwordx4 {vr(112+8*i,4)}, v1, s[40:43], s3 offen offset:{i*1024}")
        a(f"buffer_load_dwordx4 {vr(116+8*i,4)}, v1, s[44:47], s3 offen offset:{i*1024}")
    a("s_cmp_lg_u32 s28, 0")
    a("s_cbranch_scc1 H_nogate")
    srd(a, SGW, P_GW, 1024)
    srd(a, 24, P_X, 2 * MB)
    a("v_lshrrev_b32 v8, 3, v0")
    a("v_add_u32 v8, s33, v8")
    a("v_and_b32 v3, 7, v0")
    a("v_lshlrev_b32 v3, 4, v3")
    a("v_lshlrev_b32 v4, 10, v8")
    a("v_add_u32 v4, v4, v3")
    for j in range(8):
        a(f"buffer_load_dwordx4 {vr(16+4*j,4)}, v4, s[24:27], 0 offen offset:{j*128}")
        a(f"buffer_load_dwordx4 {vr(48+4*j,4)}, v3, {sr(SGW,4)}, 0 offen offset:{j*128}")
    a("v_mov_b32 v5, 0")
    a("v_mov_b32 v6, 0")
    a("s_waitcnt vmcnt(0)")
    for j in range(16):
        a(f"v_dot2_f32_bf16 v5, v{16+2*j}, v{48+2*j}, v5")
        a(f"v_dot2_f32_bf16 v6, v{17+2*j}, v{49+2*j}, v6")
    a("s_nop 3")
    a("v_add_f32 v5, v5, v6")
    for off in (0x041F, 0x081F, 0x101F):
        a(f"ds_swizzle_b32 v6, v5 offset:{off}")
        a("s_waitcnt lgkmcnt(0)")
        a("v_add_f32 v5, v5, v6")
    a("v_cvt_pk_bf16_f32 v5, v5, v5")
    a("v_lshlrev_b32 v5, 16, v5")
    a(f"v_mul_f32 v5, {f32bits(-LOG2E):#x}, v5")
    a("v_exp_f32 v5, v5")
    a("s_nop 0")
    a("v_add_f32 v5, 1.0, v5")
    a("v_rcp_f32 v5, v5")
    a("s_nop 0")
    a("v_cvt_pk_bf16_f32 v5, v5, v5")
    a("v_lshlrev_b32 v5, 16, v5")
    a("v_lshlrev_b32 v8, 2, v8")
    a(f"v_add_u32 v8, {WS_G}, v8")
    a(f"buffer_store_dword v5, v8, {sr(SWS,4)}, 0 offen sc1")
    a("s_waitcnt vmcnt(0)")
    lds_add(a, 2, 3, C_A, rtn=True)
    a("s_cmp_lg_u32 s3, 8")
    a("s_cbranch_scc1 H_nogate")
    flag_write(a, 10, 62, SWS)
    a.label("H_nogate")
    KP = 16
    PH = 80
    a("s_lshl_b32 s21, s28, 1")
    a("s_cmp_lg_u32 s28, 0")
    a("s_cbranch_scc1 H_nf2")
    a("s_lshl_b32 s19, s38, 12")
    a(f"s_add_u32 s19, s19, {FL2}")
    lds_poll(a, 2, 3, C_A, 9, sleep=LS)
    flag_poll(a, 10, 19, SWS, sleep=LS)
    lds_add(a, 2, 3, F_F2)
    a.label("H_nf2")
    lds_poll(a, 2, 3, F_F2, 1, sleep=LS)
    a.label("HM_f2")
    if "tail" in EXP:
        stamp(a, 1)
    for rb in range(16):
        a(f"s_mov_b32 s3, {rb*65536}")
        a(f"buffer_load_dwordx2 {vr(KP+2*rb,2)}, v144, {sr(SWS,4)}, s3 offen sc1")
        a(f"buffer_load_dwordx2 {vr(KP+32+2*rb,2)}, v145, {sr(SWS,4)}, s3 offen sc1")
    a("s_lshl_b32 s15, s14, 3")
    a("s_add_u32 s15, s15, s21")
    a("s_lshl_b32 s16, s13, 6")
    a("s_add_u32 s16, s16, s15")
    a("s_lshl_b32 s19, s16, 11")
    a(f"s_add_u32 s19, s19, {WS_PHIQ}")
    for k in range(4):
        a(f"buffer_load_dwordx4 {vr(PH+4*k,4)}, v1, {sr(SWS,4)}, s19 offen offset:{k*1024} sc1")
    a("s_waitcnt vmcnt(4)")
    for st in (8, 4, 2, 1):
        for i in range(st):
            for g in range(2):
                b = KP + 32 * g
                a(f"v_pk_add_f32 {vr(b+2*i,2)}, {vr(b+2*i,2)}, {vr(b+2*(i+st),2)}")
    a(f"v_cvt_pk_bf16_f32 v{KP}, v{KP}, v{KP+1}")
    a(f"v_cvt_pk_bf16_f32 v{KP+1}, v{KP+32}, v{KP+33}")
    a(f"ds_write_b64 v147, {vr(KP,2)}")
    a("s_waitcnt lgkmcnt(0)")
    lds_add(a, 2, 3, C_XCH)
    lds_poll(a, 2, 3, C_XCH, 4)
    a(f"ds_read_b128 {vr(KP,4)}, v146")
    a(f"ds_read_b128 {vr(KP+4,4)}, v146 offset:16")
    D = [32, 48]
    a("s_waitcnt vmcnt(0) lgkmcnt(0)")
    for k in range(2):
        mfma(a, D[k], KP, PH + 8 * k, "0")
        mfma(a, D[k], KP + 4, PH + 8 * k + 4, D[k])
    a("s_lshl_b32 s20, s16, 10")
    a(f"s_add_u32 s20, s20, {WS_O}")
    srd(a, SWO, P_WOA, 512 * 512 * 2)
    a("s_nop 5")
    for k in range(2):
        a(f"v_add_f32 v{10+2*k}, {f32bits(1e-6):#x}, v{D[k]+8}")
    for k in range(2):
        a(f"v_rcp_f32 v{10+2*k}, v{10+2*k}")
    a("s_nop 0")
    for k in range(2):
        for i in range(4):
            a(f"v_pk_mul_f32 {vr(D[k]+2*i,2)}, {vr(D[k]+2*i,2)}, {vr(10+2*k,2)} op_sel_hi:[1,0]")
    for k in range(2):
        for i in range(4):
            a(f"v_cvt_pk_bf16_f32 v{64+4*k+i}, v{D[k]+2*i}, v{D[k]+2*i+1}")
        a(f"buffer_store_dwordx4 {vr(64+4*k,4)}, v1, {sr(SWS,4)}, s20 offen offset:{k*1024} sc1")
    a(f"s_mul_i32 s21, s28, 6144")
    a(f"s_add_u32 s21, s21, {RING}")
    VD, VW0, VW1, VO = 148, 149, 150, 152
    a("s_lshl_b32 s22, s28, 17")
    a("s_lshl_b32 s3, s37, 7")
    a("s_add_u32 s22, s22, s3")
    a("s_lshl_b32 s23, s28, 19")
    a("s_lshl_b32 s3, s36, 11")
    a("s_add_u32 s23, s23, s3")
    a(f"s_add_u32 s23, s23, {WS_O}")
    a("s_waitcnt vmcnt(0)")
    lds_add(a, 2, 3, C_OA, rtn=True)
    a("s_cmp_lg_u32 s3, 3")
    a("s_cbranch_scc1 H_h1")
    a("s_lshl_b32 s19, s14, 12")
    a("s_lshl_b32 s3, s13, 7")
    a("s_add_u32 s19, s19, s3")
    a(f"s_add_u32 s19, s19, {FL3A}")
    flag_write(a, 10, 19, SWS)
    a.label("H_h1")
    a("s_cmp_lg_u32 s28, 0")
    a("s_cbranch_scc1 H_h2")
    a("s_lshl_b32 s19, s38, 12")
    a(f"s_add_u32 s19, s19, {FL3A}")
    flag_poll(a, 10, 19, SWS, sleep=LS)
    lds_add(a, 2, 3, F_3A)
    a.label("H_h2")
    lds_poll(a, 2, 3, F_3A, 1, sleep=LS)
    a.label("HM_3a")
    if "tail" in EXP:
        stamp(a, 2)
    ACC = 16
    OF = 80
    WF = 104

    def issueA(t):
        sl = OF + 8 * (t % 3)
        a(f"s_add_u32 m0, s21, {(t%3)*2048}")
        a(f"s_add_u32 s3, s22, {t*16384}")
        a(f"buffer_load_dwordx4 v{VD}, {sr(SWO,4)}, s3 offen lds")
        a(f"s_add_u32 m0, s21, {(t%3)*2048+1024}")
        a(f"s_add_u32 s3, s22, {t*16384+8192}")
        a(f"buffer_load_dwordx4 v{VD}, {sr(SWO,4)}, s3 offen lds")
        a(f"s_add_u32 s3, s23, {t*65536}")
        a(f"buffer_load_dwordx4 {vr(sl,4)}, v{VO}, {sr(SWS,4)}, s3 offen sc1")
        a(f"buffer_load_dwordx4 {vr(sl+4,4)}, v{VO+1}, {sr(SWS,4)}, s3 offen sc1")

    a(f"buffer_load_dword v14, v154, {sr(SWS,4)}, 0 offen sc1")
    issueA(0)
    issueA(1)
    for t in range(8):
        if t + 2 < 8:
            issueA(t + 2)
            a("s_waitcnt vmcnt(8)")
        else:
            a(f"s_waitcnt vmcnt({4*(7-t)})")
        o = (t % 3) * 2048
        a(f"ds_read_b64_tr_b16 {vr(WF,2)}, v{VW0} offset:{o}")
        a(f"ds_read_b64_tr_b16 {vr(WF+2,2)}, v{VW0} offset:{o+1024}")
        a(f"ds_read_b64_tr_b16 {vr(WF+4,2)}, v{VW1} offset:{o}")
        a(f"ds_read_b64_tr_b16 {vr(WF+6,2)}, v{VW1} offset:{o+1024}")
        sl = OF + 8 * (t % 3)
        a("s_waitcnt lgkmcnt(0)")
        z = (lambda r: "0") if t == 0 else (lambda r: r)
        mfma(a, ACC, WF, sl, z(ACC))
        mfma(a, ACC + 32, WF, sl + 4, z(ACC + 32))
        mfma(a, ACC + 16, WF + 4, sl, z(ACC + 16))
        mfma(a, ACC + 48, WF + 4, sl + 4, z(ACC + 48))
    if "first" not in EXP:
        stamp(a, 4)
    a.label("HM_ap")
    lds_poll(a, 2, 3, C_T40, 8, sleep=LS2)
    a("s_lshl_b32 s19, s28, 14")
    for j in range(1, 4):
        for q in range(4):
            a(f"ds_write_b128 v158, {vr(ACC+16*j+4*q,4)} offset:{j*4096+q*1024}")
    a("s_waitcnt lgkmcnt(0)")
    lds_add(a, 2, 3, C_AR)
    lds_poll(a, 2, 3, C_AR, 4, sleep=2)
    for j in range(1, 4):
        for q in range(4):
            a(f"ds_read_b128 {vr(ACC+16*j+4*q,4)}, v{158+j} offset:{j*4096+q*1024}")
    a("s_waitcnt lgkmcnt(0)")
    lds_add(a, 2, 3, C_AR)
    srd(a, SWO, P_WOB, 512 * 512 * 2)
    srd(a, SOUT, P_OUT, 2 * MB)
    lds_poll(a, 2, 3, C_AR, 8, sleep=2)
    for t in range(16):
        a(f"s_add_u32 m0, s19, {t*1024}")
        a(f"s_add_u32 s3, s22, {t*8192}")
        a(f"buffer_load_dwordx4 v{VD}, {sr(SWO,4)}, s3 offen lds")
    BA = 32
    FB = [48, 80]
    VW0, VW1 = 156, 157
    a("s_lshl_b32 s23, s37, 7")
    a("s_and_b32 s3, s28, 1")
    a("s_lshl_b32 s3, s3, 6")
    a("s_add_u32 s23, s23, s3")
    a("s_waitcnt vmcnt(0)")
    lds_add(a, 2, 3, C_WB)
    lds_poll(a, 2, 3, C_WB, 4, sleep=2)
    if "first" not in EXP:
        stamp(a, 5)
    a.label("HM_wb")
    a("s_setprio 0")
    lds_poll(a, 2, 3, C_OB, 4, sleep=8)
    a("s_setprio 3")
    a.label("HM_ob4")
    lds_poll(a, 2, 3, C_OB, 8, sleep=2)
    for i in range(8):
        a(f"v_pk_add_f32 {vr(ACC+2*i,2)}, {vr(ACC+2*i,2)}, {vr(ACC+16+2*i,2)}")
        a(f"v_pk_add_f32 {vr(ACC+32+2*i,2)}, {vr(ACC+32+2*i,2)}, {vr(ACC+48+2*i,2)}")
    for i in range(8):
        a(f"v_pk_add_f32 {vr(ACC+2*i,2)}, {vr(ACC+2*i,2)}, {vr(ACC+32+2*i,2)}")
    for i in range(8):
        a(f"v_pk_mul_f32 {vr(ACC+2*i,2)}, {vr(ACC+2*i,2)}, v[14:15] op_sel_hi:[1,0]")
    for i in range(0, 16, 2):
        a(f"v_mov_b64 {vr(BA+i,2)}, 0")
    a("v_sub_f32 v12, 1.0, v14")
    a("v_cvt_pk_bf16_f32 v12, v12, v12")
    a("v_lshlrev_b32 v12, 16, v12")
    a("s_mov_b32 s30, 0xff")
    def take_reads(F):
        a("s_ff1_i32_b32 s3, s31")
        a("s_bitset0_b32 s31, s3")
        a("s_bitset0_b32 s30, s3")
        a("s_lshl_b32 s3, s3, 13")
        a(f"v_add_u32 v8, s3, v{VW0}")
        a(f"v_add_u32 v9, s3, v{VW1}")
        for k in range(4):
            a(f"ds_read_b128 {vr(F+8*k,4)}, v9 offset:{k*2048}")
            a(f"ds_read_b64_tr_b16 {vr(F+8*k+4,2)}, v8 offset:{k*2048}")
            a(f"ds_read_b64_tr_b16 {vr(F+8*k+6,2)}, v8 offset:{k*2048+1024}")

    def mm4(F):
        for k in range(4):
            mfma(a, BA, F + 8 * k + 4, F + 8 * k, BA)
    a.label("H3_poll")
    a(f"ds_read_b32 v3, v2 offset:{M_RDY}")
    a("s_waitcnt lgkmcnt(0)")
    a("v_readfirstlane_b32 s31, v3")
    a("s_nop 0")
    a("s_and_b32 s31, s31, s30")
    a("s_cbranch_scc1 H3_go")
    a("s_sleep 1")
    a("s_branch H3_poll")
    a.label("H3_go")
    take_reads(FB[0])
    a.label("H3_a")
    a("s_waitcnt lgkmcnt(0)")
    a("s_cmp_eq_u32 s31, 0")
    a("s_cbranch_scc1 H3_a1")
    take_reads(FB[1])
    mm4(FB[0])
    a("s_waitcnt lgkmcnt(0)")
    a("s_cmp_eq_u32 s31, 0")
    a("s_cbranch_scc1 H3_b1")
    take_reads(FB[0])
    mm4(FB[1])
    a("s_branch H3_a")
    a.label("H3_a1")
    mm4(FB[0])
    a("s_branch H3_c")
    a.label("H3_b1")
    mm4(FB[1])
    a.label("H3_c")
    a("s_cmp_lg_u32 s30, 0")
    a("s_cbranch_scc1 H3_poll")
    a.label("HM_mm")
    a("s_nop 1")
    a("s_nop 7")
    for i in range(8):
        a(f"v_pk_fma_f32 {vr(BA+2*i,2)}, {vr(BA+2*i,2)}, v[12:13], {vr(ACC+2*i,2)} op_sel_hi:[1,0,1]")
    T = 112
    for i in range(8):
        a(f"v_cvt_pk_bf16_f32 v{T+i}, v{BA+2*i}, v{BA+2*i+1}")
    a("s_nop 1")
    a(f"v_permlane32_swap_b32 v{T}, v{T+2}")
    a(f"v_permlane32_swap_b32 v{T+1}, v{T+3}")
    a(f"v_permlane32_swap_b32 v{T+4}, v{T+6}")
    a(f"v_permlane32_swap_b32 v{T+5}, v{T+7}")
    a(f"buffer_store_dwordx4 {vr(T,4)}, v155, {sr(SOUT,4)}, s23 offen")
    a(f"buffer_store_dwordx4 {vr(T+4,4)}, v155, {sr(SOUT,4)}, s23 offen offset:32")
    a.label("HM_fin")
    a.label("HM_end")
    a("s_branch K_flush" if STAMP else "s_branch K_end")

    a.label("P1_compute")
    ACC1 = lambda rt, j: 16 + 48 * rt + 16 * j
    FS = [112, 132]
    F0 = 64
    VF = 72
    WPH = 96
    PD = [104, 120]
    T0 = [136, 152]
    AX, AWD = 4, 8
    IP, IM = 88, 92
    BV = [96, 64]
    TT = [16, 32]
    KV = [136, 152]
    a("s_sub_u32 s12, s28, 4")
    a("s_mov_b32 s46, 0")
    a("s_and_b32 s30, s12, 1")
    a("s_lshr_b32 s48, s12, 1")
    a("s_and_b32 s48, s48, 1")
    a("s_lshr_b32 s31, s12, 2")
    a("s_lshl_b32 s32, s30, 1")
    a("s_add_u32 s32, s32, s31")
    a("v_and_b32 v1, 31, v0")
    a("v_lshrrev_b32 v2, 5, v0")
    a("v_lshrrev_b32 v3, 1, v1")
    a("v_and_b32 v3, 7, v3")
    a("v_xor_b32 v3, v3, v2")
    a("v_lshlrev_b32 v3, 4, v3")
    a("s_lshl_b32 s3, s30, 6")
    a("v_add_u32 v4, s3, v1")
    a("v_lshlrev_b32 v4, 7, v4")
    a("v_add_u32 v4, v4, v3")
    for t in range(1, 4):
        a(f"v_xor_b32 v{AX+t}, {32*t}, v4")
    a("v_and_b32 v3, 15, v0")
    a("v_lshrrev_b32 v8, 2, v3")
    a("v_lshlrev_b32 v9, 3, v2")
    a("v_add_u32 v8, v8, v9")
    a("v_lshlrev_b32 v8, 7, v8")
    a("v_and_b32 v9, 8, v0")
    a("v_lshlrev_b32 v9, 3, v9")
    a("s_lshl_b32 s3, s48, 6")
    a("v_xor_b32 v9, s3, v9")
    a("v_add_u32 v8, v8, v9")
    a("v_and_b32 v9, 16, v0")
    a("v_cmp_ne_u32 s[6:7], 0, v9")
    a("v_lshlrev_b32 v9, 1, v9")
    a("v_add_u32 v8, v8, v9")
    a("v_and_b32 v9, 3, v0")
    a("v_lshlrev_b32 v9, 3, v9")
    a("v_add_u32 v8, v8, v9")
    a("v_add_u32 v8, 16384, v8")
    a("v_mov_b64 v[162:163], 0")
    a("v_mov_b32 v164, 0")
    a("s_waitcnt lgkmcnt(0)")
    srd(a, SWS, P_WS, WS_SIZE)
    a("s_cmp_lt_u32 s12, 4")
    a("s_cbranch_scc1 P1_gemm")

    def call(lbl, back=False):
        L = uid("Lc")
        a("s_getpc_b64 s[42:43]")
        a.label(L)
        if back:
            a(f"s_sub_u32 s42, s42, {L}-{lbl}")
            a("s_subb_u32 s43, s43, 0")
        else:
            a(f"s_add_u32 s42, s42, {lbl}-{L}")
            a("s_addc_u32 s43, s43, 0")
        a("s_swappc_b64 s[44:45], s[42:43]")
    if STAMP and "first" in EXP:
        a(f"s_memtime s[{STB+18}:{STB+19}]")
    if SU == "pre":
        call("SU_a")
        call("SU_b")
        call("SU_c")
        if STAMP and "first" in EXP:
            a(f"s_memtime s[{STB+18}:{STB+19}]")
        for _ in range(9):
            a("s_barrier")
    else:
        a("s_barrier")
        a("s_barrier")
        a("s_barrier")
        call("SU_a")
        a("s_barrier")
        call("SU_b")
        a("s_barrier")
        call("SU_c")
        for _ in range(4):
            a("s_barrier")
    a("s_waitcnt vmcnt(0)")
    for h in range(2):
        a(f"ds_read_b64_tr_b16 {vr(WPH+4*h,2)}, v10 offset:{h*512}")
        a(f"ds_read_b64_tr_b16 {vr(WPH+4*h+2,2)}, v10 offset:{h*512+256}")
    a(f"ds_read_b64 v[12:13], v3 offset:{L_TAG}")
    for i_ in (1, 2, 3, 4):
        stamp(a, i_)
    a("s_waitcnt lgkmcnt(0)")
    a(f"v_readfirstlane_b32 s{TAG}, v12")
    a(f"v_readfirstlane_b32 s{TAG+1}, v13")
    lds_poll(a, 3, 12, C_H, 4)
    for q in range(4):
        a(f"ds_read_b128 {vr(F0+4*q,4)}, v11 offset:{q*1024}")
    a("s_waitcnt lgkmcnt(0)")
    a("s_branch P1_feat")

    a.label("SU_a")
    a("s_lshl_b32 s51, s37, 2")
    a("s_lshl_b32 s3, s48, 1")
    a("s_add_u32 s51, s51, s3")
    a("v_and_b32 v10, 15, v0")
    a("v_lshrrev_b32 v10, 2, v10")
    a("v_and_b32 v9, 3, v0")
    a("v_lshlrev_b32 v9, 3, v9")
    a("v_lshlrev_b32 v11, 2, v2")
    a("v_add_u32 v10, v10, v11")
    a("v_lshlrev_b32 v10, 5, v10")
    a("s_lshl_b32 s3, s48, 10")
    a(f"s_add_u32 s3, s3, {PHL}")
    a("v_add3_u32 v10, v10, v9, s3")
    a("v_lshlrev_b32 v9, 4, v0")
    a(f"v_mov_b32 v3, {CNTS}")
    a("s_and_b32 s3, s12, 3")
    a("s_lshl_b32 s3, s3, 12")
    a(f"s_add_u32 s3, s3, {RING}")
    a("v_add_u32 v11, s3, v9")
    a("s_lshl_b32 s62, s37, 12")
    a("s_lshl_b32 s3, s33, 8")
    a("s_add_u32 s62, s62, s3")
    a("s_lshl_b32 s3, s38, 7")
    a("s_add_u32 s62, s62, s3")
    a(f"s_add_u32 s63, s62, {FL1}")
    a(f"s_add_u32 s62, s62, {FL2}")
    a("s_lshl_b32 s39, s37, 11")
    a("s_lshl_b32 s3, s33, 7")
    a("s_add_u32 s39, s39, s3")
    a(f"s_add_u32 s39, s39, {FLQ}")
    a("s_lshl_b32 s3, s33, 2")
    a("s_add_u32 s3, s3, s32")
    a("s_lshl_b32 s29, s51, 6")
    a("s_add_u32 s29, s29, s3")
    a("s_setpc_b64 s[44:45]")
    a.label("SU_b")
    a("v_lshlrev_b32 v12, 2, v2")
    a("v_sub_u32 v12, v1, v12")
    a("v_mov_b32 v13, 0x3f80")
    a("v_mov_b32 v14, 0x3f800000")
    for k, add in ((0, 0), (4, 16)):
        for p in range(4):
            f0 = (2 * p if p < 2 else 8 + 2 * (p - 2)) + add
            a(f"v_cmp_eq_u32 s[4:5], {f0}, v12")
            a(f"v_cmp_eq_u32 s[30:31], {f0+1}, v12")
            a("s_nop 1")
            a(f"v_cndmask_b32 v15, 0, v13, s[4:5]")
            a(f"v_cndmask_b32 v{152+k+p}, v15, v14, s[30:31]")
    a("s_setpc_b64 s[44:45]")
    a.label("SU_c")
    a("s_lshl_b32 s3, s48, 2")
    a("s_add_u32 s3, s3, s32")
    a("s_lshl_b32 s3, s3, 13")
    a(f"s_add_u32 s3, s3, {RED}")
    a("v_add_u32 v160, s3, v9")
    a("s_lshl_b32 s3, s32, 11")
    a("s_lshl_b32 s4, s48, 15")
    a("s_add_u32 s3, s3, s4")
    a(f"s_add_u32 s3, s3, {RED}")
    a("v_add_u32 v161, s3, v9")
    a("s_lshr_b32 s3, s32, 1")
    a("s_lshl_b32 s4, s3, 4")
    a("v_xor_b32 v12, s4, v1")
    a("s_lshl_b32 s4, s33, 5")
    a("s_add_u32 s4, s4, s51")
    a("s_add_u32 s4, s4, s3")
    a("s_lshl_b32 s4, s4, 3")
    a("s_and_b32 s5, s32, 1")
    a("s_lshl_b32 s5, s5, 2")
    a("s_add_u32 s4, s4, s5")
    a("s_lshl_b32 s5, s4, 8")
    a(f"s_add_u32 s5, s5, {WS_KVP}")
    a("s_and_b32 s4, s4, 255")
    a("s_lshl_b32 s4, s4, 4")
    a("s_lshl_b32 s3, s33, 16")
    a("s_add_u32 s4, s4, s3")
    a(f"s_add_u32 s4, s4, {WS_ZP}")
    a("v_lshlrev_b32 v13, 7, v2")
    a("v_lshlrev_b32 v14, 3, v12")
    a("v_add3_u32 v13, v13, v14, s5")
    a("v_lshlrev_b32 v14, 3, v2")
    a("v_add_u32 v14, s4, v14")
    a("v_cmp_gt_u32 s[4:5], 16, v12")
    a("v_cmp_eq_u32 s[30:31], 16, v12")
    a("v_mov_b32 v15, 0x7ffff000")
    a("v_mov_b32 v163, 256")
    a("v_cndmask_b32 v14, v15, v14, s[30:31]")
    a("v_cndmask_b32 v162, v14, v13, s[4:5]")
    a("v_cndmask_b32 v163, 16, v163, s[4:5]")
    a("v_and_b32 v164, 16, v0")
    a("v_lshlrev_b32 v164, 13, v164")
    a("v_and_b32 v15, 0x2f, v0")
    a("v_lshlrev_b32 v15, 4, v15")
    a("v_add_u32 v164, v164, v15")
    a("s_setpc_b64 s[44:45]")

    a.label("P1_gemm")
    a("v_mov_b64 v[12:13], 0")
    a("v_mov_b64 v[14:15], 0")
    a("s_nop 1")
    for i in range(6):
        mfma(a, 16 + 16 * i, 12, 12, "0")
    if SU == "pre":
        call("SU_a", True)
        call("SU_b", True)
        call("SU_c", True)

    def reads(F, t):
        w = lambda j, hf: f"ds_read_b64_tr_b16 {vr(F+8+4*j+2*hf,2)}, v{AWD} offset:{j*8192 + t*2048 + 512*hf}"
        return [f"ds_read_b128 {vr(F,4)}, v{AX+t}", w(2, 0), w(2, 1),
                f"ds_read_b128 {vr(F+4,4)}, v{AX+t} offset:4096", w(1, 0), w(1, 1), w(0, 0), w(0, 1)]

    def main_loop(tag, typeK):
        def m(F, k):
            rt, j = k & 1, 2 - (k >> 1)
            X, W = F + 4 * rt, F + 8 + 4 * j
            if typeK and j > 0:
                mfma(a, ACC1(rt, j), X, W, ACC1(rt, j))
            else:
                mfma(a, ACC1(rt, j), W, X, ACC1(rt, j))

        def step(F, R):
            a("s_waitcnt lgkmcnt(5)")
            m(F, 0)
            a(R[0]); a(R[1])
            a("s_waitcnt lgkmcnt(6)")
            m(F, 1)
            a(R[2]); a(R[3])
            a("s_waitcnt lgkmcnt(6)")
            m(F, 2)
            a(R[4]); a(R[5])
            m(F, 3)
            a(R[6]); a(R[7])
            a("s_waitcnt lgkmcnt(8)")
            m(F, 4)
            m(F, 5)
        a.label(f"P1_loop{tag}")
        step(FS[0], reads(FS[1], 1))
        step(FS[1], reads(FS[0], 2))
        step(FS[0], reads(FS[1], 3))
        F = FS[1]
        a("s_waitcnt lgkmcnt(0)")
        m(F, 0)
        m(F, 1)
        a("s_barrier")
        a("s_cmp_eq_u32 s49, 7")
        a(f"s_cbranch_scc1 P1_last{tag}")
        a("s_add_u32 s50, s50, 1")
        a(f"s_mov_b32 s3, {STAGE}")
        a("s_cmp_eq_u32 s50, 3")
        a(f"s_cselect_b32 s3, {(-2*STAGE) & 0xffffffff}, s3")
        a("s_cselect_b32 s50, 0, s50")
        a(f"v_add_u32 v{AX}, s3, v{AX}")
        a(f"v_add_u32 v{AWD}, s3, v{AWD}")
        R = reads(FS[0], 0)
        a(R[0]); a(R[1]); a(R[2])
        m(F, 2)
        a(R[3]); a(R[4]); a(R[5])
        m(F, 3)
        a(R[6]); a(R[7])
        for r in range(AX + 1, AX + 4):
            a(f"v_add_u32 v{r}, s3, v{r}")
        m(F, 4)
        a("s_add_u32 s49, s49, 1")
        m(F, 5)
        if SU == "pre":
            a(f"s_branch P1_loop{tag}")
        else:
            a("s_sub_u32 s3, s49, 4")
            a("s_cmp_gt_u32 s3, 2")
            a(f"s_cbranch_scc1 P1_loop{tag}")
            a("s_cmp_lg_u32 s3, 0")
            a(f"s_cbranch_scc1 P1_c1{tag}")
            call("SU_a", True)
            a(f"s_branch P1_loop{tag}")
            a.label(f"P1_c1{tag}")
            a("s_cmp_lg_u32 s3, 1")
            a(f"s_cbranch_scc1 P1_c2{tag}")
            call("SU_b", True)
            a(f"s_branch P1_loop{tag}")
            a.label(f"P1_c2{tag}")
            call("SU_c", True)
            a(f"s_branch P1_loop{tag}")
        a.label(f"P1_last{tag}")
        for k in range(2, 6):
            m(F, k)
        a(f"ds_read_b64 v[12:13], v3 offset:{L_TAG}")
        stamp(a, 3)
        a("s_lshl_b32 s4, s29, 11")
        a(f"s_add_u32 s4, s4, {WS_KVB}")
        a(f"s_add_u32 s5, s4, {64*2048}")
        a("s_nop 3")
        for rt in range(2):
            for i in range(8):
                a(f"v_cvt_pk_bf16_f32 v{112+8*rt+i}, v{ACC1(rt,2)+2*i}, v{ACC1(rt,2)+2*i+1}")

    a("s_mov_b32 s49, 0")
    a("s_mov_b32 s50, 0")
    stamp(a, 1)
    if "first" in EXP:
        a(f"s_memtime s[{STB+18}:{STB+19}]")
    a("s_barrier")
    stamp(a, 2)
    if STAMP:
        a("s_waitcnt lgkmcnt(0)")
    for r in reads(FS[0], 0):
        a(r)
    a("s_cmp_eq_u32 s38, 0")
    a("s_cbranch_scc1 P1_loopK")
    main_loop("Q", False)
    for rt in range(2):
        a(f"buffer_store_dwordx4 {vr(112+8*rt,4)}, v9, {sr(SWS,4)}, s4 offen offset:{rt*2048} sc1")
        a(f"buffer_store_dwordx4 {vr(116+8*rt,4)}, v9, {sr(SWS,4)}, s5 offen offset:{rt*2048} sc1")
    a("s_branch P1_hand")
    main_loop("K", True)
    for rt in range(2):
        a(f"buffer_store_dwordx4 {vr(112+8*rt,4)}, v164, {sr(SWS,4)}, s4 offen offset:{rt*2048+1024} sc1")
        a(f"buffer_store_dwordx4 {vr(116+8*rt,4)}, v164, {sr(SWS,4)}, s4 offen offset:{rt*2048+1280} sc1")
    a.label("P1_hand")
    for i in range(8):
        a(f"v_cvt_pk_bf16_f32 v{136+i}, v{ACC1(1,0)+2*i}, v{ACC1(1,0)+2*i+1}")
    for i in range(8):
        a(f"v_cvt_pk_bf16_f32 v{144+i}, v{ACC1(1,1)+2*i}, v{ACC1(1,1)+2*i+1}")
    for q in range(4):
        a(f"ds_write_b128 v11, {vr(136+4*q,4)} offset:{q*1024}")
    for h in range(2):
        a(f"ds_read_b64_tr_b16 {vr(WPH+4*h,2)}, v10 offset:{h*512}")
        a(f"ds_read_b64_tr_b16 {vr(WPH+4*h+2,2)}, v10 offset:{h*512+256}")
    for i in range(8):
        a(f"v_cvt_pk_bf16_f32 v{F0+i}, v{ACC1(0,0)+2*i}, v{ACC1(0,0)+2*i+1}")
    for i in range(8):
        a(f"v_cvt_pk_bf16_f32 v{VF+i}, v{ACC1(0,1)+2*i}, v{ACC1(0,1)+2*i+1}")
    a("s_waitcnt lgkmcnt(0)")
    a(f"v_readfirstlane_b32 s{TAG}, v12")
    a(f"v_readfirstlane_b32 s{TAG+1}, v13")
    lds_add(a, 3, 12, C_H)
    a("s_waitcnt vmcnt(0)")
    lds_add(a, 3, 6, C_B, rtn=True)
    a("s_cmp_lg_u32 s3, 3")
    a("s_cbranch_scc1 P1_nofl1")
    flag_write(a, 6, 63, SWS)
    a.label("P1_nofl1")
    stamp(a, 4)
    a("s_cmp_eq_u32 s38, 0")
    a("s_cbranch_scc1 P1_feat")
    a(f"s_mov_b32 s30, {f32bits(0.25*LOG2E):#x}")
    a("s_mov_b32 s31, s30")
    a("s_lshl_b32 s4, s29, 10")
    a(f"s_add_u32 s5, s4, {64*1024}")
    for rt in range(2):
        for i in range(8):
            a(f"v_pk_mul_f32 {vr(ACC1(rt,1)+2*i,2)}, {vr(ACC1(rt,1)+2*i,2)}, s[30:31]")
        for i in range(8):
            a(f"v_cvt_pk_bf16_f32 v{16+8*rt+i}, v{ACC1(rt,1)+2*i}, v{ACC1(rt,1)+2*i+1}")
        a(f"buffer_store_dwordx4 {vr(16+8*rt,4)}, v9, {sr(SWS,4)}, s4 offen offset:{rt*1024} sc1")
        a(f"buffer_store_dwordx4 {vr(20+8*rt,4)}, v9, {sr(SWS,4)}, s5 offen offset:{rt*1024} sc1")
    a.label("P1_feat")
    for i in range(0, 8, 2):
        a(f"v_mov_b64 {vr(IP+i,2)}, {vr(152+i,2)}")
    a("v_mov_b64 v[56:57], v[160:161]")
    a("v_mov_b64 v[58:59], v[162:163]")
    a(f"s_mov_b32 s30, {f32bits(LOG2E):#x}")
    a("s_mov_b32 s31, s30")
    mfma(a, PD[0], WPH, F0, "0")
    mfma(a, PD[1], WPH + 4, F0 + 4, "0")
    a("s_nop 7")
    a("s_nop 2")
    H = (0, 1)
    M = [(10, 12, 11, 13), (14, 4, 15, 5)]
    for h in H:
        P = PD[h]
        a(f"v_max3_f32 v{M[h][0]}, v{P}, v{P+1}, v{P+2}")
        a(f"v_min3_f32 v{M[h][1]}, v{P}, v{P+1}, v{P+2}")
    for o in (3, 5):
        for h in H:
            P = PD[h]
            a(f"v_max3_f32 v{M[h][0]}, v{M[h][0]}, v{P+o}, v{P+o+1}")
            a(f"v_min3_f32 v{M[h][1]}, v{M[h][1]}, v{P+o}, v{P+o+1}")
    for h in H:
        P = PD[h]
        a(f"v_max_f32 v{M[h][0]}, v{M[h][0]}, v{P+7}")
        a(f"v_min_f32 v{M[h][1]}, v{M[h][1]}, v{P+7}")
    for h in H:
        a(f"v_mov_b32 v{M[h][2]}, v{M[h][0]}")
        a(f"v_mov_b32 v{M[h][3]}, v{M[h][1]}")
    a("s_nop 1")
    for h in H:
        a(f"v_permlane32_swap_b32 v{M[h][0]}, v{M[h][2]}")
        a(f"v_permlane32_swap_b32 v{M[h][1]}, v{M[h][3]}")
    a("s_nop 1")
    for h in H:
        a(f"v_max_f32 v{M[h][0]}, v{M[h][0]}, v{M[h][2]}")
        a(f"v_min_f32 v{M[h][1]}, v{M[h][1]}, v{M[h][3]}")
    for h in H:
        a(f"v_mul_f32 v{M[h][0]}, s30, v{M[h][0]}")
        a(f"v_mul_f32 v{M[h][1]}, s30, v{M[h][1]}")
    for i in range(4):
        for h in H:
            a(f"v_pk_fma_f32 {vr(T0[h]+2*i,2)}, {vr(PD[h]+2*i,2)}, s[30:31], {vr(M[h][0],2)} op_sel_hi:[1,1,0] neg_lo:[0,0,1] neg_hi:[0,0,1]")
            a(f"v_pk_fma_f32 {vr(T0[h]+8+2*i,2)}, {vr(PD[h]+2*i,2)}, s[30:31], {vr(M[h][1],2)} op_sel_hi:[1,1,0] neg_lo:[1,0,0] neg_hi:[1,0,0]")
    for i in range(16):
        for h in H:
            a(f"v_exp_f32 v{T0[h]+i}, v{T0[h]+i}")
    for h in H:
        for g in range(2):
            a(f"v_pk_add_f32 {vr(PD[h]+4*g,2)}, {vr(T0[h]+8*g,2)}, {vr(T0[h]+8*g+2,2)}")
            a(f"v_pk_add_f32 {vr(PD[h]+4*g+2,2)}, {vr(T0[h]+8*g+4,2)}, {vr(T0[h]+8*g+6,2)}")
    for h in H:
        for g in range(2):
            a(f"v_pk_add_f32 {vr(PD[h]+4*g,2)}, {vr(PD[h]+4*g,2)}, {vr(PD[h]+4*g+2,2)}")
    for h in H:
        a(f"v_add_f32 v{M[h][0]}, v{PD[h]}, v{PD[h]+1}")
        a(f"v_add_f32 v{M[h][1]}, v{PD[h]+4}, v{PD[h]+5}")
    for h in H:
        a(f"v_mov_b32 v{M[h][2]}, v{M[h][0]}")
        a(f"v_mov_b32 v{M[h][3]}, v{M[h][1]}")
    a("s_nop 1")
    for h in H:
        a(f"v_permlane32_swap_b32 v{M[h][0]}, v{M[h][2]}")
        a(f"v_permlane32_swap_b32 v{M[h][1]}, v{M[h][3]}")
    a("s_nop 1")
    for h in H:
        a(f"v_add_f32 v{M[h][0]}, v{M[h][0]}, v{M[h][2]}")
        a(f"v_add_f32 v{M[h][1]}, v{M[h][1]}, v{M[h][3]}")
    for h in H:
        a(f"v_rcp_f32 v{M[h][0]}, v{M[h][0]}")
        a(f"v_rcp_f32 v{M[h][1]}, v{M[h][1]}")
    a("s_nop 0")
    for i in range(4):
        for h in H:
            a(f"v_pk_mul_f32 {vr(T0[h]+2*i,2)}, {vr(T0[h]+2*i,2)}, {vr(M[h][0],2)} op_sel_hi:[1,0]")
            a(f"v_pk_mul_f32 {vr(T0[h]+8+2*i,2)}, {vr(T0[h]+8+2*i,2)}, {vr(M[h][1],2)} op_sel_hi:[1,0]")
    for i in range(8):
        for h in H:
            a(f"v_cvt_pk_bf16_f32 v{PD[h]+8+i}, v{T0[h]+2*i}, v{T0[h]+2*i+1}")
    a("s_cmp_eq_u32 s38, 0")
    a("s_cbranch_scc1 P1_featK")
    a("s_lshl_b32 s4, s29, 11")
    a(f"s_add_u32 s4, s4, {WS_PHIQ}")
    a(f"s_add_u32 s5, s4, {64*2048}")
    a("s_cmp_ge_u32 s12, 4")
    a("s_cbranch_scc1 P1_done")
    a("s_waitcnt vmcnt(0)")
    lds_add(a, 3, 6, C_Q, rtn=True)
    a("s_cmp_lg_u32 s3, 3")
    a("s_cbranch_scc1 P1_done")
    flag_write(a, 6, 39, SWS)
    a("s_branch P1_done")
    a.label("P1_featK")
    a("v_mov_b32 v15, 0x3f803f80")
    for h in range(2):
        mfma(a, TT[h], PD[h] + 8, IP, "0")
        mfma(a, TT[h], PD[h] + 12, IM, TT[h])
    for i in range(8):
        a(f"v_cndmask_b32 v{BV[0]+i}, v{VF+i}, v15, s[6:7]")
        a(f"v_cndmask_b32 v{BV[1]+i}, v15, v{VF+i}, s[6:7]")
    for h in range(2):
        for i in range(8):
            a(f"v_cvt_pk_bf16_f32 v{PD[h]+i}, v{TT[h]+2*i}, v{TT[h]+2*i+1}")
    a("s_nop 1")
    for h in range(2):
        mfma(a, KV[h], PD[h], BV[h], "0")
        mfma(a, KV[h], PD[h] + 4, BV[h] + 4, KV[h])
    a("s_nop 7")
    a("s_nop 1")
    for h in range(2):
        for q in range(4):
            a(f"ds_write_b128 v56, {vr(KV[h]+4*q,4)} offset:{h*4096 + q*1024}")
    a("s_waitcnt lgkmcnt(0)")
    lds_add(a, 3, 10, C_RED1)
    lds_poll(a, 3, 10, C_RED1, 8)
    for w in range(4):
        a(f"ds_read_b128 {vr(16+8*w,4)}, v57 offset:{w*8192}")
        a(f"ds_read_b128 {vr(20+8*w,4)}, v57 offset:{w*8192+1024}")
    a("s_waitcnt lgkmcnt(0)")
    lds_add(a, 3, 10, C_RED2)
    for i in range(4):
        a(f"v_pk_add_f32 {vr(16+2*i,2)}, {vr(16+2*i,2)}, {vr(24+2*i,2)}")
        a(f"v_pk_add_f32 {vr(32+2*i,2)}, {vr(32+2*i,2)}, {vr(40+2*i,2)}")
    for i in range(4):
        a(f"v_pk_add_f32 {vr(136+2*i,2)}, {vr(16+2*i,2)}, {vr(32+2*i,2)}")
    a.label("P1_done")
    a("v_mov_b64 v[144:145], v[58:59]")
    a("s_mov_b32 s63, s38")
    if STAMP:
        a("s_cmp_lt_u32 s12, 4")
        a("s_cbranch_scc1 ST_a")
        stamp(a, 2)
        a.label("ST_a")

    UNR = 8
    PRIO = [(40, 1), (56, 0)]
    QF = 4
    KF = [8, 12]
    VFa = [16, 24]
    P = 32
    O = 40
    CN = 56
    S = [72, 88]
    NC = 104
    a("v_mov_b32 v108, v3")
    a("v_mov_b32 v1, v9")
    a("s_and_b32 s38, s2, 7")
    a("s_lshl_b32 s13, s38, 2")
    a("s_lshr_b32 s3, s2, 3")
    a("s_and_b32 s36, s3, 3")
    a("s_lshr_b32 s37, s3, 2")
    a("s_add_u32 s13, s13, s36")
    a("s_mov_b32 s36, s13")
    a("s_lshr_b32 s14, s2, 5")
    a("s_lshl_b32 s15, s14, 3")
    a("s_add_u32 s15, s15, s12")
    a("s_lshl_b32 s16, s13, 6")
    a("s_add_u32 s16, s16, s15")
    a("v_and_b32 v2, 27, v0")
    a("v_cmp_eq_u32 s[24:25], 16, v2")
    a("v_mov_b32 v3, 0x3f803f80")
    a("s_mov_b32 s20, 0x0000ffff")
    a("s_mov_b32 s21, 0x0000ffff")
    a(f"v_cndmask_b32 v{VFa[0]}, 0, v3, s[24:25]")
    for i in range(1, 16):
        a(f"v_mov_b32 v{VFa[0]+i}, v{VFa[0]}")
    a("s_mov_b32 s22, 0")
    evmask = 0
    for t_ in ([64, 40, 56] if "noev" in EXP else [8, 16, 24, 64] + [p_[0] for p_ in PRIO]):
        evmask |= 1 << (t_ // 8)
    a(f"s_mov_b32 s29, {evmask:#x}")
    a("s_lshl_b32 s47, s12, 18")
    a("s_lshl_b32 s3, s36, 11")
    a("s_add_u32 s47, s47, s3")
    a(f"s_add_u32 s47, s47, {WS_O + 2*MB}")
    lds_poll(a, 108, NC, F_Q, 1, sleep=1)
    if STAMP:
        a("s_cmp_lt_u32 s12, 4")
        a("s_cbranch_scc1 ST_b")
        stamp(a, 3)
        a.label("ST_b")
    a("s_lshl_b32 s19, s16, 10")
    a(f"buffer_load_dwordx4 {vr(QF,4)}, v1, {sr(SWS,4)}, s19 offen sc1")
    lds_poll(a, 108, NC, C_S0, 4)
    if STAMP:
        a("s_cmp_lt_u32 s12, 4")
        a("s_cbranch_scc1 ST_c")
        stamp(a, 4)
        a.label("ST_c")
    a("s_setprio 3")
    a(f"ds_read_b128 {vr(KF[0],4)}, v1")
    a("s_waitcnt vmcnt(0) lgkmcnt(0)")
    stamp(a, 5)
    mfma(a, S[1], KF[0], QF, "0")
    a("s_nop 7")
    a("s_nop 3")
    X = S[1]
    a(f"v_max3_f32 v2, v{X}, v{X+1}, v{X+2}")
    for i in range(3, 15, 2):
        a(f"v_max3_f32 v2, v2, v{X+i}, v{X+i+1}")
    a(f"v_max_f32 v2, v2, v{X+15}")
    cross_half(a, "v_max_f32", 2, 3)
    if STAMP:
        a("s_waitcnt lgkmcnt(0)")
    a.label("P2_restart")
    a("v_mov_b32 v3, v1")
    a(f"ds_read_b128 {vr(KF[0],4)}, v3")
    a(f"ds_read_b128 {vr(KF[1],4)}, v3 offset:2048")
    a("s_mov_b64 exec, s[20:21]")
    a(f"ds_read_b128 {vr(VFa[0],4)}, v3 offset:1024")
    a(f"ds_read_b128 {vr(VFa[0]+4,4)}, v3 offset:1280")
    a("s_mov_b64 exec, -1")
    a(f"v_sub_f32 v{CN}, 0, v2")
    a(f"v_sub_f32 v{CN+1}, 0, v2")
    for i in range(2, 16, 2):
        a(f"v_mov_b64 {vr(CN+i,2)}, {vr(CN,2)}")
    for i in range(0, 16, 2):
        a(f"v_mov_b64 {vr(O+i,2)}, 0")
    a("s_waitcnt lgkmcnt(3)")
    mfma(a, S[0], KF[0], QF, CN)
    a("s_mov_b32 s23, 0")
    a("s_nop 7")
    a("s_nop 3")
    a.raw("    .p2align 3")
    a.label("P2_loop")
    for u in range(UNR):
        X, Y = S[u & 1], S[(u + 1) & 1]
        Kn = KF[(u + 1) & 1]
        Kp = KF[u & 1]
        Vc = VFa[u & 1]
        Vn = VFa[(u + 1) & 1]
        for i in range(4):
            a(f"v_exp_f32 v{X+i}, v{X+i}")
        a("s_waitcnt lgkmcnt(0)")
        mfma(a, Y, Kn, QF, CN)
        a(f"ds_read_b128 {vr(Kp,4)}, v3 offset:{(u+2)*2048}")
        for i in range(4, 8):
            a(f"v_exp_f32 v{X+i}, v{X+i}")
        for i in range(4):
            a(f"v_cvt_pk_bf16_f32 v{P+i}, v{X+2*i}, v{X+2*i+1}")
        for i in range(8, 10):
            a(f"v_exp_f32 v{X+i}, v{X+i}")
        mfma(a, O, Vc, P, O)
        a("s_mov_b64 exec, s[20:21]")
        a(f"ds_read_b128 {vr(Vn,4)}, v3 offset:{(u+1)*2048+1024}")
        a(f"ds_read_b128 {vr(Vn+4,4)}, v3 offset:{(u+1)*2048+1280}")
        a("s_mov_b64 exec, -1")
        for i in range(10, 16):
            a(f"v_exp_f32 v{X+i}, v{X+i}")
        for i in range(4, 8):
            a(f"v_cvt_pk_bf16_f32 v{P+i}, v{X+2*i}, v{X+2*i+1}")
        if u == UNR - 1:
            a(f"v_add_u32 v3, {UNR*2048}, v3")
            a("s_add_u32 s23, s23, 1")
            a("s_bitcmp1_b32 s29, s23")
        else:
            a("s_nop 1")
        mfma(a, O, Vc + 4, P + 4, O)
    a("s_cbranch_scc0 P2_loop")
    a("s_cmp_eq_u32 s23, 8")
    a("s_cbranch_scc1 P2_exit")
    a("s_cmp_lg_u32 s23, 1")
    a("s_cbranch_scc1 P2_e5")
    lds_poll(a, 108, 109, C_S1, 4)
    for i in range(4):
        a(f"v_mov_b32 v{NC+i}, -1")
    a("s_lshl_b32 s19, s16, 10")
    a(f"s_add_u32 s19, s19, {WS_O + 2*MB}")
    a(f"buffer_store_dwordx4 {vr(NC,4)}, v1, {sr(SWS,4)}, s19 offen sc1")
    a("s_cmp_eq_u32 s63, 0")
    a("s_cbranch_scc1 P2_stK")
    for h in range(2):
        a(f"buffer_store_dwordx4 {vr(PD[h]+8,4)}, v1, {sr(SWS,4)}, s{4+h} offen sc1")
        a(f"buffer_store_dwordx4 {vr(PD[h]+12,4)}, v1, {sr(SWS,4)}, s{4+h} offen offset:1024 sc1")
    a("s_branch P2_loop")
    a.label("P2_stK")
    for p in range(4):
        a(f"buffer_store_dwordx2 {vr(136+2*p,2)}, v144, {sr(SWS,4)}, 0 offen sc1")
        if p < 3:
            a("v_add_u32 v144, v144, v145")
    a("s_branch P2_loop")
    a.label("P2_e5")
    a("s_cmp_lg_u32 s23, 2")
    a("s_cbranch_scc1 P2_e6")
    a("s_setprio 2")
    a("s_waitcnt vmcnt(0)")
    lds_add(a, 108, NC, C_A, rtn=True)
    a("s_cmp_lg_u32 s3, 8")
    a("s_cbranch_scc1 P2_loop")
    flag_write(a, NC, 62, SWS)
    a("s_branch P2_loop")
    a.label("P2_e6")
    a("s_cmp_lg_u32 s23, 3")
    a("s_cbranch_scc1 P2_e7")
    lds_poll(a, 108, 109, C_S2, 4)
    if STAMP and "att" in EXP:
        stamp(a, 2)
    a("s_branch P2_loop")
    a.label("P2_e7")
    a("s_cmp_lg_u32 s23, 5")
    a("s_cbranch_scc1 P2_e8")
    a("s_setprio 1")
    lds_add(a, 108, 109, C_T40)
    a("s_branch P2_loop")
    a.label("P2_e8")
    a("s_cmp_ge_u32 s12, 4")
    a("s_cbranch_scc1 P2_loop")
    a("s_setprio 0")
    a("s_branch P2_loop")
    a.label("P2_exit")
    a("s_waitcnt lgkmcnt(0)")
    stamp(a, 1)
    a("s_nop 7")
    a("s_nop 1")
    a(f"v_mov_b32 v{P}, {f32bits(2.0**64):#x}")
    a(f"v_cmp_nlt_f32 s[24:25], v{O+8}, v{P}")
    a(f"v_mov_b32 v{P+1}, 0x7f800000")
    for i in range(8):
        a(f"v_cmp_nlt_f32 s[26:27], abs(v{O+i}), v{P+1}")
        a("s_or_b64 s[24:25], s[24:25], s[26:27]")
    a("s_cmp_eq_u64 s[24:25], 0")
    a("s_cbranch_scc1 P2_fin")
    a("s_lshl_b32 s17, s13, 17")
    a(f"s_add_u32 s17, s17, {WS_KVB}")
    a("s_mov_b32 s18, s17")
    a("v_mov_b32 v2, 0xff800000")
    a("s_mov_b32 s23, 0")
    a.label("FB_max")
    a(f"buffer_load_dwordx4 {vr(KF[0],4)}, v1, {sr(SWS,4)}, s18 offen sc1")
    a("s_add_u32 s18, s18, 2048")
    a("s_add_u32 s23, s23, 1")
    a("s_waitcnt vmcnt(0)")
    mfma(a, S[0], KF[0], QF, "0")
    a("s_nop 7")
    a("s_nop 3")
    for i in range(0, 16, 2):
        a(f"v_max3_f32 v2, v2, v{S[0]+i}, v{S[0]+i+1}")
    a("s_cmp_lt_u32 s23, 64")
    a("s_cbranch_scc1 FB_max")
    cross_half(a, "v_max_f32", 2, 3)
    a(f"v_sub_f32 v{CN}, 0, v2")
    a(f"v_sub_f32 v{CN+1}, 0, v2")
    for i in range(2, 16, 2):
        a(f"v_mov_b64 {vr(CN+i,2)}, {vr(CN,2)}")
    for i in range(0, 16, 2):
        a(f"v_mov_b64 {vr(O+i,2)}, 0")
    a("s_mov_b32 s23, 0")
    a.label("FB_main")
    a(f"buffer_load_dwordx4 {vr(KF[0],4)}, v1, {sr(SWS,4)}, s17 offen sc1")
    a("s_mov_b64 exec, s[20:21]")
    a(f"buffer_load_dwordx4 {vr(VFa[0],4)}, v1, {sr(SWS,4)}, s17 offen offset:1024 sc1")
    a(f"buffer_load_dwordx4 {vr(VFa[0]+4,4)}, v1, {sr(SWS,4)}, s17 offen offset:1280 sc1")
    a("s_mov_b64 exec, -1")
    a("s_add_u32 s17, s17, 2048")
    a("s_add_u32 s23, s23, 1")
    a("s_waitcnt vmcnt(0)")
    mfma(a, S[0], KF[0], QF, CN)
    a("s_nop 7")
    a("s_nop 3")
    for i in range(16):
        a(f"v_exp_f32 v{S[0]+i}, v{S[0]+i}")
    a("s_nop 0")
    for i in range(8):
        a(f"v_cvt_pk_bf16_f32 v{P+i}, v{S[0]+2*i}, v{S[0]+2*i+1}")
    a("s_nop 1")
    mfma(a, O, VFa[0], P, O)
    mfma(a, O, VFa[0] + 4, P + 4, O)
    a("s_cmp_lt_u32 s23, 64")
    a("s_cbranch_scc1 FB_main")
    a("s_nop 7")
    a("s_nop 3")
    a.label("P2_fin")
    OFB = 80
    WFB = 144
    a(f"v_rcp_f32 v2, v{O+8}")
    a("s_lshl_b32 s19, s16, 10")
    for i in range(4):
        a(f"v_pk_mul_f32 {vr(O+2*i,2)}, {vr(O+2*i,2)}, v[2:3] op_sel_hi:[1,0]")
    for i in range(4):
        a(f"v_cvt_pk_bf16_f32 v{160+i}, v{O+2*i}, v{O+2*i+1}")
    a(f"s_add_u32 s19, s19, {WS_O + 2*MB}")
    for i in range(4):
        a(f"v_min_u32 v{160+i}, 0xfffffffe, v{160+i}")
    a(f"buffer_store_dwordx4 v[160:163], v1, {sr(SWS,4)}, s19 offen sc1")
    if "noh" in EXP:
        a("s_branch K_flush" if STAMP else "s_branch K_end")
    a("s_setprio 3")
    a("v_mov_b32 v2, v108")
    lds_add(a, 2, 3, C_OB)
    lds_poll(a, 2, 3, F_3A, 1)
    a("s_lshl_b32 s3, s12, 13")
    a("s_add_u32 s3, s3, 65536")
    a("v_add_u32 v4, s3, v1")
    lds_poll(a, 2, 3, C_OB, 8)
    if int(os.environ.get("OWN", "1")):
        a("s_waitcnt vmcnt(0)")
    a("s_mov_b32 s31, 0")
    a("s_mov_b32 s30, 0xf")
    a.label("P3_round")
    for k in range(4):
        a(f"s_bitcmp1_b32 s30, {k}")
        a(f"s_cbranch_scc0 P3_s{k}")
        a(f"s_add_u32 s3, s47, {k*65536}")
        a(f"buffer_load_dwordx4 {vr(OFB+8*k,4)}, v1, {sr(SWS,4)}, s3 offen sc1")
        a(f"buffer_load_dwordx4 {vr(OFB+8*k+4,4)}, v1, {sr(SWS,4)}, s3 offen offset:1024 sc1")
        a.label(f"P3_s{k}")
    a("s_add_u32 s31, s31, 1")
    a("s_mov_b32 s30, 0")
    a("s_waitcnt vmcnt(0)")
    for k in range(4):
        b = OFB + 8 * k
        a(f"v_max3_u32 v5, v{b}, v{b+1}, v{b+2}")
        a(f"v_max3_u32 v6, v{b+3}, v{b+4}, v{b+5}")
        a(f"v_max3_u32 v5, v5, v{b+6}, v{b+7}")
        a("v_max_u32 v5, v5, v6")
        a("v_cmp_eq_u32 s[24:25], -1, v5")
        a("s_nop 0")
        a("s_cmp_lg_u64 s[24:25], 0")
        a(f"s_cselect_b32 s3, {1<<k}, 0")
        a("s_or_b32 s30, s30, s3")
    a("s_cmp_gt_u32 s31, 0x200000")
    a("s_cbranch_scc1 P3_out")
    a("s_cmp_eq_u32 s30, 0")
    a("s_cbranch_scc1 P3_out")
    a(f"s_sleep {int(os.environ.get('RS', '4'))}")
    a("s_branch P3_round")
    a.label("P3_out")
    if STAMP:
        stamp(a, 2)
        a(f"s_add_u32 s{STB+8}, s{STB}, s31")
    for k in range(8):
        a(f"ds_write_b128 v4, {vr(OFB+4*k,4)} offset:{k*1024}")
    a("s_lshl_b32 s3, 1, s12")
    a("v_mov_b32 v3, s3")
    a("s_waitcnt lgkmcnt(0)")
    a("s_mov_b64 exec, 1")
    a(f"ds_or_b32 v2, v3 offset:{M_RDY}")
    a("s_mov_b64 exec, -1")
    if STAMP:
        a.label("K_flush")
        a("s_waitcnt vmcnt(0)")
        stamp(a, 6)
        stamp_flush(a, 0, 8, 28, SWS)
    a.label("K_end")
    a.label("K_last")
    a("s_endpgm")
    return kd(kn, 168, 80)


def main():
    a = Asm()
    head = f"""; gated mix of hedgehog linear attention and softmax attention (generated by dev/gen11.py)
; @launch kernel={NAME}_kernel grid=(256,1,1) block=(768,1,1) lds=163840
.amdgcn_target "amdgcn-amd-amdhsa--gfx950"
.text
"""
    kds = [gen_fused(a)]
    out = head + a.text() + '.section .rodata,"a"\n' + "".join(kds)
    path = sys.argv[1] if len(sys.argv) > 1 else f"f11.s"
    open(path, "w").write(out)
    print("wrote", path, len(out))


if __name__ == "__main__":
    main()
```

```python
import sys, os
import gen as G
G.STB = 80
from gen import *
STB = 80
import gen2 as G2
from gen2 import lds_poll, lds_add, flag_write, flag_poll, proj_addr, uid, TAG

G2.FSH = 7
WS_FL = 17 * MB
FL3A, FL3B, FL1, FL2, FLQ = [WS_FL + 32768 * i for i in range(5)]
SP = 131072
PHL = SP
XCH = SP + 2048
CNTS = SP + 4096
RING = SP + 8192
RED = 65536
(C_XCH, C_OA, F_3A, C_OB, F_3B, C_AR, L_TAG, _, C_B, C_A, C_RED1, C_RED2, F_F1, C_S0, C_S1, F_F2, C_H, C_Q, F_Q, C_S2, C_T40, C_WB, M_RDY) = [4 * i for i in range(23)]
P_X, P_WA, P_PHI, P_WOA, P_WB, P_WOB, P_GW = 64, 66, 68, 70, 74, 76, 78
P_OUT, P_DBG, P_WS = 56, 58, 60


LS = int(os.environ.get('LS', '8'))
LS2 = int(os.environ.get('LS2', '12'))


SU = os.environ.get("SU", "pre")


def gen_fused(a):
    kn = NAME + "_kernel"
    kernel_begin(a, kn)
    STAGE = 40960
    SWS, SX, SW0, SW1, SW2, SPHI, SGW = 8, 12, 16, 20, 24, 40, 44
    SWO, SOUT, SDBG = 40, 48, 52
    a("s_cmp_ge_u32 s2, 256")
    a("s_cbranch_scc1 K_end")
    stamp(a, 0)
    if STAMP:
        a(f"s_memrealtime s[{STB+14}:{STB+15}]")
    a("s_load_dwordx16 s[64:79], s[0:1], 0")
    a("s_load_dwordx4 s[56:59], s[0:1], 64")
    a("s_load_dwordx2 s[60:61], s[0:1], 80")
    a("v_lshrrev_b32 v1, 6, v0")
    a("v_and_b32 v0, 63, v0")
    a("v_readfirstlane_b32 s28, v1")
    a("s_and_b32 s3, s2, 1")
    a("s_lshl_b32 s33, s3, 3")
    a("s_lshr_b32 s3, s2, 3")
    a("s_and_b32 s39, s3, 7")
    a("s_add_u32 s33, s33, s39")
    a("s_lshr_b32 s36, s3, 3")
    a("s_and_b32 s4, s2, 6")
    a("s_lshl_b32 s4, s4, 1")
    a("s_add_u32 s36, s36, s4")
    a("s_and_b32 s37, s36, 7")
    a("s_lshr_b32 s38, s36, 3")
    a("s_cmp_ge_u32 s28, 4")
    a("s_cbranch_scc1 P1_compute")

    a("s_getpc_b64 s[4:5]")
    a.label("P1_pc")
    a(f"s_sub_u32 s4, s4, P1_pc-{kn}")
    a("s_subb_u32 s5, s5, 0")
    a("s_lshl_b32 s3, s28, 13")
    a("v_lshlrev_b32 v12, 7, v0")
    a("v_add_u32 v12, s3, v12")
    a(f"v_min_u32 v12, K_last-{kn}, v12")
    a("global_load_dword v13, v12, s[4:5]")
    a("v_lshrrev_b32 v5, 3, v0")
    a("s_lshl_b32 s3, s28, 3")
    a("v_add_u32 v6, s3, v5")
    a("v_lshlrev_b32 v6, 10, v6")
    a("v_lshrrev_b32 v3, 4, v0")
    a("s_and_b32 s3, s28, 1")
    a("s_lshl_b32 s3, s3, 2")
    a("v_add_u32 v3, s3, v3")
    a("v_and_b32 v4, 7, v0")
    a("v_xor_b32 v3, v3, v4")
    a("v_lshlrev_b32 v3, 4, v3")
    a("v_add_u32 v6, v6, v3")
    a("s_lshl_b32 s3, s28, 4")
    a("v_add_u32 v7, s3, v5")
    a("v_mul_u32_u24 v7, 3072, v7")
    a("v_and_b32 v5, 16, v0")
    a("v_lshrrev_b32 v5, 2, v5")
    a("v_xor_b32 v4, v4, v5")
    a("v_lshlrev_b32 v4, 4, v4")
    a("v_add_u32 v7, v7, v4")
    a("v_lshlrev_b32 v1, 4, v0")
    a(f"v_mov_b32 v2, {CNTS}")
    a("v_lshlrev_b32 v3, 2, v0")
    a("v_add_u32 v3, v2, v3")
    a("v_mov_b32 v4, 0")
    a("ds_write_b32 v3, v4")
    a("s_lshl_b32 s48, s33, 17")
    a("s_lshl_b32 s3, s37, 7")
    a("s_cmp_eq_u32 s38, 0")
    a("s_cselect_b32 s49, 1024, 0")
    a("s_cselect_b32 s29, 2048, 0")
    a("s_max_u32 s30, s29, 1024")
    a("s_add_u32 s49, s49, s3")
    a("s_add_u32 s29, s29, s3")
    a("s_add_u32 s30, s30, s3")
    a("s_lshl_b32 s50, s28, 10")
    a("s_lshl_b32 s31, s28, 11")
    a("s_mov_b32 s51, 0")
    ROT = os.environ.get("ROT", "half")
    if ROT == "q":
        a("s_add_u32 s39, s39, s36")
        a("s_and_b32 s39, s39, 3")
        a("s_lshl_b32 s39, s39, 1")
    elif ROT == "0":
        a("s_mov_b32 s39, 0")
    elif ROT == "full":
        a("s_and_b32 s3, s36, 3")
        a("s_lshl_b32 s3, s3, 1")
        a("s_add_u32 s39, s39, s3")
        a("s_and_b32 s39, s39, 7")
    elif ROT == "half":
        a("s_xor_b32 s39, s39, s36")
        a("s_and_b32 s39, s39, 1")
        a("s_lshl_b32 s39, s39, 2")
    a("s_waitcnt lgkmcnt(0)")
    srd(a, SX, P_X, 2 * MB)
    srd(a, SW0, P_WA, 512 * 1536 * 2)
    srd(a, SW2, P_WB, 512 * 1536 * 2)
    a("s_cmp_eq_u32 s38, 0")
    a(f"s_cselect_b32 s4, s{P_WA}, s{P_WB}")
    a(f"s_cselect_b32 s5, s{P_WA+1}, s{P_WB+1}")
    srd(a, SW1, 4, 512 * 1536 * 2)
    srd(a, SDBG, P_DBG, 256)
    a("s_cmp_ge_u32 s28, 2")
    a("s_cbranch_scc1 P1_nophi")
    srd(a, SPHI, P_PHI, 32 * 16 * 16 * 2)
    a(f"s_add_u32 m0, s50, {PHL}")
    a("s_lshl_b32 s6, s37, 11")
    a("s_add_u32 s6, s6, s50")
    a(f"buffer_load_dwordx4 v1, {sr(SPHI,4)}, s6 offen lds")
    a("s_branch P1_ld_loop")
    a.label("P1_nophi")
    a("s_cmp_lg_u32 s2, 0")
    a("s_cbranch_scc1 P1_ld_loop")
    a("s_cmp_lg_u32 s28, 3")
    a("s_cbranch_scc1 P1_ld_loop")
    a("s_memrealtime s[6:7]")
    a("s_waitcnt lgkmcnt(0)")
    a("s_or_b32 s6, s6, 1")
    a("v_mov_b32 v10, s6")
    a("v_mov_b32 v11, s7")
    a("s_mov_b64 exec, 1")
    a(f"buffer_store_dwordx2 v[10:11], off, {sr(SDBG,4)}, 0 sc1")
    a("s_mov_b64 exec, -1")
    a.label("P1_ld_loop")
    if STAMP and "first" in EXP:
        a("s_cmp_lg_u32 s51, 0")
        a("s_cbranch_scc1 ST_f")
        stamp(a, 4)
        a.label("ST_f")
        a("s_cmp_lg_u32 s51, 2")
        a("s_cbranch_scc1 ST_g")
        stamp(a, 5)
        a.label("ST_g")
    a("s_lshl_b32 s6, s39, 7")
    a("s_add_u32 s6, s6, s48")
    a(f"s_mul_i32 s7, s39, {64*3072}")
    for ii in range(4):
        a(f"s_add_u32 m0, s50, {ii*4096}")
        a(f"s_add_u32 s32, s6, {ii*32768}")
        a(f"buffer_load_dwordx4 v6, {sr(SX,4)}, s32 offen lds")
    for j, (S, so) in enumerate(((SW0, 49), (SW1, 29), (SW2, 30))):
        a(f"s_add_u32 m0, s31, {16384 + j*8192}")
        a(f"s_add_u32 s32, s{so}, s7")
        a(f"buffer_load_dwordx4 v7, {sr(S,4)}, s32 offen lds")
        a(f"s_add_u32 m0, s31, {16384 + j*8192 + 1024}")
        a(f"s_add_u32 s32, s32, {8*3072}")
        a(f"buffer_load_dwordx4 v7, {sr(S,4)}, s32 offen lds")
    a("s_add_u32 s39, s39, 1")
    a("s_and_b32 s39, s39, 7")
    a(f"s_add_u32 s50, s50, {STAGE}")
    a(f"s_add_u32 s31, s31, {STAGE}")
    a(f"s_cmp_lt_u32 s50, {3*STAGE}")
    a("s_cbranch_scc1 P1_ld_nowrap")
    a(f"s_sub_u32 s50, s50, {3*STAGE}")
    a(f"s_sub_u32 s31, s31, {3*STAGE}")
    a.label("P1_ld_nowrap")
    a("s_add_u32 s51, s51, 1")
    a("s_cmp_eq_u32 s51, 1")
    a("s_cbranch_scc1 P1_ld_loop")
    a("s_waitcnt vmcnt(10)")
    a("s_barrier")
    a("s_cmp_lt_u32 s51, 8")
    a("s_cbranch_scc1 P1_ld_loop")
    srd(a, SWS, P_WS, WS_SIZE)
    a("s_waitcnt vmcnt(0)")
    stamp(a, 1)
    a("s_barrier")
    a("s_cmp_lg_u32 s28, 3")
    a("s_cbranch_scc1 P1_notag")
    a("s_mov_b32 s3, 0")
    a.label("P1_tagpoll")
    a(f"buffer_load_dwordx2 v[10:11], off, {sr(SDBG,4)}, 0 sc1")
    a("s_add_u32 s3, s3, 1")
    a("s_waitcnt vmcnt(0)")
    a("v_cmp_eq_u32 vcc, 0, v10")
    a("s_cmp_gt_u32 s3, 0x400000")
    a("s_cbranch_scc1 P1_tagdone")
    a("s_cbranch_vccnz P1_tagpoll")
    a.label("P1_tagdone")
    a(f"ds_write_b64 v2, v[10:11] offset:{L_TAG}")
    a.label("P1_notag")
    a("s_lshl_b32 s62, s37, 12")
    a("s_lshl_b32 s3, s33, 8")
    a("s_add_u32 s62, s62, s3")
    a("s_lshl_b32 s3, s38, 7")
    a("s_add_u32 s62, s62, s3")
    a(f"s_add_u32 s62, s62, {FL2}")
    a("s_waitcnt lgkmcnt(0)")
    a("s_barrier")
    a(f"ds_read_b64 v[10:11], v2 offset:{L_TAG}")
    a("s_setprio 3")
    a("s_waitcnt lgkmcnt(0)")
    a(f"v_readfirstlane_b32 s{TAG}, v10")
    a(f"v_readfirstlane_b32 s{TAG+1}, v11")
    a("s_lshl_b32 s3, s33, 7")
    a("s_lshl_b32 s4, s36, 3")
    a("s_add_u32 s33, s3, s4")
    a("s_and_b32 s44, s2, 7")
    a("s_lshl_b32 s44, s44, 2")
    a("s_lshr_b32 s45, s2, 3")
    a("s_and_b32 s3, s45, 3")
    a("s_add_u32 s44, s44, s3")
    a("s_lshl_b32 s46, s44, 3")
    a("s_lshl_b32 s3, s28, 1")
    a("s_add_u32 s46, s46, s3")
    a("s_lshl_b32 s4, s46, 8")
    a(f"s_add_u32 s4, s4, {WS_KVP}")
    a("s_lshl_b32 s5, s46, 4")
    a(f"s_add_u32 s5, s5, {WS_ZP}")
    a("v_lshrrev_b32 v10, 5, v0")
    a("v_and_b32 v11, 15, v0")
    a("v_lshlrev_b32 v12, 7, v10")
    a("v_lshlrev_b32 v11, 3, v11")
    a("v_add3_u32 v12, v12, v11, s4")
    a("v_lshlrev_b32 v10, 3, v10")
    a("v_add_u32 v10, s5, v10")
    a("v_and_b32 v11, 16, v0")
    a("v_cmp_ne_u32 s[4:5], 0, v11")
    a("v_mov_b32 v13, 256")
    a("v_lshlrev_b32 v146, 5, v0")
    a("v_cndmask_b32 v144, v12, v10, s[4:5]")
    a("v_cndmask_b32 v13, v13, 16, s[4:5]")
    a("v_add_u32 v145, v144, v13")
    a(f"v_add_u32 v146, {XCH}, v146")
    a("s_lshl_b32 s3, s28, 3")
    a("v_add_u32 v147, s3, v146")
    a(f"s_mul_i32 s46, s28, 6144")
    a(f"s_add_u32 s46, s46, {RING}")
    proj_addr(a, 28, 46, 148, 149, 150, 152)
    a("v_subrev_u32 v156, s46, v149")
    a("v_and_b32 v10, 31, v0")
    a("s_lshl_b32 s3, s44, 6")
    a("s_lshr_b32 s4, s28, 1")
    a("s_lshl_b32 s5, s4, 5")
    a("s_add_u32 s3, s3, s5")
    a("v_add_u32 v10, s3, v10")
    a("v_lshlrev_b32 v154, 2, v10")
    a(f"v_add_u32 v154, {WS_G}, v154")
    a("v_lshlrev_b32 v155, 10, v10")
    a("v_lshrrev_b32 v10, 5, v0")
    a("v_lshlrev_b32 v10, 4, v10")
    a("v_add_u32 v155, v155, v10")
    a("s_lshl_b32 s4, s4, 10")
    a("s_add_u32 s4, s4, 65536")
    a("v_add_u32 v157, s4, v1")
    a("s_lshl_b32 s3, s28, 14")
    a("v_add_u32 v158, s3, v1")
    for j in range(1, 4):
        a(f"v_xor_b32 v{158+j}, {j*16384}, v158")
    a("s_mov_b32 s63, s38")
    a("s_and_b32 s38, s2, 7")
    a("s_lshl_b32 s13, s38, 2")
    a("s_lshr_b32 s3, s2, 3")
    a("s_and_b32 s36, s3, 3")
    a("s_lshr_b32 s37, s3, 2")
    a("s_add_u32 s13, s13, s36")
    a("s_mov_b32 s36, s13")
    a("s_lshr_b32 s14, s2, 5")
    a("s_cmp_lg_u32 s28, 2")
    a("s_cbranch_scc1 H_nf1")
    a("s_lshl_b32 s19, s38, 12")
    a(f"s_add_u32 s19, s19, {FL1}")
    lds_poll(a, 2, 3, C_B, 4, sleep=2)
    flag_poll(a, 10, 19, SWS, sleep=2)
    lds_add(a, 2, 3, F_F1)
    a.label("H_nf1")
    a("s_cmp_lg_u32 s28, 3")
    a("s_cbranch_scc1 H_nfq")
    a("s_lshl_b32 s19, s38, 11")
    a("s_lshl_b32 s3, s14, 8")
    a("s_add_u32 s19, s19, s3")
    a(f"s_add_u32 s19, s19, {FLQ}")
    lds_poll(a, 2, 3, C_B, 4, sleep=2)
    flag_poll(a, 10, 19, SWS, mask=1, sleep=4)
    lds_add(a, 2, 3, F_Q)
    a.label("H_nfq")
    lds_poll(a, 2, 3, F_F1, 1, sleep=2)
    stamp(a, 2)
    a("s_lshl_b32 s18, s28, 10")
    a("s_lshl_b32 s17, s13, 17")
    a(f"s_add_u32 s17, s17, {WS_KVB}")
    a("s_add_u32 s17, s17, s18")
    a("v_add_u32 v4, s18, v1")
    R = [16, 48]

    def kv_issue(Rb):
        for i in range(8):
            a(f"s_add_u32 s19, s17, {i*4096}")
            a(f"buffer_load_dwordx4 {vr(Rb+4*i,4)}, v1, {sr(SWS,4)}, s19 offen sc1")
        a("s_add_u32 s17, s17, 32768")

    def kv_write(Rb, later, first=False):
        for i in range(8):
            a(f"s_waitcnt vmcnt({later + 7 - i})")
            a(f"ds_write_b128 v4, {vr(Rb+4*i,4)} offset:{i*4096}")
            if first and i == 4:
                a("s_waitcnt lgkmcnt(0)")
                lds_add(a, 2, 3, C_S0)
        a("v_add_u32 v4, 32768, v4")
        a("s_waitcnt lgkmcnt(0)")
    kv_issue(R[0])
    kv_write(R[0], 0, first=True)
    kv_issue(R[1])
    kv_issue(R[0])
    kv_write(R[1], 8)
    lds_add(a, 2, 3, C_S1)
    kv_issue(R[1])
    a("s_cmp_lg_u32 s63, 0")
    a("s_cbranch_scc1 H_nored")
    lds_poll(a, 2, 3, C_RED2, 8)
    a.label("H_nored")
    kv_write(R[0], 8)
    kv_write(R[1], 0)
    lds_add(a, 2, 3, C_S2)
    if "first" not in EXP:
        stamp(a, 3)
    if "noh" in EXP:
        a("s_branch K_flush" if STAMP else "s_branch K_end")
    a(f"s_setprio {int(os.environ.get('HP', '3'))}")
    srd(a, 40, P_WOA, 512 * 512 * 2)
    srd(a, 44, P_WOB, 512 * 512 * 2)
    a("s_lshr_b32 s3, s2, 3")
    a("s_lshl_b32 s3, s3, 2")
    a("s_add_u32 s3, s3, s28")
    a("s_lshl_b32 s3, s3, 12")
    for i in range(4):
        a(f"buffer_load_dwordx4 {vr(112+8*i,4)}, v1, s[40:43], s3 offen offset:{i*1024}")
        a(f"buffer_load_dwordx4 {vr(116+8*i,4)}, v1, s[44:47], s3 offen offset:{i*1024}")
    a("s_cmp_lg_u32 s28, 0")
    a("s_cbranch_scc1 H_nogate")
    srd(a, SGW, P_GW, 1024)
    srd(a, 24, P_X, 2 * MB)
    a("v_lshrrev_b32 v8, 3, v0")
    a("v_add_u32 v8, s33, v8")
    a("v_and_b32 v3, 7, v0")
    a("v_lshlrev_b32 v3, 4, v3")
    a("v_lshlrev_b32 v4, 10, v8")
    a("v_add_u32 v4, v4, v3")
    for j in range(8):
        a(f"buffer_load_dwordx4 {vr(16+4*j,4)}, v4, s[24:27], 0 offen offset:{j*128}")
        a(f"buffer_load_dwordx4 {vr(48+4*j,4)}, v3, {sr(SGW,4)}, 0 offen offset:{j*128}")
    a("v_mov_b32 v5, 0")
    a("v_mov_b32 v6, 0")
    a("s_waitcnt vmcnt(0)")
    for j in range(16):
        a(f"v_dot2_f32_bf16 v5, v{16+2*j}, v{48+2*j}, v5")
        a(f"v_dot2_f32_bf16 v6, v{17+2*j}, v{49+2*j}, v6")
    a("s_nop 3")
    a("v_add_f32 v5, v5, v6")
    for off in (0x041F, 0x081F, 0x101F):
        a(f"ds_swizzle_b32 v6, v5 offset:{off}")
        a("s_waitcnt lgkmcnt(0)")
        a("v_add_f32 v5, v5, v6")
    a("v_cvt_pk_bf16_f32 v5, v5, v5")
    a("v_lshlrev_b32 v5, 16, v5")
    a(f"v_mul_f32 v5, {f32bits(-LOG2E):#x}, v5")
    a("v_exp_f32 v5, v5")
    a("s_nop 0")
    a("v_add_f32 v5, 1.0, v5")
    a("v_rcp_f32 v5, v5")
    a("s_nop 0")
    a("v_cvt_pk_bf16_f32 v5, v5, v5")
    a("v_lshlrev_b32 v5, 16, v5")
    a("v_lshlrev_b32 v8, 2, v8")
    a(f"v_add_u32 v8, {WS_G}, v8")
    a(f"buffer_store_dword v5, v8, {sr(SWS,4)}, 0 offen sc1")
    a("s_waitcnt vmcnt(0)")
    lds_add(a, 2, 3, C_A, rtn=True)
    a("s_cmp_lg_u32 s3, 8")
    a("s_cbranch_scc1 H_nogate")
    flag_write(a, 10, 62, SWS)
    a.label("H_nogate")
    KP = 16
    PH = 80
    a("s_lshl_b32 s21, s28, 1")
    a("s_cmp_lg_u32 s28, 0")
    a("s_cbranch_scc1 H_nf2")
    a("s_lshl_b32 s19, s38, 12")
    a(f"s_add_u32 s19, s19, {FL2}")
    lds_poll(a, 2, 3, C_A, 9, sleep=LS)
    flag_poll(a, 10, 19, SWS, sleep=LS)
    lds_add(a, 2, 3, F_F2)
    a.label("H_nf2")
    lds_poll(a, 2, 3, F_F2, 1, sleep=LS)
    a.label("HM_f2")
    if "tail" in EXP:
        stamp(a, 1)
    for rb in range(16):
        a(f"s_mov_b32 s3, {rb*65536}")
        a(f"buffer_load_dwordx2 {vr(KP+2*rb,2)}, v144, {sr(SWS,4)}, s3 offen sc1")
        a(f"buffer_load_dwordx2 {vr(KP+32+2*rb,2)}, v145, {sr(SWS,4)}, s3 offen sc1")
    a("s_lshl_b32 s15, s14, 3")
    a("s_add_u32 s15, s15, s21")
    a("s_lshl_b32 s16, s13, 6")
    a("s_add_u32 s16, s16, s15")
    a("s_lshl_b32 s19, s16, 11")
    a(f"s_add_u32 s19, s19, {WS_PHIQ}")
    for k in range(4):
        a(f"buffer_load_dwordx4 {vr(PH+4*k,4)}, v1, {sr(SWS,4)}, s19 offen offset:{k*1024} sc1")
    a("s_waitcnt vmcnt(4)")
    for st in (8, 4, 2, 1):
        for i in range(st):
            for g in range(2):
                b = KP + 32 * g
                a(f"v_pk_add_f32 {vr(b+2*i,2)}, {vr(b+2*i,2)}, {vr(b+2*(i+st),2)}")
    a(f"v_cvt_pk_bf16_f32 v{KP}, v{KP}, v{KP+1}")
    a(f"v_cvt_pk_bf16_f32 v{KP+1}, v{KP+32}, v{KP+33}")
    a(f"ds_write_b64 v147, {vr(KP,2)}")
    a("s_waitcnt lgkmcnt(0)")
    lds_add(a, 2, 3, C_XCH)
    lds_poll(a, 2, 3, C_XCH, 4)
    a(f"ds_read_b128 {vr(KP,4)}, v146")
    a(f"ds_read_b128 {vr(KP+4,4)}, v146 offset:16")
    D = [32, 48]
    a("s_waitcnt vmcnt(0) lgkmcnt(0)")
    for k in range(2):
        mfma(a, D[k], KP, PH + 8 * k, "0")
        mfma(a, D[k], KP + 4, PH + 8 * k + 4, D[k])
    a("s_lshl_b32 s20, s16, 10")
    a(f"s_add_u32 s20, s20, {WS_O}")
    srd(a, SWO, P_WOA, 512 * 512 * 2)
    a("s_nop 5")
    for k in range(2):
        a(f"v_add_f32 v{10+2*k}, {f32bits(1e-6):#x}, v{D[k]+8}")
    for k in range(2):
        a(f"v_rcp_f32 v{10+2*k}, v{10+2*k}")
    a("s_nop 0")
    for k in range(2):
        for i in range(4):
            a(f"v_pk_mul_f32 {vr(D[k]+2*i,2)}, {vr(D[k]+2*i,2)}, {vr(10+2*k,2)} op_sel_hi:[1,0]")
    for k in range(2):
        for i in range(4):
            a(f"v_cvt_pk_bf16_f32 v{64+4*k+i}, v{D[k]+2*i}, v{D[k]+2*i+1}")
        a(f"buffer_store_dwordx4 {vr(64+4*k,4)}, v1, {sr(SWS,4)}, s20 offen offset:{k*1024} sc1")
    a(f"s_mul_i32 s21, s28, 6144")
    a(f"s_add_u32 s21, s21, {RING}")
    VD, VW0, VW1, VO = 148, 149, 150, 152
    a("s_lshl_b32 s22, s28, 17")
    a("s_lshl_b32 s3, s37, 7")
    a("s_add_u32 s22, s22, s3")
    a("s_lshl_b32 s23, s28, 19")
    a("s_lshl_b32 s3, s36, 11")
    a("s_add_u32 s23, s23, s3")
    a(f"s_add_u32 s23, s23, {WS_O}")
    a("s_waitcnt vmcnt(0)")
    lds_add(a, 2, 3, C_OA, rtn=True)
    a("s_cmp_lg_u32 s3, 3")
    a("s_cbranch_scc1 H_h1")
    a("s_lshl_b32 s19, s14, 12")
    a("s_lshl_b32 s3, s13, 7")
    a("s_add_u32 s19, s19, s3")
    a(f"s_add_u32 s19, s19, {FL3A}")
    flag_write(a, 10, 19, SWS)
    a.label("H_h1")
    a("s_cmp_lg_u32 s28, 0")
    a("s_cbranch_scc1 H_h2")
    a("s_lshl_b32 s19, s38, 12")
    a(f"s_add_u32 s19, s19, {FL3A}")
    flag_poll(a, 10, 19, SWS, sleep=LS)
    lds_add(a, 2, 3, F_3A)
    a.label("H_h2")
    lds_poll(a, 2, 3, F_3A, 1, sleep=LS)
    a.label("HM_3a")
    if "tail" in EXP:
        stamp(a, 2)
    ACC = 16
    OF = 80
    WF = 104

    def issueA(t):
        sl = OF + 8 * (t % 3)
        a(f"s_add_u32 m0, s21, {(t%3)*2048}")
        a(f"s_add_u32 s3, s22, {t*16384}")
        a(f"buffer_load_dwordx4 v{VD}, {sr(SWO,4)}, s3 offen lds")
        a(f"s_add_u32 m0, s21, {(t%3)*2048+1024}")
        a(f"s_add_u32 s3, s22, {t*16384+8192}")
        a(f"buffer_load_dwordx4 v{VD}, {sr(SWO,4)}, s3 offen lds")
        a(f"s_add_u32 s3, s23, {t*65536}")
        a(f"buffer_load_dwordx4 {vr(sl,4)}, v{VO}, {sr(SWS,4)}, s3 offen sc1")
        a(f"buffer_load_dwordx4 {vr(sl+4,4)}, v{VO+1}, {sr(SWS,4)}, s3 offen sc1")

    a(f"buffer_load_dword v14, v154, {sr(SWS,4)}, 0 offen sc1")
    issueA(0)
    issueA(1)
    for t in range(8):
        if t + 2 < 8:
            issueA(t + 2)
            a("s_waitcnt vmcnt(8)")
        else:
            a(f"s_waitcnt vmcnt({4*(7-t)})")
        o = (t % 3) * 2048
        a(f"ds_read_b64_tr_b16 {vr(WF,2)}, v{VW0} offset:{o}")
        a(f"ds_read_b64_tr_b16 {vr(WF+2,2)}, v{VW0} offset:{o+1024}")
        a(f"ds_read_b64_tr_b16 {vr(WF+4,2)}, v{VW1} offset:{o}")
        a(f"ds_read_b64_tr_b16 {vr(WF+6,2)}, v{VW1} offset:{o+1024}")
        sl = OF + 8 * (t % 3)
        a("s_waitcnt lgkmcnt(0)")
        z = (lambda r: "0") if t == 0 else (lambda r: r)
        mfma(a, ACC, WF, sl, z(ACC))
        mfma(a, ACC + 32, WF, sl + 4, z(ACC + 32))
        mfma(a, ACC + 16, WF + 4, sl, z(ACC + 16))
        mfma(a, ACC + 48, WF + 4, sl + 4, z(ACC + 48))
    if "first" not in EXP:
        stamp(a, 4)
    a.label("HM_ap")
    lds_poll(a, 2, 3, C_T40, 8, sleep=LS2)
    a("s_lshl_b32 s19, s28, 14")
    for j in range(1, 4):
        for q in range(4):
            a(f"ds_write_b128 v158, {vr(ACC+16*j+4*q,4)} offset:{j*4096+q*1024}")
    a("s_waitcnt lgkmcnt(0)")
    lds_add(a, 2, 3, C_AR)
    lds_poll(a, 2, 3, C_AR, 4, sleep=2)
    for j in range(1, 4):
        for q in range(4):
            a(f"ds_read_b128 {vr(ACC+16*j+4*q,4)}, v{158+j} offset:{j*4096+q*1024}")
    a("s_waitcnt lgkmcnt(0)")
    lds_add(a, 2, 3, C_AR)
    srd(a, SWO, P_WOB, 512 * 512 * 2)
    srd(a, SOUT, P_OUT, 2 * MB)
    lds_poll(a, 2, 3, C_AR, 8, sleep=2)
    for t in range(16):
        a(f"s_add_u32 m0, s19, {t*1024}")
        a(f"s_add_u32 s3, s22, {t*8192}")
        a(f"buffer_load_dwordx4 v{VD}, {sr(SWO,4)}, s3 offen lds")
    BA = 32
    FB = [48, 80]
    VW0, VW1 = 156, 157
    a("s_lshl_b32 s23, s37, 7")
    a("s_and_b32 s3, s28, 1")
    a("s_lshl_b32 s3, s3, 6")
    a("s_add_u32 s23, s23, s3")
    a("s_waitcnt vmcnt(0)")
    lds_add(a, 2, 3, C_WB)
    lds_poll(a, 2, 3, C_WB, 4, sleep=2)
    if "first" not in EXP:
        stamp(a, 5)
    a.label("HM_wb")
    a("s_setprio 0")
    lds_poll(a, 2, 3, C_OB, 4, sleep=8)
    a("s_setprio 3")
    a.label("HM_ob4")
    lds_poll(a, 2, 3, C_OB, 8, sleep=2)
    for i in range(8):
        a(f"v_pk_add_f32 {vr(ACC+2*i,2)}, {vr(ACC+2*i,2)}, {vr(ACC+16+2*i,2)}")
        a(f"v_pk_add_f32 {vr(ACC+32+2*i,2)}, {vr(ACC+32+2*i,2)}, {vr(ACC+48+2*i,2)}")
    for i in range(8):
        a(f"v_pk_add_f32 {vr(ACC+2*i,2)}, {vr(ACC+2*i,2)}, {vr(ACC+32+2*i,2)}")
    for i in range(8):
        a(f"v_pk_mul_f32 {vr(ACC+2*i,2)}, {vr(ACC+2*i,2)}, v[14:15] op_sel_hi:[1,0]")
    for i in range(0, 16, 2):
        a(f"v_mov_b64 {vr(BA+i,2)}, 0")
    a("v_sub_f32 v12, 1.0, v14")
    a("v_cvt_pk_bf16_f32 v12, v12, v12")
    a("v_lshlrev_b32 v12, 16, v12")
    a("s_mov_b32 s30, 0xff")
    def take_reads(F):
        a("s_ff1_i32_b32 s3, s31")
        a("s_bitset0_b32 s31, s3")
        a("s_bitset0_b32 s30, s3")
        a("s_lshl_b32 s3, s3, 13")
        a(f"v_add_u32 v8, s3, v{VW0}")
        a(f"v_add_u32 v9, s3, v{VW1}")
        for k in range(4):
            a(f"ds_read_b128 {vr(F+8*k,4)}, v9 offset:{k*2048}")
            a(f"ds_read_b64_tr_b16 {vr(F+8*k+4,2)}, v8 offset:{k*2048}")
            a(f"ds_read_b64_tr_b16 {vr(F+8*k+6,2)}, v8 offset:{k*2048+1024}")

    def mm4(F):
        for k in range(4):
            mfma(a, BA, F + 8 * k + 4, F + 8 * k, BA)
    a.label("H3_poll")
    a(f"ds_read_b32 v3, v2 offset:{M_RDY}")
    a("s_waitcnt lgkmcnt(0)")
    a("v_readfirstlane_b32 s31, v3")
    a("s_nop 0")
    a("s_and_b32 s31, s31, s30")
    a("s_cbranch_scc1 H3_go")
    a("s_sleep 1")
    a("s_branch H3_poll")
    a.label("H3_go")
    take_reads(FB[0])
    a.label("H3_a")
    a("s_waitcnt lgkmcnt(0)")
    a("s_cmp_eq_u32 s31, 0")
    a("s_cbranch_scc1 H3_a1")
    take_reads(FB[1])
    mm4(FB[0])
    a("s_waitcnt lgkmcnt(0)")
    a("s_cmp_eq_u32 s31, 0")
    a("s_cbranch_scc1 H3_b1")
    take_reads(FB[0])
    mm4(FB[1])
    a("s_branch H3_a")
    a.label("H3_a1")
    mm4(FB[0])
    a("s_branch H3_c")
    a.label("H3_b1")
    mm4(FB[1])
    a.label("H3_c")
    a("s_cmp_lg_u32 s30, 0")
    a("s_cbranch_scc1 H3_poll")
    a.label("HM_mm")
    a("s_nop 1")
    a("s_nop 7")
    for i in range(8):
        a(f"v_pk_fma_f32 {vr(BA+2*i,2)}, {vr(BA+2*i,2)}, v[12:13], {vr(ACC+2*i,2)} op_sel_hi:[1,0,1]")
    T = 112
    for i in range(8):
        a(f"v_cvt_pk_bf16_f32 v{T+i}, v{BA+2*i}, v{BA+2*i+1}")
    a("s_nop 1")
    a(f"v_permlane32_swap_b32 v{T}, v{T+2}")
    a(f"v_permlane32_swap_b32 v{T+1}, v{T+3}")
    a(f"v_permlane32_swap_b32 v{T+4}, v{T+6}")
    a(f"v_permlane32_swap_b32 v{T+5}, v{T+7}")
    a(f"buffer_store_dwordx4 {vr(T,4)}, v155, {sr(SOUT,4)}, s23 offen")
    a(f"buffer_store_dwordx4 {vr(T+4,4)}, v155, {sr(SOUT,4)}, s23 offen offset:32")
    a.label("HM_fin")
    a.label("HM_end")
    a("s_branch K_flush" if STAMP else "s_branch K_end")

    a.label("P1_compute")
    ACC1 = lambda rt, j: 16 + 48 * rt + 16 * j
    FS = [112, 132]
    F0 = 64
    VF = 72
    WPH = 96
    PD = [104, 120]
    T0 = [136, 152]
    AX, AWD = 4, 8
    IP, IM = 88, 92
    BV = [96, 64]
    TT = [16, 32]
    KV = [136, 152]
    a("s_sub_u32 s12, s28, 4")
    a("s_mov_b32 s46, 0")
    a("s_and_b32 s30, s12, 1")
    a("s_lshr_b32 s48, s12, 1")
    a("s_and_b32 s48, s48, 1")
    a("s_lshr_b32 s31, s12, 2")
    a("s_lshl_b32 s32, s30, 1")
    a("s_add_u32 s32, s32, s31")
    a("v_and_b32 v1, 31, v0")
    a("v_lshrrev_b32 v2, 5, v0")
    a("v_lshrrev_b32 v3, 1, v1")
    a("v_and_b32 v3, 7, v3")
    a("v_xor_b32 v3, v3, v2")
    a("v_lshlrev_b32 v3, 4, v3")
    a("s_lshl_b32 s3, s30, 6")
    a("v_add_u32 v4, s3, v1")
    a("v_lshlrev_b32 v4, 7, v4")
    a("v_add_u32 v4, v4, v3")
    for t in range(1, 4):
        a(f"v_xor_b32 v{AX+t}, {32*t}, v4")
    a("v_and_b32 v3, 15, v0")
    a("v_lshrrev_b32 v8, 2, v3")
    a("v_lshlrev_b32 v9, 3, v2")
    a("v_add_u32 v8, v8, v9")
    a("v_lshlrev_b32 v8, 7, v8")
    a("v_and_b32 v9, 8, v0")
    a("v_lshlrev_b32 v9, 3, v9")
    a("s_lshl_b32 s3, s48, 6")
    a("v_xor_b32 v9, s3, v9")
    a("v_add_u32 v8, v8, v9")
    a("v_and_b32 v9, 16, v0")
    a("v_cmp_ne_u32 s[6:7], 0, v9")
    a("v_lshlrev_b32 v9, 1, v9")
    a("v_add_u32 v8, v8, v9")
    a("v_and_b32 v9, 3, v0")
    a("v_lshlrev_b32 v9, 3, v9")
    a("v_add_u32 v8, v8, v9")
    a("v_add_u32 v8, 16384, v8")
    a("v_mov_b64 v[162:163], 0")
    a("v_mov_b32 v164, 0")
    a("s_waitcnt lgkmcnt(0)")
    srd(a, SWS, P_WS, WS_SIZE)
    a("s_cmp_lt_u32 s12, 4")
    a("s_cbranch_scc1 P1_gemm")

    def call(lbl, back=False):
        L = uid("Lc")
        a("s_getpc_b64 s[42:43]")
        a.label(L)
        if back:
            a(f"s_sub_u32 s42, s42, {L}-{lbl}")
            a("s_subb_u32 s43, s43, 0")
        else:
            a(f"s_add_u32 s42, s42, {lbl}-{L}")
            a("s_addc_u32 s43, s43, 0")
        a("s_swappc_b64 s[44:45], s[42:43]")
    if STAMP and "first" in EXP:
        a(f"s_memtime s[{STB+18}:{STB+19}]")
    if SU == "pre":
        call("SU_a")
        call("SU_b")
        call("SU_c")
        if STAMP and "first" in EXP:
            a(f"s_memtime s[{STB+18}:{STB+19}]")
        for _ in range(9):
            a("s_barrier")
    else:
        a("s_barrier")
        a("s_barrier")
        a("s_barrier")
        call("SU_a")
        a("s_barrier")
        call("SU_b")
        a("s_barrier")
        call("SU_c")
        for _ in range(4):
            a("s_barrier")
    a("s_waitcnt vmcnt(0)")
    for h in range(2):
        a(f"ds_read_b64_tr_b16 {vr(WPH+4*h,2)}, v10 offset:{h*512}")
        a(f"ds_read_b64_tr_b16 {vr(WPH+4*h+2,2)}, v10 offset:{h*512+256}")
    a(f"ds_read_b64 v[12:13], v3 offset:{L_TAG}")
    for i_ in (1, 2, 3, 4):
        stamp(a, i_)
    a("s_waitcnt lgkmcnt(0)")
    a(f"v_readfirstlane_b32 s{TAG}, v12")
    a(f"v_readfirstlane_b32 s{TAG+1}, v13")
    lds_poll(a, 3, 12, C_H, 4)
    for q in range(4):
        a(f"ds_read_b128 {vr(F0+4*q,4)}, v11 offset:{q*1024}")
    a("s_waitcnt lgkmcnt(0)")
    a("s_branch P1_feat")

    a.label("SU_a")
    a("s_lshl_b32 s51, s37, 2")
    a("s_lshl_b32 s3, s48, 1")
    a("s_add_u32 s51, s51, s3")
    a("v_and_b32 v10, 15, v0")
    a("v_lshrrev_b32 v10, 2, v10")
    a("v_and_b32 v9, 3, v0")
    a("v_lshlrev_b32 v9, 3, v9")
    a("v_lshlrev_b32 v11, 2, v2")
    a("v_add_u32 v10, v10, v11")
    a("v_lshlrev_b32 v10, 5, v10")
    a("s_lshl_b32 s3, s48, 10")
    a(f"s_add_u32 s3, s3, {PHL}")
    a("v_add3_u32 v10, v10, v9, s3")
    a("v_lshlrev_b32 v9, 4, v0")
    a(f"v_mov_b32 v3, {CNTS}")
    a("s_and_b32 s3, s12, 3")
    a("s_lshl_b32 s3, s3, 12")
    a(f"s_add_u32 s3, s3, {RING}")
    a("v_add_u32 v11, s3, v9")
    a("s_lshl_b32 s62, s37, 12")
    a("s_lshl_b32 s3, s33, 8")
    a("s_add_u32 s62, s62, s3")
    a("s_lshl_b32 s3, s38, 7")
    a("s_add_u32 s62, s62, s3")
    a(f"s_add_u32 s63, s62, {FL1}")
    a(f"s_add_u32 s62, s62, {FL2}")
    a("s_lshl_b32 s39, s37, 11")
    a("s_lshl_b32 s3, s33, 7")
    a("s_add_u32 s39, s39, s3")
    a(f"s_add_u32 s39, s39, {FLQ}")
    a("s_lshl_b32 s3, s33, 2")
    a("s_add_u32 s3, s3, s32")
    a("s_lshl_b32 s29, s51, 6")
    a("s_add_u32 s29, s29, s3")
    a("s_setpc_b64 s[44:45]")
    a.label("SU_b")
    a("v_lshlrev_b32 v12, 2, v2")
    a("v_sub_u32 v12, v1, v12")
    a("v_mov_b32 v13, 0x3f80")
    a("v_mov_b32 v14, 0x3f800000")
    for k, add in ((0, 0), (4, 16)):
        for p in range(4):
            f0 = (2 * p if p < 2 else 8 + 2 * (p - 2)) + add
            a(f"v_cmp_eq_u32 s[4:5], {f0}, v12")
            a(f"v_cmp_eq_u32 s[30:31], {f0+1}, v12")
            a("s_nop 1")
            a(f"v_cndmask_b32 v15, 0, v13, s[4:5]")
            a(f"v_cndmask_b32 v{152+k+p}, v15, v14, s[30:31]")
    a("s_setpc_b64 s[44:45]")
    a.label("SU_c")
    a("s_lshl_b32 s3, s48, 2")
    a("s_add_u32 s3, s3, s32")
    a("s_lshl_b32 s3, s3, 13")
    a(f"s_add_u32 s3, s3, {RED}")
    a("v_add_u32 v160, s3, v9")
    a("s_lshl_b32 s3, s32, 11")
    a("s_lshl_b32 s4, s48, 15")
    a("s_add_u32 s3, s3, s4")
    a(f"s_add_u32 s3, s3, {RED}")
    a("v_add_u32 v161, s3, v9")
    a("s_lshr_b32 s3, s32, 1")
    a("s_lshl_b32 s4, s3, 4")
    a("v_xor_b32 v12, s4, v1")
    a("s_lshl_b32 s4, s33, 5")
    a("s_add_u32 s4, s4, s51")
    a("s_add_u32 s4, s4, s3")
    a("s_lshl_b32 s4, s4, 3")
    a("s_and_b32 s5, s32, 1")
    a("s_lshl_b32 s5, s5, 2")
    a("s_add_u32 s4, s4, s5")
    a("s_lshl_b32 s5, s4, 8")
    a(f"s_add_u32 s5, s5, {WS_KVP}")
    a("s_and_b32 s4, s4, 255")
    a("s_lshl_b32 s4, s4, 4")
    a("s_lshl_b32 s3, s33, 16")
    a("s_add_u32 s4, s4, s3")
    a(f"s_add_u32 s4, s4, {WS_ZP}")
    a("v_lshlrev_b32 v13, 7, v2")
    a("v_lshlrev_b32 v14, 3, v12")
    a("v_add3_u32 v13, v13, v14, s5")
    a("v_lshlrev_b32 v14, 3, v2")
    a("v_add_u32 v14, s4, v14")
    a("v_cmp_gt_u32 s[4:5], 16, v12")
    a("v_cmp_eq_u32 s[30:31], 16, v12")
    a("v_mov_b32 v15, 0x7ffff000")
    a("v_mov_b32 v163, 256")
    a("v_cndmask_b32 v14, v15, v14, s[30:31]")
    a("v_cndmask_b32 v162, v14, v13, s[4:5]")
    a("v_cndmask_b32 v163, 16, v163, s[4:5]")
    a("v_and_b32 v164, 16, v0")
    a("v_lshlrev_b32 v164, 13, v164")
    a("v_and_b32 v15, 0x2f, v0")
    a("v_lshlrev_b32 v15, 4, v15")
    a("v_add_u32 v164, v164, v15")
    a("s_setpc_b64 s[44:45]")

    a.label("P1_gemm")
    a("v_mov_b64 v[12:13], 0")
    a("v_mov_b64 v[14:15], 0")
    a("s_nop 1")
    for i in range(6):
        mfma(a, 16 + 16 * i, 12, 12, "0")
    if SU == "pre":
        call("SU_a", True)
        call("SU_b", True)
        call("SU_c", True)

    def reads(F, t):
        w = lambda j, hf: f"ds_read_b64_tr_b16 {vr(F+8+4*j+2*hf,2)}, v{AWD} offset:{j*8192 + t*2048 + 512*hf}"
        return [f"ds_read_b128 {vr(F,4)}, v{AX+t}", w(2, 0), w(2, 1),
                f"ds_read_b128 {vr(F+4,4)}, v{AX+t} offset:4096", w(1, 0), w(1, 1), w(0, 0), w(0, 1)]

    def main_loop(tag, typeK):
        def m(F, k):
            rt, j = k & 1, 2 - (k >> 1)
            X, W = F + 4 * rt, F + 8 + 4 * j
            if typeK and j > 0:
                mfma(a, ACC1(rt, j), X, W, ACC1(rt, j))
            else:
                mfma(a, ACC1(rt, j), W, X, ACC1(rt, j))

        def step(F, R):
            a("s_waitcnt lgkmcnt(5)")
            m(F, 0)
            a(R[0]); a(R[1])
            a("s_waitcnt lgkmcnt(6)")
            m(F, 1)
            a(R[2]); a(R[3])
            a("s_waitcnt lgkmcnt(6)")
            m(F, 2)
            a(R[4]); a(R[5])
            m(F, 3)
            a(R[6]); a(R[7])
            a("s_waitcnt lgkmcnt(8)")
            m(F, 4)
            m(F, 5)
        a.label(f"P1_loop{tag}")
        step(FS[0], reads(FS[1], 1))
        step(FS[1], reads(FS[0], 2))
        step(FS[0], reads(FS[1], 3))
        F = FS[1]
        a("s_waitcnt lgkmcnt(0)")
        m(F, 0)
        m(F, 1)
        a("s_barrier")
        a("s_cmp_eq_u32 s49, 7")
        a(f"s_cbranch_scc1 P1_last{tag}")
        a("s_add_u32 s50, s50, 1")
        a(f"s_mov_b32 s3, {STAGE}")
        a("s_cmp_eq_u32 s50, 3")
        a(f"s_cselect_b32 s3, {(-2*STAGE) & 0xffffffff}, s3")
        a("s_cselect_b32 s50, 0, s50")
        a(f"v_add_u32 v{AX}, s3, v{AX}")
        a(f"v_add_u32 v{AWD}, s3, v{AWD}")
        R = reads(FS[0], 0)
        a(R[0]); a(R[1]); a(R[2])
        m(F, 2)
        a(R[3]); a(R[4]); a(R[5])
        m(F, 3)
        a(R[6]); a(R[7])
        for r in range(AX + 1, AX + 4):
            a(f"v_add_u32 v{r}, s3, v{r}")
        m(F, 4)
        a("s_add_u32 s49, s49, 1")
        m(F, 5)
        if SU == "pre":
            a(f"s_branch P1_loop{tag}")
        else:
            a("s_sub_u32 s3, s49, 4")
            a("s_cmp_gt_u32 s3, 2")
            a(f"s_cbranch_scc1 P1_loop{tag}")
            a("s_cmp_lg_u32 s3, 0")
            a(f"s_cbranch_scc1 P1_c1{tag}")
            call("SU_a", True)
            a(f"s_branch P1_loop{tag}")
            a.label(f"P1_c1{tag}")
            a("s_cmp_lg_u32 s3, 1")
            a(f"s_cbranch_scc1 P1_c2{tag}")
            call("SU_b", True)
            a(f"s_branch P1_loop{tag}")
            a.label(f"P1_c2{tag}")
            call("SU_c", True)
            a(f"s_branch P1_loop{tag}")
        a.label(f"P1_last{tag}")
        for k in range(2, 6):
            m(F, k)
        a(f"ds_read_b64 v[12:13], v3 offset:{L_TAG}")
        stamp(a, 3)
        a("s_lshl_b32 s4, s29, 11")
        a(f"s_add_u32 s4, s4, {WS_KVB}")
        a(f"s_add_u32 s5, s4, {64*2048}")
        a("s_nop 3")
        for rt in range(2):
            for i in range(8):
                a(f"v_cvt_pk_bf16_f32 v{112+8*rt+i}, v{ACC1(rt,2)+2*i}, v{ACC1(rt,2)+2*i+1}")

    a("s_mov_b32 s49, 0")
    a("s_mov_b32 s50, 0")
    stamp(a, 1)
    if "first" in EXP:
        a(f"s_memtime s[{STB+18}:{STB+19}]")
    a("s_barrier")
    stamp(a, 2)
    if STAMP:
        a("s_waitcnt lgkmcnt(0)")
    for r in reads(FS[0], 0):
        a(r)
    a("s_cmp_eq_u32 s38, 0")
    a("s_cbranch_scc1 P1_loopK")
    main_loop("Q", False)
    for rt in range(2):
        a(f"buffer_store_dwordx4 {vr(112+8*rt,4)}, v9, {sr(SWS,4)}, s4 offen offset:{rt*2048} sc1")
        a(f"buffer_store_dwordx4 {vr(116+8*rt,4)}, v9, {sr(SWS,4)}, s5 offen offset:{rt*2048} sc1")
    a("s_branch P1_hand")
    main_loop("K", True)
    for rt in range(2):
        a(f"buffer_store_dwordx4 {vr(112+8*rt,4)}, v164, {sr(SWS,4)}, s4 offen offset:{rt*2048+1024} sc1")
        a(f"buffer_store_dwordx4 {vr(116+8*rt,4)}, v164, {sr(SWS,4)}, s4 offen offset:{rt*2048+1280} sc1")
    a.label("P1_hand")
    for i in range(8):
        a(f"v_cvt_pk_bf16_f32 v{136+i}, v{ACC1(1,0)+2*i}, v{ACC1(1,0)+2*i+1}")
    for i in range(8):
        a(f"v_cvt_pk_bf16_f32 v{144+i}, v{ACC1(1,1)+2*i}, v{ACC1(1,1)+2*i+1}")
    for q in range(4):
        a(f"ds_write_b128 v11, {vr(136+4*q,4)} offset:{q*1024}")
    for h in range(2):
        a(f"ds_read_b64_tr_b16 {vr(WPH+4*h,2)}, v10 offset:{h*512}")
        a(f"ds_read_b64_tr_b16 {vr(WPH+4*h+2,2)}, v10 offset:{h*512+256}")
    for i in range(8):
        a(f"v_cvt_pk_bf16_f32 v{F0+i}, v{ACC1(0,0)+2*i}, v{ACC1(0,0)+2*i+1}")
    for i in range(8):
        a(f"v_cvt_pk_bf16_f32 v{VF+i}, v{ACC1(0,1)+2*i}, v{ACC1(0,1)+2*i+1}")
    a("s_waitcnt lgkmcnt(0)")
    a(f"v_readfirstlane_b32 s{TAG}, v12")
    a(f"v_readfirstlane_b32 s{TAG+1}, v13")
    lds_add(a, 3, 12, C_H)
    a("s_waitcnt vmcnt(0)")
    lds_add(a, 3, 6, C_B, rtn=True)
    a("s_cmp_lg_u32 s3, 3")
    a("s_cbranch_scc1 P1_nofl1")
    flag_write(a, 6, 63, SWS)
    a.label("P1_nofl1")
    stamp(a, 4)
    a("s_cmp_eq_u32 s38, 0")
    a("s_cbranch_scc1 P1_feat")
    a(f"s_mov_b32 s30, {f32bits(0.25*LOG2E):#x}")
    a("s_mov_b32 s31, s30")
    a("s_lshl_b32 s4, s29, 10")
    a(f"s_add_u32 s5, s4, {64*1024}")
    for rt in range(2):
        for i in range(8):
            a(f"v_pk_mul_f32 {vr(ACC1(rt,1)+2*i,2)}, {vr(ACC1(rt,1)+2*i,2)}, s[30:31]")
        for i in range(8):
            a(f"v_cvt_pk_bf16_f32 v{16+8*rt+i}, v{ACC1(rt,1)+2*i}, v{ACC1(rt,1)+2*i+1}")
        a(f"buffer_store_dwordx4 {vr(16+8*rt,4)}, v9, {sr(SWS,4)}, s4 offen offset:{rt*1024} sc1")
        a(f"buffer_store_dwordx4 {vr(20+8*rt,4)}, v9, {sr(SWS,4)}, s5 offen offset:{rt*1024} sc1")
    a.label("P1_feat")
    for i in range(0, 8, 2):
        a(f"v_mov_b64 {vr(IP+i,2)}, {vr(152+i,2)}")
    a("v_mov_b64 v[56:57], v[160:161]")
    a("v_mov_b64 v[58:59], v[162:163]")
    a(f"s_mov_b32 s30, {f32bits(LOG2E):#x}")
    a("s_mov_b32 s31, s30")
    mfma(a, PD[0], WPH, F0, "0")
    mfma(a, PD[1], WPH + 4, F0 + 4, "0")
    a("s_nop 7")
    a("s_nop 2")
    H = (0, 1)
    M = [(10, 12, 11, 13), (14, 4, 15, 5)]
    for h in H:
        P = PD[h]
        a(f"v_max3_f32 v{M[h][0]}, v{P}, v{P+1}, v{P+2}")
        a(f"v_min3_f32 v{M[h][1]}, v{P}, v{P+1}, v{P+2}")
    for o in (3, 5):
        for h in H:
            P = PD[h]
            a(f"v_max3_f32 v{M[h][0]}, v{M[h][0]}, v{P+o}, v{P+o+1}")
            a(f"v_min3_f32 v{M[h][1]}, v{M[h][1]}, v{P+o}, v{P+o+1}")
    for h in H:
        P = PD[h]
        a(f"v_max_f32 v{M[h][0]}, v{M[h][0]}, v{P+7}")
        a(f"v_min_f32 v{M[h][1]}, v{M[h][1]}, v{P+7}")
    for h in H:
        a(f"v_mov_b32 v{M[h][2]}, v{M[h][0]}")
        a(f"v_mov_b32 v{M[h][3]}, v{M[h][1]}")
    a("s_nop 1")
    for h in H:
        a(f"v_permlane32_swap_b32 v{M[h][0]}, v{M[h][2]}")
        a(f"v_permlane32_swap_b32 v{M[h][1]}, v{M[h][3]}")
    a("s_nop 1")
    for h in H:
        a(f"v_max_f32 v{M[h][0]}, v{M[h][0]}, v{M[h][2]}")
        a(f"v_min_f32 v{M[h][1]}, v{M[h][1]}, v{M[h][3]}")
    for h in H:
        a(f"v_mul_f32 v{M[h][0]}, s30, v{M[h][0]}")
        a(f"v_mul_f32 v{M[h][1]}, s30, v{M[h][1]}")
    for i in range(4):
        for h in H:
            a(f"v_pk_fma_f32 {vr(T0[h]+2*i,2)}, {vr(PD[h]+2*i,2)}, s[30:31], {vr(M[h][0],2)} op_sel_hi:[1,1,0] neg_lo:[0,0,1] neg_hi:[0,0,1]")
            a(f"v_pk_fma_f32 {vr(T0[h]+8+2*i,2)}, {vr(PD[h]+2*i,2)}, s[30:31], {vr(M[h][1],2)} op_sel_hi:[1,1,0] neg_lo:[1,0,0] neg_hi:[1,0,0]")
    for i in range(16):
        for h in H:
            a(f"v_exp_f32 v{T0[h]+i}, v{T0[h]+i}")
    for h in H:
        for g in range(2):
            a(f"v_pk_add_f32 {vr(PD[h]+4*g,2)}, {vr(T0[h]+8*g,2)}, {vr(T0[h]+8*g+2,2)}")
            a(f"v_pk_add_f32 {vr(PD[h]+4*g+2,2)}, {vr(T0[h]+8*g+4,2)}, {vr(T0[h]+8*g+6,2)}")
    for h in H:
        for g in range(2):
            a(f"v_pk_add_f32 {vr(PD[h]+4*g,2)}, {vr(PD[h]+4*g,2)}, {vr(PD[h]+4*g+2,2)}")
    for h in H:
        a(f"v_add_f32 v{M[h][0]}, v{PD[h]}, v{PD[h]+1}")
        a(f"v_add_f32 v{M[h][1]}, v{PD[h]+4}, v{PD[h]+5}")
    for h in H:
        a(f"v_mov_b32 v{M[h][2]}, v{M[h][0]}")
        a(f"v_mov_b32 v{M[h][3]}, v{M[h][1]}")
    a("s_nop 1")
    for h in H:
        a(f"v_permlane32_swap_b32 v{M[h][0]}, v{M[h][2]}")
        a(f"v_permlane32_swap_b32 v{M[h][1]}, v{M[h][3]}")
    a("s_nop 1")
    for h in H:
        a(f"v_add_f32 v{M[h][0]}, v{M[h][0]}, v{M[h][2]}")
        a(f"v_add_f32 v{M[h][1]}, v{M[h][1]}, v{M[h][3]}")
    for h in H:
        a(f"v_rcp_f32 v{M[h][0]}, v{M[h][0]}")
        a(f"v_rcp_f32 v{M[h][1]}, v{M[h][1]}")
    a("s_nop 0")
    for i in range(4):
        for h in H:
            a(f"v_pk_mul_f32 {vr(T0[h]+2*i,2)}, {vr(T0[h]+2*i,2)}, {vr(M[h][0],2)} op_sel_hi:[1,0]")
            a(f"v_pk_mul_f32 {vr(T0[h]+8+2*i,2)}, {vr(T0[h]+8+2*i,2)}, {vr(M[h][1],2)} op_sel_hi:[1,0]")
    for i in range(8):
        for h in H:
            a(f"v_cvt_pk_bf16_f32 v{PD[h]+8+i}, v{T0[h]+2*i}, v{T0[h]+2*i+1}")
    a("s_cmp_eq_u32 s38, 0")
    a("s_cbranch_scc1 P1_featK")
    a("s_lshl_b32 s4, s29, 11")
    a(f"s_add_u32 s4, s4, {WS_PHIQ}")
    a(f"s_add_u32 s5, s4, {64*2048}")
    a("s_cmp_ge_u32 s12, 4")
    a("s_cbranch_scc1 P1_done")
    a("s_waitcnt vmcnt(0)")
    lds_add(a, 3, 6, C_Q, rtn=True)
    a("s_cmp_lg_u32 s3, 3")
    a("s_cbranch_scc1 P1_done")
    flag_write(a, 6, 39, SWS)
    a("s_branch P1_done")
    a.label("P1_featK")
    a("v_mov_b32 v15, 0x3f803f80")
    for h in range(2):
        mfma(a, TT[h], PD[h] + 8, IP, "0")
        mfma(a, TT[h], PD[h] + 12, IM, TT[h])
    for i in range(8):
        a(f"v_cndmask_b32 v{BV[0]+i}, v{VF+i}, v15, s[6:7]")
        a(f"v_cndmask_b32 v{BV[1]+i}, v15, v{VF+i}, s[6:7]")
    for h in range(2):
        for i in range(8):
            a(f"v_cvt_pk_bf16_f32 v{PD[h]+i}, v{TT[h]+2*i}, v{TT[h]+2*i+1}")
    a("s_nop 1")
    for h in range(2):
        mfma(a, KV[h], PD[h], BV[h], "0")
        mfma(a, KV[h], PD[h] + 4, BV[h] + 4, KV[h])
    a("s_nop 7")
    a("s_nop 1")
    for h in range(2):
        for q in range(4):
            a(f"ds_write_b128 v56, {vr(KV[h]+4*q,4)} offset:{h*4096 + q*1024}")
    a("s_waitcnt lgkmcnt(0)")
    lds_add(a, 3, 10, C_RED1)
    lds_poll(a, 3, 10, C_RED1, 8)
    for w in range(4):
        a(f"ds_read_b128 {vr(16+8*w,4)}, v57 offset:{w*8192}")
        a(f"ds_read_b128 {vr(20+8*w,4)}, v57 offset:{w*8192+1024}")
    a("s_waitcnt lgkmcnt(0)")
    lds_add(a, 3, 10, C_RED2)
    for i in range(4):
        a(f"v_pk_add_f32 {vr(16+2*i,2)}, {vr(16+2*i,2)}, {vr(24+2*i,2)}")
        a(f"v_pk_add_f32 {vr(32+2*i,2)}, {vr(32+2*i,2)}, {vr(40+2*i,2)}")
    for i in range(4):
        a(f"v_pk_add_f32 {vr(136+2*i,2)}, {vr(16+2*i,2)}, {vr(32+2*i,2)}")
    a.label("P1_done")
    a("v_mov_b64 v[144:145], v[58:59]")
    a("s_mov_b32 s63, s38")
    if STAMP:
        a("s_cmp_lt_u32 s12, 4")
        a("s_cbranch_scc1 ST_a")
        stamp(a, 2)
        a.label("ST_a")

    UNR = 8
    PRIO = [(40, 1), (56, 0)]
    QF = 4
    KF = [8, 12]
    VFa = [16, 24]
    P = 32
    O = 40
    CN = 56
    S = [72, 88]
    NC = 104
    a("v_mov_b32 v108, v3")
    a("v_mov_b32 v1, v9")
    a("s_and_b32 s38, s2, 7")
    a("s_lshl_b32 s13, s38, 2")
    a("s_lshr_b32 s3, s2, 3")
    a("s_and_b32 s36, s3, 3")
    a("s_lshr_b32 s37, s3, 2")
    a("s_add_u32 s13, s13, s36")
    a("s_mov_b32 s36, s13")
    a("s_lshr_b32 s14, s2, 5")
    a("s_lshl_b32 s15, s14, 3")
    a("s_add_u32 s15, s15, s12")
    a("s_lshl_b32 s16, s13, 6")
    a("s_add_u32 s16, s16, s15")
    a("v_and_b32 v2, 27, v0")
    a("v_cmp_eq_u32 s[24:25], 16, v2")
    a("v_mov_b32 v3, 0x3f803f80")
    a("s_mov_b32 s20, 0x0000ffff")
    a("s_mov_b32 s21, 0x0000ffff")
    a(f"v_cndmask_b32 v{VFa[0]}, 0, v3, s[24:25]")
    for i in range(1, 16):
        a(f"v_mov_b32 v{VFa[0]+i}, v{VFa[0]}")
    a("s_mov_b32 s22, 0")
    evmask = 0
    for t_ in ([64, 40, 56] if "noev" in EXP else [8, 16, 24, 64] + [p_[0] for p_ in PRIO]):
        evmask |= 1 << (t_ // 8)
    a(f"s_mov_b32 s29, {evmask:#x}")
    a("s_lshl_b32 s47, s12, 18")
    a("s_lshl_b32 s3, s36, 11")
    a("s_add_u32 s47, s47, s3")
    a(f"s_add_u32 s47, s47, {WS_O + 2*MB}")
    lds_poll(a, 108, NC, F_Q, 1, sleep=1)
    if STAMP:
        a("s_cmp_lt_u32 s12, 4")
        a("s_cbranch_scc1 ST_b")
        stamp(a, 3)
        a.label("ST_b")
    a("s_lshl_b32 s19, s16, 10")
    a(f"buffer_load_dwordx4 {vr(QF,4)}, v1, {sr(SWS,4)}, s19 offen sc1")
    lds_poll(a, 108, NC, C_S0, 4)
    if STAMP:
        a("s_cmp_lt_u32 s12, 4")
        a("s_cbranch_scc1 ST_c")
        stamp(a, 4)
        a.label("ST_c")
    a("s_setprio 3")
    a(f"ds_read_b128 {vr(KF[0],4)}, v1")
    a("s_waitcnt vmcnt(0) lgkmcnt(0)")
    stamp(a, 5)
    mfma(a, S[1], KF[0], QF, "0")
    a("s_nop 7")
    a("s_nop 3")
    X = S[1]
    a(f"v_max3_f32 v2, v{X}, v{X+1}, v{X+2}")
    for i in range(3, 15, 2):
        a(f"v_max3_f32 v2, v2, v{X+i}, v{X+i+1}")
    a(f"v_max_f32 v2, v2, v{X+15}")
    cross_half(a, "v_max_f32", 2, 3)
    if STAMP:
        a("s_waitcnt lgkmcnt(0)")
    a.label("P2_restart")
    a("v_mov_b32 v3, v1")
    a(f"ds_read_b128 {vr(KF[0],4)}, v3")
    a(f"ds_read_b128 {vr(KF[1],4)}, v3 offset:2048")
    a("s_mov_b64 exec, s[20:21]")
    a(f"ds_read_b128 {vr(VFa[0],4)}, v3 offset:1024")
    a(f"ds_read_b128 {vr(VFa[0]+4,4)}, v3 offset:1280")
    a("s_mov_b64 exec, -1")
    a(f"v_sub_f32 v{CN}, 0, v2")
    a(f"v_sub_f32 v{CN+1}, 0, v2")
    for i in range(2, 16, 2):
        a(f"v_mov_b64 {vr(CN+i,2)}, {vr(CN,2)}")
    for i in range(0, 16, 2):
        a(f"v_mov_b64 {vr(O+i,2)}, 0")
    a("s_waitcnt lgkmcnt(3)")
    mfma(a, S[0], KF[0], QF, CN)
    a("s_mov_b32 s23, 0")
    a("s_nop 7")
    a("s_nop 3")
    a.raw("    .p2align 3")
    a.label("P2_loop")
    for u in range(UNR):
        X, Y = S[u & 1], S[(u + 1) & 1]
        Kn = KF[(u + 1) & 1]
        Kp = KF[u & 1]
        Vc = VFa[u & 1]
        Vn = VFa[(u + 1) & 1]
        for i in range(4):
            a(f"v_exp_f32 v{X+i}, v{X+i}")
        a("s_waitcnt lgkmcnt(0)")
        mfma(a, Y, Kn, QF, CN)
        a(f"ds_read_b128 {vr(Kp,4)}, v3 offset:{(u+2)*2048}")
        for i in range(4, 8):
            a(f"v_exp_f32 v{X+i}, v{X+i}")
        for i in range(4):
            a(f"v_cvt_pk_bf16_f32 v{P+i}, v{X+2*i}, v{X+2*i+1}")
        for i in range(8, 10):
            a(f"v_exp_f32 v{X+i}, v{X+i}")
        mfma(a, O, Vc, P, O)
        a("s_mov_b64 exec, s[20:21]")
        a(f"ds_read_b128 {vr(Vn,4)}, v3 offset:{(u+1)*2048+1024}")
        a(f"ds_read_b128 {vr(Vn+4,4)}, v3 offset:{(u+1)*2048+1280}")
        a("s_mov_b64 exec, -1")
        for i in range(10, 16):
            a(f"v_exp_f32 v{X+i}, v{X+i}")
        for i in range(4, 8):
            a(f"v_cvt_pk_bf16_f32 v{P+i}, v{X+2*i}, v{X+2*i+1}")
        if u == UNR - 1:
            a(f"v_add_u32 v3, {UNR*2048}, v3")
            a("s_add_u32 s23, s23, 1")
            a("s_bitcmp1_b32 s29, s23")
        else:
            a("s_nop 1")
        mfma(a, O, Vc + 4, P + 4, O)
    a("s_cbranch_scc0 P2_loop")
    a("s_cmp_eq_u32 s23, 8")
    a("s_cbranch_scc1 P2_exit")
    a("s_cmp_lg_u32 s23, 1")
    a("s_cbranch_scc1 P2_e5")
    lds_poll(a, 108, 109, C_S1, 4)
    for i in range(4):
        a(f"v_mov_b32 v{NC+i}, -1")
    a("s_lshl_b32 s19, s16, 10")
    a(f"s_add_u32 s19, s19, {WS_O + 2*MB}")
    a(f"buffer_store_dwordx4 {vr(NC,4)}, v1, {sr(SWS,4)}, s19 offen sc1")
    a("s_cmp_eq_u32 s63, 0")
    a("s_cbranch_scc1 P2_stK")
    for h in range(2):
        a(f"buffer_store_dwordx4 {vr(PD[h]+8,4)}, v1, {sr(SWS,4)}, s{4+h} offen sc1")
        a(f"buffer_store_dwordx4 {vr(PD[h]+12,4)}, v1, {sr(SWS,4)}, s{4+h} offen offset:1024 sc1")
    a("s_branch P2_loop")
    a.label("P2_stK")
    for p in range(4):
        a(f"buffer_store_dwordx2 {vr(136+2*p,2)}, v144, {sr(SWS,4)}, 0 offen sc1")
        if p < 3:
            a("v_add_u32 v144, v144, v145")
    a("s_branch P2_loop")
    a.label("P2_e5")
    a("s_cmp_lg_u32 s23, 2")
    a("s_cbranch_scc1 P2_e6")
    a("s_setprio 2")
    a("s_waitcnt vmcnt(0)")
    lds_add(a, 108, NC, C_A, rtn=True)
    a("s_cmp_lg_u32 s3, 8")
    a("s_cbranch_scc1 P2_loop")
    flag_write(a, NC, 62, SWS)
    a("s_branch P2_loop")
    a.label("P2_e6")
    a("s_cmp_lg_u32 s23, 3")
    a("s_cbranch_scc1 P2_e7")
    lds_poll(a, 108, 109, C_S2, 4)
    if STAMP and "att" in EXP:
        stamp(a, 2)
    a("s_branch P2_loop")
    a.label("P2_e7")
    a("s_cmp_lg_u32 s23, 5")
    a("s_cbranch_scc1 P2_e8")
    a("s_setprio 1")
    lds_add(a, 108, 109, C_T40)
    a("s_branch P2_loop")
    a.label("P2_e8")
    a("s_cmp_ge_u32 s12, 4")
    a("s_cbranch_scc1 P2_loop")
    a("s_setprio 0")
    a("s_branch P2_loop")
    a.label("P2_exit")
    a("s_waitcnt lgkmcnt(0)")
    stamp(a, 1)
    a("s_nop 7")
    a("s_nop 1")
    a(f"v_mov_b32 v{P}, {f32bits(2.0**64):#x}")
    a(f"v_cmp_nlt_f32 s[24:25], v{O+8}, v{P}")
    a(f"v_mov_b32 v{P+1}, 0x7f800000")
    for i in range(8):
        a(f"v_cmp_nlt_f32 s[26:27], abs(v{O+i}), v{P+1}")
        a("s_or_b64 s[24:25], s[24:25], s[26:27]")
    a("s_cmp_eq_u64 s[24:25], 0")
    a("s_cbranch_scc1 P2_fin")
    a("s_lshl_b32 s17, s13, 17")
    a(f"s_add_u32 s17, s17, {WS_KVB}")
    a("s_mov_b32 s18, s17")
    a("v_mov_b32 v2, 0xff800000")
    a("s_mov_b32 s23, 0")
    a.label("FB_max")
    a(f"buffer_load_dwordx4 {vr(KF[0],4)}, v1, {sr(SWS,4)}, s18 offen sc1")
    a("s_add_u32 s18, s18, 2048")
    a("s_add_u32 s23, s23, 1")
    a("s_waitcnt vmcnt(0)")
    mfma(a, S[0], KF[0], QF, "0")
    a("s_nop 7")
    a("s_nop 3")
    for i in range(0, 16, 2):
        a(f"v_max3_f32 v2, v2, v{S[0]+i}, v{S[0]+i+1}")
    a("s_cmp_lt_u32 s23, 64")
    a("s_cbranch_scc1 FB_max")
    cross_half(a, "v_max_f32", 2, 3)
    a(f"v_sub_f32 v{CN}, 0, v2")
    a(f"v_sub_f32 v{CN+1}, 0, v2")
    for i in range(2, 16, 2):
        a(f"v_mov_b64 {vr(CN+i,2)}, {vr(CN,2)}")
    for i in range(0, 16, 2):
        a(f"v_mov_b64 {vr(O+i,2)}, 0")
    a("s_mov_b32 s23, 0")
    a.label("FB_main")
    a(f"buffer_load_dwordx4 {vr(KF[0],4)}, v1, {sr(SWS,4)}, s17 offen sc1")
    a("s_mov_b64 exec, s[20:21]")
    a(f"buffer_load_dwordx4 {vr(VFa[0],4)}, v1, {sr(SWS,4)}, s17 offen offset:1024 sc1")
    a(f"buffer_load_dwordx4 {vr(VFa[0]+4,4)}, v1, {sr(SWS,4)}, s17 offen offset:1280 sc1")
    a("s_mov_b64 exec, -1")
    a("s_add_u32 s17, s17, 2048")
    a("s_add_u32 s23, s23, 1")
    a("s_waitcnt vmcnt(0)")
    mfma(a, S[0], KF[0], QF, CN)
    a("s_nop 7")
    a("s_nop 3")
    for i in range(16):
        a(f"v_exp_f32 v{S[0]+i}, v{S[0]+i}")
    a("s_nop 0")
    for i in range(8):
        a(f"v_cvt_pk_bf16_f32 v{P+i}, v{S[0]+2*i}, v{S[0]+2*i+1}")
    a("s_nop 1")
    mfma(a, O, VFa[0], P, O)
    mfma(a, O, VFa[0] + 4, P + 4, O)
    a("s_cmp_lt_u32 s23, 64")
    a("s_cbranch_scc1 FB_main")
    a("s_nop 7")
    a("s_nop 3")
    a.label("P2_fin")
    OFB = 80
    WFB = 144
    a(f"v_rcp_f32 v2, v{O+8}")
    a("s_lshl_b32 s19, s16, 10")
    for i in range(4):
        a(f"v_pk_mul_f32 {vr(O+2*i,2)}, {vr(O+2*i,2)}, v[2:3] op_sel_hi:[1,0]")
    for i in range(4):
        a(f"v_cvt_pk_bf16_f32 v{160+i}, v{O+2*i}, v{O+2*i+1}")
    a(f"s_add_u32 s19, s19, {WS_O + 2*MB}")
    for i in range(4):
        a(f"v_min_u32 v{160+i}, 0xfffffffe, v{160+i}")
    a(f"buffer_store_dwordx4 v[160:163], v1, {sr(SWS,4)}, s19 offen sc1")
    if "noh" in EXP:
        a("s_branch K_flush" if STAMP else "s_branch K_end")
    a("s_setprio 3")
    a("v_mov_b32 v2, v108")
    lds_add(a, 2, 3, C_OB)
    lds_poll(a, 2, 3, F_3A, 1)
    a("s_lshl_b32 s3, s12, 13")
    a("s_add_u32 s3, s3, 65536")
    a("v_add_u32 v4, s3, v1")
    lds_poll(a, 2, 3, C_OB, 8)
    if int(os.environ.get("OWN", "1")):
        a("s_waitcnt vmcnt(0)")
    a("s_mov_b32 s31, 0")
    a("s_mov_b32 s30, 0xf")
    a.label("P3_round")
    for k in range(4):
        a(f"s_bitcmp1_b32 s30, {k}")
        a(f"s_cbranch_scc0 P3_s{k}")
        a(f"s_add_u32 s3, s47, {k*65536}")
        a(f"buffer_load_dwordx4 {vr(OFB+8*k,4)}, v1, {sr(SWS,4)}, s3 offen sc1")
        a(f"buffer_load_dwordx4 {vr(OFB+8*k+4,4)}, v1, {sr(SWS,4)}, s3 offen offset:1024 sc1")
        a.label(f"P3_s{k}")
    a("s_add_u32 s31, s31, 1")
    a("s_mov_b32 s30, 0")
    a("s_waitcnt vmcnt(0)")
    for k in range(4):
        b = OFB + 8 * k
        a(f"v_max3_u32 v5, v{b}, v{b+1}, v{b+2}")
        a(f"v_max3_u32 v6, v{b+3}, v{b+4}, v{b+5}")
        a(f"v_max3_u32 v5, v5, v{b+6}, v{b+7}")
        a("v_max_u32 v5, v5, v6")
        a("v_cmp_eq_u32 s[24:25], -1, v5")
        a("s_nop 0")
        a("s_cmp_lg_u64 s[24:25], 0")
        a(f"s_cselect_b32 s3, {1<<k}, 0")
        a("s_or_b32 s30, s30, s3")
    a("s_cmp_gt_u32 s31, 0x200000")
    a("s_cbranch_scc1 P3_out")
    a("s_cmp_eq_u32 s30, 0")
    a("s_cbranch_scc1 P3_out")
    a(f"s_sleep {int(os.environ.get('RS', '4'))}")
    a("s_branch P3_round")
    a.label("P3_out")
    if STAMP:
        stamp(a, 2)
        a(f"s_add_u32 s{STB+8}, s{STB}, s31")
    for k in range(8):
        a(f"ds_write_b128 v4, {vr(OFB+4*k,4)} offset:{k*1024}")
    a("s_lshl_b32 s3, 1, s12")
    a("v_mov_b32 v3, s3")
    a("s_waitcnt lgkmcnt(0)")
    a("s_mov_b64 exec, 1")
    a(f"ds_or_b32 v2, v3 offset:{M_RDY}")
    a("s_mov_b64 exec, -1")
    if STAMP:
        a.label("K_flush")
        a("s_waitcnt vmcnt(0)")
        stamp(a, 6)
        stamp_flush(a, 0, 8, 28, SWS)
    a.label("K_end")
    a.label("K_last")
    a("s_endpgm")
    return kd(kn, 168, 80)


def main():
    a = Asm()
    head = f"""; out = g*LinearAttn_hedgehog(x) + (1-g)*SoftmaxMHA(x), S=2048 D=512 H=32 Dh=16, bf16 in/out.
;   phase 2: softmax attention per (head, 256 queries); max-subtraction uses a seed max (first key tile) folded into
;            helper waves build the linear-attention output and its projection meanwhile
; @launch kernel={NAME}_kernel grid=(256,1,1) block=(768,1,1) lds=163840
.amdgcn_target "amdgcn-amd-amdhsa--gfx950"
.text
"""
    kds = [gen_fused(a)]
    out = head + a.text() + '.section .rodata,"a"\n' + "".join(kds)
    path = sys.argv[1] if len(sys.argv) > 1 else f"f11.s"
    open(path, "w").write(out)
    print("wrote", path, len(out))


if __name__ == "__main__":
    main()
```
